```python
import torch

def _softmax(x, axis=-1):
    return torch.softmax(x, dim=axis)
def _gelu(x):
    return torch.nn.functional.gelu(x, approximate="tanh")
def _silu(x):
    return torch.nn.functional.silu(x)
def _sigmoid(x):
    return torch.sigmoid(x)
def _layernorm(x, axis=-1, eps=1e-5):
    m = x.mean(dim=axis, keepdim=True)
    v = x.var(dim=axis, keepdim=True, unbiased=False)
    return (x - m) / torch.sqrt(v + eps)
def _scatter_add(tgt, idx, src, axis=0):
    return tgt.clone().index_add_(axis, idx, src)
def _segment_sum(src, seg, n):
    out = torch.zeros((n,) + src.shape[1:], dtype=src.dtype)
    return out.index_add_(0, seg, src)
def _pad(x, pw):
    flat = tuple(v for pair in reversed(pw) for v in pair)
    return torch.nn.functional.pad(x, flat)

kernel_name = 'gather_scatter__hybrid_graph_tf_nagphormer__graph'

def setup_inputs():

    _w = (lambda a: (lambda t: t.to(torch.bfloat16) if t.is_floating_point() else t)(torch.as_tensor(a)))
    N, deg, D = 50000, 16, 64
    E = N * deg
    src = (lambda lo, hi, *s: torch.randint(lo, hi, s))(0, N, E).to(torch.int64)
    dst = (lambda lo, hi, *s: torch.randint(lo, hi, s))(0, N, E).to(torch.int64)
    deg_cnt = torch.bincount(dst, minlength=N).to(float) + 1.0
    sc = 1.0 / D ** 0.5
    return {
        "x": _w((lambda *s: torch.randn(*s, dtype=torch.bfloat16) * 0.1)(N, D)),
        "src": _w(src),
        "dst": _w(dst),
        "deg_inv_sqrt": _w(1.0 / (lambda _x: torch.sqrt(torch.as_tensor(_x)))(deg_cnt)),
        "wq": _w((lambda *s: torch.randn(*s, dtype=torch.bfloat16) * 3.2)(D, D) * sc),
        "wk": _w((lambda *s: torch.randn(*s, dtype=torch.bfloat16) * 3.2)(D, D) * sc),
        "wv": _w((lambda *s: torch.randn(*s, dtype=torch.bfloat16) * 0.1)(D, D) * sc),
        "wo": _w((lambda *s: torch.randn(*s, dtype=torch.bfloat16) * 0.1)(D, D) * sc),
        "w_r": _w((lambda *s: torch.randn(*s, dtype=torch.bfloat16) * 0.1)(D)),
    }

def reference(x, src, dst, deg_inv_sqrt, wq, wk, wv, wo, w_r):
    N, D = x.shape[0], x.shape[1]
    K = 7
    h = x
    toks = [x]
    for _ in range(K):
        msg = h[src] * deg_inv_sqrt[src, None] * deg_inv_sqrt[dst, None]
        h = _segment_sum(msg, dst, N)
        toks.append(h)
    tok = torch.stack(toks, axis=1)
    t = _layernorm(tok, axis=-1)
    q   = torch.einsum('nkd,de->nke', t, wq)
    key = torch.einsum('nkd,de->nke', t, wk)
    v   = torch.einsum('nkd,de->nke', t, wv)
    scale = 1.0 / (D ** 0.5)
    attn = _softmax(torch.einsum('nkd,nld->nkl', q, key) * scale, axis=-1)
    o = torch.einsum('nkl,nld->nkd', attn, v)
    o = tok + torch.einsum('nkd,de->nke', o, wo)
    r = _layernorm(o, axis=-1)
    alpha = _softmax(torch.einsum('nkd,d->nk', r, w_r), axis=-1)
    return torch.einsum('nk,nkd->nd', alpha, o)
```

```python
N=50000; E=800000; BS=196; NCH=250; CHE=3200
MB=1<<20
TSTR=12*MB; TBYTES=10*MB
SMALL=84*MB
CHUNK=0; OFFS=4*MB; WFR=4*MB+512*1024; PARR=4*MB+768*1024; OVF=5*MB
SMALL_BYTES=10*MB
BARP=94*MB
DUMP=128*MB
CAP=40
OOBV=0x7ffff000
PLANE=BS*128
L_RHO=5*PLANE
L_W=L_RHO+BS*32
L_STAGE=L_W+8192
L_END=L_STAGE+13*1536
L_ND=L_END
LDS_BYTES=160*1024
L_HIST=PLANE
L_DH=L_HIST+1024
L_RED=L_DH+256
L_R0=L_RED+64
L_INFO=L_R0+256*8
L_INF2=L_INFO+208*16
L_CNT=L_INF2+208*4
L_ESTG=L_CNT+6656
L_LIST=L_ESTG+12800
L_WP=L_LIST+208*160
def line_of(n):
    import numpy as np
    n=np.asarray(n); t=n>>8; page=(t*205)>>13
    return n+128*t+1024*page+64*(((n>>6)&3)==3), ((n>>7)&1).astype(bool), page
```

```python
import sys
from lay import *
KNAME='gather_scatter__hybrid_graph_tf_nagphormer__graph_kernel'
class Asm:
    def __init__(s): s.l=[]; s.u=0
    def __call__(s,t):
        for x in t.strip('\n').split('\n'):
            x=x.strip()
            if x: s.l.append(x if x.endswith(':') else '    '+x)
    def lab(s,p='L'): s.u+=1; return f'{p}{s.u}'
    def text(s): return '\n'.join(s.l)+'\n'
DPP='row_mask:0xf bank_mask:0xf'
EPS='0x3727c5ac'
K=8; R=8

def line_calc(a,dst,n,t,u):
    a(f'''v_lshrrev_b32 v{t}, 8, v{n}
    v_mul_u32_u24 v{u}, 205, v{t}
    v_lshl_add_u32 v{dst}, v{t}, 7, v{n}
    v_lshrrev_b32 v{u}, 13, v{u}
    v_lshrrev_b32 v{t}, 1, v{n}
    v_lshl_add_u32 v{dst}, v{u}, 10, v{dst}
    v_bitop3_b32 v{t}, v{t}, v{n}, 64 bitop3:0x80
    v_add_u32 v{dst}, v{dst}, v{t}''')

def rho_calc(a,X,sm,sq,vs,sones):
    a(f'v_dot2_f32_bf16 v{sm}, v{X}, {sones}, 0\nv_dot2_f32_bf16 v{sq}, v{X}, v{X}, 0')
    for i in range(1,4):
        a(f'v_dot2_f32_bf16 v{sm}, v{X+i}, {sones}, v{sm}\nv_dot2_f32_bf16 v{sq}, v{X+i}, v{X+i}, v{sq}')
    a('s_nop 2')
    for m in ('quad_perm:[1,0,3,2]','quad_perm:[2,3,0,1]','row_half_mirror'):
        a(f'v_add_f32_dpp v{sm}, v{sm}, v{sm} {m} {DPP}\nv_add_f32_dpp v{sq}, v{sq}, v{sq} {m} {DPP}\ns_nop 0')
    a(f'''v_mul_f32 v{sm}, 0x3c800000, v{sm}
    v_mul_f32 v{sq}, 0x3c800000, v{sq}
    v_fma_f32 v{sq}, -v{sm}, v{sm}, v{sq}
    v_max_f32 v{sq}, 0, v{sq}''')
    if vs is not None: a(f'v_mul_f32 v{sq}, v{vs}, v{sq}\nv_mul_f32 v{sq}, v{vs}, v{sq}')
    a(f'v_add_f32 v{sq}, {EPS}, v{sq}\nv_rsq_f32 v{sm}, v{sq}\ns_nop 0')
    if vs is not None: a(f'v_mul_f32 v{sm}, v{vs}, v{sm}')

def baraddr(a,base):
    a(f'''s_and_b32 s64, s2, 7
    s_lshr_b32 s65, s64, 2
    s_xor_b32 s65, s65, s63
    s_lshl_b32 s65, s65, 13
    s_lshl_b32 s64, s64, 8
    s_add_u32 s64, s64, s65
    s_add_u32 s56, s64, {base}
    s_xor_b32 s65, s6, s63
    s_lshl_b32 s65, s65, 13
    s_and_b32 s64, s7, 7
    s_lshl_b32 s64, s64, 8
    s_add_u32 s64, s64, s65
    s_mov_b32 s75, {base+4096}
    s_add_u32 s57, s64, s75''')

def gbarrier(a,nm,first=False):
    a(f's_add_u32 s62, s62, 1\ns_barrier\ns_cmp_lg_u32 s4, 0\ns_cbranch_scc1 {nm}_w')
    a('s_mov_b64 exec, 1')
    if first:
        a(f'''v_mov_b32 v4, 0
        s_mov_b32 s64, 0
        {nm}_i:
        global_load_dword v5, v4, s[28:29] sc1
        s_waitcnt vmcnt(0)
        v_readfirstlane_b32 s63, v5
        s_cmp_lg_u32 s63, 0
        s_cbranch_scc1 {nm}_id
        s_sleep 2
        s_add_u32 s64, s64, 1
        s_cmp_lt_u32 s64, 0x20000
        s_cbranch_scc1 {nm}_i
        {nm}_id:
        s_mov_b32 s63, 0''')
        baraddr(a,BARP+16384)
    a(f'''v_mov_b32 v4, s56
    v_mov_b32 v5, 1
    global_atomic_add v6, v4, v5, s[30:31] sc0 sc1
    s_lshl_b32 s64, s62, 5
    s_sub_u32 s64, s64, 1
    v_mov_b32 v4, s57
    s_waitcnt vmcnt(0)
    v_readfirstlane_b32 s65, v6
    s_cmp_lg_u32 s65, s64
    s_cbranch_scc1 {nm}_np
    s_mov_b64 exec, 0xff
    v_mbcnt_lo_u32_b32 v6, -1, 0
    v_lshrrev_b32 v7, 2, v6
    v_xor_b32 v7, s63, v7
    v_lshlrev_b32 v7, 13, v7
    v_lshl_add_u32 v6, v6, 8, v7
    v_add_u32 v6, s75, v6
    v_mov_b32 v5, 1
    global_atomic_add v6, v5, s[30:31] sc1
    s_mov_b64 exec, 1
    {nm}_np:
    s_lshl_b32 s64, s62, 3
    s_mov_b32 s65, 0
    {nm}_p:
    global_load_dword v6, v4, s[30:31] sc1
    s_waitcnt vmcnt(0)
    v_cmp_gt_u32 vcc, s64, v6
    s_cbranch_vccz {nm}_pd
    s_add_u32 s65, s65, 1
    s_cmp_lt_u32 s65, 0x800000
    s_cbranch_scc1 {nm}_p
    {nm}_pd:
    s_mov_b64 exec, -1
    {nm}_w:
    s_barrier''')

def probe(a,nm,voff,res):
    a(f'v_add_u32 v{voff+1}, 0x2000, v{voff}\nv_mov_b32 v{voff+2}, 0\ns_mov_b32 s66, -1\ns_mov_b32 s67, -1\ns_mov_b32 s72, 0\n{nm}:')
    for s in range(2):
        a(f'''s_memtime s[68:69]
        s_waitcnt lgkmcnt(0)
        global_atomic_add v{voff+3}, v{voff+s}, v{voff+2}, s[30:31] sc0 sc1
        s_waitcnt vmcnt(0)
        s_memtime s[70:71]
        s_waitcnt lgkmcnt(0)
        s_sub_u32 s70, s70, s68
        s_min_u32 s{66+s}, s{66+s}, s70''')
    a(f's_add_u32 s72, s72, 1\ns_cmp_lt_u32 s72, 4\ns_cbranch_scc1 {nm}')
    a(f's_cmp_gt_u32 s66, s67\ns_cselect_b32 s{res}, 1, 0\ns_xor_b32 s{res}, s{res}, s6')

def gen(stop=None,dump=False,stamps=False):
    a=Asm()
    def stamp(i):
        if stamps: a(f's_memrealtime s[{80+2*i}:{81+2*i}]')
    a(f'''s_cmp_ge_u32 s2, 256
    s_cbranch_scc1 k_end
    s_load_dwordx16 s[8:23], s[0:1], 0
    s_load_dwordx8 s[24:31], s[0:1], 64
    v_lshrrev_b32 v1, 6, v0
    s_and_b32 s5, s2, 7
    v_readfirstlane_b32 s4, v1
    s_lshl_b32 s5, s5, 5
    s_lshr_b32 s3, s2, 3
    s_add_u32 s5, s5, s3
    s_getreg_b32 s7, hwreg(HW_REG_XCC_ID, 0, 4)
    s_lshr_b32 s6, s7, 2
    s_and_b32 s6, s6, 1
    s_mov_b32 s62, 0
    s_mul_i32 s54, s5, {BS}''')
    stamp(0)
    a(f'''v_lshrrev_b32 v2, 3, v0
    v_add_u32 v3, s54, v2
    v_add_u32 v4, 128, v3
    v_and_b32 v5, 7, v0
    v_lshlrev_b32 v5, 4, v5
    v_lshl_add_u32 v6, v3, 7, v5
    v_lshl_add_u32 v7, v4, 7, v5
    v_lshlrev_b32 v8, 1, v3
    v_lshlrev_b32 v9, 1, v4
    s_mul_i32 s55, s2, {CHE*4}
    v_lshlrev_b32 v10, 4, v0
    v_add_u32 v11, s55, v10
    s_mov_b32 s64, {N}
    v_cmp_gt_u32 s[48:49], s64, v3
    v_cmp_gt_u32 s[50:51], s64, v4
    s_movk_i32 s64, 544
    v_cmp_gt_u32 vcc, s64, v0
    s_and_b64 s[50:51], s[50:51], vcc
    s_movk_i32 s64, 800
    v_cmp_gt_u32 s[52:53], s64, v0
    s_cmp_ge_u32 s2, {NCH}
    s_cselect_b64 s[52:53], 0, s[52:53]
    s_waitcnt lgkmcnt(0)''')
    a(f'''s_mov_b64 exec, s[52:53]
    s_cbranch_execz p1_ne
    global_load_dwordx4 v[12:15], v11, s[12:13]
    global_load_dwordx4 v[16:19], v11, s[10:11]
    p1_ne:
    s_mov_b64 exec, s[48:49]
    s_cbranch_execz p1_nxa
    global_load_dwordx4 v[20:23], v6, s[8:9]
    global_load_ushort v28, v8, s[14:15]
    p1_nxa:
    s_mov_b64 exec, s[50:51]
    s_cbranch_execz p1_nxb
    global_load_dwordx4 v[24:27], v7, s[8:9]
    global_load_ushort v29, v9, s[14:15]
    p1_nxb:
    s_mov_b64 exec, -1
    s_add_u32 s30, s30, 0x1fffff
    s_addc_u32 s31, s31, 0
    s_and_b32 s30, s30, 0xffe00000
    s_mov_b32 s36, s30
    s_mov_b32 s37, s31
    s_mov_b32 s38, {TBYTES}
    s_mov_b32 s39, 0x20000
    s_add_u32 s40, s30, {SMALL}
    s_addc_u32 s41, s31, 0
    s_mov_b32 s42, {SMALL_BYTES}
    s_mov_b32 s43, 0x20000''')
    a(f'''v_mov_b32 v32, 0
    v_mov_b32 v33, 0
    v_mov_b32 v34, 0
    v_mov_b32 v35, 0
    v_mov_b32 v36, {OOBV}
    v_mov_b32 v37, {OOBV}
    v_mov_b32 v38, {OOBV}
    v_mov_b32 v39, {OOBV}
    ds_write_b128 v10, v[36:39] offset:{L_LIST}
    v_add_u32 v30, 16384, v10
    ds_write_b128 v30, v[36:39] offset:{L_LIST}
    v_cmp_gt_u32 vcc, 32, v0
    v_add_u32 v30, 32768, v10
    s_mov_b64 exec, vcc
    ds_write_b128 v30, v[36:39] offset:{L_LIST}
    s_mov_b64 exec, -1
    s_movk_i32 s64, 416
    v_cmp_gt_u32 vcc, s64, v0
    s_mov_b64 exec, vcc
    ds_write_b128 v10, v[32:35] offset:{L_CNT}
    s_mov_b64 exec, -1
    v_cmp_gt_u32 vcc, 64, v0
    s_mov_b64 exec, vcc
    ds_write_b128 v10, v[32:35] offset:{L_HIST}
    s_mov_b64 exec, -1
    v_cmp_gt_u32 vcc, 20, v0
    s_mov_b64 exec, vcc
    ds_write_b128 v10, v[32:35] offset:{L_DH}
    s_mov_b64 exec, -1
    v_mov_b32 v38, 0
    v_mov_b32 v39, 0
    s_movk_i32 s64, 208
    v_cmp_gt_u32 vcc, s64, v0
    s_mov_b64 exec, vcc
    ds_write_b128 v10, v[36:39] offset:{L_INFO}
    s_mov_b64 exec, -1
    s_waitcnt lgkmcnt(0)
    s_barrier
    s_cmp_ge_u32 s2, {NCH}
    s_cbranch_scc1 p1_aux''')
    a(f'''s_mov_b64 exec, s[52:53]
    s_cbranch_execz p1_e1
    s_movk_i32 s64, -{BS}
    s_waitcnt vmcnt(4)''')
    a.l.pop()
    a('''s_cmp_lt_u32 s4, 9
    s_cbranch_scc1 p1_w4
    s_waitcnt vmcnt(2)
    p1_w4:
    s_waitcnt vmcnt(4)''')
    for i in range(4):
        d=12+i; s=16+i; b=40+i; e=44+i
        a(f'''v_mul_u32_u24 v30, 85599, v{d}
        v_mul_u32_u24 v31, 10700, v{s}
        v_lshrrev_b32 v{b}, 24, v30
        v_lshrrev_b32 v31, 26, v31
        v_lshrrev_b32 v30, 5, v{b}
        v_mad_i32_i24 v{d}, v{b}, s64, v{d}
        v_sub_u32 v31, v31, v30
        v_lshlrev_b32 v{b}, 2, v{b}
        v_and_b32 v31, 7, v31
        v_mov_b32 v33, 1
        ds_add_rtn_u32 v{48+i}, v{b}, v33 offset:{L_HIST}
        v_lshl_add_u32 v{d}, v{d}, 3, v31''')
        line_calc(a,e,s,30,31)
        a(f'''v_and_b32 v30, 128, v{s}
        v_lshl_or_b32 v{e}, v30, 10, v{e}
        v_lshl_or_b32 v{e}, v{d}, 18, v{e}''')
    a('p1_e1:\ns_mov_b64 exec, -1\ns_waitcnt lgkmcnt(0)\ns_barrier')
    a(f'''s_cmp_lg_u32 s4, 0
    s_cbranch_scc1 p1_ns
    ds_read_b128 v[52:55], v10 offset:{L_HIST}
    s_waitcnt lgkmcnt(0)
    v_add_u32 v57, v52, v53
    v_add_u32 v58, v57, v54
    v_add_u32 v59, v58, v55
    v_mov_b32 v60, v59
    s_nop 1''')
    for m in ('row_shr:1','row_shr:2','row_shr:4','row_shr:8'):
        a(f'v_add_u32_dpp v60, v60, v60 {m} {DPP} bound_ctrl:0\ns_nop 1')
    a(f'''v_add_u32_dpp v60, v60, v60 row_bcast:15 row_mask:0xa bank_mask:0xf
    s_nop 1
    v_add_u32_dpp v60, v60, v60 row_bcast:31 row_mask:0xc bank_mask:0xf
    v_sub_u32 v60, v60, v59
    v_add_u32 v61, v60, v52
    v_add_u32 v62, v60, v57
    v_add_u32 v63, v60, v58
    ds_write_b128 v10, v[60:63] offset:{L_HIST}
    v_lshl_or_b32 v56, v52, 16, v60
    v_lshl_or_b32 v57, v53, 16, v61
    v_lshl_or_b32 v58, v54, 16, v62
    v_lshl_or_b32 v59, v55, 16, v63
    s_lshl_b32 s64, s2, 10
    s_add_u32 s64, s64, {OFFS}
    buffer_store_dwordx4 v[56:59], v10, s[40:43], s64 offen sc1
    p1_ns:''')
    def xconv():
        a('s_mov_b32 s66, 0x3f803f80')
        for (X,D,n,m,off) in ((20,28,3,48,0),(24,29,4,50,1024)):
            l=a.lab('xc')
            a(f's_mov_b64 exec, s[{m}:{m+1}]\ns_cbranch_execz {l}')
            a('s_waitcnt vmcnt(0)' if off==0 else '')
            a(f'v_lshlrev_b32 v{D}, 16, v{D}')
            for i in range(4):
                a(f'''v_lshlrev_b32 v64, 16, v{X+i}
                v_and_b32 v65, 0xffff0000, v{X+i}
                v_mul_f32 v64, v{D}, v64
                v_mul_f32 v65, v{D}, v65
                v_cvt_pk_bf16_f32 v{68+i}, v64, v65''')
            line_calc(a,66,n,64,65)
            a(f'''v_lshl_add_u32 v66, v66, 7, v5
            v_and_b32 v64, 128, v{n}
            v_add_u32 v67, 0x2000, v66
            v_cmp_ne_u32 vcc, 0, v64
            v_mov_b32 v65, {OOBV}
            buffer_store_dwordx4 v[68:71], v66, s[36:39], 0 offen sc1
            v_cndmask_b32 v67, v65, v67, vcc
            buffer_store_dwordx4 v[68:71], v67, s[36:39], 0 offen sc1''')
            rho_calc(a,X,64,65,None,'s66')
            a(f'''v_mov_b32 v65, v{D}
            v_lshlrev_b32 v66, 3, v2
            ds_write_b64 v66, v[64:65] offset:{L_R0+off}
            {l}:''')
        a('s_mov_b64 exec, -1')
    xconv()
    a(f'''s_waitcnt lgkmcnt(0)
    s_barrier
    s_mov_b64 exec, s[52:53]
    s_cbranch_execz p1_e2''')
    for i in range(4): a(f'ds_read_b32 v{40+i}, v{40+i} offset:{L_HIST}')
    for i in range(4):
        a(f's_waitcnt lgkmcnt({3-i})\nv_add_lshl_u32 v{40+i}, v{40+i}, v{48+i}, 2' if i==0 else f's_waitcnt lgkmcnt({3})\nv_add_lshl_u32 v{40+i}, v{40+i}, v{48+i}, 2')
        a(f'ds_write_b32 v{40+i}, v{44+i} offset:{L_ESTG}')
    a(f'''p1_e2:
    s_mov_b64 exec, -1
    s_waitcnt lgkmcnt(0)
    s_barrier
    s_mov_b64 exec, s[52:53]
    s_cbranch_execz p1_e3
    ds_read_b128 v[40:43], v10 offset:{L_ESTG}
    s_waitcnt lgkmcnt(0)
    buffer_store_dwordx4 v[40:43], v10, s[40:43], s55 offen sc1
    p1_e3:
    s_mov_b64 exec, -1
    s_branch p1_done''')
    a('p1_aux:')
    a(f'''s_cmp_ge_u32 s2, 253
    s_cbranch_scc1 p1_aw
    s_sub_u32 s64, s2, {NCH}
    s_lshl_b32 s64, s64, 4
    s_add_u32 s64, s64, s4
    s_lshr_b32 s65, s64, 2
    s_mul_i32 s65, s65, 3
    s_lshr_b32 s65, s65, 1
    s_and_b32 s74, s64, 3
    s_add_u32 s65, s65, s74
    s_and_b32 s74, s65, 1
    s_lshl_b32 s65, s65, 21
    s_lshl_b32 s73, s64, 7
    s_add_u32 s65, s65, s73
    s_add_u32 s65, s65, {254*8192}
    s_mov_b64 exec, 1
    v_mov_b32 v40, s65
    s_lshl_b32 s73, s64, 2
    s_add_u32 s73, s73, {PARR}''')
    probe(a,'pr_t',40,65)
    a(f'''s_xor_b32 s65, s65, s74
    v_mov_b32 v40, 0
    v_mov_b32 v41, s65
    buffer_store_dword v41, v40, s[40:43], s73 offen sc1
    s_mov_b64 exec, -1
    s_branch p1_ax
    p1_aw:
    s_cmp_eq_u32 s2, 255
    s_cbranch_scc0 p1_wp
    s_cmp_lg_u32 s4, 0
    s_cbranch_scc1 p1_ax
    v_and_b32 v40, 15, v0
    v_lshrrev_b32 v41, 4, v0
    v_lshlrev_b32 v40, 8, v40
    v_and_b32 v42, 1, v41
    v_lshrrev_b32 v41, 1, v41
    v_lshl_add_u32 v40, v42, 12, v40
    v_lshl_add_u32 v40, v41, 13, v40
    v_add_u32 v40, {BARP}, v40
    v_mov_b32 v41, 0
    global_store_dword v40, v41, s[30:31] sc1
    v_add_u32 v40, 0x4000, v40
    global_store_dword v40, v41, s[30:31] sc1
    s_waitcnt vmcnt(0)
    s_mov_b64 exec, 1
    v_mov_b32 v40, 0
    v_mov_b32 v41, 1
    global_store_dword v40, v41, s[28:29] sc1
    s_mov_b64 exec, -1
    s_branch p1_ax''')
    a(f'''p1_wp:
    v_and_b32 v40, 15, v0
    v_bfe_u32 v41, v0, 4, 2
    s_lshr_b32 s64, s4, 2
    s_and_b32 s65, s4, 3
    s_lshl_b32 s66, s64, 11
    v_lshlrev_b32 v42, 7, v40
    v_lshl_add_u32 v42, v41, 4, v42
    v_add_u32 v43, s66, v42
    s_cmp_eq_u32 s2, 253
    s_cbranch_scc0 p1_wv
    s_lshl_b32 s66, s65, 11
    v_add_u32 v44, s66, v42
    global_load_dwordx4 v[48:51], v43, s[16:17]
    global_load_dwordx4 v[52:55], v43, s[16:17] offset:64
    global_load_dwordx4 v[56:59], v44, s[18:19]
    global_load_dwordx4 v[60:63], v44, s[18:19] offset:64
    s_branch p1_wm
    p1_wv:
    global_load_dwordx4 v[48:51], v43, s[20:21]
    global_load_dwordx4 v[52:55], v43, s[20:21] offset:64
    s_lshl_b32 s66, s65, 5
    v_lshlrev_b32 v44, 10, v41
    v_lshl_add_u32 v44, v40, 1, v44
    v_add_u32 v44, s66, v44
    v_add_u32 v45, 4096, v44''')
    for s in range(2):
        for j in range(8):
            a(f'global_load_ushort v{72+8*s+j}, v{44+s}, s[22:23] offset:{128*j}')
    a('s_waitcnt vmcnt(0)')
    for i in range(8): a(f'v_lshl_or_b32 v{56+i}, v{73+2*i}, 16, v{72+2*i}')
    a(f'''p1_wm:
    v_mov_b32 v64, 0
    v_mov_b32 v65, 0
    v_mov_b32 v66, 0
    v_mov_b32 v67, 0
    s_nop 0
    s_waitcnt vmcnt(0)
    v_mfma_f32_16x16x32_bf16 v[64:67], v[48:51], v[56:59], v[64:67]
    v_mfma_f32_16x16x32_bf16 v[64:67], v[52:55], v[60:63], v[64:67]
    s_lshl_b32 s66, s64, 4
    v_lshl_add_u32 v46, v41, 2, s66
    v_mul_u32_u24 v46, 260, v46
    s_lshl_b32 s66, s65, 6
    v_lshl_add_u32 v46, v40, 2, v46
    v_add_u32 v46, s66, v46
    v_add_u32 v46, {L_WP-32768}, v46
    s_nop 4
    ds_write_b32 v46, v64 offset:32768
    ds_write_b32 v46, v65 offset:{32768+260}
    ds_write_b32 v46, v66 offset:{32768+520}
    ds_write_b32 v46, v67 offset:{32768+780}
    s_waitcnt lgkmcnt(0)
    s_barrier
    s_cmp_ge_u32 s4, 2
    s_cbranch_scc1 p1_ws
    v_and_b32 v46, 63, v0
    s_cmp_eq_u32 s4, 0
    s_cselect_b32 s66, 4, 260
    s_cselect_b32 s67, 260, 4
    v_mul_u32_u24 v46, s66, v46
    v_add_u32 v46, {L_WP}, v46
    v_mov_b32 v47, 0
    s_mov_b32 s68, 0
    p1_wl:
    ds_read_b32 v48, v46
    v_add_u32 v46, s67, v46
    s_add_u32 s68, s68, 1
    s_waitcnt lgkmcnt(0)
    v_add_f32 v47, v47, v48
    s_cmp_lt_u32 s68, 64
    s_cbranch_scc1 p1_wl
    v_mul_f32 v47, 0x3c800000, v47
    v_lshlrev_b32 v46, 2, v0
    v_add_u32 v46, {L_WP+64*260-32768}, v46
    ds_write_b32 v46, v47 offset:32768
    v_mov_b32 v48, v47
    s_nop 1''')
    for m in ('row_shr:1','row_shr:2','row_shr:4','row_shr:8'):
        a(f'v_add_f32_dpp v48, v48, v48 {m} {DPP} bound_ctrl:0\ns_nop 1')
    a(f'''v_add_f32_dpp v48, v48, v48 row_bcast:15 row_mask:0xa bank_mask:0xf
    s_nop 1
    v_add_f32_dpp v48, v48, v48 row_bcast:31 row_mask:0xc bank_mask:0xf
    v_mul_f32 v48, 0x3c800000, v48
    v_mov_b32 v46, {L_WP+64*260+512}
    s_lshl_b64 exec, 1, 63
    ds_write_b32 v46, v48
    s_mov_b64 exec, -1
    p1_ws:
    s_waitcnt lgkmcnt(0)
    s_barrier
    v_bfe_u32 v40, v0, 1, 4
    v_bfe_u32 v41, v0, 5, 2
    v_bfe_u32 v42, v0, 7, 1
    v_bfe_u32 v43, v0, 8, 2
    v_and_b32 v44, 1, v0
    v_lshrrev_b32 v45, 2, v40
    v_lshlrev_b32 v45, 3, v45
    v_and_b32 v46, 3, v40
    v_add_u32 v45, v45, v46
    v_and_b32 v46, 1, v43
    v_lshl_add_u32 v45, v46, 2, v45
    v_lshrrev_b32 v46, 1, v43
    v_lshl_add_u32 v45, v46, 5, v45
    v_lshlrev_b32 v46, 5, v42
    v_lshl_add_u32 v46, v41, 3, v46
    v_lshl_add_u32 v46, v44, 2, v46
    v_mul_u32_u24 v47, 260, v46
    v_lshl_add_u32 v47, v45, 2, v47
    v_add_u32 v47, {L_WP-32768}, v47
    v_lshlrev_b32 v45, 2, v45
    v_add_u32 v45, {L_WP+64*260-32768}, v45
    v_lshlrev_b32 v46, 2, v46
    v_add_u32 v46, {L_WP+64*260+256-32768}, v46
    v_mov_b32 v60, {L_WP+64*260+512}
    ds_read_b32 v48, v47 offset:32768
    ds_read_b32 v49, v47 offset:{32768+260}
    ds_read_b32 v50, v47 offset:{32768+520}
    ds_read_b32 v51, v47 offset:{32768+780}
    ds_read_b32 v52, v45 offset:32768
    ds_read_b128 v[56:59], v46 offset:32768
    ds_read_b32 v53, v60
    s_waitcnt lgkmcnt(0)
    s_cmp_eq_u32 s2, 253
    s_cbranch_scc0 p1_wc
    v_sub_f32 v52, v52, v53
    v_sub_f32 v48, v48, v56
    v_sub_f32 v49, v49, v57
    v_sub_f32 v50, v50, v58
    v_sub_f32 v51, v51, v59
    p1_wc:
    v_sub_f32 v48, v48, v52
    v_sub_f32 v49, v49, v52
    v_sub_f32 v50, v50, v52
    v_sub_f32 v51, v51, v52
    v_cvt_pk_bf16_f32 v48, v48, v49
    v_cvt_pk_bf16_f32 v49, v50, v51
    s_sub_u32 s66, s2, 253
    s_lshl_b32 s66, s66, 13
    s_add_u32 s66, s66, {WFR}
    v_lshlrev_b32 v46, 3, v0
    buffer_store_dwordx2 v[48:49], v46, s[40:43], s66 offen sc1
    p1_ax:''')
    xconv()
    a('p1_done:\ns_waitcnt vmcnt(0) lgkmcnt(0)')
    stamp(1)
    gbarrier(a,'gb0',first=True)
    stamp(2)
    if stop=='p1': a('s_endpgm')
    a(f'''v_lshrrev_b32 v2, 2, v0
    v_and_b32 v3, 3, v0
    v_lshlrev_b32 v4, 10, v2
    s_lshl_b32 s64, s5, 2
    s_add_u32 s64, s64, {OFFS}
    s_movk_i32 s65, {NCH}
    v_cmp_gt_u32 vcc, s65, v2
    v_mov_b32 v6, {OOBV}
    v_and_b32 v7, 63, v0
    v_cndmask_b32 v4, v6, v4, vcc
    v_lshlrev_b32 v8, 2, v7
    s_mov_b32 s65, {PARR}
    buffer_load_dword v5, v4, s[40:43], s64 offen sc1
    buffer_load_dword v9, v8, s[40:43], s65 offen sc1
    v_lshlrev_b32 v72, 4, v0
    v_and_b32 v72, 0x1fff, v72
    s_mov_b32 s65, {WFR+8192}
    buffer_load_dwordx4 v[76:79], v72, s[40:43], s65 offen sc1
    v_mul_u32_u24 v4, {CHE*4}, v2
    v_lshl_add_u32 v4, v3, 4, v4
    v_lshlrev_b32 v3, 2, v3
    v_add_u32 v72, {L_W}, v72
    s_waitcnt vmcnt(2)
    v_and_b32 v10, 0xffff, v5
    v_lshrrev_b32 v11, 16, v5
    v_lshl_add_u32 v4, v10, 2, v4
    v_cndmask_b32 v4, v6, v4, vcc
    buffer_load_dwordx4 v[12:15], v4, s[40:43], 0 offen sc1
    buffer_load_dwordx4 v[16:19], v4, s[40:43], 0 offen offset:64 sc1
    v_sub_u32 v20, v11, v3
    s_waitcnt vmcnt(2)
    ds_write_b128 v72, v[76:79]
    v_and_b32 v9, 1, v9
    v_cmp_eq_u32 s[60:61], 1, v9
    v_mov_b32 v21, 1
    s_nop 1
    s_and_b32 s61, s61, 0xffff
    s_bcnt1_i32_b64 s60, s[60:61]
    s_cmp_ge_u32 s60, 24
    s_cselect_b32 s61, 1, 0
    s_xor_b32 s63, s61, 1
    s_xor_b32 s58, s61, s6
    s_cmp_eq_u32 s58, 0
    s_cselect_b32 s58, 10, 21
    s_mov_b32 s62, 0''')
    baraddr(a,BARP)
    def each_entry(body,regs,base):
        for r,e in enumerate(regs):
            l=a.lab('ee')
            a(f'v_cmp_lt_i32 vcc, {base[r]}, v20\ns_mov_b64 exec, vcc\ns_cbranch_execz {l}')
            body(e)
            a(f'{l}:')
        a('s_mov_b64 exec, -1')
    regs=list(range(12,20)); base=[0,1,2,3,16,17,18,19]
    def p1body(e):
        a(f'v_lshrrev_b32 v22, 16, v{e}\nv_and_b32 v22, 0x1ffc, v22\nds_add_u32 v22, v21 offset:{L_CNT}')
    a('s_waitcnt vmcnt(0)')
    each_entry(p1body,regs,base)
    def longseg(nm,body):
        a(f'''v_cmp_lt_i32 vcc, 32, v20
        s_cbranch_vccz {nm}_d
        v_mov_b32 v23, v20
        v_mov_b32 v24, v4
        {nm}_l:
        v_subrev_u32 v20, 32, v20
        v_add_u32 v24, 128, v24
        v_cmp_lt_i32 vcc, 0, v20
        s_cbranch_vccz {nm}_r
        buffer_load_dwordx4 v[28:31], v24, s[40:43], 0 offen sc1
        buffer_load_dwordx4 v[32:35], v24, s[40:43], 0 offen offset:64 sc1
        s_waitcnt vmcnt(0)''')
        each_entry(body,list(range(28,36)),base)
        a(f'''s_branch {nm}_l
        {nm}_r:
        v_mov_b32 v20, v23
        {nm}_d:''')
    longseg('ls1',p1body)
    a('s_waitcnt lgkmcnt(0)\ns_barrier')
    a(f'''v_add_u32 v36, s54, v0
    s_mov_b32 s64, {N}
    v_cmp_gt_u32 vcc, s64, v36
    s_movk_i32 s64, {BS}
    v_cmp_gt_u32 s[64:65], s64, v0
    s_and_b64 s[66:67], vcc, s[64:65]
    s_mov_b64 exec, s[66:67]
    s_cbranch_execz p2_n1
    v_lshlrev_b32 v37, 5, v0
    v_lshlrev_b32 v38, 3, v0
    ds_read_b128 v[40:43], v37 offset:{L_CNT}
    ds_read_b128 v[44:47], v37 offset:{L_CNT+16}
    ds_read_b64 v[58:59], v38 offset:{L_R0}
    s_waitcnt lgkmcnt(1)
    v_mov_b32 v48, 0
    v_mov_b32 v49, v40
    v_add_u32 v50, v49, v41
    v_add_u32 v51, v50, v42
    v_add_u32 v52, v51, v43
    v_add_u32 v53, v52, v44
    v_add_u32 v54, v53, v45
    v_add_u32 v55, v54, v46
    v_add_u32 v56, v55, v47
    v_min_u32 v57, 63, v56
    v_sub_u32 v57, 63, v57
    v_lshlrev_b32 v57, 2, v57
    ds_add_rtn_u32 v60, v57, v21 offset:{L_DH}
    p2_n1:
    s_mov_b64 exec, -1
    s_waitcnt lgkmcnt(0)
    s_barrier
    s_cmp_ge_u32 s4, 4
    s_cbranch_scc1 p2_n2
    ds_read_b32 v61, v8 offset:{L_DH}
    s_waitcnt lgkmcnt(0)
    v_mov_b32 v62, v61
    s_nop 1''')
    for m in ('row_shr:1','row_shr:2','row_shr:4','row_shr:8'):
        a(f'v_add_u32_dpp v62, v62, v62 {m} {DPP} bound_ctrl:0\ns_nop 1')
    a(f'''v_add_u32_dpp v62, v62, v62 row_bcast:15 row_mask:0xa bank_mask:0xf
    s_nop 1
    v_add_u32_dpp v62, v62, v62 row_bcast:31 row_mask:0xc bank_mask:0xf
    v_sub_u32 v62, v62, v61
    ds_bpermute_b32 v62, v57, v62
    s_mov_b64 exec, s[66:67]
    s_cbranch_execz p2_n2
    s_waitcnt lgkmcnt(0)
    v_add_u32 v60, v60, v62
    v_lshlrev_b32 v61, 20, v60''')
    for j in range(8): a(f'v_or_b32 v{48+j}, v61, v{48+j}')
    a(f'''ds_write_b128 v37, v[48:51] offset:{L_CNT}
    ds_write_b128 v37, v[52:55] offset:{L_CNT+16}''')
    line_calc(a,64,36,62,63)
    a(f'''v_lshlrev_b32 v64, 7, v64
    v_and_b32 v62, 128, v36
    v_add_u32 v65, 0x2000, v64
    v_cmp_ne_u32 vcc, 0, v62
    v_mov_b32 v66, v59
    v_or_b32 v66, v66, v0
    v_cndmask_b32 v65, v6, v65, vcc
    v_mov_b32 v67, v56
    v_lshlrev_b32 v62, 4, v60
    ds_write_b128 v62, v[64:67] offset:{L_INFO}
    v_lshlrev_b32 v62, 5, v60
    v_add_u32 v62, {L_RHO-65024}, v62
    ds_write_b32 v62, v58 offset:65024
    v_cmp_lt_u32 vcc, {CAP}, v56
    s_and_b64 exec, exec, vcc
    s_cbranch_execz p2_n2
    v_subrev_u32 v56, {CAP}, v56
    v_mov_b32 v62, {L_RED}
    ds_add_rtn_u32 v63, v62, v56
    v_lshlrev_b32 v62, 2, v60
    s_waitcnt lgkmcnt(0)
    ds_write_b32 v62, v63 offset:{L_INF2}
    p2_n2:
    s_mov_b64 exec, -1
    s_waitcnt lgkmcnt(0)
    s_barrier''')
    a(f'''v_mov_b32 v62, {L_RED}
    ds_read_b32 v63, v62
    s_waitcnt lgkmcnt(0)
    v_readfirstlane_b32 s59, v63
    s_cmp_eq_u32 s59, 0
    s_cbranch_scc1 p2_no
    v_cmp_eq_u32 vcc, 0, v3
    s_mov_b64 exec, vcc
    ds_add_u32 v62, v10 offset:4
    s_mov_b64 exec, -1
    s_waitcnt lgkmcnt(0)
    s_barrier
    ds_read_b32 v63, v62 offset:4
    s_waitcnt lgkmcnt(0)
    v_readfirstlane_b32 s59, v63
    s_lshl_b32 s59, s59, 2
    s_add_u32 s59, s59, {OVF}
    p2_no:
    s_movk_i32 s64, 160
    s_mov_b32 s65, 0xfffff''')
    def p2body(e):
        l=a.lab('ov'); l2=a.lab('ov')
        a(f'''v_lshrrev_b32 v22, 16, v{e}
        v_and_b32 v22, 0x1ffc, v22
        ds_add_rtn_u32 v25, v22, v21 offset:{L_CNT}
        v_bfe_u32 v26, v{e}, 14, 3
        v_bfe_u32 v26, s58, v26, 1
        v_lshrrev_b32 v27, 17, v{e}
        v_and_b32 v26, v26, v27
        v_and_b32 v27, 0x1ffff, v{e}
        v_lshl_add_u32 v27, v26, 6, v27
        v_lshlrev_b32 v27, 7, v27
        s_waitcnt lgkmcnt(0)
        v_lshrrev_b32 v26, 20, v25
        v_and_b32 v25, s65, v25
        v_cmp_le_u32 vcc, {CAP}, v25
        v_mul_u32_u24 v22, s64, v26
        v_lshl_add_u32 v22, v25, 2, v22
        s_cbranch_vccnz {l}
        ds_write_b32 v22, v27 offset:{L_LIST}
        {l2}:''')
        ovh.append((l,l2))
    ovh=[]
    each_entry(p2body,regs,base)
    longseg('ls2',p2body)
    a('s_waitcnt vmcnt(0) lgkmcnt(0)\ns_barrier')
    a('s_cmp_ge_u32 s4, 13\ns_cbranch_scc1 k_end')
    a(f'''v_mov_b32 v0, v7
    v_and_b32 v1, 7, v0
    v_lshlrev_b32 v1, 4, v1
    v_lshrrev_b32 v4, 3, v0
    s_lshl_b32 s64, s4, 4
    v_add_u32 v4, s64, v4
    v_and_b32 v5, 3, v0
    v_mul_u32_u24 v6, 160, v4
    v_lshl_add_u32 v7, v5, 3, v6
    v_lshl_add_u32 v6, v5, 4, v6
    v_lshlrev_b32 v92, 4, v4''')
    for s in range(2):
        o=16+10*s
        a(f'''ds_read_b128 v[{o}:{o+3}], v6 offset:{L_LIST+1280*s}
        ds_read_b128 v[{o+4}:{o+7}], v6 offset:{L_LIST+1280*s+64}
        ds_read_b64 v[{o+8}:{o+9}], v7 offset:{L_LIST+1280*s+128}
        ds_read_b128 v[{52+4*s}:{55+4*s}], v92 offset:{L_INFO+128*s}''')
    a(f'''v_lshlrev_b32 v92, 2, v4
    ds_read_b32 v98, v92 offset:{L_INF2}
    ds_read_b32 v99, v92 offset:{L_INF2+32}
    v_mov_b32 v6, 0x3f80
    v_mov_b32 v7, 0x3f800000
    v_cmp_eq_u32 vcc, 0, v5
    v_cmp_eq_u32 s[64:65], 1, v5
    v_cmp_eq_u32 s[66:67], 2, v5
    v_cmp_eq_u32 s[68:69], 3, v5
    v_cndmask_b32 v2, 0, v6, vcc
    v_cndmask_b32 v3, 0, v6, s[66:67]
    v_cndmask_b32 v2, v2, v7, s[64:65]
    v_cndmask_b32 v3, v3, v7, s[68:69]
    s_movk_i32 s64, {BS}
    v_cmp_gt_u32 s[48:49], s64, v4
    s_movk_i32 s64, {BS-8}
    v_cmp_gt_u32 s[50:51], s64, v4
    v_lshlrev_b32 v92, 7, v4
    v_lshlrev_b32 v93, 5, v4
    v_add_u32 v93, {L_RHO}, v93
    s_waitcnt lgkmcnt(0)''')
    for s in range(2):
        i=52+4*s
        a(f'''v_add_u32 v{8+s}, v{i}, v1
        v_add_u32 v{10+s}, v{i+1}, v1
        v_and_b32 v4, 0xffff0000, v{i+2}
        v_mul_f32 v{12+s}, v4, v4
        v_cmp_eq_f32 vcc, 0, v4
        v_and_b32 v5, 0xffff, v{i+2}
        v_add_u32 v5, s54, v5
        v_cndmask_b32 v{100+s}, v4, 1.0, vcc
        v_lshl_add_u32 v{94+s}, v5, 7, v1
        v_cmp_gt_u32 vcc, s38, v{i}
        v_rcp_f32 v{14+s}, v{100+s}
        s_nop 0
        v_cndmask_b32 v{94+s}, v{i}, v{94+s}, vcc
        v_mov_b32 v{96+s}, v{i+3}''')
    a(f'''v_max_u32 v4, v96, v97
    s_nop 1
    v_max_u32_dpp v4, v4, v4 row_shr:8 {DPP} bound_ctrl:0
    s_nop 1
    v_max_u32_dpp v4, v4, v4 row_bcast:15 row_mask:0xa bank_mask:0xf
    s_nop 1
    v_max_u32_dpp v4, v4, v4 row_bcast:31 row_mask:0xc bank_mask:0xf
    s_nop 1
    v_readlane_b32 s53, v4, 63
    s_max_u32 s52, s53, {K//2}
    s_min_u32 s52, s52, {CAP}''')
    stamp(3)
    if dump:
        a(f's_lshl_b32 s64, s2, 4\ns_add_u32 s64, s64, s4\ns_mul_i32 s64, s64, {40*256}\ns_add_u32 s64, s64, {DUMP}\nv_lshlrev_b32 v4, 2, v0\nv_add_u32 v4, s64, v4')
        for i,r in enumerate(list(range(8,36))+list(range(94,102))):
            a(f'global_store_dword v4, v{r}, s[30:31]\nv_add_u32 v4, 256, v4')
        a('v_mov_b32 v5, s53\nglobal_store_dword v4, v5, s[30:31]\nv_add_u32 v4, 256, v4\nv_mov_b32 v5, s60\nglobal_store_dword v4, v5, s[30:31]\nv_add_u32 v4, 256, v4\nds_read_b32 v5, v93\ns_waitcnt lgkmcnt(0)\nglobal_store_dword v4, v5, s[30:31]')

    if stop=='p2': a('s_endpgm')
    for s_ in range(2):
        l=a.lab('nd')
        a(f"""s_mov_b64 exec, s[{48+2*s_}:{49+2*s_}]
        s_cbranch_execz {l}
        v_lshrrev_b32 v4, 3, v92
        v_add_u32 v4, {L_ND+128*s_}, v4
        v_mov_b32 v52, v{100+s_}
        v_mov_b32 v53, v{14+s_}
        v_sub_u32 v54, v{94+s_}, v1
        v_mov_b32 v55, 0
        ds_write_b128 v4, v[52:55]
        {l}:""")
    a(f"""s_mov_b64 exec, -1
    s_mov_b32 s32, s36
    s_mov_b32 s33, s37
    s_mov_b32 s34, s38
    s_mov_b32 s35, 0x20000
    s_add_u32 s36, s36, {TSTR}
    s_addc_u32 s37, s37, 0
    s_mov_b32 s44, s8
    s_mov_b32 s45, s9
    s_mov_b32 s46, {N*128}
    s_mov_b32 s47, 0x20000
    s_mov_b32 s76, 0x3f803f80
    s_mov_b32 s3, 1
    h_top:""")
    acc=[36,44]; d0=52; off=[16,26]; va=[4,5,6,7]
    def mf(s_,sl):
        a(f'v_mfma_f32_4x4x4_16b_bf16 v[{acc[s_]}:{acc[s_]+3}], v[2:3], v[{sl}:{sl+1}], v[{acc[s_]}:{acc[s_]+3}]')
        a(f'v_mfma_f32_4x4x4_16b_bf16 v[{acc[s_]+4}:{acc[s_]+7}], v[2:3], v[{sl+2}:{sl+3}], v[{acc[s_]+4}:{acc[s_]+7}]')
    a("""s_cmp_lg_u32 s3, 7
    s_cbranch_scc1 h_nx
    buffer_load_dwordx4 v[106:109], v94, s[44:47], 0 offen
    buffer_load_dwordx4 v[110:113], v95, s[44:47], 0 offen
    h_nx:""")
    for i in range(16): a(f'v_mov_b32 v{36+i}, 0')
    a('s_mov_b32 s77, s52\ns_mov_b32 s78, 0')
    handlers=[]
    for u in range(CAP//2):
        j=2*u; t0=4*u
        if j<32: q=(j>>2)&3; rb=4*(j>>4)+(j&3)
        else: q=(j-32)>>1; rb=8
        if t0>=K: a(f's_cmp_ge_u32 {j}, s52\ns_cbranch_scc1 h_drain')
        if u>0:
            h=f'h_ev{u}'; a(f's_sub_u32 s77, s77, {2*R}\ns_cbranch_scc1 {h}\n{h}_r:'); handlers.append(h)
        for hh in range(2):
            for s_ in range(2):
                a(f'v_add_u32_dpp v{va[hh*2+s_]}, v{off[s_]+rb+hh}, v1 quad_perm:[{q},{q},{q},{q}] {DPP}')
        if t0>=K:
            a(f's_waitcnt vmcnt({K-4})')
            for hh in range(2):
                for s_ in range(2): mf(s_,d0+4*((t0+hh*2+s_)%K))
        for hh in range(2):
            for s_ in range(2):
                sl=d0+4*((t0+hh*2+s_)%K)
                a(f'buffer_load_dwordx4 v[{sl}:{sl+3}], v{va[hh*2+s_]}, s[32:35], 0 offen sc1')
    MF=[16,20,24,28,32,116,120,124]
    a(f"""h_drain:
    s_cmp_lg_u32 s3, 7
    s_cbranch_scc1 h_rb
    s_cmp_gt_u32 s53, {CAP}
    v_lshlrev_b32 v4, 4, v0
    s_mov_b32 s64, {WFR}""")
    for f in range(8):
        if f==4: a(f's_add_u32 s64, s64, 4096')
        a(f'buffer_load_dwordx4 v[{MF[f]}:{MF[f]+3}], v4, s[40:43], s64 offen offset:{1024*(f&3)} sc1')
    a(f"""h_rb:
    s_cmp_ge_u32 s78, {R-1}
    s_cbranch_scc1 h_rbd
    s_barrier
    s_add_u32 s78, s78, 1
    s_branch h_rb
    h_rbd:
    s_waitcnt vmcnt(0)""")
    for t in range(K): mf(t%2,d0+4*t)
    a(f's_cmp_gt_u32 s53, {CAP}\ns_cbranch_scc1 h_slow\nh_slow_r:\ns_nop 4')
    for s_ in range(2):
        for i in range(4): a(f'v_pk_mul_f32 v[{acc[s_]+2*i}:{acc[s_]+2*i+1}], v[{acc[s_]+2*i}:{acc[s_]+2*i+1}], v[12:13] op_sel:[0,{s_}] op_sel_hi:[1,{s_}]')
        for i in range(4): a(f'v_cvt_pk_bf16_f32 v{acc[s_]+i}, v{acc[s_]+2*i}, v{acc[s_]+2*i+1}')
    a('s_cmp_eq_u32 s3, 7\ns_cbranch_scc1 h_ns')
    for s_ in range(2):
        a(f'buffer_store_dwordx4 v[{acc[s_]}:{acc[s_]+3}], v{8+s_}, s[36:39], 0 offen sc1')
        a(f'buffer_store_dwordx4 v[{acc[s_]}:{acc[s_]+3}], v{10+s_}, s[36:39], 0 offen sc1')
    a(f"""h_ns:
    s_lshl_b32 s64, s3, 2
    s_lshl_b32 s65, s3, 4
    s_sub_u32 s66, s3, 1
    s_mul_i32 s66, s66, {PLANE}
    v_add_u32 v52, s64, v93
    v_xor_b32 v53, s65, v1
    v_add3_u32 v53, v53, v92, s66""")
    for s_ in range(2):
        l=a.lab('ep'); l2=a.lab('ep')
        rho_calc(a,acc[s_],54,55,14+s_,'s76')
        a(f"""s_mov_b64 exec, s[{48+2*s_}:{49+2*s_}]
        s_cbranch_execz {l}
        ds_write_b32 v52, v54 offset:{256*s_}
        s_cmp_gt_u32 s3, 5
        s_cbranch_scc1 {l}
        ds_write_b128 v53, v[{acc[s_]}:{acc[s_]+3}] offset:{1024*s_}
        {l}:
        s_mov_b64 exec, -1""")
    a('s_cmp_eq_u32 s3, 7\ns_cbranch_scc1 f_top\ns_cmp_lg_u32 s3, 6\ns_cbranch_scc1 h_n6')
    for s_ in range(2):
        for i in range(4): a(f'v_mov_b32 v{84+4*s_+i}, v{acc[s_]+i}')
    a('h_n6:\ns_waitcnt vmcnt(0)')
    gbarrier(a,'gb1')
    a(f"""s_mov_b32 s32, s36
    s_mov_b32 s33, s37
    s_add_u32 s36, s36, {TSTR}
    s_addc_u32 s37, s37, 0
    s_add_u32 s3, s3, 1
    s_branch h_top""")
    a('f_top:')
    stamp(4)
    if stop=='hops': a('s_endpgm')
    X=52; Y=68; TK=92; WB=[2,6,10]; ST=[100,40]
    vA=104; vI=105; vR=114; vQ=115; vN=14; vS=15; RK=48
    a(f"""v_and_b32 v4, 15, v0
    v_lshrrev_b32 v5, 4, v0
    v_and_b32 v6, 3, v0
    v_lshlrev_b32 v7, 4, v5
    global_load_dwordx4 v[{ST[0]}:{ST[0]+3}], v7, s[24:25]
    global_load_dwordx4 v[{ST[1]}:{ST[1]+3}], v7, s[24:25] offset:64
    s_mov_b32 s44, s26
    s_mov_b32 s45, s27
    s_lshl_b32 s64, s4, 4
    s_mul_i32 s65, s4, 1536
    s_add_u32 s65, s65, {L_STAGE}
    v_and_b32 v8, 7, v0
    v_lshrrev_b32 v9, 3, v4
    v_xor_b32 v10, v5, v8
    v_lshlrev_b32 v10, 4, v10
    v_lshl_add_u32 v10, v9, 7, v10
    v_subrev_u32 v11, 1, v8
    v_mul_u32_u24 v12, {PLANE}, v11
    s_lshl_b32 s66, s4, 11
    v_add3_u32 v12, v12, v10, s66
    v_subrev_u32 v13, 5, v8
    v_max_i32 v13, 0, v13
    v_lshl_add_u32 v13, v13, 9, v10
    v_add_u32 v13, s65, v13
    v_cmp_gt_u32 vcc, 5, v11
    v_mov_b32 v10, 0x100
    v_mov_b32 v11, 0xffffff00
    v_cndmask_b32 v{vA}, v13, v12, vcc
    v_cndmask_b32 v{vI}, v11, v10, vcc
    s_lshl_b32 s66, s4, 9
    s_add_u32 s66, s66, {L_RHO}
    v_lshl_add_u32 v{vR}, v5, 4, s66
    v_lshl_add_u32 v{vQ}, v4, 2, s66
    s_lshl_b32 s66, s4, 8
    s_add_u32 s66, s66, {L_ND}
    v_lshl_add_u32 v{vN}, v9, 4, s66
    v_lshrrev_b32 v10, 1, v5
    v_cmp_eq_u32 s[66:67], v10, v9
    v_cmp_eq_u32 s[68:69], 0, v8
    v_bfe_u32 v10, v0, 3, 2
    v_lshlrev_b32 v10, 7, v10
    v_add_u32 v10, s65, v10
    v_add_u32 v{vS}, v10, v1
    v_bfe_u32 v10, v0, 2, 1
    v_lshl_add_u32 v1, v10, 6, v7
    v_lshlrev_b32 v0, 4, v0
    v_add_u32 v0, {L_W}, v0
    v_cmp_eq_u32 s[70:71], 0, v6
    v_cmp_eq_u32 s[72:73], 1, v6
    v_mov_b32 v10, s76
    s_waitcnt vmcnt(0)
    v_dot2_f32_bf16 v13, v{ST[0]}, s76, 0""")
    for r in [ST[0]+1,ST[0]+2,ST[0]+3,ST[1],ST[1]+1,ST[1]+2,ST[1]+3]: a(f'v_dot2_f32_bf16 v13, v{r}, s76, v13')
    for b in ST:
        for i in range(4): a(f'v_cndmask_b32 v{b+i}, 0, v{b+i}, s[72:73]\nv_cndmask_b32 v{b+i}, v{b+i}, v10, s[70:71]')
    a(f"""v_readlane_b32 s64, v13, 0
    v_readlane_b32 s65, v13, 16
    v_readlane_b32 s74, v13, 32
    v_readlane_b32 s79, v13, 48
    v_mov_b32 v10, s64
    v_add_f32 v10, s65, v10
    v_add_f32 v10, s74, v10
    v_add_f32 v10, s79, v10
    v_mul_f32 v10, 0x3c800000, v10
    s_nop 0
    v_readfirstlane_b32 s79, v10
    s_mov_b32 s74, 0x3e38aa3b
    s_mov_b32 s70, 0x11111111
    s_mov_b32 s71, 0x11111111
    s_cmp_eq_u32 s4, 12
    s_cselect_b32 s78, 2, 8
    s_mov_b32 s77, 0
    f_loop:
    s_and_b32 s64, s77, 1
    s_cbranch_scc1 f_nst
    s_cmp_eq_u32 s77, 4
    s_cbranch_scc0 f_n4""")
    for i in range(4): a(f'v_mov_b32 v{106+i}, v{110+i}\nv_mov_b32 v{84+i}, v{88+i}\nv_mov_b32 v{36+i}, v{44+i}')
    a(f"""f_n4:
    s_and_b32 s64, s77, 2
    s_cselect_b32 exec_lo, 0, -1
    s_cselect_b32 exec_hi, -1, 0
    v_xor_b32 v10, 0x60, v{vS}
    v_xor_b32 v11, 0x70, v{vS}
    ds_write_b128 v{vS}, v[106:109]
    ds_write_b128 v10, v[84:87] offset:512
    ds_write_b128 v11, v[36:39] offset:1024
    s_mov_b64 exec, -1
    f_nst:
    v_xor_b32 v10, 64, v{vA}
    ds_read_b128 v[{TK}:{TK+3}], v{vA}
    ds_read_b128 v[{TK+4}:{TK+7}], v10
    ds_read_b128 v[{WB[0]}:{WB[0]+3}], v0
    ds_read_b128 v[{WB[1]}:{WB[1]+3}], v0 offset:1024""")
    for i in range(16): a(f'v_mov_b32 v{X+i}, 0')
    for i in range(16): a(f'v_mov_b32 v{Y+i}, 0')
    a('s_waitcnt lgkmcnt(2)')
    for s_ in range(2):
        for T in range(4):
            a(f'v_mfma_f32_16x16x32_bf16 v[{X+4*T}:{X+4*T+3}], v[{MF[2*T+s_]}:{MF[2*T+s_]+3}], v[{TK+4*s_}:{TK+4*s_+3}], v[{X+4*T}:{X+4*T+3}]')
    seq=[(T,s_) for T in range(4) for s_ in range(2)]
    a(f'ds_read_b128 v[{WB[2]}:{WB[2]+3}], v0 offset:2048')
    for n,(T,s_) in enumerate(seq):
        b=WB[n%3]
        out=min(2,7-n)
        a(f's_waitcnt lgkmcnt({out})')
        a(f'v_mfma_f32_16x16x32_bf16 v[{Y+4*T}:{Y+4*T+3}], v[{TK+4*s_}:{TK+4*s_+3}], v[{b}:{b+3}], v[{Y+4*T}:{Y+4*T+3}]')
        if n+3<8: a(f'ds_read_b128 v[{b}:{b+3}], v0 offset:{1024*(n+3)}')
        if n==1:
            for sp in range(2):
                A=X+8*sp; B=A+4
                a(f'v_cvt_pk_bf16_f32 v{A}, v{A}, v{A+1}\nv_cvt_pk_bf16_f32 v{A+1}, v{A+2}, v{A+3}\nv_cvt_pk_bf16_f32 v{A+2}, v{B}, v{B+1}\nv_cvt_pk_bf16_f32 v{A+3}, v{B+2}, v{B+3}')
            for i in range(4): a(f'v_mov_b32 v{X+4+i}, 0')
    Sx=X+4; T0=X+12
    a(f"""ds_read_b128 v[{RK}:{RK+3}], v{vR}
    ds_read_b32 v2, v{vQ}
    ds_read_b96 v[4:6], v{vN}
    v_mfma_f32_16x16x32_bf16 v[{Sx}:{Sx+3}], v[{TK}:{TK+3}], v[{X}:{X+3}], v[{Sx}:{Sx+3}]
    v_mfma_f32_16x16x32_bf16 v[{Sx}:{Sx+3}], v[{TK+4}:{TK+7}], v[{X+8}:{X+11}], v[{Sx}:{Sx+3}]
    v_add_u32 v{vR}, 64, v{vR}
    v_add_u32 v{vQ}, 64, v{vQ}
    v_add_u32 v{vN}, 32, v{vN}
    s_and_b32 s64, s77, 1
    s_cbranch_scc1 f_odd
    v_add_u32 v{vA}, 0x100, v{vA}
    s_branch f_oe
    f_odd:
    v_add_u32 v{vA}, v{vI}, v{vA}
    f_oe:
    s_waitcnt lgkmcnt(0)
    v_mul_f32 v2, s74, v2
    v_cndmask_b32 v4, v4, 1.0, s[68:69]
    v_cndmask_b32 v5, v5, 1.0, s[68:69]
    v_add_u32 v6, v6, v1
    v_cndmask_b32 v4, 0, v4, s[66:67]""")
    for T in range(4):
        A=Y+4*T
        a(f'v_cvt_pk_bf16_f32 v{A}, v{A}, v{A+1}\nv_cvt_pk_bf16_f32 v{A+1}, v{A+2}, v{A+3}')
    for r in range(4): a(f'v_mul_f32 v{Sx+r}, v{RK+r}, v{Sx+r}')
    a(f"""v_max3_f32 v7, v{Sx}, v{Sx+1}, v{Sx+2}
    v_max_f32 v7, v7, v{Sx+3}
    v_mov_b32 v8, v7
    s_nop 1
    v_permlane16_swap_b32 v7, v8
    v_max_f32 v7, v7, v8
    v_mul_f32 v7, v2, v7""")
    for r in range(4): a(f'v_fma_f32 v{Sx+r}, v{Sx+r}, v2, -v7')
    for r in range(4): a(f'v_exp_f32 v{Sx+r}, v{Sx+r}')
    a(f"""v_add_f32 v7, v{Sx}, v{Sx+1}
    v_add_f32 v8, v{Sx+2}, v{Sx+3}
    v_add_f32 v7, v7, v8
    v_mov_b32 v8, v7""")
    for r in range(4): a(f'v_mul_f32 v{Sx+r}, v{RK+r}, v{Sx+r}')
    a(f"""v_permlane16_swap_b32 v7, v8
    v_add_f32 v7, v7, v8
    v_rcp_f32 v7, v7
    s_nop 0
    v_mul_f32 v7, v4, v7""")
    for r in range(4): a(f'v_mul_f32 v{Sx+r}, v7, v{Sx+r}')
    a(f'v_cvt_pk_bf16_f32 v8, v{Sx}, v{Sx+1}\nv_cvt_pk_bf16_f32 v9, v{Sx+2}, v{Sx+3}')
    for i in range(8): a(f'v_lshlrev_b32 v{X+2*i}, 16, v{TK+i}\nv_and_b32 v{X+2*i+1}, 0xffff0000, v{TK+i}')
    a('s_nop 0')
    for T in range(4):
        a(f'v_mfma_f32_16x16x16_bf16 v[{X+4*T}:{X+4*T+3}], v[{Y+4*T}:{Y+4*T+1}], v[8:9], v[{X+4*T}:{X+4*T+3}]')
    for i in range(4): a(f'v_mov_b32 v{RK+i}, 0')
    a('s_nop 1')
    for i in range(8): a(f'v_cvt_pk_bf16_f32 v{Y+i}, v{X+2*i}, v{X+2*i+1}')
    a(f"""v_dot2_f32_bf16 v7, v{Y}, v{Y}, 0
    v_mfma_f32_16x16x32_bf16 v[{RK}:{RK+3}], v[{ST[0]}:{ST[0]+3}], v[{Y}:{Y+3}], v[{RK}:{RK+3}]
    v_mfma_f32_16x16x32_bf16 v[{RK}:{RK+3}], v[{ST[1]}:{ST[1]+3}], v[{Y+4}:{Y+7}], v[{RK}:{RK+3}]""")
    for i in range(1,8): a(f'v_dot2_f32_bf16 v7, v{Y+i}, v{Y+i}, v7')
    a(f"""v_mul_f32 v9, v5, v5
    s_nop 1
    v_mov_b32 v8, v7
    s_nop 1
    v_permlane16_swap_b32 v7, v8
    v_add_f32 v7, v7, v8
    v_mov_b32 v8, v7
    s_nop 1
    v_permlane32_swap_b32 v7, v8
    v_add_f32 v7, v7, v8
    v_mul_f32 v8, 0x3c800000, v{RK}
    v_mul_f32 v7, 0x3c800000, v7
    v_fma_f32 v7, -v8, v8, v7
    v_max_f32 v7, 0, v7
    v_fmaak_f32 v7, v9, v7, {EPS}
    v_rsq_f32 v7, v7
    v_fma_f32 v8, -v{RK}, s79, v{RK+1}
    v_mul_f32 v8, v5, v8
    v_mul_f32 v7, 0x3fb8aa3b, v7
    v_mul_f32 v7, v7, v8
    s_nop 1
    v_max_f32_dpp v8, v7, v7 quad_perm:[1,0,3,2] {DPP}
    s_nop 1
    v_max_f32_dpp v8, v8, v8 quad_perm:[2,3,0,1] {DPP}
    s_nop 1
    v_max_f32_dpp v8, v8, v8 row_half_mirror {DPP}
    v_sub_f32 v7, v7, v8
    v_exp_f32 v7, v7
    s_nop 1
    v_add_f32_dpp v8, v7, v7 quad_perm:[1,0,3,2] {DPP}
    s_nop 1
    v_add_f32_dpp v8, v8, v8 quad_perm:[2,3,0,1] {DPP}
    s_nop 1
    v_add_f32_dpp v8, v8, v8 row_half_mirror {DPP}
    v_rcp_f32 v8, v8
    v_mul_f32 v7, v5, v7
    v_mul_f32 v8, v7, v8""")
    for i in range(8): a(f'v_pk_mul_f32 v[{X+2*i}:{X+2*i+1}], v[{X+2*i}:{X+2*i+1}], v[8:9] op_sel_hi:[1,0]')
    for i in range(8): a(f'v_add_f32_dpp v{X+i}, v{X+i}, v{X+i} row_shl:4 row_mask:0xf bank_mask:0x5')
    for i in range(8): a(f'v_add_f32_dpp v{X+i}, v{X+8+i}, v{X+8+i} row_shr:4 row_mask:0xf bank_mask:0xa')
    for m in ('quad_perm:[1,0,3,2]','quad_perm:[2,3,0,1]'):
        for i in range(8): a(f'v_add_f32_dpp v{X+i}, v{X+i}, v{X+i} {m} {DPP}')
    for i in range(4): a(f'v_cvt_pk_bf16_f32 v{Y+8+i}, v{X+2*i}, v{X+2*i+1}')
    a(f"""s_mov_b64 exec, s[70:71]
    buffer_store_dwordx4 v[{Y+8}:{Y+11}], v6, s[44:47], 0 offen
    s_mov_b64 exec, -1
    s_add_u32 s77, s77, 1
    s_cmp_lt_u32 s77, s78
    s_cbranch_scc1 f_loop""")
    stamp(5)
    if stamps:
        a(f's_waitcnt vmcnt(0)\ns_memrealtime s[92:93]\ns_waitcnt lgkmcnt(0)\ns_lshl_b32 s64, s2, 4\ns_add_u32 s64, s64, s4\ns_lshl_b32 s64, s64, 7\ns_add_u32 s64, s64, {DUMP}\nv_mov_b32 v4, s64\ns_mov_b64 exec, 1')
        for i in range(7): a(f'v_mov_b32 v5, s{80+2*i}\nglobal_store_dword v4, v5, s[30:31] offset:{4*i}')
    a('k_end:\ns_endpgm')
    for h in handlers:
        a(f'{h}:\ns_cmp_ge_u32 s78, {R-1}\ns_cbranch_scc1 {h}_r\ns_add_u32 s78, s78, 1\ns_barrier\ns_add_u32 s77, s77, s52\ns_cbranch_scc0 {h}\ns_branch {h}_r')
    a(f"""h_slow:
    s_mov_b32 s64, {CAP}
    v_and_b32 v4, 3, v0
    v_lshlrev_b32 v4, 2, v4
    h_sl:""")
    for s_ in range(2):
        a(f"""v_add_u32 v5, s64, v4
        v_add_u32 v6, v5, v{98+s_}
        v_subrev_u32 v6, {CAP}, v6
        v_lshlrev_b32 v6, 2, v6
        v_sub_u32 v5, v{96+s_}, v5
        v_mov_b32 v7, {OOBV}
        buffer_load_dwordx4 v[102:105], v6, s[40:43], s59 offen
        s_waitcnt vmcnt(0)""")
        for r in range(4): a(f'v_cmp_lt_i32 vcc, {r}, v5\ns_nop 1\nv_cndmask_b32 v{102+r}, v7, v{102+r}, vcc')
        for hb in range(2):
            a('s_nop 1')
            for t in range(8):
                e=8*hb+t
                a(f'v_add_u32_dpp v7, v{102+(e&3)}, v1 quad_perm:[{e>>2},{e>>2},{e>>2},{e>>2}] {DPP}\nbuffer_load_dwordx4 v[{d0+4*t}:{d0+4*t+3}], v7, s[32:35], 0 offen sc1')
            a('s_waitcnt vmcnt(0)')
            for t in range(8): mf(s_,d0+4*t); a('s_nop 0')
    a('s_add_u32 s64, s64, 16\ns_cmp_lt_u32 s64, s53\ns_cbranch_scc1 h_sl\ns_branch h_slow_r')
    for l,l2 in ovh:
        a(f'''{l}:
        s_mov_b64 s[70:71], exec
        s_andn2_b64 exec, exec, vcc
        ds_write_b32 v22, v27 offset:{L_LIST}
        s_and_b64 exec, s[70:71], vcc
        v_lshlrev_b32 v26, 2, v26
        ds_read_b32 v26, v26 offset:{L_INF2}
        v_subrev_u32 v25, {CAP}, v25
        s_waitcnt lgkmcnt(0)
        v_add_lshl_u32 v25, v25, v26, 2
        buffer_store_dword v27, v25, s[40:43], s59 offen
        s_mov_b64 exec, s[70:71]
        s_branch {l2}''')
    return a.text()

HDR=open('gather_scatter__hybrid_graph_tf_nagphormer__graph.s.ref').read().split('; Override launch')[0]
def wrap(body):
    return HDR+f'''; @launch grid=(256,1,1) block=(1024,1,1) lds={LDS_BYTES}
.amdgcn_target "amdgcn-amd-amdhsa--gfx950"
.text
.globl {KNAME}
.p2align 8
.type {KNAME},@function
{KNAME}:
'''+body+f'''.section .rodata,"a"
.p2align 6
.amdhsa_kernel {KNAME}
  .amdhsa_next_free_vgpr 128
  .amdhsa_next_free_sgpr 102
  .amdhsa_accum_offset 128
  .amdhsa_group_segment_fixed_size 0
  .amdhsa_kernarg_size 96
  .amdhsa_user_sgpr_count 2
  .amdhsa_user_sgpr_kernarg_segment_ptr 1
  .amdhsa_system_sgpr_workgroup_id_x 1
  .amdhsa_float_denorm_mode_32 3
.end_amdhsa_kernel
'''
if __name__=='__main__':
    import ast
    kw=dict(x.split('=') for x in sys.argv[2:])
    for k in kw:
        try: kw[k]=ast.literal_eval(kw[k])
        except Exception: pass
    open(sys.argv[1],'w').write(wrap(gen(**kw)))
```

```python
N=50000; E=800000; BS=196; NCH=250; CHE=3200
MB=1<<20
TSTR=12*MB; TBYTES=10*MB
SMALL=84*MB
CHUNK=128; OFFS=4*MB; WFR=4*MB+512*1024; PARR=4*MB+768*1024; OVF=5*MB
SMALL_BYTES=10*MB
BARP=94*MB
DUMP=128*MB
CAP=40
OOBV=0x7ffff000
PLANE=BS*128
PL2=PLANE+256
STG=2304
L_RHO=4*PL2
L_ND=L_RHO+BS*32
L_W=L_ND+BS*16
L_STAGE=(L_W+16384+255)//256*256
L_END=L_STAGE+13*STG
LDS_BYTES=160*1024
L_HIST=PL2
L_DH=L_HIST+1024
L_RED=L_DH+256
L_R0=L_RED+64
L_INFO=L_R0+256*8
L_INF2=L_INFO+208*16
L_CNT=L_INF2+208*4
L_ESTG=L_CNT+6656
L_LIST=L_ESTG+12800
L_WP=L_LIST+208*160
def line_of(n):
    import numpy as np
    n=np.asarray(n); t=n>>8; page=(t*205)>>13
    return n+128*t+1024*page+64*(((n>>6)&3)==3), ((n>>7)&1).astype(bool), page
```

```python
import sys
from lay import *
KNAME='gather_scatter__hybrid_graph_tf_nagphormer__graph_kernel'
class Asm:
    def __init__(s): s.l=[]; s.u=0
    def __call__(s,t):
        for x in t.strip('\n').split('\n'):
            x=x.strip()
            if x: s.l.append(x if x.endswith(':') else '    '+x)
    def lab(s,p='L'): s.u+=1; return f'{p}{s.u}'
    def text(s): return '\n'.join(s.l)+'\n'
DPP='row_mask:0xf bank_mask:0xf'
EPS='0x3727c5ac'
K=8; R=8; OUTPOL='sc1'

def line_calc(a,dst,n,t,u):
    a(f'''v_lshrrev_b32 v{t}, 8, v{n}
    v_mul_u32_u24 v{u}, 205, v{t}
    v_lshl_add_u32 v{dst}, v{t}, 7, v{n}
    v_lshrrev_b32 v{u}, 13, v{u}
    v_lshrrev_b32 v{t}, 1, v{n}
    v_lshl_add_u32 v{dst}, v{u}, 10, v{dst}
    v_bitop3_b32 v{t}, v{t}, v{n}, 64 bitop3:0x80
    v_add_u32 v{dst}, v{dst}, v{t}''')

def rho_calc(a,X,sm,sq,vs,sones):
    a(f'v_dot2_f32_bf16 v{sm}, v{X}, {sones}, 0\nv_dot2_f32_bf16 v{sq}, v{X}, v{X}, 0')
    for i in range(1,4):
        a(f'v_dot2_f32_bf16 v{sm}, v{X+i}, {sones}, v{sm}\nv_dot2_f32_bf16 v{sq}, v{X+i}, v{X+i}, v{sq}')
    a('s_nop 2')
    for m in ('quad_perm:[1,0,3,2]','quad_perm:[2,3,0,1]','row_half_mirror'):
        a(f'v_add_f32_dpp v{sm}, v{sm}, v{sm} {m} {DPP}\nv_add_f32_dpp v{sq}, v{sq}, v{sq} {m} {DPP}\ns_nop 0')
    a(f'''v_mul_f32 v{sm}, 0x3c800000, v{sm}
    v_mul_f32 v{sq}, 0x3c800000, v{sq}
    v_fma_f32 v{sq}, -v{sm}, v{sm}, v{sq}
    v_max_f32 v{sq}, 0, v{sq}''')
    if vs is not None: a(f'v_mul_f32 v{sq}, v{vs}, v{sq}\nv_mul_f32 v{sq}, v{vs}, v{sq}')
    a(f'v_add_f32 v{sq}, {EPS}, v{sq}\nv_rsq_f32 v{sm}, v{sq}\ns_nop 0')
    if vs is not None: a(f'v_mul_f32 v{sm}, v{vs}, v{sm}')

def baraddr(a,base):
    a(f'''s_and_b32 s64, s2, 7
    s_lshr_b32 s65, s64, 2
    s_xor_b32 s65, s65, s63
    s_lshl_b32 s65, s65, 13
    s_lshl_b32 s64, s64, 8
    s_add_u32 s64, s64, s65
    s_add_u32 s56, s64, {base}
    s_xor_b32 s65, s6, s63
    s_lshl_b32 s65, s65, 13
    s_and_b32 s64, s7, 7
    s_lshl_b32 s64, s64, 8
    s_add_u32 s64, s64, s65
    s_mov_b32 s75, {base+4096}
    s_add_u32 s57, s64, s75''')

def gbarrier(a,nm,first=False):
    a(f's_add_u32 s62, s62, 1\ns_barrier\ns_cmp_lg_u32 s4, 0\ns_cbranch_scc1 {nm}_w')
    a('s_mov_b64 exec, 1')
    if first:
        a(f'''v_mov_b32 v4, 0
        s_mov_b32 s64, 0
        {nm}_i:
        global_load_dword v5, v4, s[28:29] sc1
        s_waitcnt vmcnt(0)
        v_readfirstlane_b32 s63, v5
        s_cmp_lg_u32 s63, 0
        s_cbranch_scc1 {nm}_id
        s_sleep 2
        s_add_u32 s64, s64, 1
        s_cmp_lt_u32 s64, 0x20000
        s_cbranch_scc1 {nm}_i
        {nm}_id:
        s_mov_b32 s63, 0''')
        baraddr(a,BARP+16384)
    a(f'''v_mov_b32 v4, s56
    v_mov_b32 v5, 1
    global_atomic_add v6, v4, v5, s[30:31] sc0 sc1
    s_lshl_b32 s64, s62, 5
    s_sub_u32 s64, s64, 1
    v_mov_b32 v4, s57
    s_waitcnt vmcnt(0)
    v_readfirstlane_b32 s65, v6
    s_cmp_lg_u32 s65, s64
    s_cbranch_scc1 {nm}_np
    s_mov_b64 exec, 0xff
    v_mbcnt_lo_u32_b32 v6, -1, 0
    v_lshrrev_b32 v7, 2, v6
    v_xor_b32 v7, s63, v7
    v_lshlrev_b32 v7, 13, v7
    v_lshl_add_u32 v6, v6, 8, v7
    v_add_u32 v6, s75, v6
    v_mov_b32 v5, 1
    global_atomic_add v6, v5, s[30:31] sc1
    s_mov_b64 exec, 1
    {nm}_np:
    s_lshl_b32 s64, s62, 3
    s_mov_b32 s65, 0
    {nm}_p:
    global_load_dword v6, v4, s[30:31] sc1
    s_waitcnt vmcnt(0)
    v_cmp_gt_u32 vcc, s64, v6
    s_cbranch_vccz {nm}_pd
    s_add_u32 s65, s65, 1
    s_cmp_lt_u32 s65, 0x800000
    s_cbranch_scc1 {nm}_p
    {nm}_pd:
    s_mov_b64 exec, -1
    {nm}_w:
    s_barrier''')

def probe(a,nm,voff,res):
    a(f'v_add_u32 v{voff+1}, 0x2000, v{voff}\nv_mov_b32 v{voff+2}, 0\ns_mov_b32 s66, -1\ns_mov_b32 s67, -1\ns_mov_b32 s72, 0\n{nm}:')
    for s in range(2):
        a(f'''s_memtime s[68:69]
        s_waitcnt lgkmcnt(0)
        global_atomic_add v{voff+3}, v{voff+s}, v{voff+2}, s[30:31] sc0 sc1
        s_waitcnt vmcnt(0)
        s_memtime s[70:71]
        s_waitcnt lgkmcnt(0)
        s_sub_u32 s70, s70, s68
        s_min_u32 s{66+s}, s{66+s}, s70''')
    a(f's_add_u32 s72, s72, 1\ns_cmp_lt_u32 s72, 3\ns_cbranch_scc1 {nm}')
    a(f's_cmp_gt_u32 s66, s67\ns_cselect_b32 s{res}, 1, 0\ns_xor_b32 s{res}, s{res}, s6')

def gen(stop=None,dump=False,stamps=False,npairs=4,cpf=True,stag=4):
    a=Asm()
    slots={}
    def stamp(nm):
        if stamps and nm in stamps:
            i=stamps.index(nm); a(f's_memrealtime s[{80+2*i}:{81+2*i}]')
        if stamps and nm+'c' in stamps:
            i=stamps.index(nm+'c'); a(f's_memtime s[{80+2*i}:{81+2*i}]')
    a(f'''s_cmp_ge_u32 s2, 256
    s_cbranch_scc1 k_end
    s_load_dwordx16 s[8:23], s[0:1], 0
    s_load_dwordx8 s[24:31], s[0:1], 64
    v_lshrrev_b32 v1, 6, v0
    s_and_b32 s5, s2, 7
    v_readfirstlane_b32 s4, v1
    s_lshl_b32 s5, s5, 5
    s_lshr_b32 s3, s2, 3
    s_add_u32 s5, s5, s3
    s_getreg_b32 s7, hwreg(HW_REG_XCC_ID, 0, 4)
    s_lshr_b32 s6, s7, 2
    s_and_b32 s6, s6, 1
    s_mov_b32 s62, 0
    s_mul_i32 s54, s5, {BS}''')
    stamp('s')
    if cpf:
        a(f'''s_cmp_lg_u32 s4, 15
        s_cbranch_scc1 k_npf
        s_getpc_b64 s[64:65]
        k_pc:
        v_and_b32 v2, 63, v0
        v_lshlrev_b32 v2, 7, v2''')
        a('CODEPF')
        a('k_npf:')
    a(f'''v_lshrrev_b32 v2, 3, v0
    v_add_u32 v3, s54, v2
    v_add_u32 v4, 128, v3
    v_and_b32 v5, 7, v0
    v_lshlrev_b32 v5, 4, v5
    v_lshl_add_u32 v6, v3, 7, v5
    v_lshl_add_u32 v7, v4, 7, v5
    v_lshlrev_b32 v8, 1, v3
    v_lshlrev_b32 v9, 1, v4
    s_mul_i32 s55, s2, {CHE*4}
    v_lshlrev_b32 v10, 4, v0
    v_add_u32 v11, s55, v10
    s_mov_b32 s64, {N}
    v_cmp_gt_u32 s[48:49], s64, v3
    v_cmp_gt_u32 s[50:51], s64, v4
    s_movk_i32 s64, 544
    v_cmp_gt_u32 vcc, s64, v0
    s_and_b64 s[50:51], s[50:51], vcc
    s_movk_i32 s64, 800
    v_cmp_gt_u32 s[52:53], s64, v0
    s_cmp_ge_u32 s2, {NCH}
    s_cselect_b64 s[52:53], 0, s[52:53]
    s_waitcnt lgkmcnt(0)''')
    stamp('ka')
    a(f'''s_mov_b64 exec, s[52:53]
    s_cbranch_execz p1_ne
    global_load_dwordx4 v[12:15], v11, s[12:13]
    global_load_dwordx4 v[16:19], v11, s[10:11]
    p1_ne:
    s_mov_b64 exec, s[48:49]
    s_cbranch_execz p1_nxa
    global_load_dwordx4 v[20:23], v6, s[8:9]
    global_load_ushort v28, v8, s[14:15]
    p1_nxa:
    s_mov_b64 exec, s[50:51]
    s_cbranch_execz p1_nxb
    global_load_dwordx4 v[24:27], v7, s[8:9]
    global_load_ushort v29, v9, s[14:15]
    p1_nxb:
    s_mov_b64 exec, -1
    s_add_u32 s30, s30, 0x1fffff
    s_addc_u32 s31, s31, 0
    s_and_b32 s30, s30, 0xffe00000
    s_mov_b32 s36, s30
    s_mov_b32 s37, s31
    s_mov_b32 s38, {TBYTES}
    s_mov_b32 s39, 0x20000
    s_add_u32 s40, s30, {SMALL}
    s_addc_u32 s41, s31, 0
    s_mov_b32 s42, {SMALL_BYTES}
    s_mov_b32 s43, 0x20000''')
    def ldsinit():
        a(f'''v_mov_b32 v32, 0
        v_mov_b32 v33, 0
        v_mov_b32 v34, 0
        v_mov_b32 v35, 0
        v_mov_b32 v36, {OOBV}
        v_mov_b32 v37, {OOBV}
        v_mov_b32 v38, {OOBV}
        v_mov_b32 v39, {OOBV}
        ds_write_b128 v10, v[36:39] offset:{L_LIST}
        v_add_u32 v30, 16384, v10
        ds_write_b128 v30, v[36:39] offset:{L_LIST}
        v_cmp_gt_u32 vcc, 32, v0
        v_add_u32 v30, 32768, v10
        s_mov_b64 exec, vcc
        ds_write_b128 v30, v[36:39] offset:{L_LIST}
        s_mov_b64 exec, -1
        s_movk_i32 s64, 416
        v_cmp_gt_u32 vcc, s64, v0
        s_mov_b64 exec, vcc
        ds_write_b128 v10, v[32:35] offset:{L_CNT}
        s_mov_b64 exec, -1
        v_cmp_gt_u32 vcc, 64, v0
        s_mov_b64 exec, vcc
        ds_write_b128 v10, v[32:35] offset:{L_HIST}
        s_mov_b64 exec, -1
        v_cmp_gt_u32 vcc, 20, v0
        s_mov_b64 exec, vcc
        ds_write_b128 v10, v[32:35] offset:{L_DH}
        s_mov_b64 exec, -1
        v_mov_b32 v38, 0
        v_mov_b32 v39, 0
        s_movk_i32 s64, 208
        v_cmp_gt_u32 vcc, s64, v0
        s_mov_b64 exec, vcc
        ds_write_b128 v10, v[36:39] offset:{L_INFO}
        s_mov_b64 exec, -1
    ''')
    a(f's_cmp_ge_u32 s2, {NCH}\ns_cbranch_scc1 p1_aux')
    ldsinit()
    a('s_waitcnt lgkmcnt(0)\ns_barrier')
    stamp('B1')
    a(f'''s_mov_b64 exec, s[52:53]
    s_cbranch_execz p1_e1
    s_movk_i32 s64, -{BS}
    s_waitcnt vmcnt(4)''')
    a.l.pop()
    a('''s_cmp_lt_u32 s4, 9
    s_cbranch_scc1 p1_w4
    s_waitcnt vmcnt(2)
    p1_w4:
    s_waitcnt vmcnt(4)''')
    stamp('ed')
    for i in range(4):
        d=12+i; s=16+i; b=40+i; e=44+i
        a(f'''v_mul_u32_u24 v30, 85599, v{d}
        v_mul_u32_u24 v31, 10700, v{s}
        v_lshrrev_b32 v{b}, 24, v30
        v_lshrrev_b32 v31, 26, v31
        v_lshrrev_b32 v30, 5, v{b}
        v_mad_i32_i24 v{d}, v{b}, s64, v{d}
        v_sub_u32 v31, v31, v30
        v_lshlrev_b32 v{b}, 2, v{b}
        v_and_b32 v31, 7, v31
        v_mov_b32 v33, 1
        ds_add_rtn_u32 v{48+i}, v{b}, v33 offset:{L_HIST}
        v_lshl_add_u32 v{d}, v{d}, 3, v31''')
        line_calc(a,e,s,30,31)
        a(f'''v_and_b32 v30, 128, v{s}
        v_lshl_or_b32 v{e}, v30, 10, v{e}
        v_lshl_or_b32 v{e}, v{d}, 18, v{e}''')
    a('p1_e1:\ns_mov_b64 exec, -1\ns_waitcnt lgkmcnt(0)\ns_barrier')
    stamp('B2')
    a(f'''s_cmp_lg_u32 s4, 0
    s_cbranch_scc1 p1_ns
    ds_read_b128 v[52:55], v10 offset:{L_HIST}
    s_waitcnt lgkmcnt(0)
    v_add_u32 v57, v52, v53
    v_add_u32 v58, v57, v54
    v_add_u32 v59, v58, v55
    v_mov_b32 v60, v59
    s_nop 1''')
    for m in ('row_shr:1','row_shr:2','row_shr:4','row_shr:8'):
        a(f'v_add_u32_dpp v60, v60, v60 {m} {DPP} bound_ctrl:0\ns_nop 1')
    a(f'''v_add_u32_dpp v60, v60, v60 row_bcast:15 row_mask:0xa bank_mask:0xf
    s_nop 1
    v_add_u32_dpp v60, v60, v60 row_bcast:31 row_mask:0xc bank_mask:0xf
    v_sub_u32 v60, v60, v59
    v_add_u32 v61, v60, v52
    v_add_u32 v62, v60, v57
    v_add_u32 v63, v60, v58
    ds_write_b128 v10, v[60:63] offset:{L_HIST}
    v_lshl_or_b32 v56, v52, 16, v60
    v_lshl_or_b32 v57, v53, 16, v61
    v_lshl_or_b32 v58, v54, 16, v62
    v_lshl_or_b32 v59, v55, 16, v63
    s_lshl_b32 s64, s2, 10
    s_add_u32 s64, s64, {OFFS}
    buffer_store_dwordx4 v[56:59], v10, s[40:43], s64 offen sc1
    p1_ns:''')
    def xconv():
        a('s_mov_b32 s66, 0x3f803f80')
        for (X,D,n,m,off) in ((20,28,3,48,0),(24,29,4,50,1024)):
            l=a.lab('xc')
            a(f's_mov_b64 exec, s[{m}:{m+1}]\ns_cbranch_execz {l}')
            a('s_waitcnt vmcnt(0)' if off==0 else '')
            a(f'v_lshlrev_b32 v{D}, 16, v{D}')
            for i in range(4):
                a(f'''v_lshlrev_b32 v64, 16, v{X+i}
                v_and_b32 v65, 0xffff0000, v{X+i}
                v_mul_f32 v64, v{D}, v64
                v_mul_f32 v65, v{D}, v65
                v_cvt_pk_bf16_f32 v{68+i}, v64, v65''')
            line_calc(a,66,n,64,65)
            a(f'''v_lshl_add_u32 v66, v66, 7, v5
            v_and_b32 v64, 128, v{n}
            v_add_u32 v67, 0x2000, v66
            v_cmp_ne_u32 vcc, 0, v64
            v_mov_b32 v65, {OOBV}
            buffer_store_dwordx4 v[68:71], v66, s[36:39], 0 offen sc1
            v_cndmask_b32 v67, v65, v67, vcc
            buffer_store_dwordx4 v[68:71], v67, s[36:39], 0 offen sc1''')
            rho_calc(a,X,64,65,None,'s66')
            a(f'''v_mov_b32 v65, v{D}
            v_lshlrev_b32 v66, 3, v2
            ds_write_b64 v66, v[64:65] offset:{L_R0+off}
            {l}:''')
        a('s_mov_b64 exec, -1')
    xconv()
    stamp('xc')
    a(f'''s_waitcnt lgkmcnt(0)
    s_barrier''')
    stamp('B3')
    a(f'''s_mov_b64 exec, s[52:53]
    s_cbranch_execz p1_e2''')
    for i in range(4): a(f'ds_read_b32 v{40+i}, v{40+i} offset:{L_HIST}')
    for i in range(4):
        a(f's_waitcnt lgkmcnt({3-i})\nv_add_lshl_u32 v{40+i}, v{40+i}, v{48+i}, 2' if i==0 else f's_waitcnt lgkmcnt({3})\nv_add_lshl_u32 v{40+i}, v{40+i}, v{48+i}, 2')
        a(f'ds_write_b32 v{40+i}, v{44+i} offset:{L_ESTG}')
    a(f'''p1_e2:
    s_mov_b64 exec, -1
    s_waitcnt lgkmcnt(0)
    s_barrier
    s_mov_b64 exec, s[52:53]
    s_cbranch_execz p1_e3
    ds_read_b128 v[40:43], v10 offset:{L_ESTG}
    s_waitcnt lgkmcnt(0)
    buffer_store_dwordx4 v[40:43], v10, s[40:43], s55 offen sc1
    p1_e3:
    s_mov_b64 exec, -1
    s_branch p1_done''')
    a('p1_aux:')
    a(f'''s_cmp_ge_u32 s2, 253
    s_cbranch_scc1 p1_aw
    s_sub_u32 s64, s2, {NCH}
    s_lshl_b32 s64, s64, 4
    s_add_u32 s64, s64, s4
    s_lshr_b32 s65, s64, 2
    s_mul_i32 s65, s65, 3
    s_lshr_b32 s65, s65, 1
    s_and_b32 s74, s64, 3
    s_add_u32 s65, s65, s74
    s_and_b32 s74, s65, 1
    s_lshl_b32 s65, s65, 21
    s_lshl_b32 s73, s64, 7
    s_add_u32 s65, s65, s73
    s_add_u32 s65, s65, {254*8192}
    s_mov_b64 exec, 1
    v_mov_b32 v40, s65
    s_lshl_b32 s73, s64, 2
    s_add_u32 s73, s73, {PARR}''')
    probe(a,'pr_t',40,65)
    a(f'''s_xor_b32 s65, s65, s74
    v_mov_b32 v40, 0
    v_mov_b32 v41, s65
    buffer_store_dword v41, v40, s[40:43], s73 offen sc1
    s_mov_b64 exec, -1
    s_branch p1_ax
    p1_aw:
    s_cmp_eq_u32 s2, 255
    s_cbranch_scc0 p1_wp
    s_cmp_lg_u32 s4, 0
    s_cbranch_scc1 p1_ax
    v_and_b32 v40, 15, v0
    v_lshrrev_b32 v41, 4, v0
    v_lshlrev_b32 v40, 8, v40
    v_and_b32 v42, 1, v41
    v_lshrrev_b32 v41, 1, v41
    v_lshl_add_u32 v40, v42, 12, v40
    v_lshl_add_u32 v40, v41, 13, v40
    v_add_u32 v40, {BARP}, v40
    v_mov_b32 v41, 0
    global_store_dword v40, v41, s[30:31] sc1
    v_add_u32 v40, 0x4000, v40
    global_store_dword v40, v41, s[30:31] sc1
    s_waitcnt vmcnt(0)
    s_mov_b64 exec, 1
    v_mov_b32 v40, 0
    v_mov_b32 v41, 1
    global_store_dword v40, v41, s[28:29] sc1
    s_mov_b64 exec, -1
    s_branch p1_ax''')
    a(f'''p1_wp:
    v_and_b32 v40, 15, v0
    v_bfe_u32 v41, v0, 4, 2
    s_lshr_b32 s64, s4, 2
    s_and_b32 s65, s4, 3
    s_lshl_b32 s66, s64, 11
    v_lshlrev_b32 v42, 7, v40
    v_lshl_add_u32 v42, v41, 4, v42
    v_add_u32 v43, s66, v42
    s_cmp_eq_u32 s2, 253
    s_cbranch_scc0 p1_wv
    s_lshl_b32 s66, s65, 11
    v_add_u32 v44, s66, v42
    global_load_dwordx4 v[48:51], v43, s[16:17]
    global_load_dwordx4 v[52:55], v43, s[16:17] offset:64
    global_load_dwordx4 v[56:59], v44, s[18:19]
    global_load_dwordx4 v[60:63], v44, s[18:19] offset:64
    s_branch p1_wm
    p1_wv:
    global_load_dwordx4 v[48:51], v43, s[20:21]
    global_load_dwordx4 v[52:55], v43, s[20:21] offset:64
    s_lshl_b32 s66, s65, 5
    v_lshlrev_b32 v44, 10, v41
    v_lshl_add_u32 v44, v40, 1, v44
    v_add_u32 v44, s66, v44
    v_add_u32 v45, 4096, v44''')
    for s in range(2):
        for j in range(8):
            a(f'global_load_ushort v{72+8*s+j}, v{44+s}, s[22:23] offset:{128*j}')
    a('s_waitcnt vmcnt(0)')
    for i in range(8): a(f'v_lshl_or_b32 v{56+i}, v{73+2*i}, 16, v{72+2*i}')
    a(f'''p1_wm:
    v_mov_b32 v64, 0
    v_mov_b32 v65, 0
    v_mov_b32 v66, 0
    v_mov_b32 v67, 0
    s_nop 0
    s_waitcnt vmcnt(0)
    v_mfma_f32_16x16x32_bf16 v[64:67], v[48:51], v[56:59], v[64:67]
    v_mfma_f32_16x16x32_bf16 v[64:67], v[52:55], v[60:63], v[64:67]
    s_lshl_b32 s66, s64, 4
    v_lshl_add_u32 v46, v41, 2, s66
    v_mul_u32_u24 v46, 260, v46
    s_lshl_b32 s66, s65, 6
    v_lshl_add_u32 v46, v40, 2, v46
    v_add_u32 v46, s66, v46
    v_add_u32 v46, {L_WP-32768}, v46
    v_mov_b32 v47, {L_WP+64*260+512}
    v_mov_b32 v48, 0
    ds_write_b32 v47, v48
    s_nop 1
    ds_write_b32 v46, v64 offset:32768
    ds_write_b32 v46, v65 offset:{32768+260}
    ds_write_b32 v46, v66 offset:{32768+520}
    ds_write_b32 v46, v67 offset:{32768+780}
    s_waitcnt lgkmcnt(0)
    s_barrier
    v_bfe_u32 v46, v0, 3, 6
    v_and_b32 v47, 7, v0
    s_cmp_lt_u32 s4, 8
    s_cselect_b32 s66, 4, 260
    s_cselect_b32 s67, 2080, 32
    s_cselect_b32 s68, 0, 256
    v_mul_u32_u24 v60, s66, v46
    v_mul_u32_u24 v47, s67, v47
    v_add_u32 v60, v60, v47
    v_add_u32 v60, {L_WP}, v60
    s_cbranch_scc0 p1_wr''')
    for k in range(8): a(f'ds_read_b32 v{48+k}, v60 offset:{260*k}')
    a(f'''s_branch p1_wq
    p1_wr:
    ds_read_b32 v48, v60''')
    for k in range(1,8): a(f'ds_read_b32 v{48+k}, v60 offset:{4*k}')
    a(f'''p1_wq:
    v_lshlrev_b32 v46, 2, v46
    v_add_u32 v46, s68, v46
    v_add_u32 v46, {L_WP+64*260-32768}, v46
    s_waitcnt lgkmcnt(0)
    v_add_f32 v48, v48, v49
    v_add_f32 v50, v50, v51
    v_add_f32 v52, v52, v53
    v_add_f32 v54, v54, v55
    v_add_f32 v48, v48, v50
    v_add_f32 v52, v52, v54
    v_add_f32 v48, v48, v52
    s_nop 1''')
    for m in ('quad_perm:[1,0,3,2]','quad_perm:[2,3,0,1]','row_half_mirror'):
        a(f'v_add_f32_dpp v48, v48, v48 {m} {DPP}\ns_nop 1')
    a(f'''v_mul_f32 v48, 0x3c800000, v48
    ds_write_b32 v46, v48 offset:32768
    s_cmp_lt_u32 s4, 8
    s_cbranch_scc0 p1_ws
    v_mul_f32 v48, 0x3b000000, v48
    v_mov_b32 v46, {L_WP+64*260+512}
    ds_add_f32 v46, v48
    p1_ws:
    s_waitcnt lgkmcnt(0)
    s_barrier
    v_bfe_u32 v40, v0, 1, 4
    v_bfe_u32 v41, v0, 5, 2
    v_bfe_u32 v42, v0, 7, 1
    v_bfe_u32 v43, v0, 8, 2
    v_and_b32 v44, 1, v0
    v_lshrrev_b32 v45, 2, v40
    v_lshlrev_b32 v45, 3, v45
    v_and_b32 v46, 3, v40
    v_add_u32 v45, v45, v46
    v_and_b32 v46, 1, v43
    v_lshl_add_u32 v45, v46, 2, v45
    v_lshrrev_b32 v46, 1, v43
    v_lshl_add_u32 v45, v46, 5, v45
    v_lshlrev_b32 v46, 5, v42
    v_lshl_add_u32 v46, v41, 3, v46
    v_lshl_add_u32 v46, v44, 2, v46
    v_mul_u32_u24 v47, 260, v46
    v_lshl_add_u32 v47, v45, 2, v47
    v_add_u32 v47, {L_WP-32768}, v47
    v_lshlrev_b32 v45, 2, v45
    v_add_u32 v45, {L_WP+64*260-32768}, v45
    v_lshlrev_b32 v46, 2, v46
    v_add_u32 v46, {L_WP+64*260+256-32768}, v46
    v_mov_b32 v60, {L_WP+64*260+512}
    ds_read_b32 v48, v47 offset:32768
    ds_read_b32 v49, v47 offset:{32768+260}
    ds_read_b32 v50, v47 offset:{32768+520}
    ds_read_b32 v51, v47 offset:{32768+780}
    ds_read_b32 v52, v45 offset:32768
    ds_read_b128 v[56:59], v46 offset:32768
    ds_read_b32 v53, v60
    s_waitcnt lgkmcnt(0)
    s_cmp_eq_u32 s2, 253
    s_cbranch_scc0 p1_wc
    v_sub_f32 v52, v52, v53
    v_sub_f32 v48, v48, v56
    v_sub_f32 v49, v49, v57
    v_sub_f32 v50, v50, v58
    v_sub_f32 v51, v51, v59
    p1_wc:
    v_sub_f32 v48, v48, v52
    v_sub_f32 v49, v49, v52
    v_sub_f32 v50, v50, v52
    v_sub_f32 v51, v51, v52
    v_cvt_pk_bf16_f32 v48, v48, v49
    v_cvt_pk_bf16_f32 v49, v50, v51
    s_sub_u32 s66, s2, 253
    s_lshl_b32 s66, s66, 13
    s_add_u32 s66, s66, {WFR}
    v_lshlrev_b32 v46, 3, v0
    buffer_store_dwordx2 v[48:49], v46, s[40:43], s66 offen sc1
    p1_ax:''')
    ldsinit()
    xconv()
    a(f'''p1_done:
    v_lshrrev_b32 v2, 2, v0
    v_and_b32 v3, 3, v0
    v_lshlrev_b32 v70, 10, v2
    s_lshl_b32 s92, s5, 2
    s_add_u32 s92, s92, {OFFS}
    s_movk_i32 s65, {NCH}
    v_cmp_gt_u32 s[48:49], s65, v2
    v_mov_b32 v6, {OOBV}
    v_and_b32 v73, 63, v0
    v_lshlrev_b32 v8, 2, v73
    v_cndmask_b32 v70, v6, v70, s[48:49]
    s_mov_b32 s93, {PARR}
    v_lshlrev_b32 v72, 4, v0
    s_mov_b32 s94, {WFR}
    v_mul_u32_u24 v71, {CHE*4}, v2
    v_lshl_add_u32 v71, v3, 4, v71
    v_lshlrev_b32 v3, 2, v3
    s_waitcnt vmcnt(0) lgkmcnt(0)''')
    stamp('p1')
    gbarrier(a,'gb0',first=True)
    stamp('b0')
    if stop=='p1': a('s_endpgm')
    a(f'''buffer_load_dword v5, v70, s[40:43], s92 offen sc1
    buffer_load_dword v9, v8, s[40:43], s93 offen sc1
    buffer_load_dwordx4 v[76:79], v72, s[40:43], s94 offen sc1
    v_add_u32 v72, {L_W}, v72
    v_mov_b32 v6, {OOBV}
    v_mov_b32 v7, v73
    s_mov_b64 vcc, s[48:49]
    s_waitcnt vmcnt(2)
    v_and_b32 v10, 0xffff, v5
    v_lshrrev_b32 v11, 16, v5
    v_lshl_add_u32 v4, v10, 2, v71
    v_cndmask_b32 v4, v6, v4, vcc
    buffer_load_dwordx4 v[12:15], v4, s[40:43], 0 offen sc1
    buffer_load_dwordx4 v[16:19], v4, s[40:43], 0 offen offset:64 sc1
    v_sub_u32 v20, v11, v3
    s_waitcnt vmcnt(2)
    ds_write_b128 v72, v[76:79]
    v_and_b32 v9, 1, v9
    v_cmp_eq_u32 s[60:61], 1, v9
    v_mov_b32 v21, 1
    s_nop 1
    s_and_b32 s61, s61, 0xffff
    s_bcnt1_i32_b64 s60, s[60:61]
    s_cmp_ge_u32 s60, 24
    s_cselect_b32 s61, 1, 0
    s_xor_b32 s63, s61, 1
    s_xor_b32 s58, s61, s6
    s_cmp_eq_u32 s58, 0
    s_cselect_b32 s58, 10, 21
    s_mov_b32 s62, 0''')
    baraddr(a,BARP)
    def each_entry(body,regs,base):
        for r,e in enumerate(regs):
            l=a.lab('ee')
            a(f'v_cmp_lt_i32 vcc, {base[r]}, v20\ns_mov_b64 exec, vcc\ns_cbranch_execz {l}')
            body(e)
            a(f'{l}:')
        a('s_mov_b64 exec, -1')
    regs=list(range(12,20)); base=[0,1,2,3,16,17,18,19]
    def p1body(e):
        a(f'v_lshrrev_b32 v22, 16, v{e}\nv_and_b32 v22, 0x1ffc, v22\nds_add_u32 v22, v21 offset:{L_CNT}')
    a('s_waitcnt vmcnt(0)')
    stamp('sg')
    each_entry(p1body,regs,base)
    def longseg(nm,body,whole=None):
        a(f'''v_cmp_lt_i32 vcc, 32, v20
        s_cbranch_vccz {nm}_d
        v_mov_b32 v23, v20
        v_mov_b32 v24, v4
        {nm}_l:
        v_subrev_u32 v20, 32, v20
        v_add_u32 v24, 128, v24
        v_cmp_lt_i32 vcc, 0, v20
        s_cbranch_vccz {nm}_r
        buffer_load_dwordx4 v[28:31], v24, s[40:43], 0 offen sc1
        buffer_load_dwordx4 v[32:35], v24, s[40:43], 0 offen offset:64 sc1
        s_waitcnt vmcnt(0)''')
        if whole: whole(list(range(28,36)))
        else: each_entry(body,list(range(28,36)),base)
        a(f'''s_branch {nm}_l
        {nm}_r:
        v_mov_b32 v20, v23
        {nm}_d:''')
    longseg('ls1',p1body)
    a('s_waitcnt lgkmcnt(0)\ns_barrier')
    stamp('c1')
    a(f'''v_add_u32 v36, s54, v0
    s_mov_b32 s64, {N}
    v_cmp_gt_u32 vcc, s64, v36
    s_movk_i32 s64, {BS}
    v_cmp_gt_u32 s[64:65], s64, v0
    s_and_b64 s[66:67], vcc, s[64:65]
    s_mov_b64 exec, s[66:67]
    s_cbranch_execz p2_n1
    v_lshlrev_b32 v37, 5, v0
    v_lshlrev_b32 v38, 3, v0
    ds_read_b128 v[40:43], v37 offset:{L_CNT}
    ds_read_b128 v[44:47], v37 offset:{L_CNT+16}
    ds_read_b64 v[58:59], v38 offset:{L_R0}
    s_waitcnt lgkmcnt(1)
    v_mov_b32 v48, 0
    v_mov_b32 v49, v40
    v_add_u32 v50, v49, v41
    v_add_u32 v51, v50, v42
    v_add_u32 v52, v51, v43
    v_add_u32 v53, v52, v44
    v_add_u32 v54, v53, v45
    v_add_u32 v55, v54, v46
    v_add_u32 v56, v55, v47
    v_min_u32 v57, 63, v56
    v_sub_u32 v57, 63, v57
    v_lshlrev_b32 v57, 2, v57
    ds_add_rtn_u32 v60, v57, v21 offset:{L_DH}
    p2_n1:
    s_mov_b64 exec, -1
    s_waitcnt lgkmcnt(0)
    s_barrier
    s_cmp_ge_u32 s4, 4
    s_cbranch_scc1 p2_n2
    ds_read_b32 v61, v8 offset:{L_DH}
    s_waitcnt lgkmcnt(0)
    v_mov_b32 v62, v61
    s_nop 1''')
    for m in ('row_shr:1','row_shr:2','row_shr:4','row_shr:8'):
        a(f'v_add_u32_dpp v62, v62, v62 {m} {DPP} bound_ctrl:0\ns_nop 1')
    a(f'''v_add_u32_dpp v62, v62, v62 row_bcast:15 row_mask:0xa bank_mask:0xf
    s_nop 1
    v_add_u32_dpp v62, v62, v62 row_bcast:31 row_mask:0xc bank_mask:0xf
    v_sub_u32 v62, v62, v61
    ds_bpermute_b32 v62, v57, v62
    s_mov_b64 exec, s[66:67]
    s_cbranch_execz p2_n2
    s_waitcnt lgkmcnt(0)
    v_add_u32 v60, v60, v62
    v_lshlrev_b32 v61, 20, v60''')
    for j in range(8): a(f'v_or_b32 v{48+j}, v61, v{48+j}')
    a(f'''ds_write_b128 v37, v[48:51] offset:{L_CNT}
    ds_write_b128 v37, v[52:55] offset:{L_CNT+16}''')
    line_calc(a,64,36,62,63)
    a(f'''v_lshlrev_b32 v64, 7, v64
    v_and_b32 v62, 128, v36
    v_add_u32 v65, 0x2000, v64
    v_cmp_ne_u32 vcc, 0, v62
    v_mov_b32 v66, v59
    v_or_b32 v66, v66, v0
    v_cndmask_b32 v65, v6, v65, vcc
    v_mov_b32 v67, v56
    v_lshlrev_b32 v62, 4, v60
    ds_write_b128 v62, v[64:67] offset:{L_INFO}
    v_lshlrev_b32 v62, 5, v60
    v_add_u32 v62, {L_RHO-65024}, v62
    ds_write_b32 v62, v58 offset:65024
    v_cmp_lt_u32 vcc, {CAP}, v56
    s_and_b64 exec, exec, vcc
    s_cbranch_execz p2_n2
    v_subrev_u32 v56, {CAP}, v56
    v_mov_b32 v62, {L_RED}
    ds_add_rtn_u32 v63, v62, v56
    v_lshlrev_b32 v62, 2, v60
    s_waitcnt lgkmcnt(0)
    ds_write_b32 v62, v63 offset:{L_INF2}
    p2_n2:
    s_mov_b64 exec, -1
    s_waitcnt lgkmcnt(0)
    s_barrier''')
    stamp('nd')
    a(f'''v_mov_b32 v62, {L_RED}
    ds_read_b32 v63, v62
    s_waitcnt lgkmcnt(0)
    v_readfirstlane_b32 s59, v63
    s_cmp_eq_u32 s59, 0
    s_cbranch_scc1 p2_no
    v_cmp_eq_u32 vcc, 0, v3
    s_mov_b64 exec, vcc
    ds_add_u32 v62, v10 offset:4
    s_mov_b64 exec, -1
    s_waitcnt lgkmcnt(0)
    s_barrier
    ds_read_b32 v63, v62 offset:4
    s_waitcnt lgkmcnt(0)
    v_readfirstlane_b32 s59, v63
    s_lshl_b32 s59, s59, 2
    s_add_u32 s59, s59, {OVF}
    p2_no:
    s_movk_i32 s64, 160
    s_mov_b32 s65, 0xfffff''')
    ovh=[]
    def pass2(regs):
        cur={e:40+k for k,e in enumerate(regs)}
        def b1(e):
            a(f'v_lshrrev_b32 v22, 16, v{e}\nv_and_b32 v22, 0x1ffc, v22\nds_add_rtn_u32 v{cur[e]}, v22, v21 offset:{L_CNT}')
        each_entry(b1,regs,base)
        for e in regs:
            a(f'''v_bfe_u32 v26, v{e}, 14, 3
            v_lshrrev_b32 v27, 17, v{e}
            v_bfe_u32 v26, s58, v26, 1
            v_and_b32 v{e}, 0x1ffff, v{e}
            v_and_b32 v26, v26, v27
            v_lshl_add_u32 v{e}, v26, 6, v{e}
            v_lshlrev_b32 v{e}, 7, v{e}''')
        a('s_waitcnt lgkmcnt(0)')
        def b2(e):
            l=a.lab('ov'); l2=a.lab('ov')
            a(f'''v_lshrrev_b32 v26, 20, v{cur[e]}
            v_and_b32 v25, s65, v{cur[e]}
            v_cmp_le_u32 vcc, {CAP}, v25
            v_mul_u32_u24 v22, s64, v26
            v_lshl_add_u32 v22, v25, 2, v22
            s_cbranch_vccnz {l}
            ds_write_b32 v22, v{e} offset:{L_LIST}
            {l2}:''')
            ovh.append((l,l2,e))
        each_entry(b2,regs,base)
    pass2(regs)
    longseg('ls2',None,pass2)
    a('s_waitcnt vmcnt(0) lgkmcnt(0)\ns_barrier')
    stamp('c2')
    a('s_cmp_ge_u32 s4, 13\ns_cbranch_scc1 k_end')
    a(f'''v_mov_b32 v0, v7
    v_and_b32 v1, 7, v0
    v_lshlrev_b32 v1, 4, v1
    v_lshrrev_b32 v4, 3, v0
    s_lshl_b32 s64, s4, 4
    v_add_u32 v4, s64, v4
    v_and_b32 v5, 3, v0
    v_mul_u32_u24 v6, 160, v4
    v_lshl_add_u32 v7, v5, 3, v6
    v_lshl_add_u32 v6, v5, 4, v6
    v_lshlrev_b32 v92, 4, v4''')
    for s in range(2):
        o=16+10*s
        a(f'''ds_read_b128 v[{o}:{o+3}], v6 offset:{L_LIST+1280*s}
        ds_read_b128 v[{o+4}:{o+7}], v6 offset:{L_LIST+1280*s+64}
        ds_read_b64 v[{o+8}:{o+9}], v7 offset:{L_LIST+1280*s+128}
        ds_read_b128 v[{52+4*s}:{55+4*s}], v92 offset:{L_INFO+128*s}''')
    a(f'''v_lshlrev_b32 v92, 2, v4
    ds_read_b32 v98, v92 offset:{L_INF2}
    ds_read_b32 v99, v92 offset:{L_INF2+32}
    v_mov_b32 v6, 0x3f80
    v_mov_b32 v7, 0x3f800000
    v_cmp_eq_u32 vcc, 0, v5
    v_cmp_eq_u32 s[64:65], 1, v5
    v_cmp_eq_u32 s[66:67], 2, v5
    v_cmp_eq_u32 s[68:69], 3, v5
    v_cndmask_b32 v2, 0, v6, vcc
    v_cndmask_b32 v3, 0, v6, s[66:67]
    v_cndmask_b32 v2, v2, v7, s[64:65]
    v_cndmask_b32 v3, v3, v7, s[68:69]
    s_movk_i32 s64, {BS}
    v_cmp_gt_u32 s[48:49], s64, v4
    s_movk_i32 s64, {BS-8}
    v_cmp_gt_u32 s[50:51], s64, v4
    v_lshlrev_b32 v92, 7, v4
    v_lshlrev_b32 v93, 5, v4
    v_add_u32 v93, {L_RHO}, v93
    s_waitcnt lgkmcnt(0)''')
    for s in range(2):
        i=52+4*s
        a(f'''v_add_u32 v{8+s}, v{i}, v1
        v_add_u32 v{10+s}, v{i+1}, v1
        v_and_b32 v4, 0xffff0000, v{i+2}
        v_mul_f32 v{12+s}, v4, v4
        v_cmp_eq_f32 vcc, 0, v4
        v_and_b32 v5, 0xffff, v{i+2}
        v_add_u32 v5, s54, v5
        v_cndmask_b32 v{100+s}, v4, 1.0, vcc
        v_lshl_add_u32 v{94+s}, v5, 7, v1
        v_cmp_gt_u32 vcc, s38, v{i}
        v_rcp_f32 v{14+s}, v{100+s}
        s_nop 0
        v_cndmask_b32 v{94+s}, v{i}, v{94+s}, vcc
        v_mov_b32 v{96+s}, v{i+3}''')
    a(f'''v_max_u32 v4, v96, v97
    s_nop 1
    v_max_u32_dpp v4, v4, v4 row_shr:8 {DPP} bound_ctrl:0
    s_nop 1
    v_max_u32_dpp v4, v4, v4 row_bcast:15 row_mask:0xa bank_mask:0xf
    s_nop 1
    v_max_u32_dpp v4, v4, v4 row_bcast:31 row_mask:0xc bank_mask:0xf
    s_nop 1
    v_readlane_b32 s53, v4, 63
    s_max_u32 s52, s53, {K//2}
    s_min_u32 s52, s52, {CAP}''')
    stamp('p2')
    if dump:
        a(f's_lshl_b32 s64, s2, 4\ns_add_u32 s64, s64, s4\ns_mul_i32 s64, s64, {40*256}\ns_add_u32 s64, s64, {DUMP}\nv_lshlrev_b32 v4, 2, v0\nv_add_u32 v4, s64, v4')
        for i,r in enumerate(list(range(8,36))+list(range(94,102))):
            a(f'global_store_dword v4, v{r}, s[30:31]\nv_add_u32 v4, 256, v4')
        a('v_mov_b32 v5, s53\nglobal_store_dword v4, v5, s[30:31]\nv_add_u32 v4, 256, v4\nv_mov_b32 v5, s60\nglobal_store_dword v4, v5, s[30:31]\nv_add_u32 v4, 256, v4\nds_read_b32 v5, v93\ns_waitcnt lgkmcnt(0)\nglobal_store_dword v4, v5, s[30:31]')

    if stop=='p2': a('s_endpgm')
    a(f'v_mov_b32 v4, {L_END}\nv_mov_b32 v5, 0\nds_write_b32 v4, v5')
    for s_ in range(2):
        l=a.lab('nd')
        a(f"""s_mov_b64 exec, s[{48+2*s_}:{49+2*s_}]
        s_cbranch_execz {l}
        v_lshrrev_b32 v4, 3, v92
        v_add_u32 v4, {L_ND+128*s_}, v4
        v_mov_b32 v52, v{100+s_}
        v_mov_b32 v53, v{14+s_}
        v_sub_u32 v54, v{94+s_}, v1
        v_mov_b32 v55, 0
        ds_write_b128 v4, v[52:55]
        {l}:""")
    a(f"""s_mov_b64 exec, -1
    s_mov_b32 s32, s36
    s_mov_b32 s33, s37
    s_mov_b32 s34, s38
    s_mov_b32 s35, 0x20000
    s_add_u32 s36, s36, {TSTR}
    s_addc_u32 s37, s37, 0
    s_mov_b32 s44, s8
    s_mov_b32 s45, s9
    s_mov_b32 s46, {N*128}
    s_mov_b32 s47, 0x20000
    s_mov_b32 s76, 0x3f803f80
    s_mov_b32 s3, 1
    h_top:""")
    acc=[36,44]; d0=52; off=[16,26]; va=[4,5,6,7]
    def mf(s_,sl):
        a(f'v_mfma_f32_4x4x4_16b_bf16 v[{acc[s_]}:{acc[s_]+3}], v[2:3], v[{sl}:{sl+1}], v[{acc[s_]}:{acc[s_]+3}]')
        a(f'v_mfma_f32_4x4x4_16b_bf16 v[{acc[s_]+4}:{acc[s_]+7}], v[2:3], v[{sl+2}:{sl+3}], v[{acc[s_]+4}:{acc[s_]+7}]')
    def dma(pair):
        sl=pair>>1; hf=pair&1
        a(f's_mov_b32 exec_lo, {0 if hf else -1}\ns_mov_b32 exec_hi, {-1 if hf else 0}')
        for (srd,v,o) in ((44,94+sl,0),(96,8+sl,608),(32,8+sl,1184)):
            a(f's_add_u32 m0, s95, {o-512*hf}' if o-512*hf>=0 else f's_sub_u32 m0, s95, {512*hf-o}')
            a(f's_nop 0\nbuffer_load_dwordx4 v{v}, s[{srd}:{srd+3}], 0 offen {"" if srd==44 else "sc1"} lds')
        a('s_mov_b64 exec, -1')
    a(f"""s_cmp_lg_u32 s3, 7
    s_cbranch_scc1 h_nx
    s_sub_u32 s96, s32, {TSTR}
    s_subb_u32 s97, s33, 0
    s_mov_b32 s98, {TBYTES}
    s_mov_b32 s99, 0x20000
    s_mul_i32 s95, s4, {STG}
    s_add_u32 s95, s95, {L_STAGE}""")
    dma(0)
    if stag==1:
        a('s_setprio 3\ns_cmp_ge_u32 s4, 8\ns_cbranch_scc1 h_nx\ns_setprio 2\ns_cmp_ge_u32 s4, 4\ns_cbranch_scc1 h_nx\ns_setprio 1')
    if stag==2: a('s_setprio 3')
    if stag>=4:
        G={4:(8,4,5,9),5:(6,6,7,7),6:(10,5,3,8),7:(9,5,4,8)}[stag]
        a(f'''s_setprio 3
        s_cmp_ge_u32 s4, {G[0]}
        s_cbranch_scc1 h_nx
        s_cmp_ge_u32 s4, {G[1]}
        s_cselect_b32 s64, {G[2]}, {G[3]}
        v_mov_b32 v4, {L_END}
        s_mov_b32 s65, 0
        h_g7:
        ds_read_b32 v5, v4
        s_waitcnt lgkmcnt(0)
        v_readfirstlane_b32 s66, v5
        s_cmp_ge_u32 s66, s64
        s_cbranch_scc1 h_nx
        s_sleep 1
        s_add_u32 s65, s65, 1
        s_cmp_lt_u32 s65, 0x1000000
        s_cbranch_scc1 h_g7''')
    if stag==3:
        a('s_setprio 1\ns_cmp_ge_u32 s4, 8\ns_cbranch_scc1 h_nx\ns_setprio 2\ns_cmp_ge_u32 s4, 4\ns_cbranch_scc1 h_nx\ns_setprio 3')
    a('h_nx:')
    for i in range(16): a(f'v_mov_b32 v{36+i}, 0')
    a('s_mov_b32 s77, s52\ns_mov_b32 s78, 0')
    if stag: a(f's_cmp_eq_u32 s3, 7\ns_cselect_b32 s78, {R-1}, 0')
    handlers=[]
    for u in range(CAP//2):
        j=2*u; t0=4*u
        if j<32: q=(j>>2)&3; rb=4*(j>>4)+(j&3)
        else: q=(j-32)>>1; rb=8
        if t0>=K: a(f's_cmp_ge_u32 {j}, s52\ns_cbranch_scc1 h_drain')
        if u>0:
            h=f'h_ev{u}'; a(f's_sub_u32 s77, s77, {2*R}\ns_cbranch_scc1 {h}\n{h}_r:'); handlers.append(h)
        for hh in range(2):
            for s_ in range(2):
                a(f'v_add_u32_dpp v{va[hh*2+s_]}, v{off[s_]+rb+hh}, v1 quad_perm:[{q},{q},{q},{q}] {DPP}')
        if t0>=K:
            a(f's_waitcnt vmcnt({K-4})')
            for hh in range(2):
                for s_ in range(2): mf(s_,d0+4*((t0+hh*2+s_)%K))
        for hh in range(2):
            for s_ in range(2):
                sl=d0+4*((t0+hh*2+s_)%K)
                a(f'buffer_load_dwordx4 v[{sl}:{sl+3}], v{va[hh*2+s_]}, s[32:35], 0 offen sc1')
    a('h_drain:')
    if stag>=4:
        a(f's_cmp_lg_u32 s3, 7\ns_cbranch_scc1 h_rb\nv_mov_b32 v4, {L_END}\nv_mov_b32 v5, 1\ns_mov_b64 exec, 1\nds_add_u32 v4, v5\ns_mov_b64 exec, -1')
    a(f"""h_rb:
    s_cmp_ge_u32 s78, {R-1}
    s_cbranch_scc1 h_rbd
    s_barrier
    s_add_u32 s78, s78, 1
    s_branch h_rb
    h_rbd:
    s_waitcnt vmcnt(0)""")
    for t in range(K): mf(t%2,d0+4*t)
    a(f's_cmp_gt_u32 s53, {CAP}\ns_cbranch_scc1 h_slow\nh_slow_r:\ns_nop 4')
    for s_ in range(2):
        for i in range(4): a(f'v_pk_mul_f32 v[{acc[s_]+2*i}:{acc[s_]+2*i+1}], v[{acc[s_]+2*i}:{acc[s_]+2*i+1}], v[12:13] op_sel:[0,{s_}] op_sel_hi:[1,{s_}]')
        for i in range(4): a(f'v_cvt_pk_bf16_f32 v{acc[s_]+i}, v{acc[s_]+2*i}, v{acc[s_]+2*i+1}')
    a('s_cmp_eq_u32 s3, 7\ns_cbranch_scc1 h_ns')
    for s_ in range(2):
        a(f'buffer_store_dwordx4 v[{acc[s_]}:{acc[s_]+3}], v{8+s_}, s[36:39], 0 offen sc1')
        a(f'buffer_store_dwordx4 v[{acc[s_]}:{acc[s_]+3}], v{10+s_}, s[36:39], 0 offen sc1')
    a(f"""h_ns:
    s_lshl_b32 s64, s3, 2
    s_sub_u32 s66, s3, 1
    s_mul_i32 s66, s66, {PL2}
    s_and_b32 s65, s3, 3
    s_lshl_b32 s65, s65, 6
    s_add_u32 s66, s66, s65
    s_lshr_b32 s65, s3, 2
    s_lshl_b32 s65, s65, 5
    s_add_u32 s66, s66, s65
    v_add_u32 v52, s64, v93
    v_add3_u32 v53, v1, v92, s66""")
    for s_ in range(2):
        l=a.lab('ep'); l2=a.lab('ep')
        rho_calc(a,acc[s_],54,55,14+s_,'s76')
        a(f"""s_mov_b64 exec, s[{48+2*s_}:{49+2*s_}]
        s_cbranch_execz {l}
        ds_write_b32 v52, v54 offset:{256*s_}
        s_cmp_gt_u32 s3, 4
        s_cbranch_scc1 {l}
        ds_write_b128 v53, v[{acc[s_]}:{acc[s_]+3}] offset:{1024*s_}
        {l}:
        s_mov_b64 exec, -1""")
    a('s_cmp_eq_u32 s3, 7\ns_cbranch_scc1 f_top\ns_waitcnt vmcnt(0)')
    gbarrier(a,'gb1')
    a(f"""s_mov_b32 s32, s36
    s_mov_b32 s33, s37
    s_add_u32 s36, s36, {TSTR}
    s_addc_u32 s37, s37, 0
    s_add_u32 s3, s3, 1
    s_branch h_top""")
    a('f_top:')
    if stag: a('s_setprio 0')
    stamp('h')
    if stop=='hops': a('s_endpgm')
    XA=52; XB=68; TA=84; TB=106; TQ=10; WB=[18,22,26]; Z=10; ST=[100,40]; BA=48; BB=120; BO=124
    vW=0; vOq=1; vA=30; vTr=31; vRk=32; vRq=33; vNd=34; vNs=35; vBw=104; vBr=105; vNo=92; vS=93; vAq=96
    t0_,t1_,cq,dq=2,3,4,5; sv=6; vo=7
    def tokaddr(dst,n,h,ch,t1,t2,mask):
        a(f"""v_lshlrev_b32 v{t1}, 4, v{ch}
        v_lshl_add_u32 v{t1}, v{n}, 7, v{t1}
        v_and_b32 v{t2}, 3, v{h}
        v_lshl_add_u32 v{t1}, v{t2}, 6, v{t1}
        v_lshrrev_b32 v{t2}, 2, v{h}
        v_lshl_add_u32 v{t1}, v{t2}, 5, v{t1}
        v_subrev_u32 v{t2}, 1, v{h}
        v_cmp_gt_u32 s[{mask}:{mask+1}], 4, v{t2}
        v_mul_u32_u24 v{t2}, {PL2}, v{t2}
        v_add3_u32 v{t2}, v{t2}, v{t1}, s64
        v_subrev_u32 v{dst}, 4, v{h}
        v_max_i32 v{dst}, 0, v{dst}
        v_lshl_add_u32 v{dst}, v{dst}, 9, v{t1}
        v_add_u32 v{dst}, s95, v{dst}
        v_cndmask_b32 v{dst}, v{dst}, v{t2}, s[{mask}:{mask+1}]""")
    a(f"""v_and_b32 v4, 15, v0
    v_lshrrev_b32 v5, 4, v0
    v_lshlrev_b32 v7, 4, v5
    global_load_dwordx4 v[{ST[0]}:{ST[0]+3}], v7, s[24:25]
    global_load_dwordx4 v[{ST[1]}:{ST[1]+3}], v7, s[24:25] offset:64
    s_mov_b32 exec_lo, 0x01010101
    s_mov_b32 exec_hi, 0x01010101
    buffer_load_dword v99, v94, s[44:47], 0 offen
    buffer_load_dword v99, v8, s[96:99], 0 offen sc1
    buffer_load_dword v99, v8, s[32:35], 0 offen sc1
    buffer_load_dword v99, v95, s[44:47], 0 offen
    buffer_load_dword v99, v9, s[96:99], 0 offen sc1
    buffer_load_dword v99, v9, s[32:35], 0 offen sc1
    s_mov_b64 exec, -1
    s_mov_b32 s36, s26
    s_mov_b32 s37, s27
    s_mov_b32 s38, {N*128}
    s_lshl_b32 s64, s4, 11
    v_and_b32 v18, 7, v0
    v_lshrrev_b32 v19, 3, v4
    v_bfe_u32 v11, v0, 3, 2
    v_lshl_add_u32 v11, v11, 7, v1
    v_add_u32 v{vS}, s95, v11""")
    tokaddr(vA,19,18,5,20,11,54)
    a(f"""v_lshrrev_b32 v12, 1, v5
    v_and_b32 v13, 1, v5
    v_bfe_u32 v14, v0, 2, 2
    v_lshl_add_u32 v13, v13, 2, v14
    v_and_b32 v6, 3, v0
    v_lshlrev_b32 v14, 8, v19
    v_sub_u32 v{vAq}, v{vA}, v14
    v_add_u32 v{vAq}, 0x180, v{vAq}""")
    tokaddr(vTr,12,13,6,20,11,60)
    a(f"""v_cmp_eq_u32 s[66:67], v12, v19
    v_cmp_eq_u32 s[68:69], 0, v18
    v_cmp_gt_u32 s[72:73], 2, v5
    s_lshl_b32 s64, s4, 9
    s_add_u32 s64, s64, {L_RHO}
    s_lshl_b32 s65, s4, 8
    s_add_u32 s65, s65, {L_ND}
    v_lshlrev_b32 v20, 2, v4
    v_xor_b32 v11, 0x60, v20
    v_add_u32 v14, 64, v7
    v_cndmask_b32 v{vRk}, v14, v7, s[66:67]
    v_cndmask_b32 v{vRq}, v11, v20, s[66:67]
    v_cndmask_b32 v{vBw}, v11, v20, s[72:73]
    v_cmp_gt_u32 vcc, 2, v4
    v_lshlrev_b32 v20, 4, v19
    v_xor_b32 v11, 0x30, v20
    v_cndmask_b32 v{vBr}, v14, v7, vcc
    v_cndmask_b32 v{vNd}, v11, v20, s[66:67]
    v_cndmask_b32 v{vNs}, v11, v20, s[72:73]
    v_lshlrev_b32 v{vNo}, 4, v6
    s_not_b64 s[62:63], s[66:67]""")
    for r in (vRk,vRq,vBw,vBr): a(f'v_add_u32 v{r}, s64, v{r}')
    for r in (vNd,vNs,vNo): a(f'v_add_u32 v{r}, s65, v{r}')
    a(f"""v_lshlrev_b32 v20, 2, v5
    v_sub_u32 v11, v4, v20
    v_xor_b32 v13, 8, v4
    v_sub_u32 v13, v13, v20
    v_mov_b32 v14, 0x3f80
    v_mov_b32 v15, 0x3f800000""")
    for B_,d in ((BA,11),(BB,13)):
        for hf in range(2):
            a(f"""v_cmp_eq_u32 vcc, {2*hf}, v{d}
            v_cmp_eq_u32 s[74:75], {2*hf+1}, v{d}
            v_mov_b32 v{B_+2+hf}, 0
            v_cndmask_b32 v{B_+hf}, 0, v14, vcc
            v_cndmask_b32 v{B_+hf}, v{B_+hf}, v15, s[74:75]""")
    for i in range(4): a(f'v_mov_b32 v{BO+i}, 0')
    a(f"""v_cmp_eq_u32 s[56:57], v4, v12
    v_add_u32 v12, 2, v12
    v_cmp_eq_u32 s[58:59], v4, v12
    v_mov_b32 v{vOq}, v7
    v_lshlrev_b32 v{vW}, 4, v0
    v_add_u32 v{vW}, {L_W}, v{vW}
    v_cmp_eq_u32 s[70:71], 0, v6
    v_cmp_eq_u32 s[74:75], 1, v6
    v_mov_b32 v20, s76
    s_waitcnt vmcnt(6)
    v_dot2_f32_bf16 v13, v{ST[0]}, s76, 0""")
    for r in [ST[0]+1,ST[0]+2,ST[0]+3,ST[1],ST[1]+1,ST[1]+2,ST[1]+3]: a(f'v_dot2_f32_bf16 v13, v{r}, s76, v13')
    for b in ST:
        for i in range(4): a(f'v_cndmask_b32 v{b+i}, 0, v{b+i}, s[74:75]\nv_cndmask_b32 v{b+i}, v{b+i}, v20, s[70:71]')
    a(f"""v_readlane_b32 s64, v13, 0
    v_readlane_b32 s65, v13, 16
    v_readlane_b32 s74, v13, 32
    v_readlane_b32 s79, v13, 48
    v_mov_b32 v20, s64
    v_add_f32 v20, s65, v20
    v_add_f32 v20, s74, v20
    v_add_f32 v20, s79, v20
    v_mul_f32 v20, 0x3c800000, v20
    s_mov_b32 s74, 0x3e38aa3b
    v_readfirstlane_b32 s79, v20
    s_mov_b32 s70, 0x000f000f
    s_mov_b32 s71, 0x000f000f
    f_loop:""")
    stamp('fl')
    order=[(0,T,s_) for T in range(4) for s_ in range(2)]+[(1,T,s_) for T in (0,2,3,1) for s_ in range(2)]
    def pk(op,d,x,y,z=None,bc=False,neg=False):
        m=' op_sel_hi:[1,0]' if bc and z is None else (' op_sel_hi:[1,0,0]' if bc else '')
        if neg: m+=' neg_lo:[0,0,1] neg_hi:[0,0,1]'
        a(f'v_pk_{op}_f32 v[{d}:{d+1}], v[{x}:{x+1}], v[{y}:{y+1}]'+(f', v[{z}:{z+1}]' if z is not None else '')+m)
    for pair in range(npairs):
        q_=[]
        ro=128*pair; no=64*pair
        def wait_for(names):
            idx=max(q_.index(n) for n in names if n in q_) if any(n in q_ for n in names) else -1
            if idx>=0:
                left=len(q_)-idx-1
                a(f's_waitcnt lgkmcnt({left})'); del q_[:idx+1]
        def issue(txt,name): a(txt); q_.append(name)
        u7=36+8*(pair>>1)
        a(f"""s_mov_b32 exec_lo, {0 if pair&1 else -1}
        s_mov_b32 exec_hi, {-1 if pair&1 else 0}
        ds_write_b128 v{vS}, v[{u7}:{u7+3}] offset:1760
        s_mov_b64 exec, -1""")
        issue(f'ds_read_b128 v[{WB[0]}:{WB[0]+3}], v{vW}','f0')
        issue(f'ds_read_b128 v[{WB[1]}:{WB[1]+3}], v{vW} offset:1024','f1')
        issue(f'ds_read_b128 v[{WB[2]}:{WB[2]+3}], v{vW} offset:2048','f2')
        if pair: a('s_waitcnt vmcnt(2)')
        issue(f'ds_read_b128 v[{TA}:{TA+3}], v{vA}','ta0')
        issue(f'ds_read_b128 v[{TQ}:{TQ+3}], v{vAq}','tq0')
        issue(f'ds_read_b128 v[{TA+4}:{TA+7}], v{vA} offset:64','ta1')
        issue(f'ds_read_b128 v[{TQ+4}:{TQ+7}], v{vAq} offset:64','tq1')
        issue(f'ds_read_b128 v[{TB}:{TB+3}], v{vA} offset:256','tb0')
        issue(f'ds_read_b128 v[{TB+4}:{TB+7}], v{vA} offset:320','tb1')
        Sm=TQ; RK=TQ+4
        def packV(T,tro):
            for X_,o in ((XA,0),(XB,256)):
                A=X_+4*T
                a(f'v_cvt_pk_bf16_f32 v{A+3}, v{A+2}, v{A+3}\nv_cvt_pk_bf16_f32 v{A+2}, v{A}, v{A+1}')
                issue(f'ds_read_b64_tr_b16 v[{A}:{A+1}], v{vTr} offset:{o+tro}',f'u{T}{o}')
        for n,(m,T,s_) in enumerate(order):
            b=WB[n%3]
            need=[f'f{n}']
            if n==0: need+=['ta0','tq0']
            if n==1: need+=['ta1','tq1']
            wait_for(need)
            for X_,tk in ((XA,TA),(XB,TQ if m==0 else TB)):
                c=f'v[{X_+4*T}:{X_+4*T+3}]' if s_ else '0'
                if m==0: a(f'v_mfma_f32_16x16x32_bf16 v[{X_+4*T}:{X_+4*T+3}], v[{b}:{b+3}], v[{tk+4*s_}:{tk+4*s_+3}], {c}')
                else: a(f'v_mfma_f32_16x16x32_bf16 v[{X_+4*T}:{X_+4*T+3}], v[{tk+4*s_}:{tk+4*s_+3}], v[{b}:{b+3}], {c}')
            if n+3<16:
                m2,T2,s2=order[n+3]
                issue(f'ds_read_b128 v[{b}:{b+3}], v{vW} offset:{8192*m2+2048*T2+1024*s2}',f'f{n+3}')
            if n==5:
                for X_ in (XA,XB):
                    a(f'v_cvt_pk_bf16_f32 v{X_}, v{X_}, v{X_+1}\nv_cvt_pk_bf16_f32 v{X_+1}, v{X_+2}, v{X_+3}\nv_cvt_pk_bf16_f32 v{X_+2}, v{X_+4}, v{X_+5}\nv_cvt_pk_bf16_f32 v{X_+3}, v{X_+6}, v{X_+7}')
            if n==7:
                wait_for(['tb0','tb1'])
                a(f'v_mfma_f32_16x16x32_bf16 v[{XA+4}:{XA+7}], v[{TA}:{TA+3}], v[{XA}:{XA+3}], 0\nv_mfma_f32_16x16x32_bf16 v[{XB+4}:{XB+7}], v[{TB}:{TB+3}], v[{XB}:{XB+3}], 0')
                issue(f'ds_read_b128 v[{RK}:{RK+3}], v{vRk} offset:{ro}','rk')
                issue(f'ds_read_b32 v{cq}, v{vRq} offset:{ro}','rq')
                issue(f'ds_read_b32 v{dq}, v{vNd} offset:{no}','nd')
                a('s_nop 0')
                for X_ in (XA,XB):
                    A=X_+8
                    a(f'v_cvt_pk_bf16_f32 v{A}, v{A}, v{A+1}\nv_cvt_pk_bf16_f32 v{A+1}, v{A+2}, v{A+3}\nv_cvt_pk_bf16_f32 v{A+2}, v{A+4}, v{A+5}\nv_cvt_pk_bf16_f32 v{A+3}, v{A+6}, v{A+7}')
                a(f's_nop 0\nv_mfma_f32_16x16x32_bf16 v[{XA+4}:{XA+7}], v[{TA+4}:{TA+7}], v[{XA+8}:{XA+11}], v[{XA+4}:{XA+7}]\nv_mfma_f32_16x16x32_bf16 v[{XB+4}:{XB+7}], v[{TB+4}:{TB+7}], v[{XB+8}:{XB+11}], v[{XB+4}:{XB+7}]')
            if n==10:
                wait_for(['rk','rq','nd'])
                a('s_mov_b64 exec, s[66:67]')
                pk('mul',Sm,XA+4,RK); pk('mul',Sm+2,XA+6,RK+2)
                a('s_mov_b64 exec, s[62:63]')
                pk('mul',Sm,XB+4,RK); pk('mul',Sm+2,XB+6,RK+2)
                a(f's_mov_b64 exec, -1\nv_mul_f32 v{cq}, s74, v{cq}\nv_cndmask_b32 v{dq}, v{dq}, 1.0, s[68:69]')
                a(f'v_max3_f32 v{t0_}, v{Sm}, v{Sm+1}, v{Sm+2}\nv_max_f32 v{t0_}, v{t0_}, v{Sm+3}\nv_mov_b32 v{t1_}, v{t0_}')
            if n==11:
                a(f'v_permlane16_swap_b32 v{t0_}, v{t1_}\nv_max_f32 v{t0_}, v{t0_}, v{t1_}\nv_mul_f32 v{t0_}, v{cq}, v{t0_}')
                pk('fma',Sm,Sm,cq,t0_,bc=True,neg=True); pk('fma',Sm+2,Sm+2,cq,t0_,bc=True,neg=True)
                for r in range(4): a(f'v_exp_f32 v{Sm+r}, v{Sm+r}')
            if n==12:
                a(f'v_add_f32 v{t0_}, v{Sm}, v{Sm+1}\nv_add_f32 v{t1_}, v{Sm+2}, v{Sm+3}\nv_add_f32 v{t0_}, v{t0_}, v{t1_}\nv_mov_b32 v{t1_}, v{t0_}')
                pk('mul',Sm,Sm,RK); pk('mul',Sm+2,Sm+2,RK+2)
            if n==13:
                a(f'v_permlane16_swap_b32 v{t0_}, v{t1_}\nv_add_f32 v{t0_}, v{t0_}, v{t1_}\nv_rcp_f32 v{t0_}, v{t0_}')
                packV(0,0)
                a(f'v_mul_f32 v{t0_}, v{dq}, v{t0_}')
                pk('mul',Sm,Sm,t0_,bc=True); pk('mul',Sm+2,Sm+2,t0_,bc=True)
            if n==14:
                a(f"""s_mov_b64 exec, s[66:67]
                v_cvt_pk_bf16_f32 v{BA+2}, v{Sm}, v{Sm+1}
                v_cvt_pk_bf16_f32 v{BA+3}, v{Sm+2}, v{Sm+3}
                s_mov_b64 exec, s[62:63]
                v_cvt_pk_bf16_f32 v{BB+2}, v{Sm}, v{Sm+1}
                v_cvt_pk_bf16_f32 v{BB+3}, v{Sm+2}, v{Sm+3}
                s_mov_b64 exec, -1""")
                packV(2,64)
        packV(3,72)
        issue(f'ds_read_b32 v{sv}, v{vNs} offset:{no+4}','ns')
        issue(f'ds_read_b32 v{vo}, v{vNo} offset:{no+8}','no')
        packV(1,8)
        for T in (0,2,3,1):
            wait_for([f'u{T}0'])
            a(f'v_mfma_f32_16x16x32_bf16 v[{Z+4*T}:{Z+4*T+3}], v[{XA+4*T}:{XA+4*T+3}], v[{BA}:{BA+3}], 0')
        for T in (0,2,3,1):
            wait_for([f'u{T}256'])
            a(f'v_mfma_f32_16x16x32_bf16 v[{XA+4*T}:{XA+4*T+3}], v[{XB+4*T}:{XB+4*T+3}], v[{BB}:{BB+3}], 0')
        a(f'v_cndmask_b32 v{sv}, v{sv}, 1.0, s[68:69]\nv_add_u32 v{vo}, v{vo}, v{vOq}')
        for i in (0,1,4,5,6,7,2,3): a(f'v_cvt_pk_bf16_f32 v{TA+i}, v{Z+2*i}, v{Z+2*i+1}')
        issue(f'ds_write_b128 v{vA}, v[{TA}:{TA+3}]','w0'); issue(f'ds_write_b128 v{vA}, v[{TA+4}:{TA+7}] offset:64','w1')
        for i in (0,1,4,5,6,7,2,3): a(f'v_cvt_pk_bf16_f32 v{TB+i}, v{XA+2*i}, v{XA+2*i+1}')
        issue(f'ds_write_b128 v{vAq}, v[{TB}:{TB+3}]','w2'); issue(f'ds_write_b128 v{vAq}, v[{TB+4}:{TB+7}] offset:64','w3')
        a(f"""v_mfma_f32_16x16x32_bf16 v[{XB}:{XB+3}], v[{ST[0]}:{ST[0]+3}], v[{TA}:{TA+3}], 0
        v_mfma_f32_16x16x32_bf16 v[{XB+4}:{XB+7}], v[{ST[0]}:{ST[0]+3}], v[{TB}:{TB+3}], 0
        v_mfma_f32_16x16x32_bf16 v[{XB}:{XB+3}], v[{ST[1]}:{ST[1]+3}], v[{TA+4}:{TA+7}], v[{XB}:{XB+3}]
        v_mfma_f32_16x16x32_bf16 v[{XB+4}:{XB+7}], v[{ST[1]}:{ST[1]+3}], v[{TB+4}:{TB+7}], v[{XB+4}:{XB+7}]""")
        for T in range(4):
            o=(0,8,64,72)[T]
            issue(f'ds_read_b64_tr_b16 v[{Z+4*T}:{Z+4*T+1}], v{vTr} offset:{o}',f'o{T}a')
            issue(f'ds_read_b64_tr_b16 v[{Z+4*T+2}:{Z+4*T+3}], v{vTr} offset:{256+o}',f'o{T}b')
        qa,qb,t2,t3=XB+12,XB+13,XB+14,XB+15
        for i in range(8):
            a(f'v_dot2_f32_bf16 v{qa}, v{TA+i}, v{TA+i}, {"0" if i==0 else f"v{qa}"}\nv_dot2_f32_bf16 v{qb}, v{TB+i}, v{TB+i}, {"0" if i==0 else f"v{qb}"}')
        a(f"""v_cndmask_b32 v{XB}, v{XB+4}, v{XB}, s[72:73]
        v_cndmask_b32 v{XB+1}, v{XB+5}, v{XB+1}, s[72:73]
        v_mul_f32 v{t2}, 0x3e000000, v{XB}
        v_permlane32_swap_b32 v{qa}, v{qb}
        v_add_f32 v{qa}, v{qa}, v{qb}
        v_mov_b32 v{qb}, v{qa}
        v_fma_f32 v{t3}, -v{XB}, s79, v{XB+1}
        v_mul_f32 v{XB}, 0x3e000000, v{sv}
        v_permlane16_swap_b32 v{qa}, v{qb}
        v_add_f32 v{qa}, v{qa}, v{qb}
        v_mul_f32 v{XB}, v{XB}, v{XB}
        v_fma_f32 v{qa}, -v{t2}, v{t2}, v{qa}
        v_max_f32 v{qa}, 0, v{qa}
        v_fmaak_f32 v{qa}, v{XB}, v{qa}, {EPS}
        v_rsq_f32 v{qa}, v{qa}
        v_mul_f32 v{t3}, v{sv}, v{t3}
        v_mul_f32 v{t3}, 0x3fb8aa3b, v{t3}
        v_mul_f32 v{qa}, v{qa}, v{t3}""")
        if pair<npairs-1: a(f's_mov_b64 exec, s[54:55]\nv_add_u32 v{vA}, 0x200, v{vA}\nv_add_u32 v{vAq}, 0x200, v{vAq}\ns_mov_b64 exec, -1')
        else: a('s_nop 1')
        a(f"""v_max_f32_dpp v{qb}, v{qa}, v{qa} quad_perm:[1,0,3,2] {DPP}
        s_nop 1
        v_max_f32_dpp v{qb}, v{qb}, v{qb} quad_perm:[2,3,0,1] {DPP}
        s_nop 1
        v_max_f32_dpp v{qb}, v{qb}, v{qb} row_half_mirror {DPP}
        v_sub_f32 v{qa}, v{qa}, v{qb}
        v_exp_f32 v{qa}, v{qa}""")
        if pair<npairs-1: a(f's_mov_b64 exec, s[60:61]\nv_add_u32 v{vTr}, 0x200, v{vTr}\ns_mov_b64 exec, -1')
        else: a('s_nop 1')
        a(f"""v_add_f32_dpp v{qb}, v{qa}, v{qa} quad_perm:[1,0,3,2] {DPP}
        s_nop 1
        v_add_f32_dpp v{qb}, v{qb}, v{qb} quad_perm:[2,3,0,1] {DPP}
        s_nop 1
        v_add_f32_dpp v{qb}, v{qb}, v{qb} row_half_mirror {DPP}
        v_rcp_f32 v{qb}, v{qb}
        v_mul_f32 v{qa}, v{sv}, v{qa}
        v_mul_f32 v{qa}, v{qa}, v{qb}
        ds_write_b32 v{vBw}, v{qa} offset:{ro}
        ds_read_b128 v[{XB}:{XB+3}], v{vBr} offset:{ro}
        s_waitcnt lgkmcnt(2)""")
        if pair==0: a('s_cmp_eq_u32 s4, 12\ns_cbranch_scc1 f_nd0')
        if pair<npairs-1: dma(pair+1)
        if pair==0: a('f_nd0:')
        a(f"""s_waitcnt lgkmcnt(0)
        s_mov_b64 exec, s[56:57]
        v_cvt_pk_bf16_f32 v{BO}, v{XB}, v{XB+1}
        v_cvt_pk_bf16_f32 v{BO+1}, v{XB+2}, v{XB+3}
        s_mov_b64 exec, s[58:59]
        v_cvt_pk_bf16_f32 v{BO+2}, v{XB}, v{XB+1}
        v_cvt_pk_bf16_f32 v{BO+3}, v{XB+2}, v{XB+3}
        s_mov_b64 exec, -1
        s_nop 0""")
        for T in range(4):
            a(f'v_mfma_f32_16x16x32_bf16 v[{XA+4*T}:{XA+4*T+3}], v[{Z+4*T}:{Z+4*T+3}], v[{BO}:{BO+3}], 0')
        a('s_nop 4')
        for i in range(8): a(f'v_cvt_pk_bf16_f32 v{XB+8+i}, v{XA+2*i}, v{XA+2*i+1}')
        a(f"""s_mov_b64 exec, s[70:71]
        buffer_store_dwordx4 v[{XB+8}:{XB+11}], v{vo}, s[36:39], 0 offen {OUTPOL}
        buffer_store_dwordx4 v[{XB+12}:{XB+15}], v{vo}, s[36:39], 0 offen offset:64 {OUTPOL}
        s_mov_b64 exec, -1""")
        if pair==0: a('s_cmp_eq_u32 s4, 12\ns_cbranch_scc1 f_done')
    a('f_done:')
    stamp('f')
    if stamps:
        a('s_waitcnt vmcnt(0)')
        stamp('e')
        a(f's_waitcnt lgkmcnt(0)\ns_lshl_b32 s64, s2, 4\ns_add_u32 s64, s64, s4\ns_lshl_b32 s64, s64, 7\ns_add_u32 s64, s64, {DUMP}\nv_mov_b32 v4, s64\ns_mov_b64 exec, 1')
        for i in range(len(stamps)): a(f'v_mov_b32 v5, s{80+2*i}\nglobal_store_dword v4, v5, s[30:31] offset:{4*i}')
    a('k_end:\ns_endpgm')
    for h in handlers:
        a(f'{h}:\ns_cmp_ge_u32 s78, {R-1}\ns_cbranch_scc1 {h}_r\ns_add_u32 s78, s78, 1\ns_barrier\ns_add_u32 s77, s77, s52\ns_cbranch_scc0 {h}\ns_branch {h}_r')
    a(f"""h_slow:
    s_mov_b32 s64, {CAP}
    v_and_b32 v4, 3, v0
    v_lshlrev_b32 v4, 2, v4
    h_sl:""")
    for s_ in range(2):
        a(f"""v_add_u32 v5, s64, v4
        v_add_u32 v6, v5, v{98+s_}
        v_subrev_u32 v6, {CAP}, v6
        v_lshlrev_b32 v6, 2, v6
        v_sub_u32 v5, v{96+s_}, v5
        v_mov_b32 v7, {OOBV}
        buffer_load_dwordx4 v[102:105], v6, s[40:43], s59 offen
        s_waitcnt vmcnt(0)""")
        for r in range(4): a(f'v_cmp_lt_i32 vcc, {r}, v5\ns_nop 1\nv_cndmask_b32 v{102+r}, v7, v{102+r}, vcc')
        for hb in range(2):
            a('s_nop 1')
            for t in range(8):
                e=8*hb+t
                a(f'v_add_u32_dpp v7, v{102+(e&3)}, v1 quad_perm:[{e>>2},{e>>2},{e>>2},{e>>2}] {DPP}\nbuffer_load_dwordx4 v[{d0+4*t}:{d0+4*t+3}], v7, s[32:35], 0 offen sc1')
            a('s_waitcnt vmcnt(0)')
            for t in range(8): mf(s_,d0+4*t); a('s_nop 0')
    a('s_add_u32 s64, s64, 16\ns_cmp_lt_u32 s64, s53\ns_cbranch_scc1 h_sl\ns_branch h_slow_r')
    for l,l2,e in ovh:
        a(f'''{l}:
        s_mov_b64 s[70:71], exec
        s_andn2_b64 exec, exec, vcc
        ds_write_b32 v22, v{e} offset:{L_LIST}
        s_and_b64 exec, s[70:71], vcc
        v_lshlrev_b32 v26, 2, v26
        ds_read_b32 v26, v26 offset:{L_INF2}
        v_subrev_u32 v25, {CAP}, v25
        s_waitcnt lgkmcnt(0)
        v_add_lshl_u32 v25, v25, v26, 2
        buffer_store_dword v{e}, v25, s[40:43], s59 offen
        s_mov_b64 exec, s[70:71]
        s_branch {l2}''')
    a('k_last:')
    t=a.text()
    pf=''.join(f'    global_load_dword v127, v2, s[64:65]\n    v_add_u32 v2, 0x2000, v2\n' for i in range(3))
    pf+='    v_cmp_gt_u32 vcc, k_last-k_pc-128, v2\n    s_and_saveexec_b64 s[66:67], vcc\n    s_cbranch_execz k_pf2\n    global_load_dword v127, v2, s[64:65]\nk_pf2:\n    s_mov_b64 exec, -1\n'
    return t.replace('    CODEPF\n',pf)

HDR=open('gather_scatter__hybrid_graph_tf_nagphormer__graph.s.ref').read().split('; Override launch')[0]
def wrap(body):
    return HDR+f'''; @launch grid=(256,1,1) block=(1024,1,1) lds={LDS_BYTES}
.amdgcn_target "amdgcn-amd-amdhsa--gfx950"
.text
.globl {KNAME}
.p2align 8
.type {KNAME},@function
{KNAME}:
'''+body+f'''.section .rodata,"a"
.p2align 6
.amdhsa_kernel {KNAME}
  .amdhsa_next_free_vgpr 128
  .amdhsa_next_free_sgpr 102
  .amdhsa_accum_offset 128
  .amdhsa_group_segment_fixed_size 0
  .amdhsa_kernarg_size 96
  .amdhsa_user_sgpr_count 2
  .amdhsa_user_sgpr_kernarg_segment_ptr 1
  .amdhsa_system_sgpr_workgroup_id_x 1
  .amdhsa_float_denorm_mode_32 3
.end_amdhsa_kernel
'''
if __name__=='__main__':
    import ast
    kw=dict(x.split('=') for x in sys.argv[2:])
    for k in kw:
        try: kw[k]=ast.literal_eval(kw[k])
        except Exception: pass
    if 'stamps' in kw: kw['stamps']=kw['stamps'].split(',')
    open(sys.argv[1],'w').write(wrap(gen(**kw)))
```

```python
import sys
from lay import *
KNAME='gather_scatter__hybrid_graph_tf_nagphormer__graph_kernel'
class Asm:
    def __init__(s): s.l=[]; s.u=0
    def __call__(s,t):
        for x in t.strip('\n').split('\n'):
            x=x.strip()
            if x: s.l.append(x if x.endswith(':') else '    '+x)
    def lab(s,p='L'): s.u+=1; return f'{p}{s.u}'
    def text(s): return '\n'.join(s.l)+'\n'
DPP='row_mask:0xf bank_mask:0xf'
EPS='0x3727c5ac'
OUTPOL='sc1'

def line_calc(a,dst,n,t,u):
    a(f'''v_lshrrev_b32 v{t}, 8, v{n}
    v_mul_u32_u24 v{u}, 205, v{t}
    v_lshl_add_u32 v{dst}, v{t}, 7, v{n}
    v_lshrrev_b32 v{u}, 13, v{u}
    v_lshrrev_b32 v{t}, 1, v{n}
    v_lshl_add_u32 v{dst}, v{u}, 10, v{dst}
    v_bitop3_b32 v{t}, v{t}, v{n}, 64 bitop3:0x80
    v_add_u32 v{dst}, v{dst}, v{t}''')

def rho_calc(a,X,sm,sq,vs,sones):
    a(f'v_dot2_f32_bf16 v{sm}, v{X}, {sones}, 0\nv_dot2_f32_bf16 v{sq}, v{X}, v{X}, 0')
    for i in range(1,4):
        a(f'v_dot2_f32_bf16 v{sm}, v{X+i}, {sones}, v{sm}\nv_dot2_f32_bf16 v{sq}, v{X+i}, v{X+i}, v{sq}')
    a('s_nop 2')
    for m in ('quad_perm:[1,0,3,2]','quad_perm:[2,3,0,1]','row_half_mirror'):
        a(f'v_add_f32_dpp v{sm}, v{sm}, v{sm} {m} {DPP}\nv_add_f32_dpp v{sq}, v{sq}, v{sq} {m} {DPP}\ns_nop 0')
    a(f'''v_mul_f32 v{sm}, 0x3c800000, v{sm}
    v_mul_f32 v{sq}, 0x3c800000, v{sq}
    v_fma_f32 v{sq}, -v{sm}, v{sm}, v{sq}
    v_max_f32 v{sq}, 0, v{sq}''')
    if vs is not None: a(f'v_mul_f32 v{sq}, v{vs}, v{sq}\nv_mul_f32 v{sq}, v{vs}, v{sq}')
    a(f'v_add_f32 v{sq}, {EPS}, v{sq}\nv_rsq_f32 v{sm}, v{sq}\ns_nop 0')
    if vs is not None: a(f'v_mul_f32 v{sm}, v{vs}, v{sm}')

def baraddr(a,base):
    a(f'''s_and_b32 s64, s2, 7
    s_lshr_b32 s65, s64, 2
    s_xor_b32 s65, s65, s63
    s_lshl_b32 s65, s65, 13
    s_lshl_b32 s64, s64, 8
    s_add_u32 s64, s64, s65
    s_add_u32 s56, s64, {base}
    s_xor_b32 s65, s6, s63
    s_lshl_b32 s65, s65, 13
    s_and_b32 s64, s7, 7
    s_lshl_b32 s64, s64, 8
    s_add_u32 s64, s64, s65
    s_mov_b32 s75, {base+4096}
    s_add_u32 s57, s64, s75''')

def gbarrier(a,nm,first=False,pf=None):
    a(f's_add_u32 s62, s62, 1\ns_barrier\ns_cmp_lg_u32 s4, 0\ns_cbranch_scc1 {nm}_{"f" if pf else "w"}')
    a('s_mov_b64 exec, 1')
    if first:
        a(f"""v_mov_b32 v4, {L_RED}
        ds_read_b32 v5, v4 offset:12
        s_cmp_lg_u32 s63, 0
        s_cbranch_scc1 {nm}_id
        v_mov_b32 v4, 0
        s_mov_b32 s64, 0
        {nm}_i:
        global_load_dword v6, v4, s[28:29] sc1
        s_waitcnt vmcnt(0)
        v_readfirstlane_b32 s63, v6
        s_cmp_lg_u32 s63, 0
        s_cbranch_scc1 {nm}_id
        s_sleep 2
        s_add_u32 s64, s64, 1
        s_cmp_lt_u32 s64, 0x400000
        s_cbranch_scc1 {nm}_i
        {nm}_id:
        s_mov_b32 s63, 0
        v_mov_b32 v4, s56
        s_waitcnt lgkmcnt(0)
        global_atomic_add v6, v4, v5, s[30:31] sc0 sc1
        v_mov_b32 v4, s57
        s_waitcnt vmcnt(0)
        v_add_u32 v5, v5, v6
        s_nop 0
        v_readfirstlane_b32 s65, v5
        s_and_b32 s64, s65, 0xff
        s_cmp_lg_u32 s64, 32
        s_cbranch_scc1 {nm}_np
        s_sub_u32 s65, s65, 31""")
    else:
        a(f"""v_mov_b32 v4, s56
        v_mov_b32 v5, 1
        global_atomic_add v6, v4, v5, s[30:31] sc0 sc1
        s_lshl_b32 s64, s62, 5
        s_sub_u32 s64, s64, 1
        v_mov_b32 v4, s57
        s_waitcnt vmcnt(0)
        v_readfirstlane_b32 s65, v6
        s_cmp_lg_u32 s65, s64
        s_cbranch_scc1 {nm}_np
        s_mov_b32 s65, 1""")
    a(f"""s_mov_b64 exec, 0xff
    v_mbcnt_lo_u32_b32 v6, -1, 0
    v_lshrrev_b32 v7, 2, v6
    v_xor_b32 v7, s63, v7
    v_lshlrev_b32 v7, 13, v7
    v_lshl_add_u32 v6, v6, 8, v7
    v_add_u32 v6, s75, v6
    v_mov_b32 v5, s65
    global_atomic_add v6, v5, s[30:31] sc1
    s_mov_b64 exec, 1
    {nm}_np:
    s_lshl_b32 s64, s62, 3
    s_mov_b32 s65, 0
    {nm}_p:
    global_load_dword v6, v4, s[30:31] sc1
    s_waitcnt vmcnt(0)""")
    if first: a('v_and_b32 v7, 0xff, v6\nv_cmp_gt_u32 vcc, s64, v7')
    else: a('v_cmp_gt_u32 vcc, s64, v6')
    a(f"""s_cbranch_vccz {nm}_pd
    s_add_u32 s65, s65, 1
    s_cmp_lt_u32 s65, 0x800000
    s_cbranch_scc1 {nm}_p
    {nm}_pd:""")
    if first: a('v_readfirstlane_b32 s60, v6')
    a('s_mov_b64 exec, -1')
    if pf:
        a(f's_branch {nm}_w\n{nm}_f:')
        n0,n1,sl=pf
        def ex(lo,hi):
            m=((1<<(16*hi))-1)^((1<<(16*lo))-1)
            a(f's_mov_b32 exec_lo, {m&0xffffffff:#x}\ns_mov_b32 exec_hi, {m>>32:#x}')
        if n0: ex(0,n0); a('buffer_load_dword v127, v126, s[36:39], 0 offen sc1')
        if n1>n0:
            if sl: a(f's_sleep {sl}')
            ex(n0,n1); a('buffer_load_dword v127, v126, s[36:39], 0 offen sc1')
        a('s_mov_b64 exec, -1')
    a(f"""{nm}_w:
    s_barrier""")

def probe(a,nm,voff,res):
    a(f'v_add_u32 v{voff+1}, 0x2000, v{voff}\nv_mov_b32 v{voff+2}, 0\ns_mov_b32 s66, -1\ns_mov_b32 s67, -1\ns_mov_b32 s72, 0\n{nm}:')
    for s in range(2):
        a(f'''s_memtime s[68:69]
        s_waitcnt lgkmcnt(0)
        global_atomic_add v{voff+3}, v{voff+s}, v{voff+2}, s[30:31] sc0 sc1
        s_waitcnt vmcnt(0)
        s_memtime s[70:71]
        s_waitcnt lgkmcnt(0)
        s_sub_u32 s70, s70, s68
        s_min_u32 s{66+s}, s{66+s}, s70''')
    a(f's_add_u32 s72, s72, 1\ns_cmp_lt_u32 s72, 3\ns_cbranch_scc1 {nm}')
    a(f's_cmp_gt_u32 s66, s67\ns_cselect_b32 s{res}, 1, 0\ns_xor_b32 s{res}, s{res}, s6')

def gen(K=8,R=12,RB=None,pf=None,pdrain=True,stop=None,dump=False,stamps=False,npairs=4,stag=0,nprobe=4,xpos=2,pearly=False):
    a=Asm()
    if RB is None: RB=R-1
    def stamp(nm):
        if stamps and nm in stamps:
            i=stamps.index(nm); a(f's_memrealtime s[{80+2*i}:{81+2*i}]')
        if stamps and nm+'c' in stamps:
            i=stamps.index(nm+'c'); a(f's_memtime s[{80+2*i}:{81+2*i}]')
    def hstamp(nm):
        if stamps and nm in stamps:
            l=a.lab('hs'); i=stamps.index(nm)
            a(f's_cmp_lg_u32 s3, 4\ns_cbranch_scc1 {l}\ns_memrealtime s[{80+2*i}:{81+2*i}]\n{l}:')
    a(f"""s_cmp_ge_u32 s2, 256
    s_cbranch_scc1 k_end
    s_load_dwordx16 s[8:23], s[0:1], 0
    s_load_dwordx8 s[24:31], s[0:1], 64
    v_lshrrev_b32 v1, 6, v0
    s_and_b32 s5, s2, 7
    v_readfirstlane_b32 s4, v1
    s_lshl_b32 s5, s5, 5
    s_lshr_b32 s3, s2, 3
    s_add_u32 s5, s5, s3
    s_mov_b32 s62, 0
    s_mul_i32 s54, s5, {BS}
    v_lshlrev_b32 v10, 4, v0""")
    stamp('s')
    def wsinit():
        a(f"""s_add_u32 s30, s30, 0x1fffff
        s_addc_u32 s31, s31, 0
        s_and_b32 s30, s30, 0xffe00000
        s_mov_b32 s36, s30
        s_mov_b32 s37, s31
        s_mov_b32 s38, {TBYTES}
        s_mov_b32 s39, 0x20000
        s_add_u32 s40, s30, {SMALL}
        s_addc_u32 s41, s31, 0
        s_mov_b32 s42, {SMALL_BYTES}
        s_mov_b32 s43, 0x20000
        s_getreg_b32 s7, hwreg(HW_REG_XCC_ID, 0, 4)
        s_lshr_b32 s6, s7, 2
        s_mov_b64 s[56:57], 0
        s_mov_b32 s60, 0
        s_and_b32 s6, s6, 1""")
    def ldsinit(z):
        for k in range(4): a(f'v_mov_b32 v{z+k}, 0\nv_mov_b32 v{z+4+k}, {OOBV}')
        o=f'v[{z+4}:{z+7}]'; zz=f'v[{z}:{z+3}]'
        a(f"""ds_write_b128 v10, {o} offset:{L_LIST}
        v_add_u32 v1, 13312, v10
        ds_write_b128 v1, {o} offset:{L_LIST}
        v_add_u32 v1, 26624, v10
        s_movk_i32 s64, 416
        v_cmpx_gt_u32 vcc, s64, v0
        ds_write_b128 v1, {o} offset:{L_LIST}
        ds_write_b128 v10, {zz} offset:{L_CNT}
        s_movk_i32 s64, 208
        v_cmpx_gt_u32 vcc, s64, v0
        ds_write_b128 v10, v[{z+2}:{z+5}] offset:{L_INFO}
        s_movk_i32 s64, 84
        v_cmpx_gt_u32 vcc, s64, v0
        ds_write_b128 v10, {zz} offset:{L_HIST}
        s_mov_b64 exec, -1""")
    a(f"""s_cmp_ge_u32 s4, 13
    s_cbranch_scc1 p1_help
    v_lshrrev_b32 v2, 3, v0
    v_add_u32 v3, s54, v2
    v_add_u32 v4, 104, v3
    v_and_b32 v5, 7, v0
    v_lshlrev_b32 v5, 4, v5
    v_lshl_add_u32 v6, v3, 7, v5
    v_lshl_add_u32 v7, v4, 7, v5
    v_lshlrev_b32 v8, 1, v3
    v_lshlrev_b32 v9, 1, v4
    s_mul_i32 s55, s2, {CHE*4}
    v_add_u32 v11, s55, v10
    s_add_u32 s55, s55, {CHUNK}
    s_mov_b32 s64, {N}
    v_cmp_gt_u32 s[48:49], s64, v3
    v_cmp_gt_u32 s[50:51], s64, v4
    s_movk_i32 s64, 736
    v_cmp_gt_u32 vcc, s64, v0
    s_and_b64 s[50:51], s[50:51], vcc
    s_movk_i32 s64, 800
    v_cmp_gt_u32 s[52:53], s64, v0
    s_cmp_ge_u32 s2, {NCH}
    s_cselect_b64 s[52:53], 0, s[52:53]
    s_waitcnt lgkmcnt(0)""")
    a(f"""s_mov_b64 exec, s[52:53]
    s_cbranch_execz p1_ne
    global_load_dwordx4 v[12:15], v11, s[12:13]
    global_load_dwordx4 v[16:19], v11, s[10:11]
    p1_ne:
""")
    XL="""    s_mov_b64 exec, s[48:49]
    s_cbranch_execz p1_nxa
    global_load_dwordx4 v[20:23], v6, s[8:9]
    global_load_ushort v28, v8, s[14:15]
    p1_nxa:
    s_mov_b64 exec, s[50:51]
    s_cbranch_execz p1_nxb
    global_load_dwordx4 v[24:27], v7, s[8:9]
    global_load_ushort v29, v9, s[14:15]
    p1_nxb:
    s_mov_b64 exec, -1"""
    if xpos==0: a(XL)
    else: a('s_mov_b64 exec, -1')
    wsinit()
    a(f"""s_lshl_b32 s64, s2, 4
    s_add_u32 s64, s64, s4
    s_cmp_lg_u32 s64, {255*16}
    s_cbranch_scc1 p1_nz
    v_and_b32 v40, 15, v0
    v_lshrrev_b32 v41, 4, v0
    v_lshlrev_b32 v40, 8, v40
    v_and_b32 v42, 1, v41
    v_lshrrev_b32 v41, 1, v41
    v_lshl_add_u32 v40, v42, 12, v40
    v_lshl_add_u32 v40, v41, 13, v40
    v_add_u32 v40, {BARP}, v40
    v_mov_b32 v41, 0
    global_store_dword v40, v41, s[30:31] sc1
    v_add_u32 v40, 0x4000, v40
    global_store_dword v40, v41, s[30:31] sc1
    s_waitcnt vmcnt(0)
    s_mov_b64 exec, 1
    v_mov_b32 v40, 0
    v_mov_b32 v41, 1
    global_store_dword v40, v41, s[28:29] sc1
    s_mov_b64 exec, -1
    p1_nz:""")
    ldsinit(32)
    for n,d in ((3,76),(4,78)):
        line_calc(a,d,n,64,65)
        a(f"""v_lshl_add_u32 v{d}, v{d}, 7, v5
        v_and_b32 v64, 128, v{n}
        v_cmp_ne_u32 vcc, 0, v64
        v_add_u32 v{d+1}, 0x2000, v{d}
        v_cndmask_b32 v{d+1}, v36, v{d+1}, vcc""".replace('v_add_u32 v{0}'.format(d+1),'s_nop 0\nv_add_u32 v{0}'.format(d+1)))
    a('s_waitcnt lgkmcnt(0)\ns_barrier')
    stamp('B1')
    if xpos==1: a(XL)
    a(f"""s_mov_b64 exec, s[52:53]
    s_cbranch_execz p1_e1
    s_movk_i32 s64, -{BS}
    v_mov_b32 v33, 1
""")
    if xpos<2: a('s_cmp_lt_u32 s4, 12\ns_cbranch_scc1 p1_w4\ns_waitcnt vmcnt(2)\np1_w4:\ns_waitcnt vmcnt(4)')
    else: a('s_waitcnt vmcnt(0)')
    stamp('ed')
    for i in range(4):
        d=12+i; b=40+i
        a(f"""v_mul_u32_u24 v30, 85599, v{d}
        v_lshrrev_b32 v{52+i}, 24, v30
        v_lshlrev_b32 v{b}, 2, v{52+i}
        ds_add_rtn_u32 v{48+i}, v{b}, v33 offset:{L_HIST}""")
    a('p1_e1:')
    if xpos==2: a(XL)
    a('s_mov_b64 exec, -1\ns_waitcnt lgkmcnt(0)\ns_barrier')
    stamp('B2')
    a(f"""s_cmp_lg_u32 s4, 0
    s_cbranch_scc1 p1_ns
    ds_read_b128 v[72:75], v10 offset:{L_HIST}
    s_waitcnt lgkmcnt(0)
    v_add_u32 v57, v72, v73
    v_add_u32 v58, v57, v74
    v_add_u32 v59, v58, v75
    v_mov_b32 v60, v59
    s_nop 1""")
    for m in ('row_shr:1','row_shr:2','row_shr:4','row_shr:8'):
        a(f'v_add_u32_dpp v60, v60, v60 {m} {DPP} bound_ctrl:0\ns_nop 1')
    a(f"""v_add_u32_dpp v60, v60, v60 row_bcast:15 row_mask:0xa bank_mask:0xf
    s_nop 1
    v_add_u32_dpp v60, v60, v60 row_bcast:31 row_mask:0xc bank_mask:0xf
    v_sub_u32 v60, v60, v59
    v_add_u32 v61, v60, v72
    v_add_u32 v62, v60, v57
    v_add_u32 v63, v60, v58
    ds_write_b128 v10, v[60:63] offset:{L_HIST}
    v_lshl_or_b32 v56, v72, 16, v60
    v_lshl_or_b32 v57, v73, 16, v61
    v_lshl_or_b32 v58, v74, 16, v62
    v_lshl_or_b32 v59, v75, 16, v63
    s_cmp_ge_u32 s2, {NCH}
    s_cbranch_scc1 p1_ns
    s_lshl_b32 s65, s2, 10
    s_add_u32 s65, s65, {OFFS}
    buffer_store_dwordx4 v[56:59], v10, s[40:43], s65 offen sc1
    p1_ns:""")
    for i in range(4):
        d=12+i; s_=16+i; b=52+i; e=44+i
        a(f"""v_mul_u32_u24 v31, 10700, v{s_}
        v_lshrrev_b32 v30, 5, v{b}
        v_lshrrev_b32 v31, 26, v31
        v_mad_i32_i24 v{d}, v{b}, s64, v{d}
        v_sub_u32 v31, v31, v30
        v_and_b32 v31, 7, v31
        v_lshl_add_u32 v{d}, v{d}, 3, v31""")
        line_calc(a,e,s_,30,31)
        a(f"""v_and_b32 v30, 128, v{s_}
        v_lshl_or_b32 v{e}, v30, 10, v{e}
        v_lshl_or_b32 v{e}, v{d}, 18, v{e}""")
    a('s_waitcnt lgkmcnt(0)\ns_barrier')
    stamp('B3')
    a('s_mov_b64 exec, s[52:53]')
    for i in range(4): a(f'ds_read_b32 v{40+i}, v{40+i} offset:{L_HIST}')
    for i in range(4):
        a(f's_waitcnt lgkmcnt(3)\nv_add_lshl_u32 v{40+i}, v{40+i}, v{48+i}, 2')
        a(f'ds_write_b32 v{40+i}, v{44+i} offset:{L_ESTG}')
    a('s_mov_b64 exec, -1\ns_waitcnt lgkmcnt(0)\ns_barrier')
    a(f"""s_mov_b64 exec, s[52:53]
    s_cbranch_execz p1_e3
    ds_read_b128 v[40:43], v10 offset:{L_ESTG}
    s_waitcnt lgkmcnt(0)
    buffer_store_dwordx4 v[40:43], v10, s[40:43], s55 offen sc1
    p1_e3:""")
    a('s_mov_b32 s66, 0x3f803f80')
    for (X,D,n,m,off) in ((20,28,3,48,0),(24,29,4,50,832)):
        l=a.lab('xc')
        a(f's_mov_b64 exec, s[{m}:{m+1}]\ns_cbranch_execz {l}')
        if off==0: a('s_waitcnt vmcnt(1)\ns_cmp_lg_u32 s52, 0\ns_cbranch_scc1 p1_xw\ns_waitcnt vmcnt(0)\np1_xw:')
        a(f'v_lshlrev_b32 v{D}, 16, v{D}')
        for i in range(4):
            a(f"""v_lshlrev_b32 v64, 16, v{X+i}
            v_and_b32 v65, 0xffff0000, v{X+i}
            v_mul_f32 v64, v{D}, v64
            v_mul_f32 v65, v{D}, v65
            v_cvt_pk_bf16_f32 v{(68 if off==0 else 72)+i}, v64, v65""")
        ad=76 if off==0 else 78
        o=68 if off==0 else 72
        a(f"""buffer_store_dwordx4 v[{o}:{o+3}], v{ad}, s[36:39], 0 offen sc1
        buffer_store_dwordx4 v[{o}:{o+3}], v{ad+1}, s[36:39], 0 offen sc1
        {l}:""")
    for (X,D,n,m,off) in ((20,28,3,48,0),(24,29,4,50,832)):
        l=a.lab('xr')
        a(f's_mov_b64 exec, s[{m}:{m+1}]\ns_cbranch_execz {l}')
        rho_calc(a,X,64,65,None,'s66')
        a(f"""v_mov_b32 v65, v{D}
        v_lshlrev_b32 v66, 3, v2
        ds_write_b64 v66, v[64:65] offset:{L_R0+off}
        {l}:""")
    a('s_mov_b64 exec, -1\ns_branch p1_done')
    a(f"""p1_help:
    v_and_b32 v2, 63, v0
    v_and_b32 v3, 15, v0
    v_bfe_u32 v4, v0, 4, 2
    v_lshrrev_b32 v5, 2, v3
    v_and_b32 v6, 3, v0
    v_lshl_add_u32 v5, v5, 3, v6
    v_lshlrev_b32 v5, 7, v5
    v_lshl_add_u32 v5, v4, 4, v5
    v_add_u32 v7, 0x1000, v5
    s_waitcnt lgkmcnt(0)
    s_cmp_eq_u32 s4, 13
    s_cbranch_scc1 p1_probe
    s_barrier
    s_cmp_eq_u32 s4, 14
    s_cselect_b32 s64, s16, s20
    s_cselect_b32 s65, s17, s21""")
    WA=12; WBx=44; WD=[76,92,108,44]
    for t in range(4):
        for s_ in range(2):
            r=WA+8*t+4*s_
            a(f'global_load_dwordx4 v[{r}:{r+3}], v{5 if t<2 else 7}, s[64:65] offset:{512*(t&1)+64*s_}')
    a('s_cbranch_scc0 p1_wo')
    for t in range(4):
        for s_ in range(2):
            r=WBx+8*t+4*s_
            a(f'global_load_dwordx4 v[{r}:{r+3}], v{5 if t<2 else 7}, s[18:19] offset:{512*(t&1)+64*s_}')
    wsinit()
    a('s_barrier\ns_barrier\ns_barrier\ns_waitcnt vmcnt(0)\ns_branch p1_wm\np1_wo:\nv_lshlrev_b32 v8, 4, v2\nv_add_u32 v9, 0x1000, v8')
    for k in range(8):
        a(f'global_load_dwordx4 v[{76+4*k}:{79+4*k}], v{8 if k<4 else 9}, s[22:23] offset:{1024*(k&3)}')
    wsinit()
    a(f"""v_add_u32 v8, {L_WP}, v8
    v_bfe_u32 v9, v0, 2, 2
    v_lshl_add_u32 v9, v4, 3, v9
    v_lshlrev_b32 v9, 7, v9
    v_lshl_add_u32 v9, v6, 4, v9
    v_add_u32 v9, {L_WP}, v9
    s_barrier
    s_barrier
    s_barrier
    s_waitcnt vmcnt(0)""")
    for k in range(8): a(f'ds_write_b128 v8, v[{76+4*k}:{79+4*k}] offset:{1024*k}')
    a('s_waitcnt lgkmcnt(0)')
    for T in range(4):
        for s_ in range(2):
            for hf in range(2):
                r=WBx+8*T+4*s_+2*hf
                a(f'ds_read_b64_tr_b16 v[{r}:{r+1}], v9 offset:{4096*s_+512*hf+64*(T>>1)+8*(T&1)}')
        if T==2: a('s_waitcnt lgkmcnt(8)')
    a('s_waitcnt lgkmcnt(0)\np1_wm:')
    for T in range(4):
        for s_ in range(2):
            for t in range(4):
                d=WD[T]+4*t
                a(f'v_mfma_f32_16x16x32_bf16 v[{d}:{d+3}], v[{WA+8*t+4*s_}:{WA+8*t+4*s_+3}], v[{WBx+8*T+4*s_}:{WBx+8*T+4*s_+3}], '+(f'v[{d}:{d+3}]' if s_ else '0'))
    a('s_nop 7')
    for T in range(4):
        d=WD[T]
        a(f'v_pk_add_f32 v[{20+2*T}:{21+2*T}], v[{d}:{d+1}], v[{d+2}:{d+3}]')
    for k in range(2,8):
        for T in range(4):
            d=WD[T]; a(f'v_pk_add_f32 v[{20+2*T}:{21+2*T}], v[{20+2*T}:{21+2*T}], v[{d+2*k}:{d+2*k+1}]')
    for T in range(4): a(f'v_add_f32 v{12+T}, v{20+2*T}, v{21+2*T}')
    for sw in ('v_permlane16_swap_b32','v_permlane32_swap_b32'):
        for T in range(4): a(f'v_mov_b32 v{16+T}, v{12+T}')
        a('s_nop 1')
        for T in range(4): a(f'{sw} v{12+T}, v{16+T}')
        for T in range(4): a(f'v_add_f32 v{12+T}, v{12+T}, v{16+T}')
    for T in range(4): a(f'v_mul_f32 v{20+2*T}, 0xbc800000, v{12+T}')
    a('s_cmp_eq_u32 s4, 14\ns_cbranch_scc0 p1_wc')
    for k in range(8):
        a(f'v_pk_add_f32 v[{28+2*k}:{29+2*k}], v[{WD[0]+2*k}:{WD[0]+2*k+1}], v[{WD[1]+2*k}:{WD[1]+2*k+1}]')
    for T in (2,3):
        for k in range(8): a(f'v_pk_add_f32 v[{28+2*k}:{29+2*k}], v[{28+2*k}:{29+2*k}], v[{WD[T]+2*k}:{WD[T]+2*k+1}]')
    a('v_add_f32 v12, v20, v22\nv_add_f32 v13, v24, v26\nv_add_f32 v12, v12, v13\ns_nop 1')
    for m in ('quad_perm:[1,0,3,2]','quad_perm:[2,3,0,1]','row_half_mirror','row_mirror'):
        a(f'v_add_f32_dpp v12, v12, v12 {m} {DPP}')
        for k in range(16): a(f'v_add_f32_dpp v{28+k}, v{28+k}, v{28+k} {m} {DPP}')
    a('v_mul_f32 v12, 0xbc800000, v12\nv_mov_b32 v14, 0xbc800000')
    for T in range(4): a(f'v_add_f32 v{20+2*T}, v{20+2*T}, v12')
    for T in range(4):
        for k in range(8):
            d=WD[T]+2*k
            a(f'v_pk_fma_f32 v[{d}:{d+1}], v[{28+2*k}:{29+2*k}], v[14:15], v[{d}:{d+1}] op_sel_hi:[1,0,1]')
    a(f"""p1_wc:
    s_sub_u32 s64, s4, 14
    s_lshl_b32 s64, s64, 13
    s_add_u32 s64, s64, {L_W}
    v_lshlrev_b32 v8, 4, v2
    v_add_u32 v8, s64, v8""")
    for T in range(4):
        for k in range(8):
            d=WD[T]+2*k
            a(f'v_pk_add_f32 v[{d}:{d+1}], v[{d}:{d+1}], v[{20+2*T}:{21+2*T}] op_sel_hi:[1,0]')
        for s_ in range(2):
            d=WD[T]+8*s_
            for k in range(4): a(f'v_cvt_pk_bf16_f32 v{d+k}, v{d+2*k}, v{d+2*k+1}')
            a(f'ds_write_b128 v8, v[{d}:{d+3}] offset:{2048*T+1024*s_}')
    a('s_branch p1_done')
    a('p1_probe:')
    wsinit()
    a(f"""s_and_b32 s64, s2, 3
    s_and_b32 s74, s2, 1
    s_lshl_b32 s64, s64, 21
    s_lshr_b32 s65, s2, 2
    s_lshl_b32 s65, s65, 7
    s_add_u32 s64, s64, s65
    s_add_u32 s64, s64, {254*8192}
    v_mov_b32 v40, s64
    v_add_u32 v41, 0x2000, v40
    v_mov_b32 v42, 0
    v_cmp_gt_u32 vcc, 5, v2
    v_add_u32 v45, 37, v2
    v_cmp_eq_u32 s[66:67], 5, v2
    v_cndmask_b32 v45, v45, v2, vcc
    v_cmp_eq_u32 vcc, 8, v2
    v_mov_b32 v46, 0x1fff80
    v_cndmask_b32 v46, v46, 0, s[66:67]
    v_cndmask_b32 v45, v45, 47, vcc
    v_lshl_add_u32 v45, v45, 21, v46
    s_mov_b64 exec, 0x1ff
    global_load_dword v47, v45, s[30:31] sc1
    s_mov_b64 exec, 1
    global_load_dword v47, v42, s[28:29] sc1
    global_atomic_add v43, v40, v42, s[30:31] sc0 sc1
    global_atomic_add v44, v41, v42, s[30:31] sc0 sc1
    s_barrier
    s_barrier
    PB3
    s_mov_b32 s72, 0
    s_mov_b32 s67, 0
    s_waitcnt vmcnt(0)
    p1_pl:
    global_atomic_add v43, v40, v42, s[30:31] sc0 sc1
    global_atomic_add v44, v41, v42, s[30:31] sc0 sc1
    s_waitcnt vmcnt(1)
    s_memtime s[68:69]
    s_waitcnt vmcnt(0)
    s_memtime s[70:71]
    v_swap_b32 v40, v41
    s_waitcnt lgkmcnt(0)
    s_sub_u32 s66, s70, s68
    s_sub_u32 s67, s66, s67
    s_add_u32 s72, s72, 1
    PBMID
    s_cmp_lt_u32 s72, {nprobe}
    s_cbranch_scc1 p1_pl
    s_cmp_gt_i32 s67, 0
    s_cselect_b32 s65, 1, 0
    s_xor_b32 s65, s65, s6
    s_xor_b32 s65, s65, s74
    s_lshl_b32 s65, s65, 8
    s_or_b32 s65, s65, 1
    v_mov_b32 v41, s65
    v_mov_b32 v40, {L_RED}
    ds_write_b32 v40, v41 offset:12
    s_mov_b64 exec, -1""")
    a(f"""p1_done:
    v_lshrrev_b32 v2, 2, v0
    v_and_b32 v3, 3, v0
    v_lshlrev_b32 v70, 10, v2
    s_lshl_b32 s92, s5, 2
    s_add_u32 s92, s92, {OFFS}
    s_movk_i32 s65, {NCH}
    v_cmp_gt_u32 s[48:49], s65, v2
    v_mov_b32 v72, {OOBV}
    v_and_b32 v73, 63, v0
    v_lshlrev_b32 v8, 2, v73
    v_cndmask_b32 v70, v72, v70, s[48:49]
    v_mul_u32_u24 v71, {CHE*4}, v2
    v_lshl_add_u32 v71, v3, 4, v71
    v_add_u32 v71, {CHUNK}, v71
    v_lshlrev_b32 v3, 2, v3
    v_mov_b32 v21, 1
    s_cmp_lg_u32 s4, 0
    s_cbranch_scc1 p1_d2
    v_mov_b32 v4, 0
    global_load_dword v6, v4, s[28:29] sc1
    s_mov_b32 s63, 0""")
    baraddr(a,BARP+16384)
    a("""s_waitcnt vmcnt(0)
    v_readfirstlane_b32 s63, v6
    p1_d2:
    s_waitcnt vmcnt(0) lgkmcnt(0)""")
    stamp('p1')
    gbarrier(a,'gb0',first=True)
    stamp('b0')
    if stop=='p1': a('s_endpgm')
    a(f"""buffer_load_dword v5, v70, s[40:43], s92 offen sc1
    s_waitcnt vmcnt(0)
    v_and_b32 v9, 0xffff, v5
    v_lshrrev_b32 v11, 16, v5
    v_lshl_add_u32 v4, v9, 2, v71
    v_cndmask_b32 v4, v72, v4, s[48:49]
    buffer_load_dwordx4 v[12:15], v4, s[40:43], 0 offen sc1
    buffer_load_dwordx4 v[16:19], v4, s[40:43], 0 offen offset:64 sc1
    v_sub_u32 v20, v11, v3
    v_mov_b32 v6, v72
    v_mov_b32 v7, v73
    s_cmp_lg_u32 s4, 0
    s_cbranch_scc1 p2_nw
    s_cmp_ge_u32 s60, 0x8000
    s_cselect_b32 s61, 1, 0
    s_xor_b32 s63, s61, 1
    s_xor_b32 s58, s61, s6
    s_cmp_eq_u32 s58, 0
    s_cselect_b32 s58, 10, 21
    s_mov_b32 s62, 0
    v_mov_b32 v76, {L_RED}
    v_mov_b32 v77, s58
    ds_write_b32 v76, v77 offset:8""")
    baraddr(a,BARP)
    if stamps: a('s_mov_b32 s94, s60')
    a('p2_nw:')
    def each_entry(body,regs,base):
        for r,e in enumerate(regs):
            a(f'v_cmpx_lt_i32 vcc, {base[r]}, v20')
            body(e)
        a('s_mov_b64 exec, -1')
    regs=list(range(12,20)); base=[0,1,2,3,16,17,18,19]
    def pass1(regs):
        for k,e in enumerate(regs): a(f'v_lshrrev_b32 v{80+k}, 16, v{e}\nv_and_b32 v{80+k}, 0x1ffc, v{80+k}')
        ad={e:80+k for k,e in enumerate(regs)}
        each_entry(lambda e: a(f'ds_add_u32 v{ad[e]}, v21 offset:{L_CNT}'),regs,base)
    a('s_waitcnt vmcnt(0)')
    stamp('sg')
    pass1(regs)
    def longseg(nm,whole):
        a(f"""v_cmp_lt_i32 vcc, 32, v20
        s_cbranch_vccnz {nm}
        {nm}_d:""")
        def tail():
            a(f"""{nm}:
            v_mov_b32 v23, v20
            v_mov_b32 v24, v4
            {nm}_l:
            v_subrev_u32 v20, 32, v20
            v_add_u32 v24, 128, v24
            v_cmp_lt_i32 vcc, 0, v20
            s_cbranch_vccz {nm}_r
            buffer_load_dwordx4 v[28:31], v24, s[40:43], 0 offen sc1
            buffer_load_dwordx4 v[32:35], v24, s[40:43], 0 offen offset:64 sc1
            s_waitcnt vmcnt(0)""")
            whole(list(range(28,36)))
            a(f"""s_branch {nm}_l
            {nm}_r:
            v_mov_b32 v20, v23""")
            for k,e in enumerate(regs): a(f'v_lshrrev_b32 v{80+k}, 16, v{e}\nv_and_b32 v{80+k}, 0x1ffc, v{80+k}')
            a(f's_branch {nm}_d')
        tails.append(tail)
    tails=[]
    longseg('ls1',pass1)
    a('s_waitcnt lgkmcnt(0)\ns_barrier')
    stamp('c1')
    a(f"""s_cmp_ge_u32 s4, 4
    s_cbranch_scc1 p2_n1
    v_add_u32 v36, s54, v0
    s_mov_b32 s64, {N}
    v_cmp_gt_u32 vcc, s64, v36
    s_movk_i32 s64, {BS}
    v_cmp_gt_u32 s[64:65], s64, v0
    s_and_b64 s[66:67], vcc, s[64:65]
    s_mov_b64 exec, s[66:67]
    v_lshlrev_b32 v37, 5, v0
    v_lshlrev_b32 v38, 3, v0
    ds_read_b128 v[40:43], v37 offset:{L_CNT}
    ds_read_b128 v[44:47], v37 offset:{L_CNT+16}
    ds_read_b64 v[58:59], v38 offset:{L_R0}""")
    line_calc(a,66,36,62,63)
    a(f"""v_lshlrev_b32 v66, 7, v66
    v_and_b32 v62, 128, v36
    v_add_u32 v67, 0x2000, v66
    v_cmp_ne_u32 vcc, 0, v62
    v_mov_b32 v48, 0
    s_waitcnt lgkmcnt(1)
    v_cndmask_b32 v67, v6, v67, vcc
    v_mov_b32 v49, v40
    v_add_u32 v50, v49, v41
    v_add_u32 v51, v50, v42
    v_add_u32 v52, v51, v43
    v_add_u32 v53, v52, v44
    v_add_u32 v54, v53, v45
    v_add_u32 v55, v54, v46
    v_add_u32 v65, v55, v47
    v_min_u32 v57, 63, v65
    v_sub_u32 v57, 63, v57
    v_lshlrev_b32 v57, 2, v57
    ds_add_rtn_u32 v60, v57, v21 offset:{L_DH}
    s_mov_b64 exec, -1
    p2_n1:""")
    def offs(regs):
        for e in regs:
            a(f"""v_bfe_u32 v26, v{e}, 14, 3
            v_lshrrev_b32 v27, 17, v{e}
            v_bfe_u32 v26, s58, v26, 1
            v_and_b32 v{e}, 0x1ffff, v{e}
            v_and_b32 v26, v26, v27
            v_lshl_add_u32 v{e}, v26, 6, v{e}
            v_lshlrev_b32 v{e}, 7, v{e}""")
    a(f"""v_mov_b32 v62, {L_RED}
    ds_read_b32 v63, v62 offset:8
    s_waitcnt lgkmcnt(0)
    s_barrier
    v_readfirstlane_b32 s58, v63
    s_cmp_ge_u32 s4, 4
    s_cbranch_scc1 p2_n2
    ds_read_b32 v61, v8 offset:{L_DH}
    s_waitcnt lgkmcnt(0)
    v_mov_b32 v62, v61
    s_nop 1""")
    for m in ('row_shr:1','row_shr:2','row_shr:4','row_shr:8'):
        a(f'v_add_u32_dpp v62, v62, v62 {m} {DPP} bound_ctrl:0\ns_nop 1')
    a(f"""v_add_u32_dpp v62, v62, v62 row_bcast:15 row_mask:0xa bank_mask:0xf
    s_nop 1
    v_add_u32_dpp v62, v62, v62 row_bcast:31 row_mask:0xc bank_mask:0xf
    v_sub_u32 v62, v62, v61
    ds_bpermute_b32 v62, v57, v62
    s_mov_b64 exec, s[66:67]
    v_or_b32 v64, v59, v0
    s_waitcnt lgkmcnt(0)
    v_add_u32 v60, v60, v62
    v_lshlrev_b32 v61, 20, v60""")
    for j in range(8): a(f'v_or_b32 v{48+j}, v61, v{48+j}')
    a(f"""ds_write_b128 v37, v[48:51] offset:{L_CNT}
    ds_write_b128 v37, v[52:55] offset:{L_CNT+16}
    v_lshlrev_b32 v62, 4, v60
    ds_write_b128 v62, v[64:67] offset:{L_INFO}
    v_lshlrev_b32 v62, 5, v60
    v_add_u32 v62, {L_RHO-65024}, v62
    ds_write_b32 v62, v58 offset:65024
    v_cmp_lt_u32 vcc, {CAP}, v65
    s_and_b64 exec, exec, vcc
    s_cbranch_execz p2_n2
    v_subrev_u32 v56, {CAP}, v65
    v_mov_b32 v62, {L_RED}
    ds_add_rtn_u32 v63, v62, v56
    v_lshlrev_b32 v62, 2, v60
    s_waitcnt lgkmcnt(0)
    ds_write_b32 v62, v63 offset:{L_INF2}
    p2_n2:
    s_mov_b64 exec, -1""")
    offs(regs)
    a('s_waitcnt lgkmcnt(0)\ns_barrier')
    stamp('nd')
    def pass2(regs,slow):
        cur={e:40+k for k,e in enumerate(regs)}; ad={e:80+k for k,e in enumerate(regs)}
        each_entry(lambda e: a(f'ds_add_rtn_u32 v{cur[e]}, v{ad[e]}, v21 offset:{L_CNT}'),regs,base)
        if not slow:
            a(f"""v_mov_b32 v62, {L_RED}
            ds_read_b32 v63, v62
            s_movk_i32 s64, 160
            s_mov_b32 s65, 0xfffff
            s_waitcnt lgkmcnt(0)
            v_readfirstlane_b32 s59, v63
            s_cmp_lg_u32 s59, 0
            s_cbranch_scc1 p2_ovf""")
            for e in regs:
                a(f"""v_lshrrev_b32 v26, 20, v{cur[e]}
                v_and_b32 v{cur[e]}, s65, v{cur[e]}
                v_mul_u32_u24 v26, s64, v26
                v_lshl_add_u32 v{cur[e]}, v{cur[e]}, 2, v26""")
            each_entry(lambda e: a(f'ds_write_b32 v{cur[e]}, v{e} offset:{L_LIST}'),regs,base)
        else:
            a('s_waitcnt lgkmcnt(0)')
            slow2(regs)
    def slow2(regs):
        cur={e:40+k for k,e in enumerate(regs)}
        for r,e in enumerate(regs):
            l=a.lab('ov')
            a(f"""v_cmp_lt_i32 s[70:71], {base[r]}, v20
            v_lshrrev_b32 v26, 20, v{cur[e]}
            v_and_b32 v25, s65, v{cur[e]}
            v_cmp_gt_u32 vcc, {CAP}, v25
            v_mul_u32_u24 v22, s64, v26
            v_lshl_add_u32 v22, v25, 2, v22
            s_and_b64 exec, s[70:71], vcc
            ds_write_b32 v22, v{e} offset:{L_LIST}
            s_andn2_b64 exec, s[70:71], vcc
            s_cbranch_execz {l}
            v_lshlrev_b32 v26, 2, v26
            ds_read_b32 v26, v26 offset:{L_INF2}
            v_subrev_u32 v25, {CAP}, v25
            s_waitcnt lgkmcnt(0)
            v_add_lshl_u32 v25, v25, v26, 2
            buffer_store_dword v{e}, v25, s[40:43], s59 offen
            {l}:
            s_mov_b64 exec, -1""")
    pass2(regs,False)
    a('p2_ovd:')
    def long2(regs):
        for k,e in enumerate(regs): a(f'v_lshrrev_b32 v{80+k}, 16, v{e}\nv_and_b32 v{80+k}, 0x1ffc, v{80+k}')
        offs(regs); pass2(regs,True)
    longseg('ls2',long2)
    def ovf_tail():
        a(f"""p2_ovf:
        v_cmp_eq_u32 vcc, 0, v3
        s_mov_b64 exec, vcc
        ds_add_u32 v62, v9 offset:4
        s_mov_b64 exec, -1
        s_waitcnt lgkmcnt(0)
        s_barrier
        ds_read_b32 v63, v62 offset:4
        s_waitcnt lgkmcnt(0)
        v_readfirstlane_b32 s59, v63
        s_lshl_b32 s59, s59, 2
        s_add_u32 s59, s59, {OVF}""")
        slow2(regs)
        a('s_branch p2_ovd')
    tails.append(ovf_tail)
    a('s_waitcnt vmcnt(0) lgkmcnt(0)\ns_barrier')
    stamp('c2')
    a('s_cmp_ge_u32 s4, 13\ns_cbranch_scc1 k_hx')
    a(f'''v_mov_b32 v0, v7
    v_and_b32 v1, 7, v0
    v_lshlrev_b32 v1, 4, v1
    v_lshrrev_b32 v4, 3, v0
    s_lshl_b32 s64, s4, 4
    v_add_u32 v4, s64, v4
    v_and_b32 v5, 3, v0
    v_mul_u32_u24 v6, 160, v4
    v_lshl_add_u32 v7, v5, 3, v6
    v_lshl_add_u32 v6, v5, 4, v6
    v_lshlrev_b32 v116, 4, v4''')
    for s in range(2):
        o=16+10*s
        a(f'''ds_read_b128 v[{o}:{o+3}], v6 offset:{L_LIST+1280*s}
        ds_read_b128 v[{o+4}:{o+7}], v6 offset:{L_LIST+1280*s+64}
        ds_read_b64 v[{o+8}:{o+9}], v7 offset:{L_LIST+1280*s+128}
        ds_read_b128 v[{52+4*s}:{55+4*s}], v116 offset:{L_INFO+128*s}''')
    a(f'''v_lshlrev_b32 v116, 2, v4
    ds_read_b32 v122, v116 offset:{L_INF2}
    ds_read_b32 v123, v116 offset:{L_INF2+32}
    v_mov_b32 v6, 0x3f80
    v_mov_b32 v7, 0x3f800000
    v_cmp_eq_u32 vcc, 0, v5
    v_cmp_eq_u32 s[64:65], 1, v5
    v_cmp_eq_u32 s[66:67], 2, v5
    v_cmp_eq_u32 s[68:69], 3, v5
    v_cndmask_b32 v2, 0, v6, vcc
    v_cndmask_b32 v3, 0, v6, s[66:67]
    v_cndmask_b32 v2, v2, v7, s[64:65]
    v_cndmask_b32 v3, v3, v7, s[68:69]
    s_movk_i32 s64, {BS}
    v_cmp_gt_u32 s[48:49], s64, v4
    s_movk_i32 s64, {BS-8}
    v_cmp_gt_u32 s[50:51], s64, v4
    v_lshlrev_b32 v116, 7, v4
    v_lshlrev_b32 v117, 5, v4
    v_add_u32 v117, {L_RHO}, v117
    s_waitcnt lgkmcnt(0)''')
    for s in range(2):
        i=52+4*s
        a(f"""v_add_u32 v{8+s}, v{i+2}, v1
        v_add_u32 v{10+s}, v{i+3}, v1
        v_and_b32 v4, 0xffff0000, v{i}
        v_mul_f32 v{12+s}, v4, v4
        v_cmp_eq_f32 vcc, 0, v4
        v_and_b32 v5, 0xffff, v{i}
        v_add_u32 v5, s54, v5
        v_cndmask_b32 v{124+s}, v4, 1.0, vcc
        v_lshl_add_u32 v{118+s}, v5, 7, v1
        v_cmp_gt_u32 vcc, s38, v{i+2}
        v_rcp_f32 v{14+s}, v{124+s}
        v_mov_b32 v{120+s}, v{i+1}
        v_cndmask_b32 v{118+s}, v{i+2}, v{118+s}, vcc""")
    a(f'''v_max_u32 v4, v120, v121
    s_nop 1
    v_max_u32_dpp v4, v4, v4 row_shr:8 {DPP} bound_ctrl:0
    s_nop 1
    v_max_u32_dpp v4, v4, v4 row_bcast:15 row_mask:0xa bank_mask:0xf
    s_nop 1
    v_max_u32_dpp v4, v4, v4 row_bcast:31 row_mask:0xc bank_mask:0xf
    s_nop 1
    v_readlane_b32 s53, v4, 63
    s_max_u32 s52, s53, {K//2}
    s_min_u32 s52, s52, {CAP}''')
    stamp('p2')
    if dump:
        a(f's_lshl_b32 s64, s2, 4\ns_add_u32 s64, s64, s4\ns_mul_i32 s64, s64, {40*256}\ns_add_u32 s64, s64, {DUMP}\nv_lshlrev_b32 v4, 2, v0\nv_add_u32 v4, s64, v4')
        for i,r in enumerate(list(range(8,36))+list(range(118,126))):
            a(f'global_store_dword v4, v{r}, s[30:31]\nv_add_u32 v4, 256, v4')
        a('v_mov_b32 v5, s53\nglobal_store_dword v4, v5, s[30:31]\nv_add_u32 v4, 256, v4\nv_mov_b32 v5, s60\nglobal_store_dword v4, v5, s[30:31]\nv_add_u32 v4, 256, v4\nds_read_b32 v5, v117\ns_waitcnt lgkmcnt(0)\nglobal_store_dword v4, v5, s[30:31]')

    if stop=='p2': a('s_endpgm')
    a(f'v_mov_b32 v4, {L_END}\nv_mov_b32 v5, 0\nds_write_b32 v4, v5')
    if pf:
        a(f"""v_lshrrev_b32 v4, 4, v0
        v_lshl_add_u32 v4, v4, 5, s5
        v_and_b32 v4, 0xff, v4
        v_mul_u32_u24 v4, {BS}, v4
        v_and_b32 v5, 15, v0
        s_lshl_b32 s64, s4, 4
        s_sub_u32 s64, s64, 16
        v_add3_u32 v4, v4, v5, s64""")
        line_calc(a,126,4,5,6)
        a(f"""v_lshrrev_b32 v5, 14, v126
        v_bfe_u32 v5, s58, v5, 1
        v_lshrrev_b32 v6, 7, v4
        v_and_b32 v5, v5, v6
        v_lshl_add_u32 v126, v5, 6, v126
        v_lshlrev_b32 v126, 7, v126""")
    for s_ in range(2):
        l=a.lab('nd')
        a(f"""s_mov_b64 exec, s[{48+2*s_}:{49+2*s_}]
        s_cbranch_execz {l}
        v_lshrrev_b32 v4, 3, v116
        v_add_u32 v4, {L_ND+128*s_}, v4
        v_mov_b32 v52, v{124+s_}
        v_mov_b32 v53, v{14+s_}
        v_sub_u32 v54, v{118+s_}, v1
        v_mov_b32 v55, 0
        ds_write_b128 v4, v[52:55]
        {l}:""")
    a(f"""s_mov_b64 exec, -1
    s_mov_b32 s32, s36
    s_mov_b32 s33, s37
    s_mov_b32 s34, s38
    s_mov_b32 s35, 0x20000
    s_add_u32 s36, s36, {TSTR}
    s_addc_u32 s37, s37, 0
    s_mov_b32 s44, s8
    s_mov_b32 s45, s9
    s_mov_b32 s46, {N*128}
    s_mov_b32 s47, 0x20000
    s_mov_b32 s76, 0x3f803f80
    s_add_u32 s96, s30, {5*TSTR}
    s_addc_u32 s97, s31, 0
    s_mov_b32 s98, {TBYTES}
    s_mov_b32 s99, 0x20000
    s_mul_i32 s95, s4, {STG}
    s_add_u32 s95, s95, {L_STAGE}
    s_mov_b32 s3, 1
    h_top:""")
    acc=[36,44]; d0=52; off=[16,26]; va=[4,5,6,7]
    def mf(s_,sl):
        a(f'v_mfma_f32_4x4x4_16b_bf16 v[{acc[s_]}:{acc[s_]+3}], v[2:3], v[{sl}:{sl+1}], v[{acc[s_]}:{acc[s_]+3}]')
        a(f'v_mfma_f32_4x4x4_16b_bf16 v[{acc[s_]+4}:{acc[s_]+7}], v[2:3], v[{sl+2}:{sl+3}], v[{acc[s_]+4}:{acc[s_]+7}]')
    def dma(pair):
        sl=pair>>1; hf=pair&1
        a(f's_mov_b32 exec_lo, {0 if hf else -1}\ns_mov_b32 exec_hi, {-1 if hf else 0}')
        for (srd,v,o) in ((44,118+sl,0),(96,8+sl,608),(32,8+sl,1184)):
            a(f's_add_u32 m0, s95, {o-512*hf}' if o-512*hf>=0 else f's_sub_u32 m0, s95, {512*hf-o}')
            a(f's_nop 0\nbuffer_load_dwordx4 v{v}, s[{srd}:{srd+3}], 0 offen {"" if srd==44 else "sc1"} lds')
        a('s_mov_b64 exec, -1')
    a(f"""s_cmp_lg_u32 s3, 7
    s_cbranch_scc1 h_nx
""")
    dma(0)
    if stag==1:
        a('s_setprio 3\ns_cmp_ge_u32 s4, 8\ns_cbranch_scc1 h_nx\ns_setprio 2\ns_cmp_ge_u32 s4, 4\ns_cbranch_scc1 h_nx\ns_setprio 1')
    if stag==2: a('s_setprio 3')
    if stag>=4:
        G={4:(8,4,5,9),5:(6,6,7,7),6:(10,5,3,8),7:(9,5,4,8)}[stag]
        a(f'''s_setprio 3
        s_cmp_ge_u32 s4, {G[0]}
        s_cbranch_scc1 h_nx
        s_cmp_ge_u32 s4, {G[1]}
        s_cselect_b32 s64, {G[2]}, {G[3]}
        v_mov_b32 v4, {L_END}
        s_mov_b32 s65, 0
        h_g7:
        ds_read_b32 v5, v4
        s_waitcnt lgkmcnt(0)
        v_readfirstlane_b32 s66, v5
        s_cmp_ge_u32 s66, s64
        s_cbranch_scc1 h_nx
        s_sleep 1
        s_add_u32 s65, s65, 1
        s_cmp_lt_u32 s65, 0x1000000
        s_cbranch_scc1 h_g7''')
    if stag==3:
        a('s_setprio 1\ns_cmp_ge_u32 s4, 8\ns_cbranch_scc1 h_nx\ns_setprio 2\ns_cmp_ge_u32 s4, 4\ns_cbranch_scc1 h_nx\ns_setprio 3')
    a('h_nx:')
    hstamp('hs')
    for i in range(16): a(f'v_mov_b32 v{36+i}, 0')
    a('s_mov_b32 s77, s52\ns_mov_b32 s78, 0')
    if stag: a(f's_cmp_eq_u32 s3, 7\ns_cselect_b32 s78, {RB}, 0')
    handlers=[]
    for u in range(CAP//2):
        j=2*u; t0=4*u
        if j<32: q=(j>>2)&3; rb=4*(j>>4)+(j&3)
        else: q=(j-32)>>1; rb=8
        if t0>=K: a(f's_cmp_ge_u32 {j}, s52\ns_cbranch_scc1 h_drain{"" if not pdrain else (u%(K//4))}')
        if u>0:
            h=f'h_ev{u}'; a(f's_sub_u32 s77, s77, {2*R}\ns_cbranch_scc1 {h}\n{h}_r:'); handlers.append(h)
        for hh in range(2):
            for s_ in range(2):
                a(f'v_add_u32_dpp v{va[hh*2+s_]}, v{off[s_]+rb+hh}, v1 quad_perm:[{q},{q},{q},{q}] {DPP}')
        if t0>=K:
            a(f's_waitcnt vmcnt({K-4})')
            for hh in range(2):
                for s_ in range(2): mf(s_,d0+4*((t0+hh*2+s_)%K))
        for hh in range(2):
            for s_ in range(2):
                sl=d0+4*((t0+hh*2+s_)%K)
                a(f'buffer_load_dwordx4 v[{sl}:{sl+3}], v{va[hh*2+s_]}, s[32:35], 0 offen sc1')
    if pdrain:
        f0=(CAP//2)%(K//4)
        for v in [f0]+[v for v in range(K//4) if v!=f0]: a(f'h_drain{v}:\ns_mov_b32 s79, {v}\ns_branch h_drain')
    a('h_drain:')
    if stag>=4:
        a(f's_cmp_lg_u32 s3, 7\ns_cbranch_scc1 h_rb\nv_mov_b32 v4, {L_END}\nv_mov_b32 v5, 1\ns_mov_b64 exec, 1\nds_add_u32 v4, v5\ns_mov_b64 exec, -1')
    a(f"""h_rb:
    s_cmp_ge_u32 s78, {RB}
    s_cbranch_scc1 h_rbd
    s_barrier
    s_add_u32 s78, s78, 1
    s_branch h_rb
    h_rbd:""")
    hstamp('hi')
    if pdrain:
        for par in range(1,K//4): a(f's_cmp_eq_u32 s79, {par}\ns_cbranch_scc1 h_dr{par}')
        for par in range(K//4):
            if par: a(f'h_dr{par}:')
            for n in range(K//2):
                a(f's_waitcnt vmcnt({K-2-2*n})')
                for t in (2*n,2*n+1): mf(t%2,d0+4*((t+4*par)%K))
            if par<K//4-1: a('s_branch h_drx')
        a('h_drx:')
        hstamp('hd')
    else:
        a('s_waitcnt vmcnt(0)')
        hstamp('hd')
        for t in range(K): mf(t%2,d0+4*t)
    a(f's_cmp_gt_u32 s53, {CAP}\ns_cbranch_scc1 h_slow\nh_slow_r:\ns_nop 4')
    for s_ in range(2):
        for i in range(4): a(f'v_pk_mul_f32 v[{acc[s_]+2*i}:{acc[s_]+2*i+1}], v[{acc[s_]+2*i}:{acc[s_]+2*i+1}], v[12:13] op_sel:[0,{s_}] op_sel_hi:[1,{s_}]')
        for i in range(4): a(f'v_cvt_pk_bf16_f32 v{acc[s_]+i}, v{acc[s_]+2*i}, v{acc[s_]+2*i+1}')
    a('s_cmp_eq_u32 s3, 7\ns_cbranch_scc1 h_ns')
    for s_ in range(2):
        a(f'buffer_store_dwordx4 v[{acc[s_]}:{acc[s_]+3}], v{8+s_}, s[36:39], 0 offen sc1')
        a(f'buffer_store_dwordx4 v[{acc[s_]}:{acc[s_]+3}], v{10+s_}, s[36:39], 0 offen sc1')
    a(f"""h_ns:
    s_lshl_b32 s64, s3, 2
    s_sub_u32 s66, s3, 1
    s_mul_i32 s66, s66, {PL2}
    s_and_b32 s65, s3, 3
    s_lshl_b32 s65, s65, 6
    s_add_u32 s66, s66, s65
    s_lshr_b32 s65, s3, 2
    s_lshl_b32 s65, s65, 5
    s_add_u32 s66, s66, s65
    v_add_u32 v52, s64, v117
    v_add3_u32 v53, v1, v116, s66""")
    for s_ in range(2):
        l=a.lab('ep'); l2=a.lab('ep')
        rho_calc(a,acc[s_],54,55,14+s_,'s76')
        a(f"""s_mov_b64 exec, s[{48+2*s_}:{49+2*s_}]
        s_cbranch_execz {l}
        ds_write_b32 v52, v54 offset:{256*s_}
        s_cmp_gt_u32 s3, 4
        s_cbranch_scc1 {l}
        ds_write_b128 v53, v[{acc[s_]}:{acc[s_]+3}] offset:{1024*s_}
        {l}:
        s_mov_b64 exec, -1""")
    a('s_cmp_eq_u32 s3, 7\ns_cbranch_scc1 f_top\ns_waitcnt vmcnt(0)')
    hstamp('ha')
    gbarrier(a,'gb1',pf=pf)
    hstamp('hr')
    a(f"""s_mov_b32 s32, s36
    s_mov_b32 s33, s37
    s_add_u32 s36, s36, {TSTR}
    s_addc_u32 s37, s37, 0
    s_add_u32 s3, s3, 1
    s_branch h_top""")
    a('f_top:')
    a('''s_lshl_b32 s64, s2, 4
    s_add_u32 s64, s64, s4
    s_cmp_lg_u32 s64, 0xffc
    s_cbranch_scc1 h_nc
    v_mov_b32 v4, 0
    s_mov_b64 exec, 1
    global_store_dword v4, v4, s[28:29] sc1
    s_mov_b64 exec, -1
    h_nc:''')
    if stag: a('s_setprio 0')
    stamp('h')
    if stop=='hops': a('s_endpgm')
    XA=52; XB=68; TA=84; TB=106; TQ=10; WB=[18,22,26]; Z=10; ST=[100,40]; BA=48; BB=120; BO=124
    vW=0; vOq=1; vA=30; vTr=31; vRk=32; vRq=33; vNd=34; vNs=35; vBw=104; vBr=105; vNo=92; vS=93; vAq=96
    t0_,t1_,cq,dq=2,3,4,5; sv=6; vo=7
    def tokaddr(dst,n,h,ch,t1,t2,mask):
        a(f"""v_lshlrev_b32 v{t1}, 4, v{ch}
        v_lshl_add_u32 v{t1}, v{n}, 7, v{t1}
        v_and_b32 v{t2}, 3, v{h}
        v_lshl_add_u32 v{t1}, v{t2}, 6, v{t1}
        v_lshrrev_b32 v{t2}, 2, v{h}
        v_lshl_add_u32 v{t1}, v{t2}, 5, v{t1}
        v_subrev_u32 v{t2}, 1, v{h}
        v_cmp_gt_u32 s[{mask}:{mask+1}], 4, v{t2}
        v_mul_u32_u24 v{t2}, {PL2}, v{t2}
        v_add3_u32 v{t2}, v{t2}, v{t1}, s64
        v_subrev_u32 v{dst}, 4, v{h}
        v_max_i32 v{dst}, 0, v{dst}
        v_lshl_add_u32 v{dst}, v{dst}, 9, v{t1}
        v_add_u32 v{dst}, s95, v{dst}
        v_cndmask_b32 v{dst}, v{dst}, v{t2}, s[{mask}:{mask+1}]""")
    a(f"""v_and_b32 v4, 15, v0
    v_lshrrev_b32 v5, 4, v0
    v_lshlrev_b32 v7, 4, v5
    global_load_dwordx4 v[{ST[0]}:{ST[0]+3}], v7, s[24:25]
    global_load_dwordx4 v[{ST[1]}:{ST[1]+3}], v7, s[24:25] offset:64
    s_mov_b32 exec_lo, 0x01010101
    s_mov_b32 exec_hi, 0x01010101
    buffer_load_dword v99, v118, s[44:47], 0 offen
    buffer_load_dword v99, v8, s[96:99], 0 offen sc1
    buffer_load_dword v99, v8, s[32:35], 0 offen sc1
    buffer_load_dword v99, v119, s[44:47], 0 offen
    buffer_load_dword v99, v9, s[96:99], 0 offen sc1
    buffer_load_dword v99, v9, s[32:35], 0 offen sc1
    s_mov_b64 exec, -1
    s_mov_b32 s36, s26
    s_mov_b32 s37, s27
    s_mov_b32 s38, {N*128}
    s_lshl_b32 s64, s4, 11
    v_and_b32 v18, 7, v0
    v_lshrrev_b32 v19, 3, v4
    v_bfe_u32 v11, v0, 3, 2
    v_lshl_add_u32 v11, v11, 7, v1
    v_add_u32 v{vS}, s95, v11""")
    tokaddr(vA,19,18,5,20,11,54)
    a(f"""v_lshrrev_b32 v12, 1, v5
    v_and_b32 v13, 1, v5
    v_bfe_u32 v14, v0, 2, 2
    v_lshl_add_u32 v13, v13, 2, v14
    v_and_b32 v6, 3, v0
    v_lshlrev_b32 v14, 8, v19
    v_sub_u32 v{vAq}, v{vA}, v14
    v_add_u32 v{vAq}, 0x180, v{vAq}""")
    tokaddr(vTr,12,13,6,20,11,60)
    a(f"""v_cmp_eq_u32 s[66:67], v12, v19
    v_cmp_eq_u32 s[68:69], 0, v18
    v_cmp_gt_u32 s[72:73], 2, v5
    s_lshl_b32 s64, s4, 9
    s_add_u32 s64, s64, {L_RHO}
    s_lshl_b32 s65, s4, 8
    s_add_u32 s65, s65, {L_ND}
    v_lshlrev_b32 v20, 2, v4
    v_xor_b32 v11, 0x60, v20
    v_add_u32 v14, 64, v7
    v_cndmask_b32 v{vRk}, v14, v7, s[66:67]
    v_cndmask_b32 v{vRq}, v11, v20, s[66:67]
    v_cndmask_b32 v{vBw}, v11, v20, s[72:73]
    v_cmp_gt_u32 vcc, 2, v4
    v_lshlrev_b32 v20, 4, v19
    v_xor_b32 v11, 0x30, v20
    v_cndmask_b32 v{vBr}, v14, v7, vcc
    v_cndmask_b32 v{vNd}, v11, v20, s[66:67]
    v_cndmask_b32 v{vNs}, v11, v20, s[72:73]
    v_lshlrev_b32 v{vNo}, 4, v6
    s_not_b64 s[62:63], s[66:67]""")
    for r in (vRk,vRq,vBw,vBr): a(f'v_add_u32 v{r}, s64, v{r}')
    for r in (vNd,vNs,vNo): a(f'v_add_u32 v{r}, s65, v{r}')
    a(f"""v_lshlrev_b32 v20, 2, v5
    v_sub_u32 v11, v4, v20
    v_xor_b32 v13, 8, v4
    v_sub_u32 v13, v13, v20
    v_mov_b32 v14, 0x3f80
    v_mov_b32 v15, 0x3f800000""")
    for B_,d in ((BA,11),(BB,13)):
        for hf in range(2):
            a(f"""v_cmp_eq_u32 vcc, {2*hf}, v{d}
            v_cmp_eq_u32 s[74:75], {2*hf+1}, v{d}
            v_mov_b32 v{B_+2+hf}, 0
            v_cndmask_b32 v{B_+hf}, 0, v14, vcc
            v_cndmask_b32 v{B_+hf}, v{B_+hf}, v15, s[74:75]""")
    for i in range(4): a(f'v_mov_b32 v{BO+i}, 0')
    a(f"""v_cmp_eq_u32 s[56:57], v4, v12
    v_add_u32 v12, 2, v12
    v_cmp_eq_u32 s[58:59], v4, v12
    v_mov_b32 v{vOq}, v7
    v_lshlrev_b32 v{vW}, 4, v0
    v_add_u32 v{vW}, {L_W}, v{vW}
    v_cmp_eq_u32 s[70:71], 0, v6
    v_cmp_eq_u32 s[74:75], 1, v6
    v_mov_b32 v20, s76
    s_waitcnt vmcnt(6)
    v_dot2_f32_bf16 v13, v{ST[0]}, s76, 0""")
    for r in [ST[0]+1,ST[0]+2,ST[0]+3,ST[1],ST[1]+1,ST[1]+2,ST[1]+3]: a(f'v_dot2_f32_bf16 v13, v{r}, s76, v13')
    for b in ST:
        for i in range(4): a(f'v_cndmask_b32 v{b+i}, 0, v{b+i}, s[74:75]\nv_cndmask_b32 v{b+i}, v{b+i}, v20, s[70:71]')
    a(f"""v_readlane_b32 s64, v13, 0
    v_readlane_b32 s65, v13, 16
    v_readlane_b32 s74, v13, 32
    v_readlane_b32 s79, v13, 48
    v_mov_b32 v20, s64
    v_add_f32 v20, s65, v20
    v_add_f32 v20, s74, v20
    v_add_f32 v20, s79, v20
    v_mul_f32 v20, 0x3c800000, v20
    s_mov_b32 s74, 0x3e38aa3b
    v_readfirstlane_b32 s79, v20
    s_mov_b32 s70, 0x000f000f
    s_mov_b32 s71, 0x000f000f
    f_loop:""")
    stamp('fl')
    order=[(0,T,s_) for T in range(4) for s_ in range(2)]+[(1,T,s_) for T in (0,2,3,1) for s_ in range(2)]
    def pk(op,d,x,y,z=None,bc=False,neg=False):
        m=' op_sel_hi:[1,0]' if bc and z is None else (' op_sel_hi:[1,0,0]' if bc else '')
        if neg: m+=' neg_lo:[0,0,1] neg_hi:[0,0,1]'
        a(f'v_pk_{op}_f32 v[{d}:{d+1}], v[{x}:{x+1}], v[{y}:{y+1}]'+(f', v[{z}:{z+1}]' if z is not None else '')+m)
    for pair in range(npairs):
        q_=[]
        ro=128*pair; no=64*pair
        def wait_for(names):
            idx=max(q_.index(n) for n in names if n in q_) if any(n in q_ for n in names) else -1
            if idx>=0:
                left=len(q_)-idx-1
                a(f's_waitcnt lgkmcnt({left})'); del q_[:idx+1]
        def issue(txt,name): a(txt); q_.append(name)
        u7=36+8*(pair>>1)
        a(f"""s_mov_b32 exec_lo, {0 if pair&1 else -1}
        s_mov_b32 exec_hi, {-1 if pair&1 else 0}
        ds_write_b128 v{vS}, v[{u7}:{u7+3}] offset:1760
        s_mov_b64 exec, -1""")
        issue(f'ds_read_b128 v[{WB[0]}:{WB[0]+3}], v{vW}','f0')
        issue(f'ds_read_b128 v[{WB[1]}:{WB[1]+3}], v{vW} offset:1024','f1')
        issue(f'ds_read_b128 v[{WB[2]}:{WB[2]+3}], v{vW} offset:2048','f2')
        if pair: a('s_waitcnt vmcnt(2)')
        issue(f'ds_read_b128 v[{TA}:{TA+3}], v{vA}','ta0')
        issue(f'ds_read_b128 v[{TQ}:{TQ+3}], v{vAq}','tq0')
        issue(f'ds_read_b128 v[{TA+4}:{TA+7}], v{vA} offset:64','ta1')
        issue(f'ds_read_b128 v[{TQ+4}:{TQ+7}], v{vAq} offset:64','tq1')
        issue(f'ds_read_b128 v[{TB}:{TB+3}], v{vA} offset:256','tb0')
        issue(f'ds_read_b128 v[{TB+4}:{TB+7}], v{vA} offset:320','tb1')
        Sm=TQ; RK=TQ+4
        def packV(T,tro):
            for X_,o in ((XA,0),(XB,256)):
                A=X_+4*T
                a(f'v_cvt_pk_bf16_f32 v{A+3}, v{A+2}, v{A+3}\nv_cvt_pk_bf16_f32 v{A+2}, v{A}, v{A+1}')
                issue(f'ds_read_b64_tr_b16 v[{A}:{A+1}], v{vTr} offset:{o+tro}',f'u{T}{o}')
        for n,(m,T,s_) in enumerate(order):
            b=WB[n%3]
            need=[f'f{n}']
            if n==0: need+=['ta0','tq0']
            if n==1: need+=['ta1','tq1']
            wait_for(need)
            for X_,tk in ((XA,TA),(XB,TQ if m==0 else TB)):
                c=f'v[{X_+4*T}:{X_+4*T+3}]' if s_ else '0'
                if m==0: a(f'v_mfma_f32_16x16x32_bf16 v[{X_+4*T}:{X_+4*T+3}], v[{b}:{b+3}], v[{tk+4*s_}:{tk+4*s_+3}], {c}')
                else: a(f'v_mfma_f32_16x16x32_bf16 v[{X_+4*T}:{X_+4*T+3}], v[{tk+4*s_}:{tk+4*s_+3}], v[{b}:{b+3}], {c}')
            if n+3<16:
                m2,T2,s2=order[n+3]
                issue(f'ds_read_b128 v[{b}:{b+3}], v{vW} offset:{8192*m2+2048*T2+1024*s2}',f'f{n+3}')
            if n==5:
                for X_ in (XA,XB):
                    a(f'v_cvt_pk_bf16_f32 v{X_}, v{X_}, v{X_+1}\nv_cvt_pk_bf16_f32 v{X_+1}, v{X_+2}, v{X_+3}\nv_cvt_pk_bf16_f32 v{X_+2}, v{X_+4}, v{X_+5}\nv_cvt_pk_bf16_f32 v{X_+3}, v{X_+6}, v{X_+7}')
            if n==7:
                wait_for(['tb0','tb1'])
                a(f'v_mfma_f32_16x16x32_bf16 v[{XA+4}:{XA+7}], v[{TA}:{TA+3}], v[{XA}:{XA+3}], 0\nv_mfma_f32_16x16x32_bf16 v[{XB+4}:{XB+7}], v[{TB}:{TB+3}], v[{XB}:{XB+3}], 0')
                issue(f'ds_read_b128 v[{RK}:{RK+3}], v{vRk} offset:{ro}','rk')
                issue(f'ds_read_b32 v{cq}, v{vRq} offset:{ro}','rq')
                issue(f'ds_read_b32 v{dq}, v{vNd} offset:{no}','nd')
                a('s_nop 0')
                for X_ in (XA,XB):
                    A=X_+8
                    a(f'v_cvt_pk_bf16_f32 v{A}, v{A}, v{A+1}\nv_cvt_pk_bf16_f32 v{A+1}, v{A+2}, v{A+3}\nv_cvt_pk_bf16_f32 v{A+2}, v{A+4}, v{A+5}\nv_cvt_pk_bf16_f32 v{A+3}, v{A+6}, v{A+7}')
                a(f's_nop 0\nv_mfma_f32_16x16x32_bf16 v[{XA+4}:{XA+7}], v[{TA+4}:{TA+7}], v[{XA+8}:{XA+11}], v[{XA+4}:{XA+7}]\nv_mfma_f32_16x16x32_bf16 v[{XB+4}:{XB+7}], v[{TB+4}:{TB+7}], v[{XB+8}:{XB+11}], v[{XB+4}:{XB+7}]')
            if n==10:
                wait_for(['rk','rq','nd'])
                a('s_mov_b64 exec, s[66:67]')
                pk('mul',Sm,XA+4,RK); pk('mul',Sm+2,XA+6,RK+2)
                a('s_mov_b64 exec, s[62:63]')
                pk('mul',Sm,XB+4,RK); pk('mul',Sm+2,XB+6,RK+2)
                a(f's_mov_b64 exec, -1\nv_mul_f32 v{cq}, s74, v{cq}\nv_cndmask_b32 v{dq}, v{dq}, 1.0, s[68:69]')
                a(f'v_max3_f32 v{t0_}, v{Sm}, v{Sm+1}, v{Sm+2}\nv_max_f32 v{t0_}, v{t0_}, v{Sm+3}\nv_mov_b32 v{t1_}, v{t0_}')
            if n==11:
                a(f'v_permlane16_swap_b32 v{t0_}, v{t1_}\nv_max_f32 v{t0_}, v{t0_}, v{t1_}\nv_mul_f32 v{t0_}, v{cq}, v{t0_}')
                pk('fma',Sm,Sm,cq,t0_,bc=True,neg=True); pk('fma',Sm+2,Sm+2,cq,t0_,bc=True,neg=True)
                for r in range(4): a(f'v_exp_f32 v{Sm+r}, v{Sm+r}')
            if n==12:
                a(f'v_add_f32 v{t0_}, v{Sm}, v{Sm+1}\nv_add_f32 v{t1_}, v{Sm+2}, v{Sm+3}\nv_add_f32 v{t0_}, v{t0_}, v{t1_}\nv_mov_b32 v{t1_}, v{t0_}')
                pk('mul',Sm,Sm,RK); pk('mul',Sm+2,Sm+2,RK+2)
            if n==13:
                a(f'v_permlane16_swap_b32 v{t0_}, v{t1_}\nv_add_f32 v{t0_}, v{t0_}, v{t1_}\nv_rcp_f32 v{t0_}, v{t0_}')
                packV(0,0)
                a(f'v_mul_f32 v{t0_}, v{dq}, v{t0_}')
                pk('mul',Sm,Sm,t0_,bc=True); pk('mul',Sm+2,Sm+2,t0_,bc=True)
            if n==14:
                a(f"""s_mov_b64 exec, s[66:67]
                v_cvt_pk_bf16_f32 v{BA+2}, v{Sm}, v{Sm+1}
                v_cvt_pk_bf16_f32 v{BA+3}, v{Sm+2}, v{Sm+3}
                s_mov_b64 exec, s[62:63]
                v_cvt_pk_bf16_f32 v{BB+2}, v{Sm}, v{Sm+1}
                v_cvt_pk_bf16_f32 v{BB+3}, v{Sm+2}, v{Sm+3}
                s_mov_b64 exec, -1""")
                packV(2,64)
        packV(3,72)
        issue(f'ds_read_b32 v{sv}, v{vNs} offset:{no+4}','ns')
        issue(f'ds_read_b32 v{vo}, v{vNo} offset:{no+8}','no')
        packV(1,8)
        for T in (0,2,3,1):
            wait_for([f'u{T}0'])
            a(f'v_mfma_f32_16x16x32_bf16 v[{Z+4*T}:{Z+4*T+3}], v[{XA+4*T}:{XA+4*T+3}], v[{BA}:{BA+3}], 0')
        for T in (0,2,3,1):
            wait_for([f'u{T}256'])
            a(f'v_mfma_f32_16x16x32_bf16 v[{XA+4*T}:{XA+4*T+3}], v[{XB+4*T}:{XB+4*T+3}], v[{BB}:{BB+3}], 0')
        a(f'v_cndmask_b32 v{sv}, v{sv}, 1.0, s[68:69]\nv_add_u32 v{vo}, v{vo}, v{vOq}')
        for i in (0,1,4,5,6,7,2,3): a(f'v_cvt_pk_bf16_f32 v{TA+i}, v{Z+2*i}, v{Z+2*i+1}')
        issue(f'ds_write_b128 v{vA}, v[{TA}:{TA+3}]','w0'); issue(f'ds_write_b128 v{vA}, v[{TA+4}:{TA+7}] offset:64','w1')
        for i in (0,1,4,5,6,7,2,3): a(f'v_cvt_pk_bf16_f32 v{TB+i}, v{XA+2*i}, v{XA+2*i+1}')
        issue(f'ds_write_b128 v{vAq}, v[{TB}:{TB+3}]','w2'); issue(f'ds_write_b128 v{vAq}, v[{TB+4}:{TB+7}] offset:64','w3')
        a(f"""v_mfma_f32_16x16x32_bf16 v[{XB}:{XB+3}], v[{ST[0]}:{ST[0]+3}], v[{TA}:{TA+3}], 0
        v_mfma_f32_16x16x32_bf16 v[{XB+4}:{XB+7}], v[{ST[0]}:{ST[0]+3}], v[{TB}:{TB+3}], 0
        v_mfma_f32_16x16x32_bf16 v[{XB}:{XB+3}], v[{ST[1]}:{ST[1]+3}], v[{TA+4}:{TA+7}], v[{XB}:{XB+3}]
        v_mfma_f32_16x16x32_bf16 v[{XB+4}:{XB+7}], v[{ST[1]}:{ST[1]+3}], v[{TB+4}:{TB+7}], v[{XB+4}:{XB+7}]""")
        for T in range(4):
            o=(0,8,64,72)[T]
            issue(f'ds_read_b64_tr_b16 v[{Z+4*T}:{Z+4*T+1}], v{vTr} offset:{o}',f'o{T}a')
            issue(f'ds_read_b64_tr_b16 v[{Z+4*T+2}:{Z+4*T+3}], v{vTr} offset:{256+o}',f'o{T}b')
        qa,qb,t2,t3=XB+12,XB+13,XB+14,XB+15
        for i in range(8):
            a(f'v_dot2_f32_bf16 v{qa}, v{TA+i}, v{TA+i}, {"0" if i==0 else f"v{qa}"}\nv_dot2_f32_bf16 v{qb}, v{TB+i}, v{TB+i}, {"0" if i==0 else f"v{qb}"}')
        a(f"""v_cndmask_b32 v{XB}, v{XB+4}, v{XB}, s[72:73]
        v_cndmask_b32 v{XB+1}, v{XB+5}, v{XB+1}, s[72:73]
        v_mul_f32 v{t2}, 0x3e000000, v{XB}
        v_permlane32_swap_b32 v{qa}, v{qb}
        v_add_f32 v{qa}, v{qa}, v{qb}
        v_mov_b32 v{qb}, v{qa}
        v_fma_f32 v{t3}, -v{XB}, s79, v{XB+1}
        v_mul_f32 v{XB}, 0x3e000000, v{sv}
        v_permlane16_swap_b32 v{qa}, v{qb}
        v_add_f32 v{qa}, v{qa}, v{qb}
        v_mul_f32 v{XB}, v{XB}, v{XB}
        v_fma_f32 v{qa}, -v{t2}, v{t2}, v{qa}
        v_max_f32 v{qa}, 0, v{qa}
        v_fmaak_f32 v{qa}, v{XB}, v{qa}, {EPS}
        v_rsq_f32 v{qa}, v{qa}
        v_mul_f32 v{t3}, v{sv}, v{t3}
        v_mul_f32 v{t3}, 0x3fb8aa3b, v{t3}
        v_mul_f32 v{qa}, v{qa}, v{t3}""")
        if pair<npairs-1: a(f's_mov_b64 exec, s[54:55]\nv_add_u32 v{vA}, 0x200, v{vA}\nv_add_u32 v{vAq}, 0x200, v{vAq}\ns_mov_b64 exec, -1')
        else: a('s_nop 1')
        a(f"""v_max_f32_dpp v{qb}, v{qa}, v{qa} quad_perm:[1,0,3,2] {DPP}
        s_nop 1
        v_max_f32_dpp v{qb}, v{qb}, v{qb} quad_perm:[2,3,0,1] {DPP}
        s_nop 1
        v_max_f32_dpp v{qb}, v{qb}, v{qb} row_half_mirror {DPP}
        v_sub_f32 v{qa}, v{qa}, v{qb}
        v_exp_f32 v{qa}, v{qa}""")
        if pair<npairs-1: a(f's_mov_b64 exec, s[60:61]\nv_add_u32 v{vTr}, 0x200, v{vTr}\ns_mov_b64 exec, -1')
        else: a('s_nop 1')
        a(f"""v_add_f32_dpp v{qb}, v{qa}, v{qa} quad_perm:[1,0,3,2] {DPP}
        s_nop 1
        v_add_f32_dpp v{qb}, v{qb}, v{qb} quad_perm:[2,3,0,1] {DPP}
        s_nop 1
        v_add_f32_dpp v{qb}, v{qb}, v{qb} row_half_mirror {DPP}
        v_rcp_f32 v{qb}, v{qb}
        v_mul_f32 v{qa}, v{sv}, v{qa}
        v_mul_f32 v{qa}, v{qa}, v{qb}
        ds_write_b32 v{vBw}, v{qa} offset:{ro}
        ds_read_b128 v[{XB}:{XB+3}], v{vBr} offset:{ro}
        s_waitcnt lgkmcnt(2)""")
        if pair==0: a('s_cmp_eq_u32 s4, 12\ns_cbranch_scc1 f_nd0')
        if pair<npairs-1: dma(pair+1)
        if pair==0: a('f_nd0:')
        a(f"""s_waitcnt lgkmcnt(0)
        s_mov_b64 exec, s[56:57]
        v_cvt_pk_bf16_f32 v{BO}, v{XB}, v{XB+1}
        v_cvt_pk_bf16_f32 v{BO+1}, v{XB+2}, v{XB+3}
        s_mov_b64 exec, s[58:59]
        v_cvt_pk_bf16_f32 v{BO+2}, v{XB}, v{XB+1}
        v_cvt_pk_bf16_f32 v{BO+3}, v{XB+2}, v{XB+3}
        s_mov_b64 exec, -1
        s_nop 0""")
        for T in range(4):
            a(f'v_mfma_f32_16x16x32_bf16 v[{XA+4*T}:{XA+4*T+3}], v[{Z+4*T}:{Z+4*T+3}], v[{BO}:{BO+3}], 0')
        a('s_nop 4')
        for i in range(8): a(f'v_cvt_pk_bf16_f32 v{XB+8+i}, v{XA+2*i}, v{XA+2*i+1}')
        a(f"""s_mov_b64 exec, s[70:71]
        buffer_store_dwordx4 v[{XB+8}:{XB+11}], v{vo}, s[36:39], 0 offen {OUTPOL}
        buffer_store_dwordx4 v[{XB+12}:{XB+15}], v{vo}, s[36:39], 0 offen offset:64 {OUTPOL}
        s_mov_b64 exec, -1""")
        if pair==0: a('s_cmp_eq_u32 s4, 12\ns_cbranch_scc1 f_done')
    a('f_done:')
    stamp('f')
    if stamps:
        a('s_waitcnt vmcnt(0)')
        stamp('e')
        a(f's_waitcnt lgkmcnt(0)\ns_lshl_b32 s64, s2, 4\ns_add_u32 s64, s64, s4\ns_lshl_b32 s64, s64, 7\ns_add_u32 s64, s64, {DUMP}\nv_mov_b32 v4, s64\ns_mov_b64 exec, 1')
        a('v_mov_b32 v5, s94\nglobal_store_dword v4, v5, s[30:31] offset:64')
        for i in range(len(stamps)): a(f'v_mov_b32 v5, s{80+2*i}\nglobal_store_dword v4, v5, s[30:31] offset:{4*i}')
    a('k_end:\ns_endpgm')
    for h in handlers:
        a(f'{h}:\ns_cmp_ge_u32 s78, {RB}\ns_cbranch_scc1 {h}_r\ns_add_u32 s78, s78, 1\ns_barrier\ns_add_u32 s77, s77, s52\ns_cbranch_scc0 {h}\ns_branch {h}_r')
    a(f"""h_slow:
    s_mov_b32 s64, {CAP}
    v_and_b32 v4, 3, v0
    v_lshlrev_b32 v4, 2, v4
    h_sl:""")
    for s_ in range(2):
        a(f"""v_add_u32 v5, s64, v4
        v_add_u32 v6, v5, v{122+s_}
        v_subrev_u32 v6, {CAP}, v6
        v_lshlrev_b32 v6, 2, v6
        v_sub_u32 v5, v{120+s_}, v5
        v_mov_b32 v7, {OOBV}
        buffer_load_dwordx4 v[102:105], v6, s[40:43], s59 offen
        s_waitcnt vmcnt(0)""")
        for r in range(4): a(f'v_cmp_lt_i32 vcc, {r}, v5\ns_nop 1\nv_cndmask_b32 v{102+r}, v7, v{102+r}, vcc')
        for hb in range(2):
            a('s_nop 1')
            for t in range(8):
                e=8*hb+t
                a(f'v_add_u32_dpp v7, v{102+(e&3)}, v1 quad_perm:[{e>>2},{e>>2},{e>>2},{e>>2}] {DPP}\nbuffer_load_dwordx4 v[{d0+4*t}:{d0+4*t+3}], v7, s[32:35], 0 offen sc1')
            a('s_waitcnt vmcnt(0)')
            for t in range(8): mf(s_,d0+4*t); a('s_nop 0')
    a('s_add_u32 s64, s64, 16\ns_cmp_lt_u32 s64, s53\ns_cbranch_scc1 h_sl\ns_branch h_slow_r')
    a(f"""k_hx:
    s_cmp_lg_u32 s4, 13
    s_cbranch_scc1 k_end
    v_lshlrev_b32 v2, 21, v7
    v_add_u32 v3, 0x1fff80, v2
    v_cmpx_gt_u32 vcc, 42, v7
    global_load_dword v4, v3, s[30:31] sc1
    v_cmpx_gt_u32 vcc, 4, v7
    global_load_dword v4, v2, s[26:27] sc1
    s_endpgm""")
    for t in tails: t()
    t=a.text()
    if pearly: t=t.replace('    PB3\n','').replace('    PBMID\n','    s_cmp_gt_u32 s72, 2\n    s_cbranch_scc1 p1_pm\n    s_barrier\np1_pm:\n')
    else: t=t.replace('    PB3\n','    s_barrier\n    s_barrier\n').replace('    PBMID\n','')
    return t

HDR=open('gather_scatter__hybrid_graph_tf_nagphormer__graph.s.ref').read().split('; Override launch')[0]
def wrap(body):
    return HDR+f'''; @launch grid=(256,1,1) block=(1024,1,1) lds={LDS_BYTES}
.amdgcn_target "amdgcn-amd-amdhsa--gfx950"
.text
.globl {KNAME}
.p2align 8
.type {KNAME},@function
{KNAME}:
'''+body+f'''.section .rodata,"a"
.p2align 6
.amdhsa_kernel {KNAME}
  .amdhsa_next_free_vgpr 128
  .amdhsa_next_free_sgpr 102
  .amdhsa_accum_offset 128
  .amdhsa_group_segment_fixed_size 0
  .amdhsa_kernarg_size 96
  .amdhsa_user_sgpr_count 2
  .amdhsa_user_sgpr_kernarg_segment_ptr 1
  .amdhsa_system_sgpr_workgroup_id_x 1
  .amdhsa_float_denorm_mode_32 3
.end_amdhsa_kernel
'''
if __name__=='__main__':
    import ast
    kw=dict(x.split('=') for x in sys.argv[2:])
    for k in kw:
        try: kw[k]=ast.literal_eval(kw[k])
        except Exception: pass
    if 'stamps' in kw: kw['stamps']=kw['stamps'].split(',')
    open(sys.argv[1],'w').write(wrap(gen(**kw)))
```

```python
import sys
from lay import *
KNAME='gather_scatter__hybrid_graph_tf_nagphormer__graph_kernel'
class Asm:
    def __init__(s): s.l=[]; s.u=0
    def __call__(s,t):
        for x in t.strip('\n').split('\n'):
            x=x.strip()
            if x: s.l.append(x if x.endswith(':') else '    '+x)
    def lab(s,p='L'): s.u+=1; return f'{p}{s.u}'
    def text(s): return '\n'.join(s.l)+'\n'
DPP='row_mask:0xf bank_mask:0xf'
EPS='0x3727c5ac'
OUTPOL='sc1'

def line_calc(a,dst,n,t,u):
    a(f'''v_lshrrev_b32 v{t}, 8, v{n}
    v_mul_u32_u24 v{u}, 205, v{t}
    v_lshl_add_u32 v{dst}, v{t}, 7, v{n}
    v_lshrrev_b32 v{u}, 13, v{u}
    v_lshrrev_b32 v{t}, 1, v{n}
    v_lshl_add_u32 v{dst}, v{u}, 10, v{dst}
    v_bitop3_b32 v{t}, v{t}, v{n}, 64 bitop3:0x80
    v_add_u32 v{dst}, v{dst}, v{t}''')

def rho_calc(a,X,sm,sq,vs,sones):
    a(f'v_dot2_f32_bf16 v{sm}, v{X}, {sones}, 0\nv_dot2_f32_bf16 v{sq}, v{X}, v{X}, 0')
    for i in range(1,4):
        a(f'v_dot2_f32_bf16 v{sm}, v{X+i}, {sones}, v{sm}\nv_dot2_f32_bf16 v{sq}, v{X+i}, v{X+i}, v{sq}')
    a('s_nop 2')
    for m in ('quad_perm:[1,0,3,2]','quad_perm:[2,3,0,1]','row_half_mirror'):
        a(f'v_add_f32_dpp v{sm}, v{sm}, v{sm} {m} {DPP}\nv_add_f32_dpp v{sq}, v{sq}, v{sq} {m} {DPP}\ns_nop 0')
    a(f'''v_mul_f32 v{sm}, 0x3c800000, v{sm}
    v_mul_f32 v{sq}, 0x3c800000, v{sq}
    v_fma_f32 v{sq}, -v{sm}, v{sm}, v{sq}
    v_max_f32 v{sq}, 0, v{sq}''')
    if vs is not None: a(f'v_mul_f32 v{sq}, v{vs}, v{sq}\nv_mul_f32 v{sq}, v{vs}, v{sq}')
    a(f'v_add_f32 v{sq}, {EPS}, v{sq}\nv_rsq_f32 v{sm}, v{sq}\ns_nop 0')
    if vs is not None: a(f'v_mul_f32 v{sm}, v{vs}, v{sm}')

def baraddr(a,base):
    a(f'''s_and_b32 s64, s2, 7
    s_lshr_b32 s65, s64, 2
    s_xor_b32 s65, s65, s63
    s_lshl_b32 s65, s65, 13
    s_lshl_b32 s64, s64, 8
    s_add_u32 s64, s64, s65
    s_add_u32 s56, s64, {base}
    s_xor_b32 s65, s6, s63
    s_lshl_b32 s65, s65, 13
    s_and_b32 s64, s7, 7
    s_lshl_b32 s64, s64, 8
    s_add_u32 s64, s64, s65
    s_mov_b32 s75, {base+4096}
    s_add_u32 s57, s64, s75''')

def bar_l2(a,nm):
    a(f"""s_mov_b64 exec, 0xff
    v_mbcnt_lo_u32_b32 v58, -1, 0
    v_lshrrev_b32 v59, 2, v58
    v_xor_b32 v59, s63, v59
    v_lshlrev_b32 v59, 13, v59
    v_lshl_add_u32 v58, v58, 8, v59
    v_add_u32 v58, s75, v58
    v_mov_b32 v57, s65
    global_atomic_add v58, v57, s[30:31] sc1
    s_mov_b64 exec, 1
    {nm}_np:""")
def bar_poll(a,nm,votes=False):
    a(f"""s_mov_b32 s65, 0
    {nm}_p:
    global_load_dword v58, v56, s[30:31] sc1
    s_waitcnt vmcnt(0)""")
    if votes: a('v_and_b32 v59, 0xff, v58\nv_cmp_gt_u32 vcc, s64, v59')
    else: a('v_cmp_gt_u32 vcc, s64, v58')
    a(f"""s_cbranch_vccz {nm}_pd
    s_add_u32 s65, s65, 1
    s_cmp_lt_u32 s65, 0x800000
    s_cbranch_scc1 {nm}_p
    {nm}_pd:""")
def bar_arrive(a,nm):
    a(f"""v_mov_b32 v56, s56
    v_mov_b32 v57, 1
    global_atomic_add v58, v56, v57, s[30:31] sc0 sc1
    s_lshl_b32 s64, s62, 5
    s_sub_u32 s64, s64, 1
    v_mov_b32 v56, s57
    s_waitcnt vmcnt(0)
    v_readfirstlane_b32 s65, v58
    s_cmp_lg_u32 s65, s64
    s_cbranch_scc1 {nm}_np
    s_mov_b32 s65, 1""")
    bar_l2(a,nm)

def gbarrier(a,nm,pf=None,fill=None):
    a(f's_add_u32 s62, s62, 1\ns_barrier\ns_cmp_lg_u32 s4, 0\ns_cbranch_scc1 {nm}_f')
    a('s_mov_b64 exec, 1')
    bar_arrive(a,nm)
    a('s_lshl_b32 s64, s62, 3')
    bar_poll(a,nm)
    a(f's_mov_b64 exec, -1\ns_branch {nm}_w\n{nm}_f:')
    if pf:
        n0,n1,sl=pf
        def ex(lo,hi):
            m=((1<<(16*hi))-1)^((1<<(16*lo))-1)
            a(f's_mov_b32 exec_lo, {m&0xffffffff:#x}\ns_mov_b32 exec_hi, {m>>32:#x}')
        if n0: ex(0,n0); a('buffer_load_dword v127, v126, s[36:39], 0 offen sc1')
        if n1>n0:
            if sl: a(f's_sleep {sl}')
            ex(n0,n1); a('buffer_load_dword v127, v126, s[36:39], 0 offen sc1')
        a('s_mov_b64 exec, -1')
    a(f"""{nm}_w:
    s_barrier""")

def probe(a,nm,voff,res):
    a(f'v_add_u32 v{voff+1}, 0x2000, v{voff}\nv_mov_b32 v{voff+2}, 0\ns_mov_b32 s66, -1\ns_mov_b32 s67, -1\ns_mov_b32 s72, 0\n{nm}:')
    for s in range(2):
        a(f'''s_memtime s[68:69]
        s_waitcnt lgkmcnt(0)
        global_atomic_add v{voff+3}, v{voff+s}, v{voff+2}, s[30:31] sc0 sc1
        s_waitcnt vmcnt(0)
        s_memtime s[70:71]
        s_waitcnt lgkmcnt(0)
        s_sub_u32 s70, s70, s68
        s_min_u32 s{66+s}, s{66+s}, s70''')
    a(f's_add_u32 s72, s72, 1\ns_cmp_lt_u32 s72, 3\ns_cbranch_scc1 {nm}')
    a(f's_cmp_gt_u32 s66, s67\ns_cselect_b32 s{res}, 1, 0\ns_xor_b32 s{res}, s{res}, s6')

def gen(dbgst=False,K=8,R=12,RB=None,pf=None,pdrain=True,stop=None,dump=False,stamps=False,npairs=4,stag=0,nprobe=4,xpos=3,xpf=2,pa=2):
    a=Asm()
    if RB is None: RB=R-1
    def stamp(nm):
        if stamps and nm in stamps:
            i=stamps.index(nm); a(f's_memrealtime s[{80+2*i}:{81+2*i}]')
        if stamps and nm+'c' in stamps:
            i=stamps.index(nm+'c'); a(f's_memtime s[{80+2*i}:{81+2*i}]')
    def hstamp(nm):
        if stamps and nm in stamps:
            l=a.lab('hs'); i=stamps.index(nm)
            a(f's_cmp_lg_u32 s3, 4\ns_cbranch_scc1 {l}\ns_memrealtime s[{80+2*i}:{81+2*i}]\n{l}:')
    a(f"""s_cmp_ge_u32 s2, 256
    s_cbranch_scc1 k_end
    s_load_dwordx16 s[8:23], s[0:1], 0
    s_load_dwordx8 s[24:31], s[0:1], 64
    v_lshrrev_b32 v1, 6, v0
    s_and_b32 s5, s2, 7
    v_readfirstlane_b32 s4, v1
    s_lshl_b32 s5, s5, 5
    s_lshr_b32 s3, s2, 3
    s_add_u32 s5, s5, s3
    s_mov_b32 s62, 0
    s_mul_i32 s54, s5, {BS}
    v_lshlrev_b32 v10, 4, v0""")
    stamp('s')
    def wsinit():
        a(f"""s_add_u32 s30, s30, 0x1fffff
        s_addc_u32 s31, s31, 0
        s_and_b32 s30, s30, 0xffe00000
        s_mov_b32 s36, s30
        s_mov_b32 s37, s31
        s_mov_b32 s38, {TBYTES}
        s_mov_b32 s39, 0x20000
        s_add_u32 s40, s30, {SMALL}
        s_addc_u32 s41, s31, 0
        s_mov_b32 s42, {SMALL_BYTES}
        s_mov_b32 s43, 0x20000
        s_getreg_b32 s7, hwreg(HW_REG_XCC_ID, 0, 4)
        s_lshr_b32 s6, s7, 2
        s_mov_b64 s[56:57], 0
        s_mov_b32 s60, 0
        s_and_b32 s6, s6, 1""")
    def ldsinit(z):
        for k in range(4): a(f'v_mov_b32 v{z+k}, 0\nv_mov_b32 v{z+4+k}, {OOBV}')
        o=f'v[{z+4}:{z+7}]'; zz=f'v[{z}:{z+3}]'
        a(f"""ds_write_b128 v10, {o} offset:{L_LIST}
        v_add_u32 v1, 13312, v10
        ds_write_b128 v1, {o} offset:{L_LIST}
        v_add_u32 v1, 26624, v10
        s_movk_i32 s64, 416
        v_cmpx_gt_u32 vcc, s64, v0
        ds_write_b128 v1, {o} offset:{L_LIST}
        ds_write_b128 v10, {zz} offset:{L_CNT}
        s_movk_i32 s64, 208
        v_cmpx_gt_u32 vcc, s64, v0
        ds_write_b128 v10, v[{z+2}:{z+5}] offset:{L_INFO}
        s_movk_i32 s64, 84
        v_cmpx_gt_u32 vcc, s64, v0
        ds_write_b128 v10, {zz} offset:{L_HIST}
        s_mov_b64 exec, -1""")
    a(f"""s_cmp_ge_u32 s4, 13
    s_cbranch_scc1 p1_help
    v_lshrrev_b32 v2, 3, v0
    v_add_u32 v3, s54, v2
    v_add_u32 v4, 104, v3
    v_and_b32 v5, 7, v0
    v_lshlrev_b32 v5, 4, v5
    v_lshl_add_u32 v6, v3, 7, v5
    v_lshl_add_u32 v7, v4, 7, v5
    v_lshlrev_b32 v8, 1, v3
    v_lshlrev_b32 v9, 1, v4
    s_mul_i32 s55, s2, {CHE*4}
    v_add_u32 v11, s55, v10
    s_add_u32 s55, s55, {CHUNK}
    s_mov_b32 s64, {N}
    v_cmp_gt_u32 s[48:49], s64, v3
    v_cmp_gt_u32 s[50:51], s64, v4
    s_movk_i32 s64, 736
    v_cmp_gt_u32 vcc, s64, v0
    s_and_b64 s[50:51], s[50:51], vcc
    s_movk_i32 s64, 800
    v_cmp_gt_u32 s[52:53], s64, v0
    s_cmp_ge_u32 s2, {NCH}
    s_cselect_b64 s[52:53], 0, s[52:53]
    s_waitcnt lgkmcnt(0)""")
    a(f"""s_mov_b64 exec, s[52:53]
    s_cbranch_execz p1_ne
    global_load_dwordx4 v[12:15], v11, s[12:13]
    global_load_dwordx4 v[16:19], v11, s[10:11]
    p1_ne:
""")
    XL="""    s_mov_b64 exec, s[48:49]
    s_cbranch_execz p1_nxa
    global_load_dwordx4 v[20:23], v6, s[8:9]
    global_load_ushort v28, v8, s[14:15]
    p1_nxa:
    s_mov_b64 exec, s[50:51]
    s_cbranch_execz p1_nxb
    global_load_dwordx4 v[24:27], v7, s[8:9]
    global_load_ushort v29, v9, s[14:15]
    p1_nxb:
    s_mov_b64 exec, -1"""
    if xpos==0: a(XL)
    else: a('s_mov_b64 exec, -1')
    wsinit()
    a(f"""s_lshl_b32 s64, s2, 4
    s_add_u32 s64, s64, s4
    s_cmp_lg_u32 s64, {255*16}
    s_cbranch_scc1 p1_nz
    v_and_b32 v40, 15, v0
    v_lshrrev_b32 v41, 4, v0
    v_lshlrev_b32 v40, 8, v40
    v_and_b32 v42, 1, v41
    v_lshrrev_b32 v41, 1, v41
    v_lshl_add_u32 v40, v42, 12, v40
    v_lshl_add_u32 v40, v41, 13, v40
    v_add_u32 v40, {BARP}, v40
    v_mov_b32 v41, 0
    global_store_dword v40, v41, s[30:31] sc1
    v_add_u32 v40, 0x4000, v40
    global_store_dword v40, v41, s[30:31] sc1
    v_add_u32 v40, 0x4000, v40
    global_store_dword v40, v41, s[30:31] sc1
    s_waitcnt vmcnt(0)
    s_mov_b64 exec, 1
    v_mov_b32 v40, 0
    v_mov_b32 v41, 1
    global_store_dword v40, v41, s[28:29] sc1
    s_mov_b64 exec, -1
    p1_nz:""")
    ldsinit(32)
    for n,d in ((3,76),(4,78)):
        line_calc(a,d,n,64,65)
        a(f"""v_lshl_add_u32 v{d}, v{d}, 7, v5
        v_and_b32 v64, 128, v{n}
        v_cmp_ne_u32 vcc, 0, v64
        v_add_u32 v{d+1}, 0x2000, v{d}
        v_cndmask_b32 v{d+1}, v36, v{d+1}, vcc""".replace('v_add_u32 v{0}'.format(d+1),'s_nop 0\nv_add_u32 v{0}'.format(d+1)))
    a('s_waitcnt lgkmcnt(0)\ns_barrier')
    stamp('B1')
    if xpos==1: a(XL)
    a(f"""s_mov_b64 exec, s[52:53]
    s_cbranch_execz p1_e1
    s_movk_i32 s64, -{BS}
    v_mov_b32 v33, 1
""")
    if xpos<2: a('s_cmp_lt_u32 s4, 12\ns_cbranch_scc1 p1_w4\ns_waitcnt vmcnt(2)\np1_w4:\ns_waitcnt vmcnt(4)')
    else: a('s_waitcnt vmcnt(0)')
    stamp('ed')
    for i in range(4):
        d=12+i; b=40+i
        a(f"""v_mul_u32_u24 v30, 85599, v{d}
        v_lshrrev_b32 v{52+i}, 24, v30
        v_lshlrev_b32 v{b}, 2, v{52+i}
        ds_add_rtn_u32 v{48+i}, v{b}, v33 offset:{L_HIST}""")
    a('p1_e1:')
    if xpos==2: a(XL)
    a('s_mov_b64 exec, -1\ns_waitcnt lgkmcnt(0)\ns_barrier')
    stamp('B2')
    a(f"""s_cmp_lg_u32 s4, 0
    s_cbranch_scc1 p1_ns
    ds_read_b128 v[72:75], v10 offset:{L_HIST}
    s_waitcnt lgkmcnt(0)
    v_add_u32 v57, v72, v73
    v_add_u32 v58, v57, v74
    v_add_u32 v59, v58, v75
    v_mov_b32 v60, v59
    s_nop 1""")
    for m in ('row_shr:1','row_shr:2','row_shr:4','row_shr:8'):
        a(f'v_add_u32_dpp v60, v60, v60 {m} {DPP} bound_ctrl:0\ns_nop 1')
    a(f"""v_add_u32_dpp v60, v60, v60 row_bcast:15 row_mask:0xa bank_mask:0xf
    s_nop 1
    v_add_u32_dpp v60, v60, v60 row_bcast:31 row_mask:0xc bank_mask:0xf
    v_sub_u32 v60, v60, v59
    v_add_u32 v61, v60, v72
    v_add_u32 v62, v60, v57
    v_add_u32 v63, v60, v58
    ds_write_b128 v10, v[60:63] offset:{L_HIST}
    v_lshl_or_b32 v56, v72, 16, v60
    v_lshl_or_b32 v57, v73, 16, v61
    v_lshl_or_b32 v58, v74, 16, v62
    v_lshl_or_b32 v59, v75, 16, v63
    s_cmp_ge_u32 s2, {NCH}
    s_cbranch_scc1 p1_ns
    s_lshl_b32 s65, s2, 10
    s_add_u32 s65, s65, {OFFS}
    buffer_store_dwordx4 v[56:59], v10, s[40:43], s65 offen sc1
    p1_ns:""")
    for i in range(4):
        d=12+i; s_=16+i; b=52+i; e=44+i
        a(f"""v_mul_u32_u24 v31, 10700, v{s_}
        v_lshrrev_b32 v30, 5, v{b}
        v_lshrrev_b32 v31, 26, v31
        v_mad_i32_i24 v{d}, v{b}, s64, v{d}
        v_sub_u32 v31, v31, v30
        v_and_b32 v31, 7, v31
        v_lshl_add_u32 v{d}, v{d}, 3, v31""")
        line_calc(a,e,s_,30,31)
        a(f"""v_and_b32 v30, 128, v{s_}
        v_lshl_or_b32 v{e}, v30, 10, v{e}
        v_lshl_or_b32 v{e}, v{d}, 18, v{e}""")
    a('s_waitcnt lgkmcnt(0)\ns_barrier')
    stamp('B3')
    a('s_mov_b64 exec, s[52:53]')
    for i in range(4): a(f'ds_read_b32 v{40+i}, v{40+i} offset:{L_HIST}')
    for i in range(4):
        a(f's_waitcnt lgkmcnt(3)\nv_add_lshl_u32 v{40+i}, v{40+i}, v{48+i}, 2')
        a(f'ds_write_b32 v{40+i}, v{44+i} offset:{L_ESTG}')
    a('s_mov_b64 exec, -1\ns_waitcnt lgkmcnt(0)\ns_barrier')
    a(f"""s_mov_b64 exec, s[52:53]
    s_cbranch_execz p1_e3
    ds_read_b128 v[40:43], v10 offset:{L_ESTG}
    s_waitcnt lgkmcnt(0)
    buffer_store_dwordx4 v[40:43], v10, s[40:43], s55 offen sc1
    p1_e3:
    s_mov_b64 exec, -1""")
    if xpos==3:
        a(XL)
        a('s_cmp_lt_u32 s4, 12\ns_cbranch_scc1 p1_w4\ns_waitcnt vmcnt(2)\np1_w4:\ns_waitcnt vmcnt(4)')
    else: a('s_waitcnt vmcnt(0)')
    stamp('pa')
    a('s_barrier\ns_mov_b32 s66, 0x3f803f80\ns_waitcnt vmcnt(0)')
    for (X,D,n,m,off) in ((20,28,3,48,0),(24,29,4,50,832)):
        l=a.lab('xc')
        a(f's_mov_b64 exec, s[{m}:{m+1}]\ns_cbranch_execz {l}')
        a(f'v_lshlrev_b32 v{D}, 16, v{D}')
        for i in range(4):
            a(f"""v_lshlrev_b32 v64, 16, v{X+i}
            v_and_b32 v65, 0xffff0000, v{X+i}
            v_mul_f32 v64, v{D}, v64
            v_mul_f32 v65, v{D}, v65
            v_cvt_pk_bf16_f32 v{(68 if off==0 else 72)+i}, v64, v65""")
        ad=76 if off==0 else 78
        o=68 if off==0 else 72
        a(f"""buffer_store_dwordx4 v[{o}:{o+3}], v{ad}, s[36:39], 0 offen sc1
        buffer_store_dwordx4 v[{o}:{o+3}], v{ad+1}, s[36:39], 0 offen sc1
        {l}:""")
    for (X,D,n,m,off) in ((20,28,3,48,0),(24,29,4,50,832)):
        l=a.lab('xr')
        a(f's_mov_b64 exec, s[{m}:{m+1}]\ns_cbranch_execz {l}')
        rho_calc(a,X,64,65,None,'s66')
        a(f"""v_mov_b32 v65, v{D}
        v_lshlrev_b32 v66, 3, v2
        ds_write_b64 v66, v[64:65] offset:{L_R0+off}
        {l}:""")
    a('s_mov_b64 exec, -1\ns_branch p1_done')
    a(f"""p1_help:
    v_and_b32 v2, 63, v0
    v_and_b32 v3, 15, v0
    v_bfe_u32 v4, v0, 4, 2
    v_lshrrev_b32 v5, 2, v3
    v_and_b32 v6, 3, v0
    v_lshl_add_u32 v5, v5, 3, v6
    v_lshlrev_b32 v5, 7, v5
    v_lshl_add_u32 v5, v4, 4, v5
    v_add_u32 v7, 0x1000, v5
    s_waitcnt lgkmcnt(0)
    s_cmp_eq_u32 s4, 13
    s_cbranch_scc1 p1_probe
    s_barrier
    s_cmp_eq_u32 s4, 14
    s_cselect_b32 s64, s16, s20
    s_cselect_b32 s65, s17, s21""")
    WA=12; WBx=44; WD=[76,92,108,44]
    for t in range(4):
        for s_ in range(2):
            r=WA+8*t+4*s_
            a(f'global_load_dwordx4 v[{r}:{r+3}], v{5 if t<2 else 7}, s[64:65] offset:{512*(t&1)+64*s_}')
    a('s_cbranch_scc0 p1_wo')
    for t in range(4):
        for s_ in range(2):
            r=WBx+8*t+4*s_
            a(f'global_load_dwordx4 v[{r}:{r+3}], v{5 if t<2 else 7}, s[18:19] offset:{512*(t&1)+64*s_}')
    wsinit()
    XP=f"""v_add_u32 v8, s54, v2
    v_lshlrev_b32 v9, 7, v8
    s_mov_b32 s44, s8
    s_mov_b32 s45, s9
    s_mov_b32 s46, {N*128}
    s_mov_b32 s47, 0x20000
    s_movk_i32 s64, 0x2000
    s_movk_i32 s65, 0x4000
    buffer_load_dword v126, v9, s[44:47], 0 offen
    buffer_load_dword v126, v9, s[44:47], s64 offen
    buffer_load_dword v126, v9, s[44:47], s65 offen
    s_movk_i32 s64, 0x6000
    s_mov_b64 exec, 15
    buffer_load_dword v126, v9, s[44:47], s64 offen
    v_lshlrev_b32 v9, 7, v2
    s_lshl_b32 s64, s54, 1
    s_mov_b32 s44, s14
    s_mov_b32 s45, s15
    s_mov_b32 s46, {N*2}
    buffer_load_dword v126, v9, s[44:47], s64 offen
    s_mov_b64 exec, -1"""
    if xpf==1: a(XP)
    a('s_barrier')
    if xpf==2: a(XP)
    a(f's_barrier\ns_barrier\ns_barrier\ns_waitcnt vmcnt({5 if xpf else 0})')
    a('s_branch p1_wm\np1_wo:\nv_lshlrev_b32 v8, 4, v2\nv_add_u32 v9, 0x1000, v8')
    for k in range(8):
        a(f'global_load_dwordx4 v[{76+4*k}:{79+4*k}], v{8 if k<4 else 9}, s[22:23] offset:{1024*(k&3)}')
    wsinit()
    a(f"""v_add_u32 v8, {L_WP}, v8
    v_bfe_u32 v9, v0, 2, 2
    v_lshl_add_u32 v9, v4, 3, v9
    v_lshlrev_b32 v9, 7, v9
    v_lshl_add_u32 v9, v6, 4, v9
    v_add_u32 v9, {L_WP}, v9
    s_barrier
    s_barrier
    s_barrier
    s_waitcnt vmcnt(0)""")
    for k in range(8): a(f'ds_write_b128 v8, v[{76+4*k}:{79+4*k}] offset:{1024*k}')
    a('s_waitcnt lgkmcnt(0)')
    for T in range(4):
        for s_ in range(2):
            for hf in range(2):
                r=WBx+8*T+4*s_+2*hf
                a(f'ds_read_b64_tr_b16 v[{r}:{r+1}], v9 offset:{4096*s_+512*hf+64*(T>>1)+8*(T&1)}')
        if T==2: a('s_waitcnt lgkmcnt(8)')
    a('s_waitcnt lgkmcnt(0)\np1_wm:')
    for T in range(4):
        for s_ in range(2):
            for t in range(4):
                d=WD[T]+4*t
                a(f'v_mfma_f32_16x16x32_bf16 v[{d}:{d+3}], v[{WA+8*t+4*s_}:{WA+8*t+4*s_+3}], v[{WBx+8*T+4*s_}:{WBx+8*T+4*s_+3}], '+(f'v[{d}:{d+3}]' if s_ else '0'))
    a('s_nop 7')
    for T in range(4):
        d=WD[T]
        a(f'v_pk_add_f32 v[{20+2*T}:{21+2*T}], v[{d}:{d+1}], v[{d+2}:{d+3}]')
    for k in range(2,8):
        for T in range(4):
            d=WD[T]; a(f'v_pk_add_f32 v[{20+2*T}:{21+2*T}], v[{20+2*T}:{21+2*T}], v[{d+2*k}:{d+2*k+1}]')
    for T in range(4): a(f'v_add_f32 v{12+T}, v{20+2*T}, v{21+2*T}')
    for sw in ('v_permlane16_swap_b32','v_permlane32_swap_b32'):
        for T in range(4): a(f'v_mov_b32 v{16+T}, v{12+T}')
        a('s_nop 1')
        for T in range(4): a(f'{sw} v{12+T}, v{16+T}')
        for T in range(4): a(f'v_add_f32 v{12+T}, v{12+T}, v{16+T}')
    for T in range(4): a(f'v_mul_f32 v{20+2*T}, 0xbc800000, v{12+T}')
    a('s_cmp_eq_u32 s4, 14\ns_cbranch_scc0 p1_wc')
    for k in range(8):
        a(f'v_pk_add_f32 v[{28+2*k}:{29+2*k}], v[{WD[0]+2*k}:{WD[0]+2*k+1}], v[{WD[1]+2*k}:{WD[1]+2*k+1}]')
    for T in (2,3):
        for k in range(8): a(f'v_pk_add_f32 v[{28+2*k}:{29+2*k}], v[{28+2*k}:{29+2*k}], v[{WD[T]+2*k}:{WD[T]+2*k+1}]')
    a('v_add_f32 v12, v20, v22\nv_add_f32 v13, v24, v26\nv_add_f32 v12, v12, v13\ns_nop 1')
    for m in ('quad_perm:[1,0,3,2]','quad_perm:[2,3,0,1]','row_half_mirror','row_mirror'):
        a(f'v_add_f32_dpp v12, v12, v12 {m} {DPP}')
        for k in range(16): a(f'v_add_f32_dpp v{28+k}, v{28+k}, v{28+k} {m} {DPP}')
    a('v_mul_f32 v12, 0xbc800000, v12\nv_mov_b32 v14, 0xbc800000')
    for T in range(4): a(f'v_add_f32 v{20+2*T}, v{20+2*T}, v12')
    for T in range(4):
        for k in range(8):
            d=WD[T]+2*k
            a(f'v_pk_fma_f32 v[{d}:{d+1}], v[{28+2*k}:{29+2*k}], v[14:15], v[{d}:{d+1}] op_sel_hi:[1,0,1]')
    a(f"""p1_wc:
    s_sub_u32 s64, s4, 14
    s_lshl_b32 s64, s64, 13
    s_add_u32 s64, s64, {L_W}
    v_lshlrev_b32 v8, 4, v2
    v_add_u32 v8, s64, v8""")
    for T in range(4):
        for k in range(8):
            d=WD[T]+2*k
            a(f'v_pk_add_f32 v[{d}:{d+1}], v[{d}:{d+1}], v[{20+2*T}:{21+2*T}] op_sel_hi:[1,0]')
        for s_ in range(2):
            d=WD[T]+8*s_
            for k in range(4): a(f'v_cvt_pk_bf16_f32 v{d+k}, v{d+2*k}, v{d+2*k+1}')
            a(f'ds_write_b128 v8, v[{d}:{d+3}] offset:{2048*T+1024*s_}')
    a(f"""s_cmp_eq_u32 s4, 14
    s_cbranch_scc1 p1_done
    s_mov_b64 exec, 1
    v_mov_b32 v56, 0
    global_load_dword v58, v56, s[28:29] sc1
    s_mov_b32 s63, 0
    s_mov_b32 s62, 1""")
    baraddr(a,BARP+16384)
    a(f"""s_mov_b32 s64, 0
    s_waitcnt vmcnt(0)
    s_barrier
    gb0_i:
    v_readfirstlane_b32 s65, v58
    s_cmp_lg_u32 s65, 0
    s_cbranch_scc1 gb0_id
    s_sleep 2
    global_load_dword v58, v56, s[28:29] sc1
    s_add_u32 s64, s64, 1
    s_cmp_lt_u32 s64, 0x400000
    s_waitcnt vmcnt(0)
    s_cbranch_scc1 gb0_i
    gb0_id:""")
    bar_arrive(a,'gb0')
    a('s_mov_b32 s64, 8')
    bar_poll(a,'gb0')
    baraddr(a,BARP+32768)
    a('s_mov_b64 exec, -1\ns_branch p1_done')
    a('p1_probe:')
    wsinit()
    a(f"""s_and_b32 s64, s2, 3
    s_and_b32 s74, s2, 1
    s_lshl_b32 s64, s64, 21
    s_lshr_b32 s65, s2, 2
    s_lshl_b32 s65, s65, 7
    s_add_u32 s64, s64, s65
    s_add_u32 s64, s64, {254*8192}
    v_mov_b32 v40, s64
    v_add_u32 v41, 0x2000, v40
    v_mov_b32 v42, 0
    v_cmp_gt_u32 vcc, 5, v2
    v_add_u32 v45, 37, v2
    v_cmp_eq_u32 s[66:67], 5, v2
    v_cndmask_b32 v45, v45, v2, vcc
    v_cmp_eq_u32 vcc, 8, v2
    v_mov_b32 v46, 0x1fff80
    v_cndmask_b32 v46, v46, 0, s[66:67]
    v_cndmask_b32 v45, v45, 47, vcc
    v_lshl_add_u32 v45, v45, 21, v46
    s_mov_b64 exec, 0x1ff
    global_load_dword v47, v45, s[30:31] sc1
    s_mov_b64 exec, 1
    global_load_dword v47, v42, s[28:29] sc1
    global_atomic_add v43, v40, v42, s[30:31] sc0 sc1
    global_atomic_add v44, v41, v42, s[30:31] sc0 sc1
    s_barrier
    s_barrier
    PB3
    s_mov_b32 s72, 0
    s_mov_b32 s67, 0
    s_waitcnt vmcnt(0)
    p1_pl:
    global_atomic_add v43, v40, v42, s[30:31] sc0 sc1
    global_atomic_add v44, v41, v42, s[30:31] sc0 sc1
    s_waitcnt vmcnt(1)
    s_memtime s[68:69]
    s_waitcnt vmcnt(0)
    s_memtime s[70:71]
    v_swap_b32 v40, v41
    s_waitcnt lgkmcnt(0)
    s_sub_u32 s66, s70, s68
    s_sub_u32 s67, s66, s67
    s_add_u32 s72, s72, 1
    PBMID
    s_cmp_lt_u32 s72, {nprobe}
    s_cbranch_scc1 p1_pl
    s_cmp_gt_i32 s67, 0
    s_cselect_b32 s65, 1, 0
    s_xor_b32 s65, s65, s6
    s_xor_b32 s65, s65, s74
    s_lshl_b32 s65, s65, 8
    s_or_b32 s65, s65, 1
    v_mov_b32 v41, s65
    v_mov_b32 v40, {L_RED}
    ds_write_b32 v40, v41 offset:12
    s_mov_b64 exec, -1""")
    a(f"""p1_done:
    v_lshrrev_b32 v2, 2, v0
    v_and_b32 v3, 3, v0
    v_lshlrev_b32 v70, 10, v2
    s_lshl_b32 s92, s5, 2
    s_add_u32 s92, s92, {OFFS}
    s_movk_i32 s65, {NCH}
    v_cmp_gt_u32 s[48:49], s65, v2
    v_mov_b32 v72, {OOBV}
    v_and_b32 v73, 63, v0
    v_lshlrev_b32 v8, 2, v73
    v_cndmask_b32 v70, v72, v70, s[48:49]
    v_mul_u32_u24 v71, {CHE*4}, v2
    v_lshl_add_u32 v71, v3, 4, v71
    v_add_u32 v71, {CHUNK}, v71
    v_lshlrev_b32 v3, 2, v3
    v_mov_b32 v21, 1
    s_waitcnt vmcnt(0) lgkmcnt(0)""")
    stamp('p1')
    a('s_barrier')
    stamp('b0')
    if stop=='p1': a('s_endpgm')
    a(f"""buffer_load_dword v5, v70, s[40:43], s92 offen sc1
    s_cmp_lg_u32 s4, 15
    s_cbranch_scc1 p2_na
    s_mov_b64 exec, 1
    v_mov_b32 v56, {L_RED}
    ds_read_b32 v57, v56 offset:12
    v_mov_b32 v56, s56
    s_waitcnt lgkmcnt(0)
    global_atomic_add v58, v56, v57, s[30:31] sc0 sc1
    s_mov_b64 exec, -1
    p2_na:
    s_waitcnt vmcnt(0)
    v_and_b32 v9, 0xffff, v5
    v_lshrrev_b32 v11, 16, v5
    v_lshl_add_u32 v4, v9, 2, v71
    v_cndmask_b32 v4, v72, v4, s[48:49]
    buffer_load_dwordx4 v[12:15], v4, s[40:43], 0 offen sc1
    buffer_load_dwordx4 v[16:19], v4, s[40:43], 0 offen offset:64 sc1
    v_sub_u32 v20, v11, v3
    v_mov_b32 v6, v72
    v_mov_b32 v7, v73
    s_cmp_lg_u32 s4, 15
    s_cbranch_scc1 p2_nw
    s_mov_b64 exec, 1
    v_add_u32 v57, v57, v58
    v_mov_b32 v56, s57
    v_readfirstlane_b32 s65, v57
    s_and_b32 s64, s65, 0xff
    s_cmp_lg_u32 s64, 32
    s_cbranch_scc1 gbb_np
    s_sub_u32 s65, s65, 31""")
    bar_l2(a,'gbb')
    a('s_mov_b64 exec, -1\np2_nw:')
    def each_entry(body,regs,base):
        for r,e in enumerate(regs):
            a(f'v_cmpx_lt_i32 vcc, {base[r]}, v20')
            body(e)
        a('s_mov_b64 exec, -1')
    regs=list(range(12,20)); base=[0,1,2,3,16,17,18,19]
    def pass1(regs):
        for k,e in enumerate(regs): a(f'v_lshrrev_b32 v{80+k}, 16, v{e}\nv_and_b32 v{80+k}, 0x1ffc, v{80+k}')
        ad={e:80+k for k,e in enumerate(regs)}
        each_entry(lambda e: a(f'ds_add_u32 v{ad[e]}, v21 offset:{L_CNT}'),regs,base)
    a('s_waitcnt vmcnt(0)')
    stamp('sg')
    pass1(regs)
    def longseg(nm,whole):
        a(f"""v_cmp_lt_i32 vcc, 32, v20
        s_cbranch_vccnz {nm}
        {nm}_d:""")
        def tail():
            a(f"""{nm}:
            v_mov_b32 v23, v20
            v_mov_b32 v24, v4
            {nm}_l:
            v_subrev_u32 v20, 32, v20
            v_add_u32 v24, 128, v24
            v_cmp_lt_i32 vcc, 0, v20
            s_cbranch_vccz {nm}_r
            buffer_load_dwordx4 v[28:31], v24, s[40:43], 0 offen sc1
            buffer_load_dwordx4 v[32:35], v24, s[40:43], 0 offen offset:64 sc1
            s_waitcnt vmcnt(0)""")
            whole(list(range(28,36)))
            a(f"""s_branch {nm}_l
            {nm}_r:
            v_mov_b32 v20, v23""")
            for k,e in enumerate(regs): a(f'v_lshrrev_b32 v{80+k}, 16, v{e}\nv_and_b32 v{80+k}, 0x1ffc, v{80+k}')
            a(f's_branch {nm}_d')
        tails.append(tail)
    tails=[]
    longseg('ls1',pass1)
    a('s_waitcnt lgkmcnt(0)\ns_barrier')
    stamp('c1')
    a(f"""s_cmp_ge_u32 s4, 4
    s_cbranch_scc1 p2_n1
    v_add_u32 v36, s54, v0
    s_mov_b32 s64, {N}
    v_cmp_gt_u32 vcc, s64, v36
    s_movk_i32 s64, {BS}
    v_cmp_gt_u32 s[64:65], s64, v0
    s_and_b64 s[66:67], vcc, s[64:65]
    s_mov_b64 exec, s[66:67]
    v_lshlrev_b32 v37, 5, v0
    v_lshlrev_b32 v38, 3, v0
    ds_read_b128 v[40:43], v37 offset:{L_CNT}
    ds_read_b128 v[44:47], v37 offset:{L_CNT+16}
    ds_read_b64 v[58:59], v38 offset:{L_R0}""")
    line_calc(a,66,36,62,63)
    a(f"""v_lshlrev_b32 v66, 7, v66
    v_and_b32 v62, 128, v36
    v_add_u32 v67, 0x2000, v66
    v_cmp_ne_u32 vcc, 0, v62
    v_mov_b32 v48, 0
    s_waitcnt lgkmcnt(1)
    v_cndmask_b32 v67, v6, v67, vcc
    v_mov_b32 v49, v40
    v_add_u32 v50, v49, v41
    v_add_u32 v51, v50, v42
    v_add_u32 v52, v51, v43
    v_add_u32 v53, v52, v44
    v_add_u32 v54, v53, v45
    v_add_u32 v55, v54, v46
    v_add_u32 v65, v55, v47
    v_min_u32 v57, 63, v65
    v_sub_u32 v57, 63, v57
    v_lshlrev_b32 v57, 2, v57
    ds_add_rtn_u32 v60, v57, v21 offset:{L_DH}
    s_mov_b64 exec, -1
    p2_n1:""")
    def offs(regs):
        for e in regs:
            a(f"""v_bfe_u32 v26, v{e}, 14, 3
            v_lshrrev_b32 v27, 17, v{e}
            v_bfe_u32 v26, s58, v26, 1
            v_and_b32 v{e}, 0x1ffff, v{e}
            v_and_b32 v26, v26, v27
            v_lshl_add_u32 v{e}, v26, 6, v{e}
            v_lshlrev_b32 v{e}, 7, v{e}""")
    a('s_cmp_lg_u32 s4, 15\ns_cbranch_scc1 p2_nq\ns_mov_b64 exec, 1\nv_mov_b32 v56, s57\ns_mov_b32 s64, 8')
    bar_poll(a,'gbb',votes=True)
    a(f"""v_mov_b32 v62, {L_RED}
    ds_write_b32 v62, v58 offset:8
    s_mov_b64 exec, -1
    p2_nq:
    v_mov_b32 v62, {L_RED}
    s_waitcnt lgkmcnt(0)
    s_barrier
    ds_read_b32 v63, v62 offset:8
    ds_read_b32 v61, v8 offset:{L_DH}
    s_waitcnt lgkmcnt(0)
    v_readfirstlane_b32 s60, v63
    s_cmp_ge_u32 s60, 0x8000
    s_cselect_b32 s61, 1, 0
    s_xor_b32 s58, s61, s6
    s_cmp_eq_u32 s58, 0
    s_cselect_b32 s58, 10, 21
    s_cmp_ge_u32 s4, 4
    s_cbranch_scc1 p2_n2
    v_mov_b32 v62, v61
    s_nop 1""")
    for m in ('row_shr:1','row_shr:2','row_shr:4','row_shr:8'):
        a(f'v_add_u32_dpp v62, v62, v62 {m} {DPP} bound_ctrl:0\ns_nop 1')
    a(f"""v_add_u32_dpp v62, v62, v62 row_bcast:15 row_mask:0xa bank_mask:0xf
    s_nop 1
    v_add_u32_dpp v62, v62, v62 row_bcast:31 row_mask:0xc bank_mask:0xf
    v_sub_u32 v62, v62, v61
    ds_bpermute_b32 v62, v57, v62
    s_mov_b64 exec, s[66:67]
    v_or_b32 v64, v59, v0
    s_waitcnt lgkmcnt(0)
    v_add_u32 v60, v60, v62
    v_lshlrev_b32 v61, 20, v60""")
    for j in range(8): a(f'v_or_b32 v{48+j}, v61, v{48+j}')
    a(f"""ds_write_b128 v37, v[48:51] offset:{L_CNT}
    ds_write_b128 v37, v[52:55] offset:{L_CNT+16}
    v_lshlrev_b32 v62, 4, v60
    ds_write_b128 v62, v[64:67] offset:{L_INFO}
    v_lshlrev_b32 v62, 5, v60
    v_add_u32 v62, {L_RHO-65024}, v62
    ds_write_b32 v62, v58 offset:65024
    v_cmp_lt_u32 vcc, {CAP}, v65
    s_and_b64 exec, exec, vcc
    s_cbranch_execz p2_n2
    v_subrev_u32 v56, {CAP}, v65
    v_mov_b32 v62, {L_RED}
    ds_add_rtn_u32 v63, v62, v56
    v_lshlrev_b32 v62, 2, v60
    s_waitcnt lgkmcnt(0)
    ds_write_b32 v62, v63 offset:{L_INF2}
    p2_n2:
    s_mov_b64 exec, -1""")
    offs(regs)
    a('s_waitcnt lgkmcnt(0)\ns_barrier')
    stamp('nd')
    def pass2(regs,slow):
        cur={e:40+k for k,e in enumerate(regs)}; ad={e:80+k for k,e in enumerate(regs)}
        each_entry(lambda e: a(f'ds_add_rtn_u32 v{cur[e]}, v{ad[e]}, v21 offset:{L_CNT}'),regs,base)
        if not slow:
            a(f"""v_mov_b32 v62, {L_RED}
            ds_read_b32 v63, v62
            s_movk_i32 s64, 160
            s_mov_b32 s65, 0xfffff
            s_waitcnt lgkmcnt(0)
            v_readfirstlane_b32 s59, v63
            s_cmp_lg_u32 s59, 0
            s_cbranch_scc1 p2_ovf""")
            for e in regs:
                a(f"""v_lshrrev_b32 v26, 20, v{cur[e]}
                v_and_b32 v{cur[e]}, s65, v{cur[e]}
                v_mul_u32_u24 v26, s64, v26
                v_lshl_add_u32 v{cur[e]}, v{cur[e]}, 2, v26""")
            each_entry(lambda e: a(f'ds_write_b32 v{cur[e]}, v{e} offset:{L_LIST}'),regs,base)
        else:
            a('s_waitcnt lgkmcnt(0)')
            slow2(regs)
    def slow2(regs):
        cur={e:40+k for k,e in enumerate(regs)}
        for r,e in enumerate(regs):
            l=a.lab('ov')
            a(f"""v_cmp_lt_i32 s[70:71], {base[r]}, v20
            v_lshrrev_b32 v26, 20, v{cur[e]}
            v_and_b32 v25, s65, v{cur[e]}
            v_cmp_gt_u32 vcc, {CAP}, v25
            v_mul_u32_u24 v22, s64, v26
            v_lshl_add_u32 v22, v25, 2, v22
            s_and_b64 exec, s[70:71], vcc
            ds_write_b32 v22, v{e} offset:{L_LIST}
            s_andn2_b64 exec, s[70:71], vcc
            s_cbranch_execz {l}
            v_lshlrev_b32 v26, 2, v26
            ds_read_b32 v26, v26 offset:{L_INF2}
            v_subrev_u32 v25, {CAP}, v25
            s_waitcnt lgkmcnt(0)
            v_add_lshl_u32 v25, v25, v26, 2
            buffer_store_dword v{e}, v25, s[40:43], s59 offen
            {l}:
            s_mov_b64 exec, -1""")
    pass2(regs,False)
    a('p2_ovd:')
    def long2(regs):
        for k,e in enumerate(regs): a(f'v_lshrrev_b32 v{80+k}, 16, v{e}\nv_and_b32 v{80+k}, 0x1ffc, v{80+k}')
        offs(regs); pass2(regs,True)
    longseg('ls2',long2)
    def ovf_tail():
        a(f"""p2_ovf:
        v_cmp_eq_u32 vcc, 0, v3
        s_mov_b64 exec, vcc
        ds_add_u32 v62, v9 offset:4
        s_mov_b64 exec, -1
        s_waitcnt lgkmcnt(0)
        s_barrier
        ds_read_b32 v63, v62 offset:4
        s_waitcnt lgkmcnt(0)
        v_readfirstlane_b32 s59, v63
        s_lshl_b32 s59, s59, 2
        s_add_u32 s59, s59, {OVF}""")
        slow2(regs)
        a('s_branch p2_ovd')
    tails.append(ovf_tail)
    a('s_waitcnt vmcnt(0) lgkmcnt(0)\ns_barrier')
    stamp('c2')
    a('s_cmp_ge_u32 s4, 13\ns_cbranch_scc1 k_hx')
    a('s_xor_b32 s63, s61, 1\ns_mov_b32 s62, 0\ns_cmp_lg_u32 s4, 0\ns_cbranch_scc1 p2_nb')
    baraddr(a,BARP)
    if stamps: a('s_mov_b32 s94, s60')
    a('p2_nb:')
    a(f'''v_mov_b32 v0, v7
    v_and_b32 v1, 7, v0
    v_lshlrev_b32 v1, 4, v1
    v_lshrrev_b32 v4, 3, v0
    s_lshl_b32 s64, s4, 4
    v_add_u32 v4, s64, v4
    v_and_b32 v5, 3, v0
    v_mul_u32_u24 v6, 160, v4
    v_lshl_add_u32 v7, v5, 3, v6
    v_lshl_add_u32 v6, v5, 4, v6
    v_lshlrev_b32 v116, 4, v4''')
    for s in range(2):
        o=16+10*s
        a(f'''ds_read_b128 v[{o}:{o+3}], v6 offset:{L_LIST+1280*s}
        ds_read_b128 v[{o+4}:{o+7}], v6 offset:{L_LIST+1280*s+64}
        ds_read_b64 v[{o+8}:{o+9}], v7 offset:{L_LIST+1280*s+128}
        ds_read_b128 v[{52+4*s}:{55+4*s}], v116 offset:{L_INFO+128*s}''')
    a(f'''v_lshlrev_b32 v116, 2, v4
    ds_read_b32 v122, v116 offset:{L_INF2}
    ds_read_b32 v123, v116 offset:{L_INF2+32}
    v_mov_b32 v6, 0x3f80
    v_mov_b32 v7, 0x3f800000
    v_cmp_eq_u32 vcc, 0, v5
    v_cmp_eq_u32 s[64:65], 1, v5
    v_cmp_eq_u32 s[66:67], 2, v5
    v_cmp_eq_u32 s[68:69], 3, v5
    v_cndmask_b32 v2, 0, v6, vcc
    v_cndmask_b32 v3, 0, v6, s[66:67]
    v_cndmask_b32 v2, v2, v7, s[64:65]
    v_cndmask_b32 v3, v3, v7, s[68:69]
    s_movk_i32 s64, {BS}
    v_cmp_gt_u32 s[48:49], s64, v4
    s_movk_i32 s64, {BS-8}
    v_cmp_gt_u32 s[50:51], s64, v4
    v_lshlrev_b32 v116, 7, v4
    v_lshlrev_b32 v117, 5, v4
    v_add_u32 v117, {L_RHO}, v117
    s_waitcnt lgkmcnt(0)''')
    for s in range(2):
        i=52+4*s
        a(f"""v_add_u32 v{8+s}, v{i+2}, v1
        v_add_u32 v{10+s}, v{i+3}, v1
        v_and_b32 v4, 0xffff0000, v{i}
        v_mul_f32 v{12+s}, v4, v4
        v_cmp_eq_f32 vcc, 0, v4
        v_and_b32 v5, 0xffff, v{i}
        v_add_u32 v5, s54, v5
        v_cndmask_b32 v{124+s}, v4, 1.0, vcc
        v_lshl_add_u32 v{118+s}, v5, 7, v1
        v_cmp_gt_u32 vcc, s38, v{i+2}
        v_rcp_f32 v{14+s}, v{124+s}
        v_mov_b32 v{120+s}, v{i+1}
        v_cndmask_b32 v{118+s}, v{i+2}, v{118+s}, vcc""")
    a(f'''v_max_u32 v4, v120, v121
    s_nop 1
    v_max_u32_dpp v4, v4, v4 row_shr:8 {DPP} bound_ctrl:0
    s_nop 1
    v_max_u32_dpp v4, v4, v4 row_bcast:15 row_mask:0xa bank_mask:0xf
    s_nop 1
    v_max_u32_dpp v4, v4, v4 row_bcast:31 row_mask:0xc bank_mask:0xf
    s_nop 1
    v_readlane_b32 s53, v4, 63
    s_max_u32 s52, s53, {K//2}
    s_min_u32 s52, s52, {CAP}''')
    stamp('p2')
    if dump:
        a(f's_lshl_b32 s64, s2, 4\ns_add_u32 s64, s64, s4\ns_mul_i32 s64, s64, {40*256}\ns_add_u32 s64, s64, {DUMP}\nv_lshlrev_b32 v4, 2, v0\nv_add_u32 v4, s64, v4')
        for i,r in enumerate(list(range(8,36))+list(range(118,126))):
            a(f'global_store_dword v4, v{r}, s[30:31]\nv_add_u32 v4, 256, v4')
        a('v_mov_b32 v5, s53\nglobal_store_dword v4, v5, s[30:31]\nv_add_u32 v4, 256, v4\nv_mov_b32 v5, s60\nglobal_store_dword v4, v5, s[30:31]\nv_add_u32 v4, 256, v4\nds_read_b32 v5, v117\ns_waitcnt lgkmcnt(0)\nglobal_store_dword v4, v5, s[30:31]')

    if stop=='p2': a('s_endpgm')
    a(f'v_mov_b32 v4, {L_END}\nv_mov_b32 v5, 0\nds_write_b32 v4, v5')
    if pf:
        a(f"""v_lshrrev_b32 v4, 4, v0
        v_lshl_add_u32 v4, v4, 5, s5
        v_and_b32 v4, 0xff, v4
        v_mul_u32_u24 v4, {BS}, v4
        v_and_b32 v5, 15, v0
        s_lshl_b32 s64, s4, 4
        s_sub_u32 s64, s64, 16
        v_add3_u32 v4, v4, v5, s64""")
        line_calc(a,126,4,5,6)
        a(f"""v_lshrrev_b32 v5, 14, v126
        v_bfe_u32 v5, s58, v5, 1
        v_lshrrev_b32 v6, 7, v4
        v_and_b32 v5, v5, v6
        v_lshl_add_u32 v126, v5, 6, v126
        v_lshlrev_b32 v126, 7, v126""")
    for s_ in range(2):
        l=a.lab('nd')
        a(f"""s_mov_b64 exec, s[{48+2*s_}:{49+2*s_}]
        s_cbranch_execz {l}
        v_lshrrev_b32 v4, 3, v116
        v_add_u32 v4, {L_ND+128*s_}, v4
        v_mov_b32 v52, v{124+s_}
        v_mov_b32 v53, v{14+s_}
        v_sub_u32 v54, v{118+s_}, v1
        v_mov_b32 v55, 0
        ds_write_b128 v4, v[52:55]
        {l}:""")
    a(f"""s_mov_b64 exec, -1
    s_mov_b32 s32, s36
    s_mov_b32 s33, s37
    s_mov_b32 s34, s38
    s_mov_b32 s35, 0x20000
    s_add_u32 s36, s36, {TSTR}
    s_addc_u32 s37, s37, 0
    s_mov_b32 s44, s8
    s_mov_b32 s45, s9
    s_mov_b32 s46, {N*128}
    s_mov_b32 s47, 0x20000
    s_mov_b32 s76, 0x3f803f80
    s_add_u32 s96, s30, {5*TSTR}
    s_addc_u32 s97, s31, 0
    s_mov_b32 s98, {TBYTES}
    s_mov_b32 s99, 0x20000
    s_mul_i32 s95, s4, {STG}
    s_add_u32 s95, s95, {L_STAGE}
    s_mov_b32 s3, 1
    h_top:""")
    acc=[36,44]; d0=52; off=[16,26]; va=[4,5,6,7]
    def mf(s_,sl):
        a(f'v_mfma_f32_4x4x4_16b_bf16 v[{acc[s_]}:{acc[s_]+3}], v[2:3], v[{sl}:{sl+1}], v[{acc[s_]}:{acc[s_]+3}]')
        a(f'v_mfma_f32_4x4x4_16b_bf16 v[{acc[s_]+4}:{acc[s_]+7}], v[2:3], v[{sl+2}:{sl+3}], v[{acc[s_]+4}:{acc[s_]+7}]')
    def dma(pair):
        sl=pair>>1; hf=pair&1
        a(f's_mov_b32 exec_lo, {0 if hf else -1}\ns_mov_b32 exec_hi, {-1 if hf else 0}')
        for (srd,v,o) in ((44,118+sl,0),(96,8+sl,608),(32,8+sl,1184)):
            a(f's_add_u32 m0, s95, {o-512*hf}' if o-512*hf>=0 else f's_sub_u32 m0, s95, {512*hf-o}')
            a(f's_nop 0\nbuffer_load_dwordx4 v{v}, s[{srd}:{srd+3}], 0 offen {"" if srd==44 else "sc1"} lds')
        a('s_mov_b64 exec, -1')
    a(f"""s_cmp_lg_u32 s3, 7
    s_cbranch_scc1 h_nx
""")
    dma(0)
    if stag==1:
        a('s_setprio 3\ns_cmp_ge_u32 s4, 8\ns_cbranch_scc1 h_nx\ns_setprio 2\ns_cmp_ge_u32 s4, 4\ns_cbranch_scc1 h_nx\ns_setprio 1')
    if stag==2: a('s_setprio 3')
    if stag>=4:
        G={4:(8,4,5,9),5:(6,6,7,7),6:(10,5,3,8),7:(9,5,4,8)}[stag]
        a(f'''s_setprio 3
        s_cmp_ge_u32 s4, {G[0]}
        s_cbranch_scc1 h_nx
        s_cmp_ge_u32 s4, {G[1]}
        s_cselect_b32 s64, {G[2]}, {G[3]}
        v_mov_b32 v4, {L_END}
        s_mov_b32 s65, 0
        h_g7:
        ds_read_b32 v5, v4
        s_waitcnt lgkmcnt(0)
        v_readfirstlane_b32 s66, v5
        s_cmp_ge_u32 s66, s64
        s_cbranch_scc1 h_nx
        s_sleep 1
        s_add_u32 s65, s65, 1
        s_cmp_lt_u32 s65, 0x1000000
        s_cbranch_scc1 h_g7''')
    if stag==3:
        a('s_setprio 1\ns_cmp_ge_u32 s4, 8\ns_cbranch_scc1 h_nx\ns_setprio 2\ns_cmp_ge_u32 s4, 4\ns_cbranch_scc1 h_nx\ns_setprio 3')
    a('h_nx:')
    hstamp('hs')
    for i in range(16): a(f'v_mov_b32 v{36+i}, 0')
    a('s_mov_b32 s77, s52\ns_mov_b32 s78, 0')
    if stag: a(f's_cmp_eq_u32 s3, 7\ns_cselect_b32 s78, {RB}, 0')
    handlers=[]
    for u in range(CAP//2):
        j=2*u; t0=4*u
        if j<32: q=(j>>2)&3; rb=4*(j>>4)+(j&3)
        else: q=(j-32)>>1; rb=8
        if t0>=K: a(f's_cmp_ge_u32 {j}, s52\ns_cbranch_scc1 h_drain{"" if not pdrain else (u%(K//4))}')
        if u>0:
            h=f'h_ev{u}'; a(f's_sub_u32 s77, s77, {2*R}\ns_cbranch_scc1 {h}\n{h}_r:'); handlers.append(h)
        for hh in range(2):
            for s_ in range(2):
                a(f'v_add_u32_dpp v{va[hh*2+s_]}, v{off[s_]+rb+hh}, v1 quad_perm:[{q},{q},{q},{q}] {DPP}')
        if t0>=K:
            a(f's_waitcnt vmcnt({K-4})')
            for hh in range(2):
                for s_ in range(2): mf(s_,d0+4*((t0+hh*2+s_)%K))
        for hh in range(2):
            for s_ in range(2):
                sl=d0+4*((t0+hh*2+s_)%K)
                a(f'buffer_load_dwordx4 v[{sl}:{sl+3}], v{va[hh*2+s_]}, s[32:35], 0 offen sc1')
    if pdrain:
        f0=(CAP//2)%(K//4)
        for v in [f0]+[v for v in range(K//4) if v!=f0]: a(f'h_drain{v}:\ns_mov_b32 s79, {v}\ns_branch h_drain')
    a('h_drain:')
    if stag>=4:
        a(f's_cmp_lg_u32 s3, 7\ns_cbranch_scc1 h_rb\nv_mov_b32 v4, {L_END}\nv_mov_b32 v5, 1\ns_mov_b64 exec, 1\nds_add_u32 v4, v5\ns_mov_b64 exec, -1')
    a(f"""h_rb:
    s_cmp_ge_u32 s78, {RB}
    s_cbranch_scc1 h_rbd
    s_barrier
    s_add_u32 s78, s78, 1
    s_branch h_rb
    h_rbd:""")
    hstamp('hi')
    if pdrain:
        for par in range(1,K//4): a(f's_cmp_eq_u32 s79, {par}\ns_cbranch_scc1 h_dr{par}')
        for par in range(K//4):
            if par: a(f'h_dr{par}:')
            for n in range(K//2):
                a(f's_waitcnt vmcnt({K-2-2*n})')
                for t in (2*n,2*n+1): mf(t%2,d0+4*((t+4*par)%K))
            if par<K//4-1: a('s_branch h_drx')
        a('h_drx:')
        hstamp('hd')
    else:
        a('s_waitcnt vmcnt(0)')
        hstamp('hd')
        for t in range(K): mf(t%2,d0+4*t)
    a(f's_cmp_gt_u32 s53, {CAP}\ns_cbranch_scc1 h_slow\nh_slow_r:\ns_nop 4')
    for s_ in range(2):
        for i in range(4): a(f'v_pk_mul_f32 v[{acc[s_]+2*i}:{acc[s_]+2*i+1}], v[{acc[s_]+2*i}:{acc[s_]+2*i+1}], v[12:13] op_sel:[0,{s_}] op_sel_hi:[1,{s_}]')
        for i in range(4): a(f'v_cvt_pk_bf16_f32 v{acc[s_]+i}, v{acc[s_]+2*i}, v{acc[s_]+2*i+1}')
    a('s_cmp_eq_u32 s3, 7\ns_cbranch_scc1 h_ns')
    for s_ in range(2):
        a(f'buffer_store_dwordx4 v[{acc[s_]}:{acc[s_]+3}], v{8+s_}, s[36:39], 0 offen sc1')
        a(f'buffer_store_dwordx4 v[{acc[s_]}:{acc[s_]+3}], v{10+s_}, s[36:39], 0 offen sc1')
    a(f"""h_ns:
    s_lshl_b32 s64, s3, 2
    s_sub_u32 s66, s3, 1
    s_mul_i32 s66, s66, {PL2}
    s_and_b32 s65, s3, 3
    s_lshl_b32 s65, s65, 6
    s_add_u32 s66, s66, s65
    s_lshr_b32 s65, s3, 2
    s_lshl_b32 s65, s65, 5
    s_add_u32 s66, s66, s65
    v_add_u32 v52, s64, v117
    v_add3_u32 v53, v1, v116, s66""")
    for s_ in range(2):
        l=a.lab('ep'); l2=a.lab('ep')
        rho_calc(a,acc[s_],54,55,14+s_,'s76')
        a(f"""s_mov_b64 exec, s[{48+2*s_}:{49+2*s_}]
        s_cbranch_execz {l}
        ds_write_b32 v52, v54 offset:{256*s_}
        s_cmp_gt_u32 s3, 4
        s_cbranch_scc1 {l}
        ds_write_b128 v53, v[{acc[s_]}:{acc[s_]+3}] offset:{1024*s_}
        {l}:
        s_mov_b64 exec, -1""")
    a('s_cmp_eq_u32 s3, 7\ns_cbranch_scc1 f_top\ns_waitcnt vmcnt(0)')
    hstamp('ha')
    gbarrier(a,'gb1',pf=pf)
    hstamp('hr')
    a(f"""s_mov_b32 s32, s36
    s_mov_b32 s33, s37
    s_add_u32 s36, s36, {TSTR}
    s_addc_u32 s37, s37, 0
    s_add_u32 s3, s3, 1
    s_branch h_top""")
    a('f_top:')
    a('''s_lshl_b32 s64, s2, 4
    s_add_u32 s64, s64, s4
    s_cmp_lg_u32 s64, 0xffc
    s_cbranch_scc1 h_nc
    v_mov_b32 v4, 0
    s_mov_b64 exec, 1
    global_store_dword v4, v4, s[28:29] sc1
    s_mov_b64 exec, -1
    h_nc:''')
    if stag: a('s_setprio 0')
    stamp('h')
    if stop=='hops': a('s_endpgm')
    XA=52; XB=68; TA=84; TB=106; TQ=10; WB=[18,22,26]; Z=10; ST=[100,40]; BA=48; BB=120; BO=124
    vW=0; vOq=1; vA=30; vTr=31; vRk=32; vRq=33; vNd=34; vNs=35; vBw=104; vBr=105; vNo=92; vS=93; vAq=96
    t0_,t1_,cq,dq=2,3,4,5; sv=6; vo=7
    def tokaddr(dst,n,h,ch,t1,t2,mask):
        a(f"""v_lshlrev_b32 v{t1}, 4, v{ch}
        v_lshl_add_u32 v{t1}, v{n}, 7, v{t1}
        v_and_b32 v{t2}, 3, v{h}
        v_lshl_add_u32 v{t1}, v{t2}, 6, v{t1}
        v_lshrrev_b32 v{t2}, 2, v{h}
        v_lshl_add_u32 v{t1}, v{t2}, 5, v{t1}
        v_subrev_u32 v{t2}, 1, v{h}
        v_cmp_gt_u32 s[{mask}:{mask+1}], 4, v{t2}
        v_mul_u32_u24 v{t2}, {PL2}, v{t2}
        v_add3_u32 v{t2}, v{t2}, v{t1}, s64
        v_subrev_u32 v{dst}, 4, v{h}
        v_max_i32 v{dst}, 0, v{dst}
        v_lshl_add_u32 v{dst}, v{dst}, 9, v{t1}
        v_add_u32 v{dst}, s95, v{dst}
        v_cndmask_b32 v{dst}, v{dst}, v{t2}, s[{mask}:{mask+1}]""")
    a(f"""v_and_b32 v4, 15, v0
    v_lshrrev_b32 v5, 4, v0
    v_lshlrev_b32 v7, 4, v5
    global_load_dwordx4 v[{ST[0]}:{ST[0]+3}], v7, s[24:25]
    global_load_dwordx4 v[{ST[1]}:{ST[1]+3}], v7, s[24:25] offset:64
    s_mov_b32 exec_lo, 0x01010101
    s_mov_b32 exec_hi, 0x01010101
    buffer_load_dword v99, v118, s[44:47], 0 offen
    buffer_load_dword v99, v8, s[96:99], 0 offen sc1
    buffer_load_dword v99, v8, s[32:35], 0 offen sc1
    buffer_load_dword v99, v119, s[44:47], 0 offen
    buffer_load_dword v99, v9, s[96:99], 0 offen sc1
    buffer_load_dword v99, v9, s[32:35], 0 offen sc1
    s_mov_b64 exec, -1
    s_mov_b32 s36, s26
    s_mov_b32 s37, s27
    s_mov_b32 s38, {N*128}
    s_lshl_b32 s64, s4, 11
    v_and_b32 v18, 7, v0
    v_lshrrev_b32 v19, 3, v4
    v_bfe_u32 v11, v0, 3, 2
    v_lshl_add_u32 v11, v11, 7, v1
    v_add_u32 v{vS}, s95, v11""")
    tokaddr(vA,19,18,5,20,11,54)
    a(f"""v_lshrrev_b32 v12, 1, v5
    v_and_b32 v13, 1, v5
    v_bfe_u32 v14, v0, 2, 2
    v_lshl_add_u32 v13, v13, 2, v14
    v_and_b32 v6, 3, v0
    v_lshlrev_b32 v14, 8, v19
    v_sub_u32 v{vAq}, v{vA}, v14
    v_add_u32 v{vAq}, 0x180, v{vAq}""")
    tokaddr(vTr,12,13,6,20,11,60)
    a(f"""v_cmp_eq_u32 s[66:67], v12, v19
    v_cmp_eq_u32 s[68:69], 0, v18
    v_cmp_gt_u32 s[72:73], 2, v5
    s_lshl_b32 s64, s4, 9
    s_add_u32 s64, s64, {L_RHO}
    s_lshl_b32 s65, s4, 8
    s_add_u32 s65, s65, {L_ND}
    v_lshlrev_b32 v20, 2, v4
    v_xor_b32 v11, 0x60, v20
    v_add_u32 v14, 64, v7
    v_cndmask_b32 v{vRk}, v14, v7, s[66:67]
    v_cndmask_b32 v{vRq}, v11, v20, s[66:67]
    v_cndmask_b32 v{vBw}, v11, v20, s[72:73]
    v_cmp_gt_u32 vcc, 2, v4
    v_lshlrev_b32 v20, 4, v19
    v_xor_b32 v11, 0x30, v20
    v_cndmask_b32 v{vBr}, v14, v7, vcc
    v_cndmask_b32 v{vNd}, v11, v20, s[66:67]
    v_cndmask_b32 v{vNs}, v11, v20, s[72:73]
    v_lshlrev_b32 v{vNo}, 4, v6
    s_not_b64 s[62:63], s[66:67]""")
    for r in (vRk,vRq,vBw,vBr): a(f'v_add_u32 v{r}, s64, v{r}')
    for r in (vNd,vNs,vNo): a(f'v_add_u32 v{r}, s65, v{r}')
    a(f"""v_lshlrev_b32 v20, 2, v5
    v_sub_u32 v11, v4, v20
    v_xor_b32 v13, 8, v4
    v_sub_u32 v13, v13, v20
    v_mov_b32 v14, 0x3f80
    v_mov_b32 v15, 0x3f800000""")
    for B_,d in ((BA,11),(BB,13)):
        for hf in range(2):
            a(f"""v_cmp_eq_u32 vcc, {2*hf}, v{d}
            v_cmp_eq_u32 s[74:75], {2*hf+1}, v{d}
            v_mov_b32 v{B_+2+hf}, 0
            v_cndmask_b32 v{B_+hf}, 0, v14, vcc
            v_cndmask_b32 v{B_+hf}, v{B_+hf}, v15, s[74:75]""")
    for i in range(4): a(f'v_mov_b32 v{BO+i}, 0')
    a(f"""v_cmp_eq_u32 s[56:57], v4, v12
    v_add_u32 v12, 2, v12
    v_cmp_eq_u32 s[58:59], v4, v12
    v_mov_b32 v{vOq}, v7
    v_lshlrev_b32 v{vW}, 4, v0
    v_add_u32 v{vW}, {L_W}, v{vW}
    v_cmp_eq_u32 s[70:71], 0, v6
    v_cmp_eq_u32 s[74:75], 1, v6
    v_mov_b32 v20, s76
    s_waitcnt vmcnt(6)
    v_dot2_f32_bf16 v13, v{ST[0]}, s76, 0""")
    for r in [ST[0]+1,ST[0]+2,ST[0]+3,ST[1],ST[1]+1,ST[1]+2,ST[1]+3]: a(f'v_dot2_f32_bf16 v13, v{r}, s76, v13')
    for b in ST:
        for i in range(4): a(f'v_cndmask_b32 v{b+i}, 0, v{b+i}, s[74:75]\nv_cndmask_b32 v{b+i}, v{b+i}, v20, s[70:71]')
    a(f"""v_readlane_b32 s64, v13, 0
    v_readlane_b32 s65, v13, 16
    v_readlane_b32 s74, v13, 32
    v_readlane_b32 s79, v13, 48
    v_mov_b32 v20, s64
    v_add_f32 v20, s65, v20
    v_add_f32 v20, s74, v20
    v_add_f32 v20, s79, v20
    v_mul_f32 v20, 0x3c800000, v20
    s_mov_b32 s74, 0x3e38aa3b
    v_readfirstlane_b32 s79, v20
    s_mov_b32 s70, 0x000f000f
    s_mov_b32 s71, 0x000f000f
    f_loop:""")
    stamp('fl')
    order=[(0,T,s_) for T in range(4) for s_ in range(2)]+[(1,T,s_) for T in (0,2,3,1) for s_ in range(2)]
    def pk(op,d,x,y,z=None,bc=False,neg=False):
        m=' op_sel_hi:[1,0]' if bc and z is None else (' op_sel_hi:[1,0,0]' if bc else '')
        if neg: m+=' neg_lo:[0,0,1] neg_hi:[0,0,1]'
        a(f'v_pk_{op}_f32 v[{d}:{d+1}], v[{x}:{x+1}], v[{y}:{y+1}]'+(f', v[{z}:{z+1}]' if z is not None else '')+m)
    for pair in range(npairs):
        q_=[]
        ro=128*pair; no=64*pair
        def wait_for(names):
            idx=max(q_.index(n) for n in names if n in q_) if any(n in q_ for n in names) else -1
            if idx>=0:
                left=len(q_)-idx-1
                a(f's_waitcnt lgkmcnt({left})'); del q_[:idx+1]
        def issue(txt,name): a(txt); q_.append(name)
        u7=36+8*(pair>>1)
        a(f"""s_mov_b32 exec_lo, {0 if pair&1 else -1}
        s_mov_b32 exec_hi, {-1 if pair&1 else 0}
        ds_write_b128 v{vS}, v[{u7}:{u7+3}] offset:1760
        s_mov_b64 exec, -1""")
        issue(f'ds_read_b128 v[{WB[0]}:{WB[0]+3}], v{vW}','f0')
        issue(f'ds_read_b128 v[{WB[1]}:{WB[1]+3}], v{vW} offset:1024','f1')
        issue(f'ds_read_b128 v[{WB[2]}:{WB[2]+3}], v{vW} offset:2048','f2')
        if pair: a('s_waitcnt vmcnt(2)')
        issue(f'ds_read_b128 v[{TA}:{TA+3}], v{vA}','ta0')
        issue(f'ds_read_b128 v[{TQ}:{TQ+3}], v{vAq}','tq0')
        issue(f'ds_read_b128 v[{TA+4}:{TA+7}], v{vA} offset:64','ta1')
        issue(f'ds_read_b128 v[{TQ+4}:{TQ+7}], v{vAq} offset:64','tq1')
        issue(f'ds_read_b128 v[{TB}:{TB+3}], v{vA} offset:256','tb0')
        issue(f'ds_read_b128 v[{TB+4}:{TB+7}], v{vA} offset:320','tb1')
        Sm=TQ; RK=TQ+4
        def packV(T,tro):
            for X_,o in ((XA,0),(XB,256)):
                A=X_+4*T
                a(f'v_cvt_pk_bf16_f32 v{A+3}, v{A+2}, v{A+3}\nv_cvt_pk_bf16_f32 v{A+2}, v{A}, v{A+1}')
                issue(f'ds_read_b64_tr_b16 v[{A}:{A+1}], v{vTr} offset:{o+tro}',f'u{T}{o}')
        for n,(m,T,s_) in enumerate(order):
            b=WB[n%3]
            need=[f'f{n}']
            if n==0: need+=['ta0','tq0']
            if n==1: need+=['ta1','tq1']
            wait_for(need)
            for X_,tk in ((XA,TA),(XB,TQ if m==0 else TB)):
                c=f'v[{X_+4*T}:{X_+4*T+3}]' if s_ else '0'
                if m==0: a(f'v_mfma_f32_16x16x32_bf16 v[{X_+4*T}:{X_+4*T+3}], v[{b}:{b+3}], v[{tk+4*s_}:{tk+4*s_+3}], {c}')
                else: a(f'v_mfma_f32_16x16x32_bf16 v[{X_+4*T}:{X_+4*T+3}], v[{tk+4*s_}:{tk+4*s_+3}], v[{b}:{b+3}], {c}')
            if n+3<16:
                m2,T2,s2=order[n+3]
                issue(f'ds_read_b128 v[{b}:{b+3}], v{vW} offset:{8192*m2+2048*T2+1024*s2}',f'f{n+3}')
            if n==5:
                for X_ in (XA,XB):
                    a(f'v_cvt_pk_bf16_f32 v{X_}, v{X_}, v{X_+1}\nv_cvt_pk_bf16_f32 v{X_+1}, v{X_+2}, v{X_+3}\nv_cvt_pk_bf16_f32 v{X_+2}, v{X_+4}, v{X_+5}\nv_cvt_pk_bf16_f32 v{X_+3}, v{X_+6}, v{X_+7}')
            if n==7:
                wait_for(['tb0','tb1'])
                a(f'v_mfma_f32_16x16x32_bf16 v[{XA+4}:{XA+7}], v[{TA}:{TA+3}], v[{XA}:{XA+3}], 0\nv_mfma_f32_16x16x32_bf16 v[{XB+4}:{XB+7}], v[{TB}:{TB+3}], v[{XB}:{XB+3}], 0')
                issue(f'ds_read_b128 v[{RK}:{RK+3}], v{vRk} offset:{ro}','rk')
                issue(f'ds_read_b32 v{cq}, v{vRq} offset:{ro}','rq')
                issue(f'ds_read_b32 v{dq}, v{vNd} offset:{no}','nd')
                a('s_nop 0')
                for X_ in (XA,XB):
                    A=X_+8
                    a(f'v_cvt_pk_bf16_f32 v{A}, v{A}, v{A+1}\nv_cvt_pk_bf16_f32 v{A+1}, v{A+2}, v{A+3}\nv_cvt_pk_bf16_f32 v{A+2}, v{A+4}, v{A+5}\nv_cvt_pk_bf16_f32 v{A+3}, v{A+6}, v{A+7}')
                a(f's_nop 0\nv_mfma_f32_16x16x32_bf16 v[{XA+4}:{XA+7}], v[{TA+4}:{TA+7}], v[{XA+8}:{XA+11}], v[{XA+4}:{XA+7}]\nv_mfma_f32_16x16x32_bf16 v[{XB+4}:{XB+7}], v[{TB+4}:{TB+7}], v[{XB+8}:{XB+11}], v[{XB+4}:{XB+7}]')
            if n==10:
                wait_for(['rk','rq','nd'])
                a('s_mov_b64 exec, s[66:67]')
                pk('mul',Sm,XA+4,RK); pk('mul',Sm+2,XA+6,RK+2)
                a('s_mov_b64 exec, s[62:63]')
                pk('mul',Sm,XB+4,RK); pk('mul',Sm+2,XB+6,RK+2)
                a(f's_mov_b64 exec, -1\nv_mul_f32 v{cq}, s74, v{cq}\nv_cndmask_b32 v{dq}, v{dq}, 1.0, s[68:69]')
                a(f'v_max3_f32 v{t0_}, v{Sm}, v{Sm+1}, v{Sm+2}\nv_max_f32 v{t0_}, v{t0_}, v{Sm+3}\nv_mov_b32 v{t1_}, v{t0_}')
            if n==11:
                a(f'v_permlane16_swap_b32 v{t0_}, v{t1_}\nv_max_f32 v{t0_}, v{t0_}, v{t1_}\nv_mul_f32 v{t0_}, v{cq}, v{t0_}')
                pk('fma',Sm,Sm,cq,t0_,bc=True,neg=True); pk('fma',Sm+2,Sm+2,cq,t0_,bc=True,neg=True)
                for r in range(4): a(f'v_exp_f32 v{Sm+r}, v{Sm+r}')
            if n==12:
                a(f'v_add_f32 v{t0_}, v{Sm}, v{Sm+1}\nv_add_f32 v{t1_}, v{Sm+2}, v{Sm+3}\nv_add_f32 v{t0_}, v{t0_}, v{t1_}\nv_mov_b32 v{t1_}, v{t0_}')
                pk('mul',Sm,Sm,RK); pk('mul',Sm+2,Sm+2,RK+2)
            if n==13:
                a(f'v_permlane16_swap_b32 v{t0_}, v{t1_}\nv_add_f32 v{t0_}, v{t0_}, v{t1_}\nv_rcp_f32 v{t0_}, v{t0_}')
                packV(0,0)
                a(f'v_mul_f32 v{t0_}, v{dq}, v{t0_}')
                pk('mul',Sm,Sm,t0_,bc=True); pk('mul',Sm+2,Sm+2,t0_,bc=True)
            if n==14:
                a(f"""s_mov_b64 exec, s[66:67]
                v_cvt_pk_bf16_f32 v{BA+2}, v{Sm}, v{Sm+1}
                v_cvt_pk_bf16_f32 v{BA+3}, v{Sm+2}, v{Sm+3}
                s_mov_b64 exec, s[62:63]
                v_cvt_pk_bf16_f32 v{BB+2}, v{Sm}, v{Sm+1}
                v_cvt_pk_bf16_f32 v{BB+3}, v{Sm+2}, v{Sm+3}
                s_mov_b64 exec, -1""")
                packV(2,64)
        packV(3,72)
        issue(f'ds_read_b32 v{sv}, v{vNs} offset:{no+4}','ns')
        issue(f'ds_read_b32 v{vo}, v{vNo} offset:{no+8}','no')
        packV(1,8)
        for T in (0,2,3,1):
            wait_for([f'u{T}0'])
            a(f'v_mfma_f32_16x16x32_bf16 v[{Z+4*T}:{Z+4*T+3}], v[{XA+4*T}:{XA+4*T+3}], v[{BA}:{BA+3}], 0')
        for T in (0,2,3,1):
            wait_for([f'u{T}256'])
            a(f'v_mfma_f32_16x16x32_bf16 v[{XA+4*T}:{XA+4*T+3}], v[{XB+4*T}:{XB+4*T+3}], v[{BB}:{BB+3}], 0')
        a(f'v_cndmask_b32 v{sv}, v{sv}, 1.0, s[68:69]\nv_add_u32 v{vo}, v{vo}, v{vOq}')
        for i in (0,1,4,5,6,7,2,3): a(f'v_cvt_pk_bf16_f32 v{TA+i}, v{Z+2*i}, v{Z+2*i+1}')
        issue(f'ds_write_b128 v{vA}, v[{TA}:{TA+3}]','w0'); issue(f'ds_write_b128 v{vA}, v[{TA+4}:{TA+7}] offset:64','w1')
        for i in (0,1,4,5,6,7,2,3): a(f'v_cvt_pk_bf16_f32 v{TB+i}, v{XA+2*i}, v{XA+2*i+1}')
        issue(f'ds_write_b128 v{vAq}, v[{TB}:{TB+3}]','w2'); issue(f'ds_write_b128 v{vAq}, v[{TB+4}:{TB+7}] offset:64','w3')
        a(f"""v_mfma_f32_16x16x32_bf16 v[{XB}:{XB+3}], v[{ST[0]}:{ST[0]+3}], v[{TA}:{TA+3}], 0
        v_mfma_f32_16x16x32_bf16 v[{XB+4}:{XB+7}], v[{ST[0]}:{ST[0]+3}], v[{TB}:{TB+3}], 0
        v_mfma_f32_16x16x32_bf16 v[{XB}:{XB+3}], v[{ST[1]}:{ST[1]+3}], v[{TA+4}:{TA+7}], v[{XB}:{XB+3}]
        v_mfma_f32_16x16x32_bf16 v[{XB+4}:{XB+7}], v[{ST[1]}:{ST[1]+3}], v[{TB+4}:{TB+7}], v[{XB+4}:{XB+7}]""")
        for T in range(4):
            o=(0,8,64,72)[T]
            issue(f'ds_read_b64_tr_b16 v[{Z+4*T}:{Z+4*T+1}], v{vTr} offset:{o}',f'o{T}a')
            issue(f'ds_read_b64_tr_b16 v[{Z+4*T+2}:{Z+4*T+3}], v{vTr} offset:{256+o}',f'o{T}b')
        qa,qb,t2,t3=XB+12,XB+13,XB+14,XB+15
        for i in range(8):
            a(f'v_dot2_f32_bf16 v{qa}, v{TA+i}, v{TA+i}, {"0" if i==0 else f"v{qa}"}\nv_dot2_f32_bf16 v{qb}, v{TB+i}, v{TB+i}, {"0" if i==0 else f"v{qb}"}')
        a(f"""v_cndmask_b32 v{XB}, v{XB+4}, v{XB}, s[72:73]
        v_cndmask_b32 v{XB+1}, v{XB+5}, v{XB+1}, s[72:73]
        v_mul_f32 v{t2}, 0x3e000000, v{XB}
        v_permlane32_swap_b32 v{qa}, v{qb}
        v_add_f32 v{qa}, v{qa}, v{qb}
        v_mov_b32 v{qb}, v{qa}
        v_fma_f32 v{t3}, -v{XB}, s79, v{XB+1}
        v_mul_f32 v{XB}, 0x3e000000, v{sv}
        v_permlane16_swap_b32 v{qa}, v{qb}
        v_add_f32 v{qa}, v{qa}, v{qb}
        v_mul_f32 v{XB}, v{XB}, v{XB}
        v_fma_f32 v{qa}, -v{t2}, v{t2}, v{qa}
        v_max_f32 v{qa}, 0, v{qa}
        v_fmaak_f32 v{qa}, v{XB}, v{qa}, {EPS}
        v_rsq_f32 v{qa}, v{qa}
        v_mul_f32 v{t3}, v{sv}, v{t3}
        v_mul_f32 v{t3}, 0x3fb8aa3b, v{t3}
        v_mul_f32 v{qa}, v{qa}, v{t3}""")
        if pair<npairs-1: a(f's_mov_b64 exec, s[54:55]\nv_add_u32 v{vA}, 0x200, v{vA}\nv_add_u32 v{vAq}, 0x200, v{vAq}\ns_mov_b64 exec, -1')
        else: a('s_nop 1')
        a(f"""v_max_f32_dpp v{qb}, v{qa}, v{qa} quad_perm:[1,0,3,2] {DPP}
        s_nop 1
        v_max_f32_dpp v{qb}, v{qb}, v{qb} quad_perm:[2,3,0,1] {DPP}
        s_nop 1
        v_max_f32_dpp v{qb}, v{qb}, v{qb} row_half_mirror {DPP}
        v_sub_f32 v{qa}, v{qa}, v{qb}
        v_exp_f32 v{qa}, v{qa}""")
        if pair<npairs-1: a(f's_mov_b64 exec, s[60:61]\nv_add_u32 v{vTr}, 0x200, v{vTr}\ns_mov_b64 exec, -1')
        else: a('s_nop 1')
        a(f"""v_add_f32_dpp v{qb}, v{qa}, v{qa} quad_perm:[1,0,3,2] {DPP}
        s_nop 1
        v_add_f32_dpp v{qb}, v{qb}, v{qb} quad_perm:[2,3,0,1] {DPP}
        s_nop 1
        v_add_f32_dpp v{qb}, v{qb}, v{qb} row_half_mirror {DPP}
        v_rcp_f32 v{qb}, v{qb}
        v_mul_f32 v{qa}, v{sv}, v{qa}
        v_mul_f32 v{qa}, v{qa}, v{qb}
        ds_write_b32 v{vBw}, v{qa} offset:{ro}
        ds_read_b128 v[{XB}:{XB+3}], v{vBr} offset:{ro}
        s_waitcnt lgkmcnt(2)""")
        if pair==0: a('s_cmp_eq_u32 s4, 12\ns_cbranch_scc1 f_nd0')
        if pair<npairs-1: dma(pair+1)
        if pair==0: a('f_nd0:')
        a(f"""s_waitcnt lgkmcnt(0)
        s_mov_b64 exec, s[56:57]
        v_cvt_pk_bf16_f32 v{BO}, v{XB}, v{XB+1}
        v_cvt_pk_bf16_f32 v{BO+1}, v{XB+2}, v{XB+3}
        s_mov_b64 exec, s[58:59]
        v_cvt_pk_bf16_f32 v{BO+2}, v{XB}, v{XB+1}
        v_cvt_pk_bf16_f32 v{BO+3}, v{XB+2}, v{XB+3}
        s_mov_b64 exec, -1
        s_nop 0""")
        for T in range(4):
            a(f'v_mfma_f32_16x16x32_bf16 v[{XA+4*T}:{XA+4*T+3}], v[{Z+4*T}:{Z+4*T+3}], v[{BO}:{BO+3}], 0')
        a('s_nop 4')
        for i in range(8): a(f'v_cvt_pk_bf16_f32 v{XB+8+i}, v{XA+2*i}, v{XA+2*i+1}')
        a(f"""s_mov_b64 exec, s[70:71]
        buffer_store_dwordx4 v[{XB+8}:{XB+11}], v{vo}, s[36:39], 0 offen {OUTPOL}
        buffer_store_dwordx4 v[{XB+12}:{XB+15}], v{vo}, s[36:39], 0 offen offset:64 {OUTPOL}
        s_mov_b64 exec, -1""")
        if pair==0: a('s_cmp_eq_u32 s4, 12\ns_cbranch_scc1 f_done')
    a('f_done:')
    stamp('f')
    if stamps:
        a('s_waitcnt vmcnt(0)')
        stamp('e')
        a(f's_waitcnt lgkmcnt(0)\ns_lshl_b32 s64, s2, 4\ns_add_u32 s64, s64, s4\ns_lshl_b32 s64, s64, 7\ns_add_u32 s64, s64, {DUMP}\nv_mov_b32 v4, s64\ns_mov_b64 exec, 1')
        if dbgst:
            a('v_mov_b32 v6, 0\ns_not_b32 s65, s80\nv_mov_b32 v5, s65\nglobal_atomic_umax v6, v5, s[28:29] offset:8 sc1')
            for i in range(len(stamps)): a(f'v_mov_b32 v5, s{80+2*i}\nglobal_atomic_umax v6, v5, s[28:29] offset:{12+4*i} sc1')
            a('s_or_b32 s65, s2, s4\ns_cbranch_scc1 k_nv\nv_mov_b32 v5, s94\nglobal_store_dword v6, v5, s[28:29] offset:4 sc1\nk_nv:')
        a('v_mov_b32 v5, s94\nglobal_store_dword v4, v5, s[30:31] offset:64')
        for i in range(len(stamps)): a(f'v_mov_b32 v5, s{80+2*i}\nglobal_store_dword v4, v5, s[30:31] offset:{4*i}')
    a('k_end:\ns_endpgm')
    for h in handlers:
        a(f'{h}:\ns_cmp_ge_u32 s78, {RB}\ns_cbranch_scc1 {h}_r\ns_add_u32 s78, s78, 1\ns_barrier\ns_add_u32 s77, s77, s52\ns_cbranch_scc0 {h}\ns_branch {h}_r')
    a(f"""h_slow:
    s_mov_b32 s64, {CAP}
    v_and_b32 v4, 3, v0
    v_lshlrev_b32 v4, 2, v4
    h_sl:""")
    for s_ in range(2):
        a(f"""v_add_u32 v5, s64, v4
        v_add_u32 v6, v5, v{122+s_}
        v_subrev_u32 v6, {CAP}, v6
        v_lshlrev_b32 v6, 2, v6
        v_sub_u32 v5, v{120+s_}, v5
        v_mov_b32 v7, {OOBV}
        buffer_load_dwordx4 v[102:105], v6, s[40:43], s59 offen
        s_waitcnt vmcnt(0)""")
        for r in range(4): a(f'v_cmp_lt_i32 vcc, {r}, v5\ns_nop 1\nv_cndmask_b32 v{102+r}, v7, v{102+r}, vcc')
        for hb in range(2):
            a('s_nop 1')
            for t in range(8):
                e=8*hb+t
                a(f'v_add_u32_dpp v7, v{102+(e&3)}, v1 quad_perm:[{e>>2},{e>>2},{e>>2},{e>>2}] {DPP}\nbuffer_load_dwordx4 v[{d0+4*t}:{d0+4*t+3}], v7, s[32:35], 0 offen sc1')
            a('s_waitcnt vmcnt(0)')
            for t in range(8): mf(s_,d0+4*t); a('s_nop 0')
    a('s_add_u32 s64, s64, 16\ns_cmp_lt_u32 s64, s53\ns_cbranch_scc1 h_sl\ns_branch h_slow_r')
    a(f"""k_hx:
    s_cmp_lg_u32 s4, 13
    s_cbranch_scc1 k_end
    v_lshlrev_b32 v2, 21, v7
    v_add_u32 v3, 0x1fff80, v2
    v_cmpx_gt_u32 vcc, 42, v7
    global_load_dword v4, v3, s[30:31] sc1
    v_cmpx_gt_u32 vcc, 4, v7
    global_load_dword v4, v2, s[26:27] sc1
    s_endpgm""")
    for t in tails: t()
    t=a.text()
    t=t.replace('    PB3\n','    s_barrier\n    s_barrier\n').replace('    PBMID\n',f'    s_cmp_lg_u32 s72, {pa}\n    s_cbranch_scc1 p1_pm\n    s_barrier\np1_pm:\n')
    return t

HDR=open('gather_scatter__hybrid_graph_tf_nagphormer__graph.s.ref').read().split('; Override launch')[0]
def wrap(body):
    return HDR+f'''; @launch grid=(256,1,1) block=(1024,1,1) lds={LDS_BYTES}
.amdgcn_target "amdgcn-amd-amdhsa--gfx950"
.text
.globl {KNAME}
.p2align 8
.type {KNAME},@function
{KNAME}:
'''+body+f'''.section .rodata,"a"
.p2align 6
.amdhsa_kernel {KNAME}
  .amdhsa_next_free_vgpr 128
  .amdhsa_next_free_sgpr 102
  .amdhsa_accum_offset 128
  .amdhsa_group_segment_fixed_size 0
  .amdhsa_kernarg_size 96
  .amdhsa_user_sgpr_count 2
  .amdhsa_user_sgpr_kernarg_segment_ptr 1
  .amdhsa_system_sgpr_workgroup_id_x 1
  .amdhsa_float_denorm_mode_32 3
.end_amdhsa_kernel
'''
if __name__=='__main__':
    import ast
    kw=dict(x.split('=') for x in sys.argv[2:])
    for k in kw:
        try: kw[k]=ast.literal_eval(kw[k])
        except Exception: pass
    if 'stamps' in kw: kw['stamps']=kw['stamps'].split(',')
    open(sys.argv[1],'w').write(wrap(gen(**kw)))
```

```python
import sys
from lay import *
KNAME='gather_scatter__hybrid_graph_tf_nagphormer__graph_kernel'
class Asm:
    def __init__(s): s.l=[]; s.u=0
    def __call__(s,t):
        for x in t.strip('\n').split('\n'):
            x=x.strip()
            if x: s.l.append(x if x.endswith(':') else '    '+x)
    def lab(s,p='L'): s.u+=1; return f'{p}{s.u}'
    def text(s): return '\n'.join(s.l)+'\n'
DPP='row_mask:0xf bank_mask:0xf'
EPS='0x3727c5ac'
OUTPOL='sc1'

def line_calc(a,dst,n,t,u):
    a(f'''v_lshrrev_b32 v{t}, 8, v{n}
    v_mul_u32_u24 v{u}, 205, v{t}
    v_lshl_add_u32 v{dst}, v{t}, 7, v{n}
    v_lshrrev_b32 v{u}, 13, v{u}
    v_lshrrev_b32 v{t}, 1, v{n}
    v_lshl_add_u32 v{dst}, v{u}, 10, v{dst}
    v_bitop3_b32 v{t}, v{t}, v{n}, 64 bitop3:0x80
    v_add_u32 v{dst}, v{dst}, v{t}''')

def rho_calc(a,X,sm,sq,vs,sones):
    a(f'v_dot2_f32_bf16 v{sm}, v{X}, {sones}, 0\nv_dot2_f32_bf16 v{sq}, v{X}, v{X}, 0')
    for i in range(1,4):
        a(f'v_dot2_f32_bf16 v{sm}, v{X+i}, {sones}, v{sm}\nv_dot2_f32_bf16 v{sq}, v{X+i}, v{X+i}, v{sq}')
    a('s_nop 2')
    for m in ('quad_perm:[1,0,3,2]','quad_perm:[2,3,0,1]','row_half_mirror'):
        a(f'v_add_f32_dpp v{sm}, v{sm}, v{sm} {m} {DPP}\nv_add_f32_dpp v{sq}, v{sq}, v{sq} {m} {DPP}\ns_nop 0')
    a(f'''v_mul_f32 v{sm}, 0x3c800000, v{sm}
    v_mul_f32 v{sq}, 0x3c800000, v{sq}
    v_fma_f32 v{sq}, -v{sm}, v{sm}, v{sq}
    v_max_f32 v{sq}, 0, v{sq}''')
    if vs is not None: a(f'v_mul_f32 v{sq}, v{vs}, v{sq}\nv_mul_f32 v{sq}, v{vs}, v{sq}')
    a(f'v_add_f32 v{sq}, {EPS}, v{sq}\nv_rsq_f32 v{sm}, v{sq}\ns_nop 0')
    if vs is not None: a(f'v_mul_f32 v{sm}, v{vs}, v{sm}')

def baraddr(a,base):
    a(f'''s_and_b32 s64, s2, 7
    s_lshr_b32 s65, s64, 2
    s_xor_b32 s65, s65, s63
    s_lshl_b32 s65, s65, 13
    s_lshl_b32 s64, s64, 8
    s_add_u32 s64, s64, s65
    s_add_u32 s56, s64, {base}
    s_xor_b32 s65, s6, s63
    s_lshl_b32 s65, s65, 13
    s_and_b32 s64, s7, 7
    s_lshl_b32 s64, s64, 8
    s_add_u32 s64, s64, s65
    s_mov_b32 s75, {base+4096}
    s_add_u32 s57, s64, s75''')

def bar_l2(a,nm):
    a(f"""s_mov_b64 exec, 0xff
    v_mbcnt_lo_u32_b32 v58, -1, 0
    v_lshrrev_b32 v59, 2, v58
    v_xor_b32 v59, s63, v59
    v_lshlrev_b32 v59, 13, v59
    v_lshl_add_u32 v58, v58, 8, v59
    v_add_u32 v58, s75, v58
    v_mov_b32 v57, s65
    global_atomic_add v58, v57, s[30:31] sc1
    s_mov_b64 exec, 1
    {nm}_np:""")
def bar_poll(a,nm,votes=False):
    a(f"""s_mov_b32 s65, 0
    {nm}_p:
    global_load_dword v58, v56, s[30:31] sc1
    s_waitcnt vmcnt(0)""")
    if votes: a('v_and_b32 v59, 0xff, v58\nv_cmp_gt_u32 vcc, s64, v59')
    else: a('v_cmp_gt_u32 vcc, s64, v58')
    a(f"""s_cbranch_vccz {nm}_pd
    s_add_u32 s65, s65, 1
    s_cmp_lt_u32 s65, 0x800000
    s_cbranch_scc1 {nm}_p
    {nm}_pd:""")
def bar_arrive(a,nm):
    a(f"""v_mov_b32 v56, s56
    v_mov_b32 v57, 1
    global_atomic_add v58, v56, v57, s[30:31] sc0 sc1
    s_lshl_b32 s64, s62, 5
    s_sub_u32 s64, s64, 1
    v_mov_b32 v56, s57
    s_waitcnt vmcnt(0)
    v_readfirstlane_b32 s65, v58
    s_cmp_lg_u32 s65, s64
    s_cbranch_scc1 {nm}_np
    s_mov_b32 s65, 1""")
    bar_l2(a,nm)

def gbarrier(a,nm,pf=None,fill=None):
    a(f's_add_u32 s62, s62, 1\ns_barrier\ns_cmp_lg_u32 s4, 0\ns_cbranch_scc1 {nm}_f')
    a('s_mov_b64 exec, 1')
    bar_arrive(a,nm)
    a('s_lshl_b32 s64, s62, 3')
    bar_poll(a,nm)
    a(f's_mov_b64 exec, -1\ns_branch {nm}_w\n{nm}_f:')
    if pf:
        n0,n1,sl=pf
        def ex(lo,hi):
            m=((1<<(16*hi))-1)^((1<<(16*lo))-1)
            a(f's_mov_b32 exec_lo, {m&0xffffffff:#x}\ns_mov_b32 exec_hi, {m>>32:#x}')
        if n0: ex(0,n0); a('buffer_load_dword v127, v126, s[36:39], 0 offen sc1')
        if n1>n0:
            if sl: a(f's_sleep {sl}')
            ex(n0,n1); a('buffer_load_dword v127, v126, s[36:39], 0 offen sc1')
        a('s_mov_b64 exec, -1')
    a(f"""{nm}_w:
    s_barrier""")

def probe(a,nm,voff,res):
    a(f'v_add_u32 v{voff+1}, 0x2000, v{voff}\nv_mov_b32 v{voff+2}, 0\ns_mov_b32 s66, -1\ns_mov_b32 s67, -1\ns_mov_b32 s72, 0\n{nm}:')
    for s in range(2):
        a(f'''s_memtime s[68:69]
        s_waitcnt lgkmcnt(0)
        global_atomic_add v{voff+3}, v{voff+s}, v{voff+2}, s[30:31] sc0 sc1
        s_waitcnt vmcnt(0)
        s_memtime s[70:71]
        s_waitcnt lgkmcnt(0)
        s_sub_u32 s70, s70, s68
        s_min_u32 s{66+s}, s{66+s}, s70''')
    a(f's_add_u32 s72, s72, 1\ns_cmp_lt_u32 s72, 3\ns_cbranch_scc1 {nm}')
    a(f's_cmp_gt_u32 s66, s67\ns_cselect_b32 s{res}, 1, 0\ns_xor_b32 s{res}, s{res}, s6')

def gen(xh=0,ent='nt',xnt='',fprio=(0,1,0,2,0),dbgst=False,K=8,R=12,RB=7,pf=(0,1,6),pdrain=True,stop=None,dump=False,stamps=False,npairs=4,stag=0,nprobe=4,xpos=2,xpf=0,pa=2):
    a=Asm()
    if RB is None: RB=R-1
    def stamp(nm):
        if stamps and nm in stamps:
            i=stamps.index(nm); a(f's_memrealtime s[{80+2*i}:{81+2*i}]')
        if stamps and nm+'c' in stamps:
            i=stamps.index(nm+'c'); a(f's_memtime s[{80+2*i}:{81+2*i}]')
    def hstamp(nm):
        if stamps and nm in stamps:
            l=a.lab('hs'); i=stamps.index(nm)
            a(f's_cmp_lg_u32 s3, 4\ns_cbranch_scc1 {l}\ns_memrealtime s[{80+2*i}:{81+2*i}]\n{l}:')
    a(f"""s_cmp_ge_u32 s2, 256
    s_cbranch_scc1 k_end
    s_load_dwordx16 s[8:23], s[0:1], 0
    s_load_dwordx8 s[24:31], s[0:1], 64
    v_lshrrev_b32 v1, 6, v0
    s_and_b32 s5, s2, 7
    v_readfirstlane_b32 s4, v1
    s_lshl_b32 s5, s5, 5
    s_lshr_b32 s3, s2, 3
    s_add_u32 s5, s5, s3
    s_mov_b32 s62, 0
    s_mul_i32 s54, s5, {BS}
    v_lshlrev_b32 v10, 4, v0""")
    stamp('s')
    def wsinit():
        a(f"""s_add_u32 s30, s30, 0x1fffff
        s_addc_u32 s31, s31, 0
        s_and_b32 s30, s30, 0xffe00000
        s_mov_b32 s36, s30
        s_mov_b32 s37, s31
        s_mov_b32 s38, {TBYTES}
        s_mov_b32 s39, 0x20000
        s_add_u32 s40, s30, {SMALL}
        s_addc_u32 s41, s31, 0
        s_mov_b32 s42, {SMALL_BYTES}
        s_mov_b32 s43, 0x20000
        s_getreg_b32 s7, hwreg(HW_REG_XCC_ID, 0, 4)
        s_lshr_b32 s6, s7, 2
        s_mov_b64 s[56:57], 0
        s_mov_b32 s44, s8
        s_mov_b32 s45, s9
        s_mov_b32 s46, {N*128}
        s_mov_b32 s47, 0x20000
        s_add_u32 s96, s30, {5*TSTR}
        s_addc_u32 s97, s31, 0
        s_mov_b32 s98, {TBYTES}
        s_mov_b32 s99, 0x20000
        s_mov_b32 s60, 0
        s_and_b32 s6, s6, 1""")
    def ldsinit(z):
        for k in range(4): a(f'v_mov_b32 v{z+k}, 0\nv_mov_b32 v{z+4+k}, {OOBV}')
        o=f'v[{z+4}:{z+7}]'; zz=f'v[{z}:{z+3}]'
        a(f"""ds_write_b128 v10, {o} offset:{L_LIST}
        v_add_u32 v1, 13312, v10
        ds_write_b128 v1, {o} offset:{L_LIST}
        v_add_u32 v1, 26624, v10
        s_movk_i32 s64, 416
        v_cmpx_gt_u32 vcc, s64, v0
        ds_write_b128 v1, {o} offset:{L_LIST}
        ds_write_b128 v10, {zz} offset:{L_CNT}
        s_movk_i32 s64, 208
        v_cmpx_gt_u32 vcc, s64, v0
        ds_write_b128 v10, v[{z+2}:{z+5}] offset:{L_INFO}
        s_movk_i32 s64, 84
        v_cmpx_gt_u32 vcc, s64, v0
        ds_write_b128 v10, {zz} offset:{L_HIST}
        s_mov_b64 exec, -1""")
    a(f"""s_cmp_ge_u32 s4, 13
    s_cbranch_scc1 p1_help
    v_lshrrev_b32 v2, 3, v0
    v_add_u32 v3, s54, v2
    v_add_u32 v4, 104, v3
    v_and_b32 v5, 7, v0
    v_lshlrev_b32 v5, 4, v5
    v_lshl_add_u32 v6, v3, 7, v5
    v_lshl_add_u32 v7, v4, 7, v5
    v_lshlrev_b32 v8, 1, v3
    v_lshlrev_b32 v9, 1, v4
    s_mul_i32 s55, s2, {CHE*4}
    v_add_u32 v11, s55, v10
    s_add_u32 s55, s55, {CHUNK}
    s_mov_b32 s64, {N}
    v_cmp_gt_u32 s[48:49], s64, v3
    v_cmp_gt_u32 s[50:51], s64, v4
    s_movk_i32 s64, 736
    v_cmp_gt_u32 vcc, s64, v0
    s_and_b64 s[50:51], s[50:51], vcc
    s_movk_i32 s64, 800
    v_cmp_gt_u32 s[52:53], s64, v0
    s_cmp_ge_u32 s2, {NCH}
    s_cselect_b64 s[52:53], 0, s[52:53]
    s_waitcnt lgkmcnt(0)""")
    a(f"""s_mov_b64 exec, s[52:53]
    s_cbranch_execz p1_ne
    global_load_dwordx4 v[12:15], v11, s[12:13] {ent}
    global_load_dwordx4 v[16:19], v11, s[10:11] {ent}
    p1_ne:
""")
    XL=f"""    s_mov_b64 exec, s[48:49]
    s_cbranch_execz p1_nxa
    global_load_dwordx4 v[20:23], v6, s[8:9] {xnt}
    global_load_ushort v28, v8, s[14:15]
    p1_nxa:
    s_mov_b64 exec, s[50:51]
    s_cbranch_execz p1_nxb
    global_load_dwordx4 v[24:27], v7, s[8:9] {xnt}
    global_load_ushort v29, v9, s[14:15]
    p1_nxb:
    s_mov_b64 exec, -1"""
    if xpos==0: a(XL)
    else: a('s_mov_b64 exec, -1')
    wsinit()
    a(f"""s_lshl_b32 s64, s2, 4
    s_add_u32 s64, s64, s4
    s_cmp_lg_u32 s64, {255*16}
    s_cbranch_scc1 p1_nz
    v_and_b32 v40, 15, v0
    v_lshrrev_b32 v41, 4, v0
    v_lshlrev_b32 v40, 8, v40
    v_and_b32 v42, 1, v41
    v_lshrrev_b32 v41, 1, v41
    v_lshl_add_u32 v40, v42, 12, v40
    v_lshl_add_u32 v40, v41, 13, v40
    v_add_u32 v40, {BARP}, v40
    v_mov_b32 v41, 0
    global_store_dword v40, v41, s[30:31] sc1
    v_add_u32 v40, 0x4000, v40
    global_store_dword v40, v41, s[30:31] sc1
    v_add_u32 v40, 0x4000, v40
    global_store_dword v40, v41, s[30:31] sc1
    s_waitcnt vmcnt(0)
    s_mov_b64 exec, 1
    v_mov_b32 v40, 0
    v_mov_b32 v41, 1
    global_store_dword v40, v41, s[28:29] sc1
    s_mov_b64 exec, -1
    p1_nz:""")
    ldsinit(32)
    for n,d in ((3,76),(4,78)):
        line_calc(a,d,n,64,65)
        a(f"""v_lshl_add_u32 v{d}, v{d}, 7, v5
        v_and_b32 v64, 128, v{n}
        v_cmp_ne_u32 vcc, 0, v64
        v_add_u32 v{d+1}, 0x2000, v{d}
        v_cndmask_b32 v{d+1}, v36, v{d+1}, vcc""".replace('v_add_u32 v{0}'.format(d+1),'s_nop 0\nv_add_u32 v{0}'.format(d+1)))
    a('s_waitcnt lgkmcnt(0)\ns_barrier')
    stamp('B1')
    if xpos==1: a(XL)
    a(f"""s_mov_b64 exec, s[52:53]
    s_cbranch_execz p1_e1
    s_movk_i32 s64, -{BS}
    v_mov_b32 v33, 1
""")
    if xpos<2: a('s_cmp_lt_u32 s4, 12\ns_cbranch_scc1 p1_w4\ns_waitcnt vmcnt(2)\np1_w4:\ns_waitcnt vmcnt(4)')
    else: a('s_waitcnt vmcnt(0)')
    stamp('ed')
    for i in range(4):
        d=12+i; b=40+i
        a(f"""v_mul_u32_u24 v30, 85599, v{d}
        v_lshrrev_b32 v{52+i}, 24, v30
        v_lshlrev_b32 v{b}, 2, v{52+i}
        ds_add_rtn_u32 v{48+i}, v{b}, v33 offset:{L_HIST}""")
    a('p1_e1:')
    if xpos==2: a(XL)
    a('s_mov_b64 exec, -1\ns_waitcnt lgkmcnt(0)\ns_barrier')
    stamp('B2')
    a(f"""s_cmp_lg_u32 s4, 0
    s_cbranch_scc1 p1_ns
    ds_read_b128 v[72:75], v10 offset:{L_HIST}
    s_waitcnt lgkmcnt(0)
    v_add_u32 v57, v72, v73
    v_add_u32 v58, v57, v74
    v_add_u32 v59, v58, v75
    v_mov_b32 v60, v59
    s_nop 1""")
    for m in ('row_shr:1','row_shr:2','row_shr:4','row_shr:8'):
        a(f'v_add_u32_dpp v60, v60, v60 {m} {DPP} bound_ctrl:0\ns_nop 1')
    a(f"""v_add_u32_dpp v60, v60, v60 row_bcast:15 row_mask:0xa bank_mask:0xf
    s_nop 1
    v_add_u32_dpp v60, v60, v60 row_bcast:31 row_mask:0xc bank_mask:0xf
    v_sub_u32 v60, v60, v59
    v_add_u32 v61, v60, v72
    v_add_u32 v62, v60, v57
    v_add_u32 v63, v60, v58
    ds_write_b128 v10, v[60:63] offset:{L_HIST}
    v_lshl_or_b32 v56, v72, 16, v60
    v_lshl_or_b32 v57, v73, 16, v61
    v_lshl_or_b32 v58, v74, 16, v62
    v_lshl_or_b32 v59, v75, 16, v63
    s_cmp_ge_u32 s2, {NCH}
    s_cbranch_scc1 p1_ns
    s_lshl_b32 s65, s2, 10
    s_add_u32 s65, s65, {OFFS}
    buffer_store_dwordx4 v[56:59], v10, s[40:43], s65 offen sc1
    p1_ns:""")
    for i in range(4):
        d=12+i; s_=16+i; b=52+i; e=44+i
        a(f"""v_mul_u32_u24 v31, 10700, v{s_}
        v_lshrrev_b32 v30, 5, v{b}
        v_lshrrev_b32 v31, 26, v31
        v_mad_i32_i24 v{d}, v{b}, s64, v{d}
        v_sub_u32 v31, v31, v30
        v_and_b32 v31, 7, v31
        v_lshl_add_u32 v{d}, v{d}, 3, v31""")
        line_calc(a,e,s_,30,31)
        a(f"""v_and_b32 v30, 128, v{s_}
        v_lshl_or_b32 v{e}, v30, 10, v{e}
        v_lshl_or_b32 v{e}, v{d}, 18, v{e}""")
    a('s_waitcnt lgkmcnt(0)\ns_barrier')
    stamp('B3')
    a('s_mov_b64 exec, s[52:53]')
    for i in range(4): a(f'ds_read_b32 v{40+i}, v{40+i} offset:{L_HIST}')
    for i in range(4):
        a(f's_waitcnt lgkmcnt(3)\nv_add_lshl_u32 v{40+i}, v{40+i}, v{48+i}, 2')
        a(f'ds_write_b32 v{40+i}, v{44+i} offset:{L_ESTG}')
    a('s_mov_b64 exec, -1\ns_waitcnt lgkmcnt(0)\ns_barrier')
    a(f"""s_mov_b64 exec, s[52:53]
    s_cbranch_execz p1_e3
    ds_read_b128 v[40:43], v10 offset:{L_ESTG}
    s_waitcnt lgkmcnt(0)
    buffer_store_dwordx4 v[40:43], v10, s[40:43], s55 offen sc1
    p1_e3:
    s_mov_b64 exec, -1""")
    if xpos==3:
        a(XL)
        a('s_cmp_lt_u32 s4, 12\ns_cbranch_scc1 p1_w4\ns_waitcnt vmcnt(2)\np1_w4:\ns_waitcnt vmcnt(4)')
    else: a('s_waitcnt vmcnt(0)')
    stamp('pa')
    a('s_barrier\ns_mov_b32 s66, 0x3f803f80\ns_waitcnt vmcnt(0)')
    for (X,D,n,m,off) in ((20,28,3,48,0),(24,29,4,50,832)):
        l=a.lab('xc')
        a(f's_mov_b64 exec, s[{m}:{m+1}]\ns_cbranch_execz {l}')
        a(f'v_lshlrev_b32 v{D}, 16, v{D}')
        for i in range(4):
            a(f"""v_lshlrev_b32 v64, 16, v{X+i}
            v_and_b32 v65, 0xffff0000, v{X+i}
            v_mul_f32 v64, v{D}, v64
            v_mul_f32 v65, v{D}, v65
            v_cvt_pk_bf16_f32 v{(68 if off==0 else 72)+i}, v64, v65""")
        ad=76 if off==0 else 78
        o=68 if off==0 else 72
        a(f"""buffer_store_dwordx4 v[{o}:{o+3}], v{ad}, s[36:39], 0 offen sc1
        buffer_store_dwordx4 v[{o}:{o+3}], v{ad+1}, s[36:39], 0 offen sc1
        {l}:""")
    for (X,D,n,m,off) in ((20,28,3,48,0),(24,29,4,50,832)):
        l=a.lab('xr')
        a(f's_mov_b64 exec, s[{m}:{m+1}]\ns_cbranch_execz {l}')
        rho_calc(a,X,64,65,None,'s66')
        a(f"""v_mov_b32 v65, v{D}
        v_lshlrev_b32 v66, 3, v2
        ds_write_b64 v66, v[64:65] offset:{L_R0+off}
        {l}:""")
    a('s_mov_b64 exec, -1\ns_branch p1_done')
    a(f"""p1_help:
    v_and_b32 v2, 63, v0
    v_and_b32 v3, 15, v0
    v_bfe_u32 v4, v0, 4, 2
    v_lshrrev_b32 v5, 2, v3
    v_and_b32 v6, 3, v0
    v_lshl_add_u32 v5, v5, 3, v6
    v_lshlrev_b32 v5, 7, v5
    v_lshl_add_u32 v5, v4, 4, v5
    v_add_u32 v7, 0x1000, v5
    s_waitcnt lgkmcnt(0)
    s_cmp_eq_u32 s4, 13
    s_cbranch_scc1 p1_probe
    s_barrier
    s_cmp_eq_u32 s4, 14
    s_cselect_b32 s64, s16, s20
    s_cselect_b32 s65, s17, s21""")
    WA=12; WBx=44; WD=[76,92,108,44]
    for t in range(4):
        for s_ in range(2):
            r=WA+8*t+4*s_
            a(f'global_load_dwordx4 v[{r}:{r+3}], v{5 if t<2 else 7}, s[64:65] offset:{512*(t&1)+64*s_}')
    a('s_cbranch_scc0 p1_wo')
    for t in range(4):
        for s_ in range(2):
            r=WBx+8*t+4*s_
            a(f'global_load_dwordx4 v[{r}:{r+3}], v{5 if t<2 else 7}, s[18:19] offset:{512*(t&1)+64*s_}')
    wsinit()
    XP=f"""v_add_u32 v8, s54, v2
    v_lshlrev_b32 v9, 7, v8
    s_mov_b32 s44, s8
    s_mov_b32 s45, s9
    s_mov_b32 s46, {N*128}
    s_mov_b32 s47, 0x20000
    s_movk_i32 s64, 0x2000
    s_movk_i32 s65, 0x4000
    buffer_load_dword v126, v9, s[44:47], 0 offen {xnt}
    buffer_load_dword v126, v9, s[44:47], s64 offen {xnt}
    buffer_load_dword v126, v9, s[44:47], s65 offen {xnt}
    s_movk_i32 s64, 0x6000
    s_mov_b64 exec, 15
    buffer_load_dword v126, v9, s[44:47], s64 offen {xnt}
    v_lshlrev_b32 v9, 7, v2
    s_lshl_b32 s64, s54, 1
    s_mov_b32 s44, s14
    s_mov_b32 s45, s15
    s_mov_b32 s46, {N*2}
    buffer_load_dword v126, v9, s[44:47], s64 offen {xnt}
    s_mov_b64 exec, -1"""
    if xpf==1: a(XP)
    a('s_barrier')
    if xpf==2: a(XP)
    a(f's_barrier\ns_barrier\ns_barrier\ns_waitcnt vmcnt({5 if xpf else 0})')
    a('s_branch p1_wm\np1_wo:\nv_lshlrev_b32 v8, 4, v2\nv_add_u32 v9, 0x1000, v8')
    for k in range(8):
        a(f'global_load_dwordx4 v[{76+4*k}:{79+4*k}], v{8 if k<4 else 9}, s[22:23] offset:{1024*(k&3)}')
    wsinit()
    a(f"""v_add_u32 v8, {L_WP}, v8
    v_bfe_u32 v9, v0, 2, 2
    v_lshl_add_u32 v9, v4, 3, v9
    v_lshlrev_b32 v9, 7, v9
    v_lshl_add_u32 v9, v6, 4, v9
    v_add_u32 v9, {L_WP}, v9
    s_barrier
    s_barrier
    s_barrier
    s_waitcnt vmcnt(0)""")
    for k in range(8): a(f'ds_write_b128 v8, v[{76+4*k}:{79+4*k}] offset:{1024*k}')
    a('s_waitcnt lgkmcnt(0)')
    for T in range(4):
        for s_ in range(2):
            for hf in range(2):
                r=WBx+8*T+4*s_+2*hf
                a(f'ds_read_b64_tr_b16 v[{r}:{r+1}], v9 offset:{4096*s_+512*hf+64*(T>>1)+8*(T&1)}')
        if T==2: a('s_waitcnt lgkmcnt(8)')
    a('s_waitcnt lgkmcnt(0)\np1_wm:')
    for T in range(4):
        for s_ in range(2):
            for t in range(4):
                d=WD[T]+4*t
                a(f'v_mfma_f32_16x16x32_bf16 v[{d}:{d+3}], v[{WA+8*t+4*s_}:{WA+8*t+4*s_+3}], v[{WBx+8*T+4*s_}:{WBx+8*T+4*s_+3}], '+(f'v[{d}:{d+3}]' if s_ else '0'))
    a('s_nop 7')
    for T in range(4):
        d=WD[T]
        a(f'v_pk_add_f32 v[{20+2*T}:{21+2*T}], v[{d}:{d+1}], v[{d+2}:{d+3}]')
    for k in range(2,8):
        for T in range(4):
            d=WD[T]; a(f'v_pk_add_f32 v[{20+2*T}:{21+2*T}], v[{20+2*T}:{21+2*T}], v[{d+2*k}:{d+2*k+1}]')
    for T in range(4): a(f'v_add_f32 v{12+T}, v{20+2*T}, v{21+2*T}')
    for sw in ('v_permlane16_swap_b32','v_permlane32_swap_b32'):
        for T in range(4): a(f'v_mov_b32 v{16+T}, v{12+T}')
        a('s_nop 1')
        for T in range(4): a(f'{sw} v{12+T}, v{16+T}')
        for T in range(4): a(f'v_add_f32 v{12+T}, v{12+T}, v{16+T}')
    for T in range(4): a(f'v_mul_f32 v{20+2*T}, 0xbc800000, v{12+T}')
    a('s_cmp_eq_u32 s4, 14\ns_cbranch_scc0 p1_wc')
    for k in range(8):
        a(f'v_pk_add_f32 v[{28+2*k}:{29+2*k}], v[{WD[0]+2*k}:{WD[0]+2*k+1}], v[{WD[1]+2*k}:{WD[1]+2*k+1}]')
    for T in (2,3):
        for k in range(8): a(f'v_pk_add_f32 v[{28+2*k}:{29+2*k}], v[{28+2*k}:{29+2*k}], v[{WD[T]+2*k}:{WD[T]+2*k+1}]')
    a('v_add_f32 v12, v20, v22\nv_add_f32 v13, v24, v26\nv_add_f32 v12, v12, v13\ns_nop 1')
    for m in ('quad_perm:[1,0,3,2]','quad_perm:[2,3,0,1]','row_half_mirror','row_mirror'):
        a(f'v_add_f32_dpp v12, v12, v12 {m} {DPP}')
        for k in range(16): a(f'v_add_f32_dpp v{28+k}, v{28+k}, v{28+k} {m} {DPP}')
    a('v_mul_f32 v12, 0xbc800000, v12\nv_mov_b32 v14, 0xbc800000')
    for T in range(4): a(f'v_add_f32 v{20+2*T}, v{20+2*T}, v12')
    for T in range(4):
        for k in range(8):
            d=WD[T]+2*k
            a(f'v_pk_fma_f32 v[{d}:{d+1}], v[{28+2*k}:{29+2*k}], v[14:15], v[{d}:{d+1}] op_sel_hi:[1,0,1]')
    a(f"""p1_wc:
    s_sub_u32 s64, s4, 14
    s_lshl_b32 s64, s64, 13
    s_add_u32 s64, s64, {L_W}
    v_lshlrev_b32 v8, 4, v2
    v_add_u32 v8, s64, v8""")
    for T in range(4):
        for k in range(8):
            d=WD[T]+2*k
            a(f'v_pk_add_f32 v[{d}:{d+1}], v[{d}:{d+1}], v[{20+2*T}:{21+2*T}] op_sel_hi:[1,0]')
        for s_ in range(2):
            d=WD[T]+8*s_
            for k in range(4): a(f'v_cvt_pk_bf16_f32 v{d+k}, v{d+2*k}, v{d+2*k+1}')
            a(f'ds_write_b128 v8, v[{d}:{d+3}] offset:{2048*T+1024*s_}')
    a(f"""s_cmp_eq_u32 s4, 14
    s_cbranch_scc1 p1_done
    s_mov_b64 exec, 1
    v_mov_b32 v56, 0
    global_load_dword v58, v56, s[28:29] sc1
    s_mov_b32 s63, 0
    s_mov_b32 s62, 1""")
    baraddr(a,BARP+16384)
    a(f"""s_mov_b32 s64, 0
    s_waitcnt vmcnt(0)
    s_barrier
    gb0_i:
    v_readfirstlane_b32 s65, v58
    s_cmp_lg_u32 s65, 0
    s_cbranch_scc1 gb0_id
    s_sleep 2
    global_load_dword v58, v56, s[28:29] sc1
    s_add_u32 s64, s64, 1
    s_cmp_lt_u32 s64, 0x400000
    s_waitcnt vmcnt(0)
    s_cbranch_scc1 gb0_i
    gb0_id:""")
    bar_arrive(a,'gb0')
    a('s_mov_b32 s64, 8')
    bar_poll(a,'gb0')
    baraddr(a,BARP+32768)
    a('s_mov_b64 exec, -1\ns_branch p1_done')
    a('p1_probe:')
    wsinit()
    a(f"""s_and_b32 s64, s2, 3
    s_and_b32 s74, s2, 1
    s_lshl_b32 s64, s64, 21
    s_lshr_b32 s65, s2, 2
    s_lshl_b32 s65, s65, 7
    s_add_u32 s64, s64, s65
    s_add_u32 s64, s64, {254*8192}
    v_mov_b32 v40, s64
    v_add_u32 v41, 0x2000, v40
    v_mov_b32 v42, 0
    v_cmp_gt_u32 vcc, 5, v2
    v_add_u32 v45, 37, v2
    v_cmp_eq_u32 s[66:67], 5, v2
    v_cndmask_b32 v45, v45, v2, vcc
    v_cmp_eq_u32 vcc, 8, v2
    v_mov_b32 v46, 0x1fff80
    v_cndmask_b32 v46, v46, 0, s[66:67]
    v_cndmask_b32 v45, v45, 47, vcc
    v_lshl_add_u32 v45, v45, 21, v46
    s_mov_b64 exec, 0x1ff
    global_load_dword v47, v45, s[30:31] sc1
    s_mov_b64 exec, 1
    global_load_dword v47, v42, s[28:29] sc1
    global_atomic_add v43, v40, v42, s[30:31] sc0 sc1
    global_atomic_add v44, v41, v42, s[30:31] sc0 sc1
    s_barrier
    s_barrier
    PB3
    s_mov_b32 s72, 0
    s_mov_b32 s67, 0
    s_waitcnt vmcnt(0)
    p1_pl:
    global_atomic_add v43, v40, v42, s[30:31] sc0 sc1
    global_atomic_add v44, v41, v42, s[30:31] sc0 sc1
    s_waitcnt vmcnt(1)
    s_memtime s[68:69]
    s_waitcnt vmcnt(0)
    s_memtime s[70:71]
    v_swap_b32 v40, v41
    s_waitcnt lgkmcnt(0)
    s_sub_u32 s66, s70, s68
    s_sub_u32 s67, s66, s67
    s_add_u32 s72, s72, 1
    PBMID
    s_cmp_lt_u32 s72, {nprobe}
    s_cbranch_scc1 p1_pl
    s_cmp_gt_i32 s67, 0
    s_cselect_b32 s65, 1, 0
    s_xor_b32 s65, s65, s6
    s_xor_b32 s65, s65, s74
    s_lshl_b32 s65, s65, 8
    s_or_b32 s65, s65, 1
    v_mov_b32 v41, s65
    v_mov_b32 v40, {L_RED}
    ds_write_b32 v40, v41 offset:12
    s_mov_b64 exec, -1""")
    a(f"""p1_done:
    v_lshrrev_b32 v2, 2, v0
    v_and_b32 v3, 3, v0
    v_lshlrev_b32 v70, 10, v2
    s_lshl_b32 s92, s5, 2
    s_add_u32 s92, s92, {OFFS}
    s_movk_i32 s65, {NCH}
    v_cmp_gt_u32 s[48:49], s65, v2
    v_mov_b32 v72, {OOBV}
    v_and_b32 v73, 63, v0
    v_lshlrev_b32 v8, 2, v73
    v_cndmask_b32 v70, v72, v70, s[48:49]
    v_mul_u32_u24 v71, {CHE*4}, v2
    v_lshl_add_u32 v71, v3, 4, v71
    v_add_u32 v71, {CHUNK}, v71
    v_lshlrev_b32 v3, 2, v3
    v_mov_b32 v21, 1
    s_waitcnt vmcnt(0) lgkmcnt(0)""")
    stamp('p1')
    a('s_barrier')
    stamp('b0')
    if stop=='p1': a('s_endpgm')
    a(f"""buffer_load_dword v5, v70, s[40:43], s92 offen sc1
    s_cmp_lg_u32 s4, 15
    s_cbranch_scc1 p2_na
    s_mov_b64 exec, 1
    v_mov_b32 v56, {L_RED}
    ds_read_b32 v57, v56 offset:12
    v_mov_b32 v56, s56
    s_waitcnt lgkmcnt(0)
    global_atomic_add v58, v56, v57, s[30:31] sc0 sc1
    s_mov_b64 exec, -1
    p2_na:
    s_waitcnt vmcnt(0)
    v_and_b32 v9, 0xffff, v5
    v_lshrrev_b32 v11, 16, v5
    v_lshl_add_u32 v4, v9, 2, v71
    v_cndmask_b32 v4, v72, v4, s[48:49]
    buffer_load_dwordx4 v[12:15], v4, s[40:43], 0 offen sc1
    buffer_load_dwordx4 v[16:19], v4, s[40:43], 0 offen offset:64 sc1
    v_sub_u32 v20, v11, v3
    v_mov_b32 v6, v72
    v_mov_b32 v7, v73
    s_cmp_lg_u32 s4, 15
    s_cbranch_scc1 p2_nw
    s_mov_b64 exec, 1
    v_add_u32 v57, v57, v58
    v_mov_b32 v56, s57
    v_readfirstlane_b32 s65, v57
    s_and_b32 s64, s65, 0xff
    s_cmp_lg_u32 s64, 32
    s_cbranch_scc1 gbb_np
    s_sub_u32 s65, s65, 31""")
    bar_l2(a,'gbb')
    a('s_mov_b64 exec, -1\np2_nw:')
    def each_entry(body,regs,base):
        for r,e in enumerate(regs):
            a(f'v_cmpx_lt_i32 vcc, {base[r]}, v20')
            body(e)
        a('s_mov_b64 exec, -1')
    regs=list(range(12,20)); base=[0,1,2,3,16,17,18,19]
    def pass1(regs):
        for k,e in enumerate(regs): a(f'v_lshrrev_b32 v{80+k}, 16, v{e}\nv_and_b32 v{80+k}, 0x1ffc, v{80+k}')
        ad={e:80+k for k,e in enumerate(regs)}
        each_entry(lambda e: a(f'ds_add_u32 v{ad[e]}, v21 offset:{L_CNT}'),regs,base)
    a('s_waitcnt vmcnt(0)')
    stamp('sg')
    pass1(regs)
    def longseg(nm,whole):
        a(f"""v_cmp_lt_i32 vcc, 32, v20
        s_cbranch_vccnz {nm}
        {nm}_d:""")
        def tail():
            a(f"""{nm}:
            v_mov_b32 v23, v20
            v_mov_b32 v24, v4
            {nm}_l:
            v_subrev_u32 v20, 32, v20
            v_add_u32 v24, 128, v24
            v_cmp_lt_i32 vcc, 0, v20
            s_cbranch_vccz {nm}_r
            buffer_load_dwordx4 v[28:31], v24, s[40:43], 0 offen sc1
            buffer_load_dwordx4 v[32:35], v24, s[40:43], 0 offen offset:64 sc1
            s_waitcnt vmcnt(0)""")
            whole(list(range(28,36)))
            a(f"""s_branch {nm}_l
            {nm}_r:
            v_mov_b32 v20, v23""")
            for k,e in enumerate(regs): a(f'v_lshrrev_b32 v{80+k}, 16, v{e}\nv_and_b32 v{80+k}, 0x1ffc, v{80+k}')
            a(f's_branch {nm}_d')
        tails.append(tail)
    tails=[]
    longseg('ls1',pass1)
    a('s_waitcnt lgkmcnt(0)\ns_barrier')
    stamp('c1')
    a(f"""s_cmp_ge_u32 s4, 4
    s_cbranch_scc1 p2_n1
    v_add_u32 v36, s54, v0
    s_mov_b32 s64, {N}
    v_cmp_gt_u32 vcc, s64, v36
    s_movk_i32 s64, {BS}
    v_cmp_gt_u32 s[64:65], s64, v0
    s_and_b64 s[66:67], vcc, s[64:65]
    s_mov_b64 exec, s[66:67]
    v_lshlrev_b32 v37, 5, v0
    v_lshlrev_b32 v38, 3, v0
    ds_read_b128 v[40:43], v37 offset:{L_CNT}
    ds_read_b128 v[44:47], v37 offset:{L_CNT+16}
    ds_read_b64 v[58:59], v38 offset:{L_R0}""")
    line_calc(a,66,36,62,63)
    a(f"""v_lshlrev_b32 v66, 7, v66
    v_and_b32 v62, 128, v36
    v_add_u32 v67, 0x2000, v66
    v_cmp_ne_u32 vcc, 0, v62
    v_mov_b32 v48, 0
    s_waitcnt lgkmcnt(1)
    v_cndmask_b32 v67, v6, v67, vcc
    v_mov_b32 v49, v40
    v_add_u32 v50, v49, v41
    v_add_u32 v51, v50, v42
    v_add_u32 v52, v51, v43
    v_add_u32 v53, v52, v44
    v_add_u32 v54, v53, v45
    v_add_u32 v55, v54, v46
    v_add_u32 v65, v55, v47
    v_min_u32 v57, 63, v65
    v_sub_u32 v57, 63, v57
    v_lshlrev_b32 v57, 2, v57
    ds_add_rtn_u32 v60, v57, v21 offset:{L_DH}
    s_mov_b64 exec, -1
    p2_n1:""")
    def offs(regs):
        for e in regs:
            a(f"""v_bfe_u32 v26, v{e}, 14, 3
            v_lshrrev_b32 v27, 17, v{e}
            v_bfe_u32 v26, s58, v26, 1
            v_and_b32 v{e}, 0x1ffff, v{e}
            v_and_b32 v26, v26, v27
            v_lshl_add_u32 v{e}, v26, 6, v{e}
            v_lshlrev_b32 v{e}, 7, v{e}""")
    a('s_cmp_lg_u32 s4, 15\ns_cbranch_scc1 p2_nq\ns_mov_b64 exec, 1\nv_mov_b32 v56, s57\ns_mov_b32 s64, 8')
    bar_poll(a,'gbb',votes=True)
    a(f"""v_mov_b32 v62, {L_RED}
    ds_write_b32 v62, v58 offset:8
    s_mov_b64 exec, -1
    p2_nq:
    v_mov_b32 v62, {L_RED}
    s_waitcnt lgkmcnt(0)
    s_barrier
    ds_read_b32 v63, v62 offset:8
    ds_read_b32 v61, v8 offset:{L_DH}
    s_waitcnt lgkmcnt(0)
    v_readfirstlane_b32 s60, v63
    s_cmp_ge_u32 s60, 0x8000
    s_cselect_b32 s61, 1, 0
    s_xor_b32 s58, s61, s6
    s_cmp_eq_u32 s58, 0
    s_cselect_b32 s58, 10, 21
    s_cmp_ge_u32 s4, 4
    s_cbranch_scc1 p2_n2
    v_mov_b32 v62, v61
    s_nop 1""")
    for m in ('row_shr:1','row_shr:2','row_shr:4','row_shr:8'):
        a(f'v_add_u32_dpp v62, v62, v62 {m} {DPP} bound_ctrl:0\ns_nop 1')
    a(f"""v_add_u32_dpp v62, v62, v62 row_bcast:15 row_mask:0xa bank_mask:0xf
    s_nop 1
    v_add_u32_dpp v62, v62, v62 row_bcast:31 row_mask:0xc bank_mask:0xf
    v_sub_u32 v62, v62, v61
    ds_bpermute_b32 v62, v57, v62
    s_mov_b64 exec, s[66:67]
    v_or_b32 v64, v59, v0
    s_waitcnt lgkmcnt(0)
    v_add_u32 v60, v60, v62
    v_lshlrev_b32 v61, 20, v60""")
    for j in range(8): a(f'v_or_b32 v{48+j}, v61, v{48+j}')
    a(f"""ds_write_b128 v37, v[48:51] offset:{L_CNT}
    ds_write_b128 v37, v[52:55] offset:{L_CNT+16}
    v_lshlrev_b32 v62, 4, v60
    ds_write_b128 v62, v[64:67] offset:{L_INFO}
    v_lshlrev_b32 v62, 5, v60
    v_add_u32 v62, {L_RHO-65024}, v62
    ds_write_b32 v62, v58 offset:65024
    v_cmp_lt_u32 vcc, {CAP}, v65
    s_and_b64 exec, exec, vcc
    s_cbranch_execz p2_n3
    v_subrev_u32 v56, {CAP}, v65
    v_mov_b32 v62, {L_RED}
    ds_add_rtn_u32 v63, v62, v56
    v_lshlrev_b32 v62, 2, v60
    s_waitcnt lgkmcnt(0)
    ds_write_b32 v62, v63 offset:{L_INF2}
    s_branch p2_n3
    p2_n2:""")
    offs(regs)
    a('p2_n3:\ns_mov_b64 exec, -1')
    a('s_waitcnt lgkmcnt(0)\ns_barrier')
    stamp('nd')
    def pass2(regs,slow):
        cur={e:40+k for k,e in enumerate(regs)}; ad={e:80+k for k,e in enumerate(regs)}
        each_entry(lambda e: a(f'ds_add_rtn_u32 v{cur[e]}, v{ad[e]}, v21 offset:{L_CNT}'),regs,base)
        if not slow:
            a(f"""v_mov_b32 v62, {L_RED}
            ds_read_b32 v63, v62
            s_cmp_ge_u32 s4, 4
            s_cbranch_scc1 p2_o2""")
            offs(regs)
            a(f"""p2_o2:
            s_movk_i32 s64, 160
            s_mov_b32 s65, 0xfffff
            s_waitcnt lgkmcnt(0)
            v_readfirstlane_b32 s59, v63
            s_cmp_lg_u32 s59, 0
            s_cbranch_scc1 p2_ovf""")
            for e in regs:
                a(f"""v_lshrrev_b32 v26, 20, v{cur[e]}
                v_and_b32 v{cur[e]}, s65, v{cur[e]}
                v_mul_u32_u24 v26, s64, v26
                v_lshl_add_u32 v{cur[e]}, v{cur[e]}, 2, v26""")
            each_entry(lambda e: a(f'ds_write_b32 v{cur[e]}, v{e} offset:{L_LIST}'),regs,base)
        else:
            a('s_waitcnt lgkmcnt(0)')
            slow2(regs)
    def slow2(regs):
        cur={e:40+k for k,e in enumerate(regs)}
        for r,e in enumerate(regs):
            l=a.lab('ov')
            a(f"""v_cmp_lt_i32 s[70:71], {base[r]}, v20
            v_lshrrev_b32 v26, 20, v{cur[e]}
            v_and_b32 v25, s65, v{cur[e]}
            v_cmp_gt_u32 vcc, {CAP}, v25
            v_mul_u32_u24 v22, s64, v26
            v_lshl_add_u32 v22, v25, 2, v22
            s_and_b64 exec, s[70:71], vcc
            ds_write_b32 v22, v{e} offset:{L_LIST}
            s_andn2_b64 exec, s[70:71], vcc
            s_cbranch_execz {l}
            v_lshlrev_b32 v26, 2, v26
            ds_read_b32 v26, v26 offset:{L_INF2}
            v_subrev_u32 v25, {CAP}, v25
            s_waitcnt lgkmcnt(0)
            v_add_lshl_u32 v25, v25, v26, 2
            buffer_store_dword v{e}, v25, s[40:43], s59 offen
            {l}:
            s_mov_b64 exec, -1""")
    pass2(regs,False)
    a('p2_ovd:')
    def long2(regs):
        for k,e in enumerate(regs): a(f'v_lshrrev_b32 v{80+k}, 16, v{e}\nv_and_b32 v{80+k}, 0x1ffc, v{80+k}')
        offs(regs); pass2(regs,True)
    longseg('ls2',long2)
    def ovf_tail():
        a(f"""p2_ovf:
        v_cmp_eq_u32 vcc, 0, v3
        s_mov_b64 exec, vcc
        ds_add_u32 v62, v9 offset:4
        s_mov_b64 exec, -1
        s_waitcnt lgkmcnt(0)
        s_barrier
        ds_read_b32 v63, v62 offset:4
        s_waitcnt lgkmcnt(0)
        v_readfirstlane_b32 s59, v63
        s_lshl_b32 s59, s59, 2
        s_add_u32 s59, s59, {OVF}""")
        slow2(regs)
        a('s_branch p2_ovd')
    tails.append(ovf_tail)
    a('s_waitcnt vmcnt(0) lgkmcnt(0)\ns_barrier')
    stamp('c2')
    a('s_cmp_ge_u32 s4, 13\ns_cbranch_scc1 k_hx')
    a(f"""v_mov_b32 v0, v7
    v_lshrrev_b32 v115, 3, v0
    s_lshl_b32 s64, s4, 4
    v_add_u32 v115, s64, v115
    v_and_b32 v114, 3, v0
    v_mul_u32_u24 v6, 160, v115
    v_lshl_add_u32 v7, v114, 3, v6
    v_lshl_add_u32 v6, v114, 4, v6
    ds_read_b128 v[16:19], v6 offset:{L_LIST}
    ds_read_b128 v[26:29], v6 offset:{L_LIST+1280}
    v_lshlrev_b32 v116, 4, v115
    v_and_b32 v1, 7, v0
    v_lshlrev_b32 v1, 4, v1""")
    for s in range(2):
        o=16+10*s
        a(f"""ds_read_b128 v[{100+4*s}:{103+4*s}], v116 offset:{L_INFO+128*s}
        ds_read_b128 v[{o+4}:{o+7}], v6 offset:{L_LIST+1280*s+64}
        ds_read_b64 v[{o+8}:{o+9}], v7 offset:{L_LIST+1280*s+128}""")
    a(f"""s_mov_b32 s32, s36
    s_mov_b32 s33, s37
    s_mov_b32 s34, s38
    s_mov_b32 s35, 0x20000
    s_mov_b32 s3, 1
    v_mov_b32 v126, -1
    s_waitcnt lgkmcnt(6)""")
    stamp('p2')
    def deferred():
        a(f"""v_lshlrev_b32 v116, 2, v115
        ds_read_b32 v122, v116 offset:{L_INF2}
        ds_read_b32 v123, v116 offset:{L_INF2+32}
        v_mov_b32 v6, 0x3f80
        v_mov_b32 v7, 0x3f800000
        v_cmp_eq_u32 s[70:71], 0, v114
        v_cmp_eq_u32 s[64:65], 1, v114
        v_cmp_eq_u32 s[66:67], 2, v114
        v_cmp_eq_u32 s[68:69], 3, v114
        v_cndmask_b32 v2, 0, v6, s[70:71]
        v_cndmask_b32 v3, 0, v6, s[66:67]
        v_cndmask_b32 v2, v2, v7, s[64:65]
        v_cndmask_b32 v3, v3, v7, s[68:69]
        s_movk_i32 s64, {BS}
        v_cmp_gt_u32 s[48:49], s64, v115
        s_movk_i32 s64, {BS-8}
        v_cmp_gt_u32 s[50:51], s64, v115
        v_lshlrev_b32 v116, 7, v115
        v_lshlrev_b32 v117, 5, v115
        v_add_u32 v117, {L_RHO}, v117
        s_waitcnt lgkmcnt(0)
        v_max_u32 v4, v101, v105
        v_mov_b32 v120, v101
        v_mov_b32 v121, v105
        v_max_u32_dpp v4, v4, v4 row_shr:8 {DPP} bound_ctrl:0
        s_nop 1
        v_max_u32_dpp v4, v4, v4 row_bcast:15 row_mask:0xa bank_mask:0xf
        s_nop 1
        v_max_u32_dpp v4, v4, v4 row_bcast:31 row_mask:0xc bank_mask:0xf
        s_nop 1
        v_readlane_b32 s53, v4, 63""")
        for s in range(2):
            i=100+4*s
            a(f"""v_add_u32 v{8+s}, v{i+2}, v1
            v_add_u32 v{10+s}, v{i+3}, v1
            v_and_b32 v4, 0xffff0000, v{i}
            v_mul_f32 v{12+s}, v4, v4
            v_cmp_eq_f32 s[64:65], 0, v4
            v_and_b32 v5, 0xffff, v{i}
            v_add_u32 v5, s54, v5
            v_cndmask_b32 v{124+s}, v4, 1.0, s[64:65]
            v_lshl_add_u32 v{118+s}, v5, 7, v1
            v_cmp_gt_u32 s[64:65], s38, v{i+2}
            v_rcp_f32 v{14+s}, v{124+s}
            s_nop 0
            v_cndmask_b32 v{118+s}, v{i+2}, v{118+s}, s[64:65]""")
        a(f"""s_max_u32 s52, s53, {K//2}
        s_min_u32 s52, s52, {CAP}
        s_add_u32 s36, s36, {TSTR}
        s_addc_u32 s37, s37, 0
        s_mov_b32 s76, 0x3f803f80
        v_lshrrev_b32 v4, 4, v0
        v_lshlrev_b32 v4, 4, v4
        global_load_dwordx4 v[84:87], v4, s[24:25]
        global_load_dwordx4 v[88:91], v4, s[24:25] offset:64""")
    def late():
        a(f"""s_mul_i32 s95, s4, {STG}
        s_add_u32 s95, s95, {L_STAGE}
        s_xor_b32 s63, s61, 1
        s_mov_b32 s62, 0""")
        a('s_cmp_lg_u32 s4, 0\ns_cbranch_scc1 f_nb')
        baraddr(a,BARP)
        if stamps: a('s_mov_b32 s94, s60')
        a('f_nb:')
        if stag>=4: a(f'v_mov_b32 v4, {L_END}\nv_mov_b32 v5, 0\nds_write_b32 v4, v5')
        if pf:
            a(f"""v_lshrrev_b32 v4, 4, v0
            v_lshl_add_u32 v4, v4, 5, s5
            v_and_b32 v4, 0xff, v4
            v_mul_u32_u24 v4, {BS}, v4
            v_and_b32 v5, 15, v0
            s_lshl_b32 s64, s4, 4
            s_sub_u32 s64, s64, 16
            v_add3_u32 v4, v4, v5, s64""")
            line_calc(a,126,4,5,6)
            a(f"""v_lshrrev_b32 v5, 14, v126
            v_bfe_u32 v5, s58, v5, 1
            v_lshrrev_b32 v6, 7, v4
            v_and_b32 v5, v5, v6
            v_lshl_add_u32 v126, v5, 6, v126
            v_lshlrev_b32 v126, 7, v126""")
    def late2():
        for s_ in range(2):
            a(f"""s_mov_b64 exec, s[{48+2*s_}:{49+2*s_}]
            v_lshrrev_b32 v4, 3, v116
            v_add_u32 v4, {L_ND+128*s_}, v4
            v_mov_b32 v52, v{124+s_}
            v_mov_b32 v53, v{14+s_}
            v_sub_u32 v54, v{118+s_}, v1
            v_mov_b32 v55, 0
            ds_write_b128 v4, v[52:55]""")
        a('s_mov_b64 exec, -1')
    if dump:
        deferred()
        a(f's_lshl_b32 s64, s2, 4\ns_add_u32 s64, s64, s4\ns_mul_i32 s64, s64, {40*256}\ns_add_u32 s64, s64, {DUMP}\nv_lshlrev_b32 v4, 2, v0\nv_add_u32 v4, s64, v4')
        for i,r in enumerate(list(range(8,36))+list(range(118,126))):
            a(f'global_store_dword v4, v{r}, s[30:31]\nv_add_u32 v4, 256, v4')
        a('v_mov_b32 v5, s53\nglobal_store_dword v4, v5, s[30:31]\nv_add_u32 v4, 256, v4\nv_mov_b32 v5, s60\nglobal_store_dword v4, v5, s[30:31]\nv_add_u32 v4, 256, v4\nds_read_b32 v5, v117\ns_waitcnt lgkmcnt(0)\nglobal_store_dword v4, v5, s[30:31]')
    if stop=='p2': a('s_endpgm')
    a('h_top:')
    XA=52; XB=68; TA=120; TB=[40,41,42,43,48,49,50,51]; TQ=10; WB=[18,22,26]; Z=10; ST=[84,88]; BA=92; BB=96; BO=100
    vW,vOq,vA,vTr,vRk,vRq,vNd,vNs,vBw,vBr,vNo,vS=range(104,116); vAq=114+11
    mRA,mRT,mVA,mVB,mH0,mRH,mCA,mCB='s[10:11]','s[12:13]','s[14:15]','s[16:17]','s[18:19]','s[20:21]','s[22:23]','s[8:9]'
    t0_,t1_,cq,dq=2,3,4,5; sv=6; vo=7
    def tokaddr(dst,n,h,ch,t1,t2,mask):
        a(f"""v_lshlrev_b32 v{t1}, 4, v{ch}
        v_lshl_add_u32 v{t1}, v{n}, 7, v{t1}
        v_and_b32 v{t2}, 3, v{h}
        v_lshl_add_u32 v{t1}, v{t2}, 6, v{t1}
        v_lshrrev_b32 v{t2}, 2, v{h}
        v_lshl_add_u32 v{t1}, v{t2}, 5, v{t1}
        v_subrev_u32 v{t2}, 1, v{h}
        v_cmp_gt_u32 {mask}, 4, v{t2}
        v_mul_u32_u24 v{t2}, {PL2}, v{t2}
        v_add3_u32 v{t2}, v{t2}, v{t1}, s64
        v_subrev_u32 v{dst}, 4, v{h}
        v_max_i32 v{dst}, 0, v{dst}
        v_lshl_add_u32 v{dst}, v{dst}, 9, v{t1}
        v_add_u32 v{dst}, s95, v{dst}
        v_cndmask_b32 v{dst}, v{dst}, v{t2}, {mask}""")
    J,Q,C3,Q16,H,NN,QH,T1,T2,T3,T4,T5=4,5,6,7,56,57,58,59,60,61,62,63
    def fsetup():
        a(f"""v_and_b32 v{J}, 15, v0
        v_lshrrev_b32 v{Q}, 4, v0
        v_lshlrev_b32 v{Q16}, 4, v{Q}
        s_lshl_b32 s64, s4, 11
        v_and_b32 v{H}, 7, v0
        v_lshrrev_b32 v{NN}, 3, v{J}
        v_bfe_u32 v{T1}, v0, 3, 2
        v_lshl_add_u32 v{T1}, v{T1}, 7, v1
        v_add_u32 v{vS}, s95, v{T1}""")
        tokaddr(vA,NN,H,Q,T1,T2,mRA)
        a(f"""v_lshrrev_b32 v{QH}, 1, v{Q}
        v_and_b32 v{T3}, 1, v{Q}
        v_bfe_u32 v{T4}, v0, 2, 2
        v_lshl_add_u32 v{T3}, v{T3}, 2, v{T4}
        v_and_b32 v{C3}, 3, v0
        v_lshlrev_b32 v{T4}, 8, v{NN}
        v_sub_u32 v{vAq}, v{vA}, v{T4}
        v_add_u32 v{vAq}, 0x180, v{vAq}""")
        tokaddr(vTr,QH,T3,C3,T1,T2,mRT)
        a(f"""v_cmp_eq_u32 {mVA}, v{QH}, v{NN}
        v_cmp_ne_u32 {mVB}, v{QH}, v{NN}
        v_cmp_eq_u32 {mH0}, 0, v{H}
        v_cmp_gt_u32 {mRH}, 2, v{Q}
        v_cmp_gt_u32 s[66:67], 2, v{J}
        s_lshl_b32 s64, s4, 9
        s_add_u32 s64, s64, {L_RHO}
        s_lshl_b32 s65, s4, 8
        s_add_u32 s65, s65, {L_ND}
        v_lshlrev_b32 v{T1}, 2, v{J}
        v_xor_b32 v{T2}, 0x60, v{T1}
        v_add_u32 v{T4}, 64, v{Q16}
        v_cndmask_b32 v{vRk}, v{T4}, v{Q16}, {mVA}
        v_cndmask_b32 v{vRq}, v{T2}, v{T1}, {mVA}
        v_cndmask_b32 v{vBw}, v{T2}, v{T1}, {mRH}
        v_cndmask_b32 v{vBr}, v{T4}, v{Q16}, s[66:67]
        v_lshlrev_b32 v{T1}, 4, v{NN}
        v_xor_b32 v{T2}, 0x30, v{T1}
        v_cndmask_b32 v{vNd}, v{T2}, v{T1}, {mVA}
        v_cndmask_b32 v{vNs}, v{T2}, v{T1}, {mRH}
        v_lshlrev_b32 v{vNo}, 4, v{C3}""")
        for r in (vRk,vRq,vBw,vBr): a(f'v_add_u32 v{r}, s64, v{r}')
        for r in (vNd,vNs,vNo): a(f'v_add_u32 v{r}, s65, v{r}')
    def fsetup2():
        a(f"""v_and_b32 v{J}, 15, v0
        v_lshrrev_b32 v{Q}, 4, v0
        v_lshlrev_b32 v{Q16}, 4, v{Q}
        v_lshrrev_b32 v{QH}, 1, v{Q}
        v_and_b32 v{C3}, 3, v0
        v_lshlrev_b32 v{T1}, 2, v{Q}
        v_sub_u32 v{T2}, v{J}, v{T1}
        v_xor_b32 v{T3}, 8, v{J}
        v_sub_u32 v{T3}, v{T3}, v{T1}
        v_mov_b32 v{T4}, 0x3f80
        v_mov_b32 v{T5}, 0x3f800000""")
        for B_,d in ((BA,T2),(BB,T3)):
            for hf in range(2):
                a(f"""v_cmp_eq_u32 s[66:67], {2*hf}, v{d}
                v_cmp_eq_u32 s[68:69], {2*hf+1}, v{d}
                v_mov_b32 v{B_+2+hf}, 0
                v_cndmask_b32 v{B_+hf}, 0, v{T4}, s[66:67]
                v_cndmask_b32 v{B_+hf}, v{B_+hf}, v{T5}, s[68:69]""")
        for i in range(4): a(f'v_mov_b32 v{BO+i}, 0')
        a(f"""v_cmp_eq_u32 {mCA}, v{J}, v{QH}
        v_add_u32 v{QH}, 2, v{QH}
        v_cmp_eq_u32 {mCB}, v{J}, v{QH}
        v_mov_b32 v{vOq}, v{Q16}
        v_lshlrev_b32 v{vW}, 4, v0
        v_add_u32 v{vW}, {L_W}, v{vW}
        v_cmp_eq_u32 s[66:67], 0, v{C3}
        v_cmp_eq_u32 s[68:69], 1, v{C3}
        v_mov_b32 v{T1}, s76
        v_dot2_f32_bf16 v{T3}, v{ST[0]}, s76, 0""")
        for r in [ST[0]+1,ST[0]+2,ST[0]+3,ST[1],ST[1]+1,ST[1]+2,ST[1]+3]: a(f'v_dot2_f32_bf16 v{T3}, v{r}, s76, v{T3}')
        for b in ST:
            for i in range(4): a(f'v_cndmask_b32 v{b+i}, 0, v{b+i}, s[68:69]\nv_cndmask_b32 v{b+i}, v{b+i}, v{T1}, s[66:67]')
        a(f"""v_readlane_b32 s64, v{T3}, 0
        v_readlane_b32 s65, v{T3}, 16
        v_readlane_b32 s66, v{T3}, 32
        v_readlane_b32 s67, v{T3}, 48
        v_mov_b32 v{T1}, s64
        v_add_f32 v{T1}, s65, v{T1}
        v_add_f32 v{T1}, s66, v{T1}
        v_add_f32 v{T1}, s67, v{T1}
        v_mul_f32 v{T1}, 0x3c800000, v{T1}
        s_mov_b32 s74, 0x3e38aa3b
        v_readfirstlane_b32 s55, v{T1}""")
    acc=[36,44]; d0=52; off=[16,26]; va=[4,5,6,7]
    def mf(s_,sl):
        a(f'v_mfma_f32_4x4x4_16b_bf16 v[{acc[s_]}:{acc[s_]+3}], v[2:3], v[{sl}:{sl+1}], v[{acc[s_]}:{acc[s_]+3}]')
        a(f'v_mfma_f32_4x4x4_16b_bf16 v[{acc[s_]+4}:{acc[s_]+7}], v[2:3], v[{sl+2}:{sl+3}], v[{acc[s_]+4}:{acc[s_]+7}]')
    def dma(pair):
        sl=pair>>1; hf=pair&1
        a(f's_mov_b32 exec_lo, {0 if hf else -1}\ns_mov_b32 exec_hi, {-1 if hf else 0}')
        for (srd,v,o) in ((44,118+sl,0),(96,8+sl,608),(32,8+sl,1184)):
            a(f's_add_u32 m0, s95, {o-512*hf}' if o-512*hf>=0 else f's_sub_u32 m0, s95, {512*hf-o}')
            a(f's_nop 0\nbuffer_load_dwordx4 v{v}, s[{srd}:{srd+3}], 0 offen {"" if srd==44 else "sc1"} lds')
        a('s_mov_b64 exec, -1')
    a(f"""s_cmp_lg_u32 s3, 7
    s_cbranch_scc1 h_nx
""")
    dma(0)
    a('s_setprio 3')
    if stag==1:
        a('s_setprio 3\ns_cmp_ge_u32 s4, 8\ns_cbranch_scc1 h_nx\ns_setprio 2\ns_cmp_ge_u32 s4, 4\ns_cbranch_scc1 h_nx\ns_setprio 1')
    if stag==2: a('s_setprio 3')
    if stag>=4:
        G={4:(8,4,5,9),5:(6,6,7,7),6:(10,5,3,8),7:(9,5,4,8)}[stag]
        a(f'''s_setprio 3
        s_cmp_ge_u32 s4, {G[0]}
        s_cbranch_scc1 h_nx
        s_cmp_ge_u32 s4, {G[1]}
        s_cselect_b32 s64, {G[2]}, {G[3]}
        v_mov_b32 v4, {L_END}
        s_mov_b32 s65, 0
        h_g7:
        ds_read_b32 v5, v4
        s_waitcnt lgkmcnt(0)
        v_readfirstlane_b32 s66, v5
        s_cmp_ge_u32 s66, s64
        s_cbranch_scc1 h_nx
        s_sleep 1
        s_add_u32 s65, s65, 1
        s_cmp_lt_u32 s65, 0x1000000
        s_cbranch_scc1 h_g7''')
    if stag==3:
        a('s_setprio 1\ns_cmp_ge_u32 s4, 8\ns_cbranch_scc1 h_nx\ns_setprio 2\ns_cmp_ge_u32 s4, 4\ns_cbranch_scc1 h_nx\ns_setprio 3')
    a('h_nx:')
    hstamp('hs')
    handlers=[]
    for u in range(CAP//2):
        j=2*u; t0=4*u
        if j<32: q=(j>>2)&3; rb=4*(j>>4)+(j&3)
        else: q=(j-32)>>1; rb=8
        if t0>=K: a(f's_cmp_ge_u32 {j}, s52\ns_cbranch_scc1 h_drain{"" if not pdrain else (u%(K//4))}')
        if u==1:
            a('s_cmp_eq_u32 s3, 1\ns_cbranch_scc1 h_def\nh_defr:')
            for i in range(16): a(f'v_mov_b32 v{36+i}, 0')
            a('s_mov_b32 s77, s52\ns_mov_b32 s78, 0')
            if stag: a(f's_cmp_eq_u32 s3, 7\ns_cselect_b32 s78, {RB}, 0')
        if u>0:
            h=f'h_ev{u}'; a(f's_sub_u32 s77, s77, {2*R}\ns_cbranch_scc1 {h}\n{h}_r:'); handlers.append(h)
        for hh in range(2):
            for s_ in range(2):
                a(f'v_add_u32_dpp v{va[hh*2+s_]}, v{off[s_]+rb+hh}, v1 quad_perm:[{q},{q},{q},{q}] {DPP}')
        if t0>=K:
            a(f's_waitcnt vmcnt({K-4})')
            for hh in range(2):
                for s_ in range(2): mf(s_,d0+4*((t0+hh*2+s_)%K))
        for hh in range(2):
            for s_ in range(2):
                sl=d0+4*((t0+hh*2+s_)%K)
                a(f'buffer_load_dwordx4 v[{sl}:{sl+3}], v{va[hh*2+s_]}, s[32:35], 0 offen sc1')
    if pdrain:
        f0=(CAP//2)%(K//4)
        for v in [f0]+[v for v in range(K//4) if v!=f0]: a(f'h_drain{v}:\ns_mov_b32 s79, {v}\ns_branch h_drain')
    a('h_drain:')
    if stag>=4:
        a(f's_cmp_lg_u32 s3, 7\ns_cbranch_scc1 h_rb\nv_mov_b32 v4, {L_END}\nv_mov_b32 v5, 1\ns_mov_b64 exec, 1\nds_add_u32 v4, v5\ns_mov_b64 exec, -1')
    a(f"""h_rb:
    s_cmp_ge_u32 s78, {RB}
    s_cbranch_scc1 h_rbd
    s_barrier
    s_add_u32 s78, s78, 1
    s_branch h_rb
    h_rbd:""")
    hstamp('hi')
    if pdrain:
        for par in range(1,K//4): a(f's_cmp_eq_u32 s79, {par}\ns_cbranch_scc1 h_dr{par}')
        for par in range(K//4):
            if par: a(f'h_dr{par}:')
            for n in range(K//2):
                a(f's_waitcnt vmcnt({K-2-2*n})')
                for t in (2*n,2*n+1): mf(t%2,d0+4*((t+4*par)%K))
            if par<K//4-1: a('s_branch h_drx')
        a('h_drx:')
        hstamp('hd')
    else:
        a('s_waitcnt vmcnt(0)')
        hstamp('hd')
        for t in range(K): mf(t%2,d0+4*t)
    a(f's_cmp_gt_u32 s53, {CAP}\ns_cbranch_scc1 h_slow\nh_slow_r:\ns_nop 4')
    for s_ in range(2):
        for i in range(4): a(f'v_pk_mul_f32 v[{acc[s_]+2*i}:{acc[s_]+2*i+1}], v[{acc[s_]+2*i}:{acc[s_]+2*i+1}], v[12:13] op_sel:[0,{s_}] op_sel_hi:[1,{s_}]')
        for i in range(4): a(f'v_cvt_pk_bf16_f32 v{acc[s_]+i}, v{acc[s_]+2*i}, v{acc[s_]+2*i+1}')
    a('s_cmp_eq_u32 s3, 7\ns_cbranch_scc1 h_ns')
    for s_ in range(2):
        a(f'buffer_store_dwordx4 v[{acc[s_]}:{acc[s_]+3}], v{8+s_}, s[36:39], 0 offen sc1')
        a(f'buffer_store_dwordx4 v[{acc[s_]}:{acc[s_]+3}], v{10+s_}, s[36:39], 0 offen sc1')
    a(f"""h_ns:
    s_lshl_b32 s64, s3, 2
    s_sub_u32 s66, s3, 1
    s_mul_i32 s66, s66, {PL2}
    s_and_b32 s65, s3, 3
    s_lshl_b32 s65, s65, 6
    s_add_u32 s66, s66, s65
    s_lshr_b32 s65, s3, 2
    s_lshl_b32 s65, s65, 5
    s_add_u32 s66, s66, s65
    v_add_u32 v52, s64, v117
    v_add3_u32 v53, v1, v116, s66""")
    for s_ in range(2):
        l=a.lab('ep'); l2=a.lab('ep')
        rho_calc(a,acc[s_],54,55,14+s_,'s76')
        a(f"""s_mov_b64 exec, s[{48+2*s_}:{49+2*s_}]
        s_cbranch_execz {l}
        ds_write_b32 v52, v54 offset:{256*s_}
        s_cmp_gt_u32 s3, 4
        s_cbranch_scc1 {l}
        ds_write_b128 v53, v[{acc[s_]}:{acc[s_]+3}] offset:{1024*s_}
        {l}:
        s_mov_b64 exec, -1""")
    a('s_cmp_eq_u32 s3, 7\ns_cbranch_scc1 f_top\ns_cmp_le_u32 s3, 3\ns_cbranch_scc1 f_set\nf_setr:\ns_waitcnt vmcnt(0)')
    hstamp('ha')
    if xh:
        a(f'''s_cmp_lg_u32 s3, {xh}
        s_cbranch_scc1 h_nxp
        s_mov_b32 exec_lo, 0x01010101
        s_mov_b32 exec_hi, 0x01010101
        buffer_load_dword v127, v118, s[44:47], 0 offen
        buffer_load_dword v127, v119, s[44:47], 0 offen
        s_mov_b64 exec, -1
        h_nxp:''')
    gbarrier(a,'gb1',pf=pf)
    hstamp('hr')
    a(f"""s_mov_b32 s32, s36
    s_mov_b32 s33, s37
    s_add_u32 s36, s36, {TSTR}
    s_addc_u32 s37, s37, 0
    s_add_u32 s3, s3, 1
    s_branch h_top""")
    a('f_top:')
    a('''s_lshl_b32 s64, s2, 4
    s_add_u32 s64, s64, s4
    s_cmp_lg_u32 s64, 0xffc
    s_cbranch_scc1 h_nc
    v_mov_b32 v4, 0
    s_mov_b64 exec, 1
    global_store_dword v4, v4, s[28:29] sc1
    s_mov_b64 exec, -1
    h_nc:''')
    stamp('h')
    if stop=='hops': a('s_endpgm')
    a(f"""s_mov_b32 exec_lo, 0x01010101
    s_mov_b32 exec_hi, 0x01010101
    buffer_load_dword v117, v118, s[44:47], 0 offen
    buffer_load_dword v117, v8, s[96:99], 0 offen sc1
    buffer_load_dword v117, v8, s[32:35], 0 offen sc1
    buffer_load_dword v117, v119, s[44:47], 0 offen
    buffer_load_dword v117, v9, s[96:99], 0 offen sc1
    buffer_load_dword v117, v9, s[32:35], 0 offen sc1
    s_mov_b64 exec, -1
    s_mov_b32 s36, s26
    s_mov_b32 s37, s27
    s_mov_b32 s38, {N*128}
    s_mov_b32 s70, 0x000f000f
    s_mov_b32 s71, 0x000f000f
    v_mov_b32 v116, v{vAq}
    f_loop:""")
    vAq=116
    stamp('fl')
    order=[(0,T,s_) for T in range(4) for s_ in range(2)]+[(1,T,s_) for T in (0,2,3,1) for s_ in range(2)]
    def pk(op,d,x,y,z=None,bc=False,neg=False):
        m=' op_sel_hi:[1,0]' if bc and z is None else (' op_sel_hi:[1,0,0]' if bc else '')
        if neg: m+=' neg_lo:[0,0,1] neg_hi:[0,0,1]'
        a(f'v_pk_{op}_f32 v[{d}:{d+1}], v[{x}:{x+1}], v[{y}:{y+1}]'+(f', v[{z}:{z+1}]' if z is not None else '')+m)
    for pair in range(npairs):
        q_=[]
        ro=128*pair; no=64*pair
        def wait_for(names):
            idx=max(q_.index(n) for n in names if n in q_) if any(n in q_ for n in names) else -1
            if idx>=0:
                left=len(q_)-idx-1
                a(f's_waitcnt lgkmcnt({left})'); del q_[:idx+1]
        def issue(txt,name): a(txt); q_.append(name)
        u7=36+8*(pair>>1)
        if fprio: a(f's_setprio {fprio[0]}')
        a(f"""s_mov_b32 exec_lo, {0 if pair&1 else -1}
        s_mov_b32 exec_hi, {-1 if pair&1 else 0}
        ds_write_b128 v{vS}, v[{u7}:{u7+3}] offset:1760
        s_mov_b64 exec, -1""")
        issue(f'ds_read_b128 v[{WB[0]}:{WB[0]+3}], v{vW}','f0')
        issue(f'ds_read_b128 v[{WB[1]}:{WB[1]+3}], v{vW} offset:1024','f1')
        issue(f'ds_read_b128 v[{WB[2]}:{WB[2]+3}], v{vW} offset:2048','f2')
        if pair: a('s_waitcnt vmcnt(2)')
        issue(f'ds_read_b128 v[{TA}:{TA+3}], v{vA}','ta0')
        issue(f'ds_read_b128 v[{TQ}:{TQ+3}], v{vAq}','tq0')
        issue(f'ds_read_b128 v[{TA+4}:{TA+7}], v{vA} offset:64','ta1')
        issue(f'ds_read_b128 v[{TQ+4}:{TQ+7}], v{vAq} offset:64','tq1')
        issue(f'ds_read_b128 v[{TB[0]}:{TB[3]}], v{vA} offset:256','tb0')
        issue(f'ds_read_b128 v[{TB[4]}:{TB[7]}], v{vA} offset:320','tb1')
        Sm=TQ; RK=TQ+4
        def packV(T,tro):
            for X_,o in ((XA,0),(XB,256)):
                A=X_+4*T
                a(f'v_cvt_pk_bf16_f32 v{A+3}, v{A+2}, v{A+3}\nv_cvt_pk_bf16_f32 v{A+2}, v{A}, v{A+1}')
                issue(f'ds_read_b64_tr_b16 v[{A}:{A+1}], v{vTr} offset:{o+tro}',f'u{T}{o}')
        for n,(m,T,s_) in enumerate(order):
            b=WB[n%3]
            need=[f'f{n}']
            if n==0: need+=['ta0','tq0']
            if n==1: need+=['ta1','tq1']
            if n==8 and fprio: a(f's_setprio {fprio[3]}')
            wait_for(need)
            for X_,tk in ((XA,TA+4*s_),(XB,TQ+4*s_ if m==0 else TB[4*s_])):
                c=f'v[{X_+4*T}:{X_+4*T+3}]' if s_ else '0'
                if m==0: a(f'v_mfma_f32_16x16x32_bf16 v[{X_+4*T}:{X_+4*T+3}], v[{b}:{b+3}], v[{tk}:{tk+3}], {c}')
                else: a(f'v_mfma_f32_16x16x32_bf16 v[{X_+4*T}:{X_+4*T+3}], v[{tk}:{tk+3}], v[{b}:{b+3}], {c}')
            if n+3<16:
                m2,Tn,s2=order[n+3]
                issue(f'ds_read_b128 v[{b}:{b+3}], v{vW} offset:{8192*m2+2048*Tn+1024*s2}',f'f{n+3}')
            if n==5:
                for X_ in (XA,XB):
                    a(f'v_cvt_pk_bf16_f32 v{X_}, v{X_}, v{X_+1}\nv_cvt_pk_bf16_f32 v{X_+1}, v{X_+2}, v{X_+3}\nv_cvt_pk_bf16_f32 v{X_+2}, v{X_+4}, v{X_+5}\nv_cvt_pk_bf16_f32 v{X_+3}, v{X_+6}, v{X_+7}')
            if n==7:
                wait_for(['tb0','tb1'])
                a(f'v_mfma_f32_16x16x32_bf16 v[{XA+4}:{XA+7}], v[{TA}:{TA+3}], v[{XA}:{XA+3}], 0\nv_mfma_f32_16x16x32_bf16 v[{XB+4}:{XB+7}], v[{TB[0]}:{TB[3]}], v[{XB}:{XB+3}], 0')
                issue(f'ds_read_b128 v[{RK}:{RK+3}], v{vRk} offset:{ro}','rk')
                issue(f'ds_read_b32 v{cq}, v{vRq} offset:{ro}','rq')
                issue(f'ds_read_b32 v{dq}, v{vNd} offset:{no}','nd')
                a('s_nop 0')
                for X_ in (XA,XB):
                    A=X_+8
                    a(f'v_cvt_pk_bf16_f32 v{A}, v{A}, v{A+1}\nv_cvt_pk_bf16_f32 v{A+1}, v{A+2}, v{A+3}\nv_cvt_pk_bf16_f32 v{A+2}, v{A+4}, v{A+5}\nv_cvt_pk_bf16_f32 v{A+3}, v{A+6}, v{A+7}')
                a(f's_nop 0\nv_mfma_f32_16x16x32_bf16 v[{XA+4}:{XA+7}], v[{TA+4}:{TA+7}], v[{XA+8}:{XA+11}], v[{XA+4}:{XA+7}]\nv_mfma_f32_16x16x32_bf16 v[{XB+4}:{XB+7}], v[{TB[4]}:{TB[7]}], v[{XB+8}:{XB+11}], v[{XB+4}:{XB+7}]')
            if n==10:
                wait_for(['rk','rq','nd'])
                a(f's_mov_b64 exec, {mVA}')
                pk('mul',Sm,XA+4,RK); pk('mul',Sm+2,XA+6,RK+2)
                a(f's_mov_b64 exec, {mVB}')
                pk('mul',Sm,XB+4,RK); pk('mul',Sm+2,XB+6,RK+2)
                a(f's_mov_b64 exec, -1\nv_mul_f32 v{cq}, s74, v{cq}\nv_cndmask_b32 v{dq}, v{dq}, 1.0, {mH0}')
                a(f'v_max3_f32 v{t0_}, v{Sm}, v{Sm+1}, v{Sm+2}\nv_max_f32 v{t0_}, v{t0_}, v{Sm+3}\nv_mov_b32 v{t1_}, v{t0_}')
            if n==11:
                a(f'v_permlane16_swap_b32 v{t0_}, v{t1_}\nv_max_f32 v{t0_}, v{t0_}, v{t1_}\nv_mul_f32 v{t0_}, v{cq}, v{t0_}')
                pk('fma',Sm,Sm,cq,t0_,bc=True,neg=True); pk('fma',Sm+2,Sm+2,cq,t0_,bc=True,neg=True)
                for r in range(4): a(f'v_exp_f32 v{Sm+r}, v{Sm+r}')
            if n==12:
                a(f'v_add_f32 v{t0_}, v{Sm}, v{Sm+1}\nv_add_f32 v{t1_}, v{Sm+2}, v{Sm+3}\nv_add_f32 v{t0_}, v{t0_}, v{t1_}\nv_mov_b32 v{t1_}, v{t0_}')
                pk('mul',Sm,Sm,RK); pk('mul',Sm+2,Sm+2,RK+2)
            if n==13:
                a(f'v_permlane16_swap_b32 v{t0_}, v{t1_}\nv_add_f32 v{t0_}, v{t0_}, v{t1_}\nv_rcp_f32 v{t0_}, v{t0_}')
                packV(0,0)
                a(f'v_mul_f32 v{t0_}, v{dq}, v{t0_}')
                pk('mul',Sm,Sm,t0_,bc=True); pk('mul',Sm+2,Sm+2,t0_,bc=True)
            if n==14:
                a(f"""s_mov_b64 exec, {mVA}
                v_cvt_pk_bf16_f32 v{BA+2}, v{Sm}, v{Sm+1}
                v_cvt_pk_bf16_f32 v{BA+3}, v{Sm+2}, v{Sm+3}
                s_mov_b64 exec, {mVB}
                v_cvt_pk_bf16_f32 v{BB+2}, v{Sm}, v{Sm+1}
                v_cvt_pk_bf16_f32 v{BB+3}, v{Sm+2}, v{Sm+3}
                s_mov_b64 exec, -1""")
                packV(2,64)
        packV(3,72)
        issue(f'ds_read_b32 v{sv}, v{vNs} offset:{no+4}','ns')
        issue(f'ds_read_b32 v{vo}, v{vNo} offset:{no+8}','no')
        packV(1,8)
        if fprio: a(f's_setprio {fprio[1]}')
        for T in (0,2,3,1):
            wait_for([f'u{T}0'])
            a(f'v_mfma_f32_16x16x32_bf16 v[{Z+4*T}:{Z+4*T+3}], v[{XA+4*T}:{XA+4*T+3}], v[{BA}:{BA+3}], 0')
        for T in (0,2,3,1):
            wait_for([f'u{T}256'])
            a(f'v_mfma_f32_16x16x32_bf16 v[{XA+4*T}:{XA+4*T+3}], v[{XB+4*T}:{XB+4*T+3}], v[{BB}:{BB+3}], 0')
        a(f'v_cndmask_b32 v{sv}, v{sv}, 1.0, {mH0}\nv_add_u32 v{vo}, v{vo}, v{vOq}')
        for i in (0,1,4,5,6,7,2,3): a(f'v_cvt_pk_bf16_f32 v{TA+i}, v{Z+2*i}, v{Z+2*i+1}')
        issue(f'ds_write_b128 v{vA}, v[{TA}:{TA+3}]','w0'); issue(f'ds_write_b128 v{vA}, v[{TA+4}:{TA+7}] offset:64','w1')
        for i in (0,1,4,5,6,7,2,3): a(f'v_cvt_pk_bf16_f32 v{TB[i]}, v{XA+2*i}, v{XA+2*i+1}')
        issue(f'ds_write_b128 v{vAq}, v[{TB[0]}:{TB[3]}]','w2'); issue(f'ds_write_b128 v{vAq}, v[{TB[4]}:{TB[7]}] offset:64','w3')
        a(f"""v_mfma_f32_16x16x32_bf16 v[{XB}:{XB+3}], v[{ST[0]}:{ST[0]+3}], v[{TA}:{TA+3}], 0
        v_mfma_f32_16x16x32_bf16 v[{XB+4}:{XB+7}], v[{ST[0]}:{ST[0]+3}], v[{TB[0]}:{TB[3]}], 0
        v_mfma_f32_16x16x32_bf16 v[{XB}:{XB+3}], v[{ST[1]}:{ST[1]+3}], v[{TA+4}:{TA+7}], v[{XB}:{XB+3}]
        v_mfma_f32_16x16x32_bf16 v[{XB+4}:{XB+7}], v[{ST[1]}:{ST[1]+3}], v[{TB[4]}:{TB[7]}], v[{XB+4}:{XB+7}]""")
        for T in range(4):
            o=(0,8,64,72)[T]
            issue(f'ds_read_b64_tr_b16 v[{Z+4*T}:{Z+4*T+1}], v{vTr} offset:{o}',f'o{T}a')
            issue(f'ds_read_b64_tr_b16 v[{Z+4*T+2}:{Z+4*T+3}], v{vTr} offset:{256+o}',f'o{T}b')
        qa,qb,t2,t3=XB+12,XB+13,XB+14,XB+15
        if fprio: a(f's_setprio {fprio[2]}')
        for i in range(8):
            a(f'v_dot2_f32_bf16 v{qa}, v{TA+i}, v{TA+i}, {"0" if i==0 else f"v{qa}"}\nv_dot2_f32_bf16 v{qb}, v{TB[i]}, v{TB[i]}, {"0" if i==0 else f"v{qb}"}')
        a(f"""v_cndmask_b32 v{XB}, v{XB+4}, v{XB}, {mRH}
        v_cndmask_b32 v{XB+1}, v{XB+5}, v{XB+1}, {mRH}
        v_mul_f32 v{t2}, 0x3e000000, v{XB}
        v_permlane32_swap_b32 v{qa}, v{qb}
        v_add_f32 v{qa}, v{qa}, v{qb}
        v_mov_b32 v{qb}, v{qa}
        v_fma_f32 v{t3}, -v{XB}, s55, v{XB+1}
        v_mul_f32 v{XB}, 0x3e000000, v{sv}
        v_permlane16_swap_b32 v{qa}, v{qb}
        v_add_f32 v{qa}, v{qa}, v{qb}
        v_mul_f32 v{XB}, v{XB}, v{XB}
        v_fma_f32 v{qa}, -v{t2}, v{t2}, v{qa}
        v_max_f32 v{qa}, 0, v{qa}
        v_fmaak_f32 v{qa}, v{XB}, v{qa}, {EPS}
        v_rsq_f32 v{qa}, v{qa}
        v_mul_f32 v{t3}, v{sv}, v{t3}
        v_mul_f32 v{t3}, 0x3fb8aa3b, v{t3}
        v_mul_f32 v{qa}, v{qa}, v{t3}""")
        if pair<npairs-1: a(f's_mov_b64 exec, {mRA}\nv_add_u32 v{vA}, 0x200, v{vA}\nv_add_u32 v{vAq}, 0x200, v{vAq}\ns_mov_b64 exec, -1')
        else: a('s_nop 1')
        a(f"""v_max_f32_dpp v{qb}, v{qa}, v{qa} quad_perm:[1,0,3,2] {DPP}
        s_nop 1
        v_max_f32_dpp v{qb}, v{qb}, v{qb} quad_perm:[2,3,0,1] {DPP}
        s_nop 1
        v_max_f32_dpp v{qb}, v{qb}, v{qb} row_half_mirror {DPP}
        v_sub_f32 v{qa}, v{qa}, v{qb}
        v_exp_f32 v{qa}, v{qa}""")
        if pair<npairs-1: a(f's_mov_b64 exec, {mRT}\nv_add_u32 v{vTr}, 0x200, v{vTr}\ns_mov_b64 exec, -1')
        else: a('s_nop 1')
        a(f"""v_add_f32_dpp v{qb}, v{qa}, v{qa} quad_perm:[1,0,3,2] {DPP}
        s_nop 1
        v_add_f32_dpp v{qb}, v{qb}, v{qb} quad_perm:[2,3,0,1] {DPP}
        s_nop 1
        v_add_f32_dpp v{qb}, v{qb}, v{qb} row_half_mirror {DPP}
        v_rcp_f32 v{qb}, v{qb}
        v_mul_f32 v{qa}, v{sv}, v{qa}
        v_mul_f32 v{qa}, v{qa}, v{qb}
        ds_write_b32 v{vBw}, v{qa} offset:{ro}
        ds_read_b128 v[{XB}:{XB+3}], v{vBr} offset:{ro}
        s_waitcnt lgkmcnt(2)""")
        if pair==0: a('s_cmp_eq_u32 s4, 12\ns_cbranch_scc1 f_nd0')
        if pair<npairs-1: dma(pair+1)
        if pair==0: a('f_nd0:')
        if fprio: a(f's_setprio {fprio[4]}')
        a(f"""s_waitcnt lgkmcnt(0)
        s_mov_b64 exec, {mCA}
        v_cvt_pk_bf16_f32 v{BO}, v{XB}, v{XB+1}
        v_cvt_pk_bf16_f32 v{BO+1}, v{XB+2}, v{XB+3}
        s_mov_b64 exec, {mCB}
        v_cvt_pk_bf16_f32 v{BO+2}, v{XB}, v{XB+1}
        v_cvt_pk_bf16_f32 v{BO+3}, v{XB+2}, v{XB+3}
        s_mov_b64 exec, -1
        s_nop 0""")
        for T in range(4):
            a(f'v_mfma_f32_16x16x32_bf16 v[{XA+4*T}:{XA+4*T+3}], v[{Z+4*T}:{Z+4*T+3}], v[{BO}:{BO+3}], 0')
        a('s_nop 4')
        for i in range(8): a(f'v_cvt_pk_bf16_f32 v{XB+8+i}, v{XA+2*i}, v{XA+2*i+1}')
        a(f"""s_mov_b64 exec, s[70:71]
        buffer_store_dwordx4 v[{XB+8}:{XB+11}], v{vo}, s[36:39], 0 offen {OUTPOL}
        buffer_store_dwordx4 v[{XB+12}:{XB+15}], v{vo}, s[36:39], 0 offen offset:64 {OUTPOL}
        s_mov_b64 exec, -1""")
        if pair==0: a('s_cmp_eq_u32 s4, 12\ns_cbranch_scc1 f_done')
    a('f_done:')
    stamp('f')
    if stamps:
        a('s_waitcnt vmcnt(0)')
        stamp('e')
        a(f's_waitcnt lgkmcnt(0)\ns_lshl_b32 s64, s2, 4\ns_add_u32 s64, s64, s4\ns_lshl_b32 s64, s64, 7\ns_add_u32 s64, s64, {DUMP}\nv_mov_b32 v4, s64\ns_mov_b64 exec, 1')
        if dbgst:
            a('v_mov_b32 v6, 0\ns_not_b32 s65, s80\nv_mov_b32 v5, s65\nglobal_atomic_umax v6, v5, s[28:29] offset:8 sc1')
            for i in range(len(stamps)): a(f'v_mov_b32 v5, s{80+2*i}\nglobal_atomic_umax v6, v5, s[28:29] offset:{12+4*i} sc1')
            a('s_or_b32 s65, s2, s4\ns_cbranch_scc1 k_nv\nv_mov_b32 v5, s94\nglobal_store_dword v6, v5, s[28:29] offset:4 sc1\nk_nv:')
        a('v_mov_b32 v5, s94\nglobal_store_dword v4, v5, s[30:31] offset:64')
        for i in range(len(stamps)): a(f'v_mov_b32 v5, s{80+2*i}\nglobal_store_dword v4, v5, s[30:31] offset:{4*i}')
    a('k_end:\ns_endpgm')
    for h in handlers:
        a(f'{h}:\ns_cmp_ge_u32 s78, {RB}\ns_cbranch_scc1 {h}_r\ns_add_u32 s78, s78, 1\ns_barrier\ns_add_u32 s77, s77, s52\ns_cbranch_scc0 {h}\ns_branch {h}_r')
    a(f"""h_slow:
    s_mov_b32 s64, {CAP}
    v_and_b32 v4, 3, v0
    v_lshlrev_b32 v4, 2, v4
    h_sl:""")
    for s_ in range(2):
        a(f"""v_add_u32 v5, s64, v4
        v_add_u32 v6, v5, v{122+s_}
        v_subrev_u32 v6, {CAP}, v6
        v_lshlrev_b32 v6, 2, v6
        v_sub_u32 v5, v{120+s_}, v5
        v_mov_b32 v7, {OOBV}
        buffer_load_dwordx4 v[68:71], v6, s[40:43], s59 offen
        s_waitcnt vmcnt(0)""")
        for r in range(4): a(f'v_cmp_lt_i32 vcc, {r}, v5\ns_nop 1\nv_cndmask_b32 v{68+r}, v7, v{68+r}, vcc')
        for hb in range(4):
            a('s_nop 1')
            for t in range(4):
                a(f'v_add_u32_dpp v7, v{68+t}, v1 quad_perm:[{hb},{hb},{hb},{hb}] {DPP}\nbuffer_load_dwordx4 v[{d0+4*t}:{d0+4*t+3}], v7, s[32:35], 0 offen sc1')
            a('s_waitcnt vmcnt(0)')
            for t in range(4): mf(s_,d0+4*t); a('s_nop 0')
    a('s_add_u32 s64, s64, 16\ns_cmp_lt_u32 s64, s53\ns_cbranch_scc1 h_sl\ns_branch h_slow_r')
    a(f"""k_hx:
    s_cmp_lg_u32 s4, 13
    s_cbranch_scc1 k_end
    v_lshlrev_b32 v2, 21, v7
    v_add_u32 v3, 0x1fff80, v2
    v_cmpx_gt_u32 vcc, 42, v7
    global_load_dword v4, v3, s[30:31] sc1
    v_cmpx_gt_u32 vcc, 4, v7
    global_load_dword v4, v2, s[26:27] sc1
    s_endpgm""")
    vAq=125
    a('f_set:\ns_cmp_eq_u32 s3, 2\ns_cbranch_scc1 f_set2\ns_cmp_eq_u32 s3, 3\ns_cbranch_scc1 f_set3'); late(); late2(); a('s_branch f_setr')
    a('f_set2:'); fsetup(); a('s_branch f_setr')
    a('f_set3:'); fsetup2(); a('s_branch f_setr')
    a('h_def:'); deferred(); a('s_branch h_defr')
    for t in tails: t()
    t=a.text()
    t=t.replace('    PB3\n','    s_barrier\n    s_barrier\n').replace('    PBMID\n',f'    s_cmp_lg_u32 s72, {pa}\n    s_cbranch_scc1 p1_pm\n    s_barrier\np1_pm:\n')
    return t

HDR=open('gather_scatter__hybrid_graph_tf_nagphormer__graph.s.ref').read().split('; Override launch')[0]
def wrap(body):
    return HDR+f'''; @launch grid=(256,1,1) block=(1024,1,1) lds={LDS_BYTES}
.amdgcn_target "amdgcn-amd-amdhsa--gfx950"
.text
.globl {KNAME}
.p2align 8
.type {KNAME},@function
{KNAME}:
'''+body+f'''.section .rodata,"a"
.p2align 6
.amdhsa_kernel {KNAME}
  .amdhsa_next_free_vgpr 128
  .amdhsa_next_free_sgpr 102
  .amdhsa_accum_offset 128
  .amdhsa_group_segment_fixed_size 0
  .amdhsa_kernarg_size 96
  .amdhsa_user_sgpr_count 2
  .amdhsa_user_sgpr_kernarg_segment_ptr 1
  .amdhsa_system_sgpr_workgroup_id_x 1
  .amdhsa_float_denorm_mode_32 3
.end_amdhsa_kernel
'''
if __name__=='__main__':
    import ast
    kw=dict(x.split('=') for x in sys.argv[2:])
    for k in kw:
        try: kw[k]=ast.literal_eval(kw[k])
        except Exception: pass
    if 'stamps' in kw: kw['stamps']=kw['stamps'].split(',')
    open(sys.argv[1],'w').write(wrap(gen(**kw)))
```

```python
import sys
from lay import *
KNAME='gather_scatter__hybrid_graph_tf_nagphormer__graph_kernel'
class Asm:
    def __init__(s): s.l=[]; s.u=0
    def __call__(s,t):
        for x in t.strip('\n').split('\n'):
            x=x.strip()
            if x: s.l.append(x if x.endswith(':') else '    '+x)
    def lab(s,p='L'): s.u+=1; return f'{p}{s.u}'
    def text(s): return '\n'.join(s.l)+'\n'
DPP='row_mask:0xf bank_mask:0xf'
EPS='0x3727c5ac'
OUTPOL='sc1'

def line_calc(a,dst,n,t,u):
    a(f'''v_lshrrev_b32 v{t}, 8, v{n}
    v_mul_u32_u24 v{u}, 205, v{t}
    v_lshl_add_u32 v{dst}, v{t}, 7, v{n}
    v_lshrrev_b32 v{u}, 13, v{u}
    v_lshrrev_b32 v{t}, 1, v{n}
    v_lshl_add_u32 v{dst}, v{u}, 10, v{dst}
    v_bitop3_b32 v{t}, v{t}, v{n}, 64 bitop3:0x80
    v_add_u32 v{dst}, v{dst}, v{t}''')

def rho_calc(a,X,sm,sq,vs,sones):
    a(f'v_dot2_f32_bf16 v{sm}, v{X}, {sones}, 0\nv_dot2_f32_bf16 v{sq}, v{X}, v{X}, 0')
    for i in range(1,4):
        a(f'v_dot2_f32_bf16 v{sm}, v{X+i}, {sones}, v{sm}\nv_dot2_f32_bf16 v{sq}, v{X+i}, v{X+i}, v{sq}')
    a('s_nop 2')
    for m in ('quad_perm:[1,0,3,2]','quad_perm:[2,3,0,1]','row_half_mirror'):
        a(f'v_add_f32_dpp v{sm}, v{sm}, v{sm} {m} {DPP}\nv_add_f32_dpp v{sq}, v{sq}, v{sq} {m} {DPP}\ns_nop 0')
    a(f'''v_mul_f32 v{sm}, 0x3c800000, v{sm}
    v_mul_f32 v{sq}, 0x3c800000, v{sq}
    v_fma_f32 v{sq}, -v{sm}, v{sm}, v{sq}
    v_max_f32 v{sq}, 0, v{sq}''')
    if vs is not None: a(f'v_mul_f32 v{sq}, v{vs}, v{sq}\nv_mul_f32 v{sq}, v{vs}, v{sq}')
    a(f'v_add_f32 v{sq}, {EPS}, v{sq}\nv_rsq_f32 v{sm}, v{sq}\ns_nop 0')
    if vs is not None: a(f'v_mul_f32 v{sm}, v{vs}, v{sm}')

def baraddr(a,base):
    a(f'''s_and_b32 s64, s2, 7
    s_lshr_b32 s65, s64, 2
    s_xor_b32 s65, s65, s63
    s_lshl_b32 s65, s65, 13
    s_lshl_b32 s64, s64, 8
    s_add_u32 s64, s64, s65
    s_add_u32 s56, s64, {base}
    s_xor_b32 s65, s6, s63
    s_lshl_b32 s65, s65, 13
    s_and_b32 s64, s7, 7
    s_lshl_b32 s64, s64, 8
    s_add_u32 s64, s64, s65
    s_mov_b32 s75, {base+4096}
    s_add_u32 s57, s64, s75''')

def bar_l2(a,nm):
    a(f"""s_mov_b64 exec, 0xff
    v_mbcnt_lo_u32_b32 v58, -1, 0
    v_lshrrev_b32 v59, 2, v58
    v_xor_b32 v59, s63, v59
    v_lshlrev_b32 v59, 13, v59
    v_lshl_add_u32 v58, v58, 8, v59
    v_add_u32 v58, s75, v58
    v_mov_b32 v57, s65
    global_atomic_add v58, v57, s[30:31] sc1
    s_mov_b64 exec, 1
    {nm}_np:""")
def bar_poll(a,nm,votes=False):
    a(f"""s_mov_b32 s65, 0
    {nm}_p:
    global_load_dword v58, v56, s[30:31] sc1
    s_waitcnt vmcnt(0)""")
    if votes: a('v_and_b32 v59, 0xff, v58\nv_cmp_gt_u32 vcc, s64, v59')
    else: a('v_cmp_gt_u32 vcc, s64, v58')
    a(f"""s_cbranch_vccz {nm}_pd
    s_add_u32 s65, s65, 1
    s_cmp_lt_u32 s65, 0x800000
    s_cbranch_scc1 {nm}_p
    {nm}_pd:""")
def bar_arrive(a,nm):
    a(f"""v_mov_b32 v56, s56
    v_mov_b32 v57, 1
    global_atomic_add v58, v56, v57, s[30:31] sc0 sc1
    s_lshl_b32 s64, s62, 5
    s_sub_u32 s64, s64, 1
    v_mov_b32 v56, s57
    s_waitcnt vmcnt(0)
    v_readfirstlane_b32 s65, v58
    s_cmp_lg_u32 s65, s64
    s_cbranch_scc1 {nm}_np
    s_mov_b32 s65, 1""")
    bar_l2(a,nm)

def gbarrier(a,nm,pf=None,fill=None):
    a(f's_add_u32 s62, s62, 1\ns_barrier\ns_cmp_lg_u32 s4, 0\ns_cbranch_scc1 {nm}_f')
    a('s_mov_b64 exec, 1')
    bar_arrive(a,nm)
    a('s_lshl_b32 s64, s62, 3')
    bar_poll(a,nm)
    a(f's_mov_b64 exec, -1\ns_branch {nm}_w\n{nm}_f:')
    if pf:
        n0,n1,sl=pf
        def ex(lo,hi):
            m=((1<<(16*hi))-1)^((1<<(16*lo))-1)
            a(f's_mov_b32 exec_lo, {m&0xffffffff:#x}\ns_mov_b32 exec_hi, {m>>32:#x}')
        if n0: ex(0,n0); a('buffer_load_dword v127, v126, s[36:39], 0 offen sc1')
        if n1>n0:
            if sl: a(f's_sleep {sl}')
            ex(n0,n1); a('buffer_load_dword v127, v126, s[36:39], 0 offen sc1')
        a('s_mov_b64 exec, -1')
    a(f"""{nm}_w:
    s_barrier""")

def probe(a,nm,voff,res):
    a(f'v_add_u32 v{voff+1}, 0x2000, v{voff}\nv_mov_b32 v{voff+2}, 0\ns_mov_b32 s66, -1\ns_mov_b32 s67, -1\ns_mov_b32 s72, 0\n{nm}:')
    for s in range(2):
        a(f'''s_memtime s[68:69]
        s_waitcnt lgkmcnt(0)
        global_atomic_add v{voff+3}, v{voff+s}, v{voff+2}, s[30:31] sc0 sc1
        s_waitcnt vmcnt(0)
        s_memtime s[70:71]
        s_waitcnt lgkmcnt(0)
        s_sub_u32 s70, s70, s68
        s_min_u32 s{66+s}, s{66+s}, s70''')
    a(f's_add_u32 s72, s72, 1\ns_cmp_lt_u32 s72, 3\ns_cbranch_scc1 {nm}')
    a(f's_cmp_gt_u32 s66, s67\ns_cselect_b32 s{res}, 1, 0\ns_xor_b32 s{res}, s{res}, s6')

def gen(side=None,xh=0,ent='nt',xnt='',fprio=(0,1,0,2,0),dbgst=False,K=8,R=12,RB=7,pf=(0,1,6),pdrain=True,stop=None,dump=False,stamps=False,npairs=4,stag=0,nprobe=4,xpos=2,xpf=0,pa=2):
    a=Asm()
    if RB is None: RB=R-1
    def stamp(nm):
        if stamps and nm in stamps:
            i=stamps.index(nm); a(f's_memrealtime s[{80+2*i}:{81+2*i}]')
        if stamps and nm+'c' in stamps:
            i=stamps.index(nm+'c'); a(f's_memtime s[{80+2*i}:{81+2*i}]')
    def hstamp(nm):
        if stamps and nm in stamps:
            l=a.lab('hs'); i=stamps.index(nm)
            a(f's_cmp_lg_u32 s3, 4\ns_cbranch_scc1 {l}\ns_memrealtime s[{80+2*i}:{81+2*i}]\n{l}:')
    a(f"""s_cmp_ge_u32 s2, 256
    s_cbranch_scc1 k_end
    s_load_dwordx16 s[8:23], s[0:1], 0
    s_load_dwordx8 s[24:31], s[0:1], 64
    v_lshrrev_b32 v1, 6, v0
    s_and_b32 s5, s2, 7
    v_readfirstlane_b32 s4, v1
    s_lshl_b32 s5, s5, 5
    s_lshr_b32 s3, s2, 3
    s_add_u32 s5, s5, s3
    s_mov_b32 s62, 0
    s_mul_i32 s54, s5, {BS}
    v_lshlrev_b32 v10, 4, v0""")
    stamp('s')
    def wsinit():
        a(f"""s_add_u32 s30, s30, 0x1fffff
        s_addc_u32 s31, s31, 0
        s_and_b32 s30, s30, 0xffe00000
        s_mov_b32 s36, s30
        s_mov_b32 s37, s31
        s_mov_b32 s38, {TBYTES}
        s_mov_b32 s39, 0x20000
        s_add_u32 s40, s30, {SMALL}
        s_addc_u32 s41, s31, 0
        s_mov_b32 s42, {SMALL_BYTES}
        s_mov_b32 s43, 0x20000
        s_getreg_b32 s7, hwreg(HW_REG_XCC_ID, 0, 4)
        s_lshr_b32 s6, s7, 2
        s_mov_b64 s[56:57], 0
        s_mov_b32 s44, s8
        s_mov_b32 s45, s9
        s_mov_b32 s46, {N*128}
        s_mov_b32 s47, 0x20000
        s_add_u32 s96, s30, {5*TSTR}
        s_addc_u32 s97, s31, 0
        s_mov_b32 s98, {TBYTES}
        s_mov_b32 s99, 0x20000
        s_mov_b32 s60, 0
        s_and_b32 s6, s6, 1""")
    def ldsinit(z):
        for k in range(4): a(f'v_mov_b32 v{z+k}, 0\nv_mov_b32 v{z+4+k}, {OOBV}')
        o=f'v[{z+4}:{z+7}]'; zz=f'v[{z}:{z+3}]'
        a(f"""ds_write_b128 v10, {o} offset:{L_LIST}
        v_add_u32 v1, 13312, v10
        ds_write_b128 v1, {o} offset:{L_LIST}
        v_add_u32 v1, 26624, v10
        s_movk_i32 s64, 416
        v_cmpx_gt_u32 vcc, s64, v0
        ds_write_b128 v1, {o} offset:{L_LIST}
        ds_write_b128 v10, {zz} offset:{L_CNT}
        s_movk_i32 s64, 208
        v_cmpx_gt_u32 vcc, s64, v0
        ds_write_b128 v10, v[{z+2}:{z+5}] offset:{L_INFO}
        s_movk_i32 s64, 84
        v_cmpx_gt_u32 vcc, s64, v0
        ds_write_b128 v10, {zz} offset:{L_HIST}
        s_mov_b64 exec, -1""")
    a(f"""s_cmp_ge_u32 s4, 13
    s_cbranch_scc1 p1_help
    v_lshrrev_b32 v2, 3, v0
    v_add_u32 v3, s54, v2
    v_add_u32 v4, 104, v3
    v_and_b32 v5, 7, v0
    v_lshlrev_b32 v5, 4, v5
    v_lshl_add_u32 v6, v3, 7, v5
    v_lshl_add_u32 v7, v4, 7, v5
    v_lshlrev_b32 v8, 1, v3
    v_lshlrev_b32 v9, 1, v4
    s_mul_i32 s55, s2, {CHE*4}
    v_add_u32 v11, s55, v10
    s_add_u32 s55, s55, {CHUNK}
    s_mov_b32 s64, {N}
    v_cmp_gt_u32 s[48:49], s64, v3
    v_cmp_gt_u32 s[50:51], s64, v4
    s_movk_i32 s64, 736
    v_cmp_gt_u32 vcc, s64, v0
    s_and_b64 s[50:51], s[50:51], vcc
    s_movk_i32 s64, 800
    v_cmp_gt_u32 s[52:53], s64, v0
    s_cmp_ge_u32 s2, {NCH}
    s_cselect_b64 s[52:53], 0, s[52:53]
    s_waitcnt lgkmcnt(0)""")
    a(f"""s_mov_b64 exec, s[52:53]
    s_cbranch_execz p1_ne
    global_load_dwordx4 v[12:15], v11, s[12:13] {ent}
    global_load_dwordx4 v[16:19], v11, s[10:11] {ent}
    p1_ne:
""")
    XL=f"""    s_mov_b64 exec, s[48:49]
    s_cbranch_execz p1_nxa
    global_load_dwordx4 v[20:23], v6, s[8:9] {xnt}
    global_load_ushort v28, v8, s[14:15]
    p1_nxa:
    s_mov_b64 exec, s[50:51]
    s_cbranch_execz p1_nxb
    global_load_dwordx4 v[24:27], v7, s[8:9] {xnt}
    global_load_ushort v29, v9, s[14:15]
    p1_nxb:
    s_mov_b64 exec, -1"""
    if xpos==0: a(XL)
    else: a('s_mov_b64 exec, -1')
    wsinit()
    a(f"""s_lshl_b32 s64, s2, 4
    s_add_u32 s64, s64, s4
    s_cmp_lg_u32 s64, {255*16}
    s_cbranch_scc1 p1_nz
    v_and_b32 v40, 15, v0
    v_lshrrev_b32 v41, 4, v0
    v_lshlrev_b32 v40, 8, v40
    v_and_b32 v42, 1, v41
    v_lshrrev_b32 v41, 1, v41
    v_lshl_add_u32 v40, v42, 12, v40
    v_lshl_add_u32 v40, v41, 13, v40
    v_add_u32 v40, {BARP}, v40
    v_mov_b32 v41, 0
    global_store_dword v40, v41, s[30:31] sc1
    v_add_u32 v40, 0x4000, v40
    global_store_dword v40, v41, s[30:31] sc1
    v_add_u32 v40, 0x4000, v40
    global_store_dword v40, v41, s[30:31] sc1
    s_waitcnt vmcnt(0)
    s_mov_b64 exec, 1
    v_mov_b32 v40, 0
    v_mov_b32 v41, 1
    global_store_dword v40, v41, s[28:29] sc1
    s_mov_b64 exec, -1
    p1_nz:""")
    ldsinit(32)
    for n,d in ((3,76),(4,78)):
        line_calc(a,d,n,64,65)
        a(f"""v_lshl_add_u32 v{d}, v{d}, 7, v5
        v_and_b32 v64, 128, v{n}
        v_cmp_ne_u32 vcc, 0, v64
        v_add_u32 v{d+1}, 0x2000, v{d}
        v_cndmask_b32 v{d+1}, v36, v{d+1}, vcc""".replace('v_add_u32 v{0}'.format(d+1),'s_nop 0\nv_add_u32 v{0}'.format(d+1)))
    a('s_waitcnt lgkmcnt(0)\ns_barrier')
    stamp('B1')
    if xpos==1: a(XL)
    a(f"""s_mov_b64 exec, s[52:53]
    s_cbranch_execz p1_e1
    s_movk_i32 s64, -{BS}
    v_mov_b32 v33, 1
""")
    if xpos<2: a('s_cmp_lt_u32 s4, 12\ns_cbranch_scc1 p1_w4\ns_waitcnt vmcnt(2)\np1_w4:\ns_waitcnt vmcnt(4)')
    else: a('s_waitcnt vmcnt(0)')
    stamp('ed')
    for i in range(4):
        d=12+i; b=40+i
        a(f"""v_mul_u32_u24 v30, 85599, v{d}
        v_lshrrev_b32 v{52+i}, 24, v30
        v_lshlrev_b32 v{b}, 2, v{52+i}
        ds_add_rtn_u32 v{48+i}, v{b}, v33 offset:{L_HIST}""")
    a('p1_e1:')
    if xpos==2: a(XL)
    a('s_mov_b64 exec, -1\ns_waitcnt lgkmcnt(0)\ns_barrier')
    stamp('B2')
    a(f"""s_cmp_lg_u32 s4, 0
    s_cbranch_scc1 p1_ns
    ds_read_b128 v[72:75], v10 offset:{L_HIST}
    s_waitcnt lgkmcnt(0)
    v_add_u32 v57, v72, v73
    v_add_u32 v58, v57, v74
    v_add_u32 v59, v58, v75
    v_mov_b32 v60, v59
    s_nop 1""")
    for m in ('row_shr:1','row_shr:2','row_shr:4','row_shr:8'):
        a(f'v_add_u32_dpp v60, v60, v60 {m} {DPP} bound_ctrl:0\ns_nop 1')
    a(f"""v_add_u32_dpp v60, v60, v60 row_bcast:15 row_mask:0xa bank_mask:0xf
    s_nop 1
    v_add_u32_dpp v60, v60, v60 row_bcast:31 row_mask:0xc bank_mask:0xf
    v_sub_u32 v60, v60, v59
    v_add_u32 v61, v60, v72
    v_add_u32 v62, v60, v57
    v_add_u32 v63, v60, v58
    ds_write_b128 v10, v[60:63] offset:{L_HIST}
    v_lshl_or_b32 v56, v72, 16, v60
    v_lshl_or_b32 v57, v73, 16, v61
    v_lshl_or_b32 v58, v74, 16, v62
    v_lshl_or_b32 v59, v75, 16, v63
    s_cmp_ge_u32 s2, {NCH}
    s_cbranch_scc1 p1_ns
    s_lshl_b32 s65, s2, 10
    s_add_u32 s65, s65, {OFFS}
    buffer_store_dwordx4 v[56:59], v10, s[40:43], s65 offen sc1
    p1_ns:""")
    for i in range(4):
        d=12+i; s_=16+i; b=52+i; e=44+i
        a(f"""v_mul_u32_u24 v31, 10700, v{s_}
        v_lshrrev_b32 v30, 5, v{b}
        v_lshrrev_b32 v31, 26, v31
        v_mad_i32_i24 v{d}, v{b}, s64, v{d}
        v_sub_u32 v31, v31, v30
        v_and_b32 v31, 7, v31
        v_lshl_add_u32 v{d}, v{d}, 3, v31""")
        line_calc(a,e,s_,30,31)
        a(f"""v_and_b32 v30, 128, v{s_}
        v_lshl_or_b32 v{e}, v30, 10, v{e}
        v_lshl_or_b32 v{e}, v{d}, 18, v{e}""")
    a('s_waitcnt lgkmcnt(0)\ns_barrier')
    stamp('B3')
    a('s_mov_b64 exec, s[52:53]')
    for i in range(4): a(f'ds_read_b32 v{40+i}, v{40+i} offset:{L_HIST}')
    for i in range(4):
        a(f's_waitcnt lgkmcnt(3)\nv_add_lshl_u32 v{40+i}, v{40+i}, v{48+i}, 2')
        a(f'ds_write_b32 v{40+i}, v{44+i} offset:{L_ESTG}')
    a('s_mov_b64 exec, -1\ns_waitcnt lgkmcnt(0)\ns_barrier')
    a(f"""s_mov_b64 exec, s[52:53]
    s_cbranch_execz p1_e3
    ds_read_b128 v[40:43], v10 offset:{L_ESTG}
    s_waitcnt lgkmcnt(0)
    buffer_store_dwordx4 v[40:43], v10, s[40:43], s55 offen sc1
    p1_e3:
    s_mov_b64 exec, -1""")
    if xpos==3:
        a(XL)
        a('s_cmp_lt_u32 s4, 12\ns_cbranch_scc1 p1_w4\ns_waitcnt vmcnt(2)\np1_w4:\ns_waitcnt vmcnt(4)')
    else: a('s_waitcnt vmcnt(0)')
    stamp('pa')
    a('s_barrier\ns_mov_b32 s66, 0x3f803f80\ns_waitcnt vmcnt(0)')
    for (X,D,n,m,off) in ((20,28,3,48,0),(24,29,4,50,832)):
        l=a.lab('xc')
        a(f's_mov_b64 exec, s[{m}:{m+1}]\ns_cbranch_execz {l}')
        a(f'v_lshlrev_b32 v{D}, 16, v{D}')
        for i in range(4):
            a(f"""v_lshlrev_b32 v64, 16, v{X+i}
            v_and_b32 v65, 0xffff0000, v{X+i}
            v_mul_f32 v64, v{D}, v64
            v_mul_f32 v65, v{D}, v65
            v_cvt_pk_bf16_f32 v{(68 if off==0 else 72)+i}, v64, v65""")
        ad=76 if off==0 else 78
        o=68 if off==0 else 72
        a(f"""buffer_store_dwordx4 v[{o}:{o+3}], v{ad}, s[36:39], 0 offen sc1
        buffer_store_dwordx4 v[{o}:{o+3}], v{ad+1}, s[36:39], 0 offen sc1
        {l}:""")
    for (X,D,n,m,off) in ((20,28,3,48,0),(24,29,4,50,832)):
        l=a.lab('xr')
        a(f's_mov_b64 exec, s[{m}:{m+1}]\ns_cbranch_execz {l}')
        rho_calc(a,X,64,65,None,'s66')
        a(f"""v_mov_b32 v65, v{D}
        v_lshlrev_b32 v66, 3, v2
        ds_write_b64 v66, v[64:65] offset:{L_R0+off}
        {l}:""")
    a('s_mov_b64 exec, -1\ns_branch p1_done')
    a(f"""p1_help:
    v_and_b32 v2, 63, v0
    v_and_b32 v3, 15, v0
    v_bfe_u32 v4, v0, 4, 2
    v_lshrrev_b32 v5, 2, v3
    v_and_b32 v6, 3, v0
    v_lshl_add_u32 v5, v5, 3, v6
    v_lshlrev_b32 v5, 7, v5
    v_lshl_add_u32 v5, v4, 4, v5
    v_add_u32 v7, 0x1000, v5
    s_waitcnt lgkmcnt(0)
    s_cmp_eq_u32 s4, 13
    s_cbranch_scc1 p1_probe
    s_barrier
    s_cmp_eq_u32 s4, 14
    s_cselect_b32 s64, s16, s20
    s_cselect_b32 s65, s17, s21""")
    WA=12; WBx=44; WD=[76,92,108,44]
    for t in range(4):
        for s_ in range(2):
            r=WA+8*t+4*s_
            a(f'global_load_dwordx4 v[{r}:{r+3}], v{5 if t<2 else 7}, s[64:65] offset:{512*(t&1)+64*s_}')
    a('s_cbranch_scc0 p1_wo')
    for t in range(4):
        for s_ in range(2):
            r=WBx+8*t+4*s_
            a(f'global_load_dwordx4 v[{r}:{r+3}], v{5 if t<2 else 7}, s[18:19] offset:{512*(t&1)+64*s_}')
    wsinit()
    XP=f"""v_add_u32 v8, s54, v2
    v_lshlrev_b32 v9, 7, v8
    s_mov_b32 s44, s8
    s_mov_b32 s45, s9
    s_mov_b32 s46, {N*128}
    s_mov_b32 s47, 0x20000
    s_movk_i32 s64, 0x2000
    s_movk_i32 s65, 0x4000
    buffer_load_dword v126, v9, s[44:47], 0 offen {xnt}
    buffer_load_dword v126, v9, s[44:47], s64 offen {xnt}
    buffer_load_dword v126, v9, s[44:47], s65 offen {xnt}
    s_movk_i32 s64, 0x6000
    s_mov_b64 exec, 15
    buffer_load_dword v126, v9, s[44:47], s64 offen {xnt}
    v_lshlrev_b32 v9, 7, v2
    s_lshl_b32 s64, s54, 1
    s_mov_b32 s44, s14
    s_mov_b32 s45, s15
    s_mov_b32 s46, {N*2}
    buffer_load_dword v126, v9, s[44:47], s64 offen {xnt}
    s_mov_b64 exec, -1"""
    if xpf==1: a(XP)
    a('s_barrier')
    if xpf==2: a(XP)
    a(f's_barrier\ns_barrier\ns_barrier\ns_waitcnt vmcnt({5 if xpf else 0})')
    a('s_branch p1_wm\np1_wo:\nv_lshlrev_b32 v8, 4, v2\nv_add_u32 v9, 0x1000, v8')
    for k in range(8):
        a(f'global_load_dwordx4 v[{76+4*k}:{79+4*k}], v{8 if k<4 else 9}, s[22:23] offset:{1024*(k&3)}')
    wsinit()
    a(f"""v_add_u32 v8, {L_WP}, v8
    v_bfe_u32 v9, v0, 2, 2
    v_lshl_add_u32 v9, v4, 3, v9
    v_lshlrev_b32 v9, 7, v9
    v_lshl_add_u32 v9, v6, 4, v9
    v_add_u32 v9, {L_WP}, v9
    s_barrier
    s_barrier
    s_barrier
    s_waitcnt vmcnt(0)""")
    for k in range(8): a(f'ds_write_b128 v8, v[{76+4*k}:{79+4*k}] offset:{1024*k}')
    a('s_waitcnt lgkmcnt(0)')
    for T in range(4):
        for s_ in range(2):
            for hf in range(2):
                r=WBx+8*T+4*s_+2*hf
                a(f'ds_read_b64_tr_b16 v[{r}:{r+1}], v9 offset:{4096*s_+512*hf+64*(T>>1)+8*(T&1)}')
        if T==2: a('s_waitcnt lgkmcnt(8)')
    a('s_waitcnt lgkmcnt(0)\np1_wm:')
    for T in range(4):
        for s_ in range(2):
            for t in range(4):
                d=WD[T]+4*t
                a(f'v_mfma_f32_16x16x32_bf16 v[{d}:{d+3}], v[{WA+8*t+4*s_}:{WA+8*t+4*s_+3}], v[{WBx+8*T+4*s_}:{WBx+8*T+4*s_+3}], '+(f'v[{d}:{d+3}]' if s_ else '0'))
    a('s_nop 7')
    for T in range(4):
        d=WD[T]
        a(f'v_pk_add_f32 v[{20+2*T}:{21+2*T}], v[{d}:{d+1}], v[{d+2}:{d+3}]')
    for k in range(2,8):
        for T in range(4):
            d=WD[T]; a(f'v_pk_add_f32 v[{20+2*T}:{21+2*T}], v[{20+2*T}:{21+2*T}], v[{d+2*k}:{d+2*k+1}]')
    for T in range(4): a(f'v_add_f32 v{12+T}, v{20+2*T}, v{21+2*T}')
    for sw in ('v_permlane16_swap_b32','v_permlane32_swap_b32'):
        for T in range(4): a(f'v_mov_b32 v{16+T}, v{12+T}')
        a('s_nop 1')
        for T in range(4): a(f'{sw} v{12+T}, v{16+T}')
        for T in range(4): a(f'v_add_f32 v{12+T}, v{12+T}, v{16+T}')
    for T in range(4): a(f'v_mul_f32 v{20+2*T}, 0xbc800000, v{12+T}')
    a('s_cmp_eq_u32 s4, 14\ns_cbranch_scc0 p1_wc')
    for k in range(8):
        a(f'v_pk_add_f32 v[{28+2*k}:{29+2*k}], v[{WD[0]+2*k}:{WD[0]+2*k+1}], v[{WD[1]+2*k}:{WD[1]+2*k+1}]')
    for T in (2,3):
        for k in range(8): a(f'v_pk_add_f32 v[{28+2*k}:{29+2*k}], v[{28+2*k}:{29+2*k}], v[{WD[T]+2*k}:{WD[T]+2*k+1}]')
    a('v_add_f32 v12, v20, v22\nv_add_f32 v13, v24, v26\nv_add_f32 v12, v12, v13\ns_nop 1')
    for m in ('quad_perm:[1,0,3,2]','quad_perm:[2,3,0,1]','row_half_mirror','row_mirror'):
        a(f'v_add_f32_dpp v12, v12, v12 {m} {DPP}')
        for k in range(16): a(f'v_add_f32_dpp v{28+k}, v{28+k}, v{28+k} {m} {DPP}')
    a('v_mul_f32 v12, 0xbc800000, v12\nv_mov_b32 v14, 0xbc800000')
    for T in range(4): a(f'v_add_f32 v{20+2*T}, v{20+2*T}, v12')
    for T in range(4):
        for k in range(8):
            d=WD[T]+2*k
            a(f'v_pk_fma_f32 v[{d}:{d+1}], v[{28+2*k}:{29+2*k}], v[14:15], v[{d}:{d+1}] op_sel_hi:[1,0,1]')
    a(f"""p1_wc:
    s_sub_u32 s64, s4, 14
    s_lshl_b32 s64, s64, 13
    s_add_u32 s64, s64, {L_W}
    v_lshlrev_b32 v8, 4, v2
    v_add_u32 v8, s64, v8""")
    for T in range(4):
        for k in range(8):
            d=WD[T]+2*k
            a(f'v_pk_add_f32 v[{d}:{d+1}], v[{d}:{d+1}], v[{20+2*T}:{21+2*T}] op_sel_hi:[1,0]')
        for s_ in range(2):
            d=WD[T]+8*s_
            for k in range(4): a(f'v_cvt_pk_bf16_f32 v{d+k}, v{d+2*k}, v{d+2*k+1}')
            a(f'ds_write_b128 v8, v[{d}:{d+3}] offset:{2048*T+1024*s_}')
    a(f"""s_cmp_eq_u32 s4, 14
    s_cbranch_scc1 p1_done
    s_mov_b64 exec, 1
    v_mov_b32 v56, 0
    global_load_dword v58, v56, s[28:29] sc1
    s_mov_b32 s63, 0
    s_mov_b32 s62, 1""")
    baraddr(a,BARP+16384)
    a(f"""s_mov_b32 s64, 0
    s_waitcnt vmcnt(0)
    s_barrier
    gb0_i:
    v_readfirstlane_b32 s65, v58
    s_cmp_lg_u32 s65, 0
    s_cbranch_scc1 gb0_id
    s_sleep 2
    global_load_dword v58, v56, s[28:29] sc1
    s_add_u32 s64, s64, 1
    s_cmp_lt_u32 s64, 0x400000
    s_waitcnt vmcnt(0)
    s_cbranch_scc1 gb0_i
    gb0_id:""")
    bar_arrive(a,'gb0')
    a('s_mov_b32 s64, 8')
    bar_poll(a,'gb0')
    baraddr(a,BARP+32768)
    a('s_mov_b64 exec, -1\ns_branch p1_done')
    a('p1_probe:')
    wsinit()
    a(f"""s_and_b32 s64, s2, 3
    s_and_b32 s74, s2, 1
    s_lshl_b32 s64, s64, 21
    s_lshr_b32 s65, s2, 2
    s_lshl_b32 s65, s65, 7
    s_add_u32 s64, s64, s65
    s_add_u32 s64, s64, {254*8192}
    v_mov_b32 v40, s64
    v_add_u32 v41, 0x2000, v40
    v_mov_b32 v42, 0
    v_cmp_gt_u32 vcc, 5, v2
    v_add_u32 v45, 37, v2
    v_cmp_eq_u32 s[66:67], 5, v2
    v_cndmask_b32 v45, v45, v2, vcc
    v_cmp_eq_u32 vcc, 8, v2
    v_mov_b32 v46, 0x1fff80
    v_cndmask_b32 v46, v46, 0, s[66:67]
    v_cndmask_b32 v45, v45, 47, vcc
    v_lshl_add_u32 v45, v45, 21, v46
    s_mov_b64 exec, 0x1ff
    global_load_dword v47, v45, s[30:31] sc1
    s_mov_b64 exec, 1
    global_load_dword v47, v42, s[28:29] sc1
    global_atomic_add v43, v40, v42, s[30:31] sc0 sc1
    global_atomic_add v44, v41, v42, s[30:31] sc0 sc1
    s_barrier
    s_barrier
    PB3
    s_mov_b32 s72, 0
    s_mov_b32 s67, 0
    s_waitcnt vmcnt(0)
    p1_pl:
    global_atomic_add v43, v40, v42, s[30:31] sc0 sc1
    global_atomic_add v44, v41, v42, s[30:31] sc0 sc1
    s_waitcnt vmcnt(1)
    s_memtime s[68:69]
    s_waitcnt vmcnt(0)
    s_memtime s[70:71]
    v_swap_b32 v40, v41
    s_waitcnt lgkmcnt(0)
    s_sub_u32 s66, s70, s68
    s_sub_u32 s67, s66, s67
    s_add_u32 s72, s72, 1
    PBMID
    s_cmp_lt_u32 s72, {nprobe}
    s_cbranch_scc1 p1_pl
    s_cmp_gt_i32 s67, 0
    s_cselect_b32 s65, 1, 0
    s_xor_b32 s65, s65, s6
    s_xor_b32 s65, s65, s74
    s_lshl_b32 s65, s65, 8
    s_or_b32 s65, s65, 1
    v_mov_b32 v41, s65
    v_mov_b32 v40, {L_RED}
    ds_write_b32 v40, v41 offset:12
    s_mov_b64 exec, -1""")
    a(f"""p1_done:
    v_lshrrev_b32 v2, 2, v0
    v_and_b32 v3, 3, v0
    v_lshlrev_b32 v70, 10, v2
    s_lshl_b32 s92, s5, 2
    s_add_u32 s92, s92, {OFFS}
    s_movk_i32 s65, {NCH}
    v_cmp_gt_u32 s[48:49], s65, v2
    v_mov_b32 v72, {OOBV}
    v_and_b32 v73, 63, v0
    v_lshlrev_b32 v8, 2, v73
    v_cndmask_b32 v70, v72, v70, s[48:49]
    v_mul_u32_u24 v71, {CHE*4}, v2
    v_lshl_add_u32 v71, v3, 4, v71
    v_add_u32 v71, {CHUNK}, v71
    v_lshlrev_b32 v3, 2, v3
    v_mov_b32 v21, 1
    s_waitcnt vmcnt(0) lgkmcnt(0)""")
    stamp('p1')
    a('s_barrier')
    stamp('b0')
    if stop=='p1': a('s_endpgm')
    a(f"""buffer_load_dword v5, v70, s[40:43], s92 offen sc1
    s_cmp_lg_u32 s4, 15
    s_cbranch_scc1 p2_na
    s_mov_b64 exec, 1
    v_mov_b32 v56, {L_RED}
    ds_read_b32 v57, v56 offset:12
    v_mov_b32 v56, s56
    s_waitcnt lgkmcnt(0)
    global_atomic_add v58, v56, v57, s[30:31] sc0 sc1
    s_mov_b64 exec, -1
    p2_na:
    s_waitcnt vmcnt(0)
    v_and_b32 v9, 0xffff, v5
    v_lshrrev_b32 v11, 16, v5
    v_lshl_add_u32 v4, v9, 2, v71
    v_cndmask_b32 v4, v72, v4, s[48:49]
    buffer_load_dwordx4 v[12:15], v4, s[40:43], 0 offen sc1
    buffer_load_dwordx4 v[16:19], v4, s[40:43], 0 offen offset:64 sc1
    v_sub_u32 v20, v11, v3
    v_mov_b32 v6, v72
    v_mov_b32 v7, v73
    s_cmp_lg_u32 s4, 15
    s_cbranch_scc1 p2_nw
    s_mov_b64 exec, 1
    v_add_u32 v57, v57, v58
    v_mov_b32 v56, s57
    v_readfirstlane_b32 s65, v57
    s_and_b32 s64, s65, 0xff
    s_cmp_lg_u32 s64, 32
    s_cbranch_scc1 gbb_np
    s_sub_u32 s65, s65, 31""")
    bar_l2(a,'gbb')
    a('s_mov_b64 exec, -1\np2_nw:')
    def each_entry(body,regs,base):
        for r,e in enumerate(regs):
            a(f'v_cmpx_lt_i32 vcc, {base[r]}, v20')
            body(e)
        a('s_mov_b64 exec, -1')
    regs=list(range(12,20)); base=[0,1,2,3,16,17,18,19]
    def pass1(regs):
        for k,e in enumerate(regs): a(f'v_lshrrev_b32 v{80+k}, 16, v{e}\nv_and_b32 v{80+k}, 0x1ffc, v{80+k}')
        ad={e:80+k for k,e in enumerate(regs)}
        each_entry(lambda e: a(f'ds_add_u32 v{ad[e]}, v21 offset:{L_CNT}'),regs,base)
    a('s_waitcnt vmcnt(0)')
    stamp('sg')
    pass1(regs)
    def longseg(nm,whole):
        a(f"""v_cmp_lt_i32 vcc, 32, v20
        s_cbranch_vccnz {nm}
        {nm}_d:""")
        def tail():
            a(f"""{nm}:
            v_mov_b32 v23, v20
            v_mov_b32 v24, v4
            {nm}_l:
            v_subrev_u32 v20, 32, v20
            v_add_u32 v24, 128, v24
            v_cmp_lt_i32 vcc, 0, v20
            s_cbranch_vccz {nm}_r
            buffer_load_dwordx4 v[28:31], v24, s[40:43], 0 offen sc1
            buffer_load_dwordx4 v[32:35], v24, s[40:43], 0 offen offset:64 sc1
            s_waitcnt vmcnt(0)""")
            whole(list(range(28,36)))
            a(f"""s_branch {nm}_l
            {nm}_r:
            v_mov_b32 v20, v23""")
            for k,e in enumerate(regs): a(f'v_lshrrev_b32 v{80+k}, 16, v{e}\nv_and_b32 v{80+k}, 0x1ffc, v{80+k}')
            a(f's_branch {nm}_d')
        tails.append(tail)
    tails=[]
    longseg('ls1',pass1)
    a('s_waitcnt lgkmcnt(0)\ns_barrier')
    stamp('c1')
    a(f"""s_cmp_ge_u32 s4, 4
    s_cbranch_scc1 p2_n1
    v_add_u32 v36, s54, v0
    s_mov_b32 s64, {N}
    v_cmp_gt_u32 vcc, s64, v36
    s_movk_i32 s64, {BS}
    v_cmp_gt_u32 s[64:65], s64, v0
    s_and_b64 s[66:67], vcc, s[64:65]
    s_mov_b64 exec, s[66:67]
    v_lshlrev_b32 v37, 5, v0
    v_lshlrev_b32 v38, 3, v0
    ds_read_b128 v[40:43], v37 offset:{L_CNT}
    ds_read_b128 v[44:47], v37 offset:{L_CNT+16}
    ds_read_b64 v[58:59], v38 offset:{L_R0}""")
    line_calc(a,66,36,62,63)
    a(f"""v_lshlrev_b32 v66, 7, v66
    v_and_b32 v62, 128, v36
    v_add_u32 v67, 0x2000, v66
    v_cmp_ne_u32 vcc, 0, v62
    v_mov_b32 v48, 0
    s_waitcnt lgkmcnt(1)
    v_cndmask_b32 v67, v6, v67, vcc
    v_mov_b32 v49, v40
    v_add_u32 v50, v49, v41
    v_add_u32 v51, v50, v42
    v_add_u32 v52, v51, v43
    v_add_u32 v53, v52, v44
    v_add_u32 v54, v53, v45
    v_add_u32 v55, v54, v46
    v_add_u32 v65, v55, v47
    v_min_u32 v57, 63, v65
    v_sub_u32 v57, 63, v57
    v_lshlrev_b32 v57, 2, v57
    ds_add_rtn_u32 v60, v57, v21 offset:{L_DH}
    s_mov_b64 exec, -1
    p2_n1:""")
    def offs(regs):
        for e in regs:
            a(f"""v_bfe_u32 v26, v{e}, 14, 3
            v_lshrrev_b32 v27, 17, v{e}
            v_bfe_u32 v26, s58, v26, 1
            v_and_b32 v{e}, 0x1ffff, v{e}
            v_and_b32 v26, v26, v27
            v_lshl_add_u32 v{e}, v26, 6, v{e}
            v_lshlrev_b32 v{e}, 7, v{e}""")
    a('s_cmp_lg_u32 s4, 15\ns_cbranch_scc1 p2_nq\ns_mov_b64 exec, 1\nv_mov_b32 v56, s57\ns_mov_b32 s64, 8')
    bar_poll(a,'gbb',votes=True)
    a(f"""v_mov_b32 v62, {L_RED}
    ds_write_b32 v62, v58 offset:8
    s_mov_b64 exec, -1
    p2_nq:
    v_mov_b32 v62, {L_RED}
    s_waitcnt lgkmcnt(0)
    s_barrier
    ds_read_b32 v63, v62 offset:8
    ds_read_b32 v61, v8 offset:{L_DH}
    s_waitcnt lgkmcnt(0)
    v_readfirstlane_b32 s60, v63
    s_cmp_ge_u32 s60, 0x8000
    s_cselect_b32 s61, 1, 0
    s_xor_b32 s58, s61, s6
    s_cmp_eq_u32 s58, 0
    s_cselect_b32 s58, 10, 21
    s_cmp_ge_u32 s4, 4
    s_cbranch_scc1 p2_n2
    v_mov_b32 v62, v61
    s_nop 1""")
    for m in ('row_shr:1','row_shr:2','row_shr:4','row_shr:8'):
        a(f'v_add_u32_dpp v62, v62, v62 {m} {DPP} bound_ctrl:0\ns_nop 1')
    a(f"""v_add_u32_dpp v62, v62, v62 row_bcast:15 row_mask:0xa bank_mask:0xf
    s_nop 1
    v_add_u32_dpp v62, v62, v62 row_bcast:31 row_mask:0xc bank_mask:0xf
    v_sub_u32 v62, v62, v61
    ds_bpermute_b32 v62, v57, v62
    s_mov_b64 exec, s[66:67]
    v_or_b32 v64, v59, v0
    s_waitcnt lgkmcnt(0)
    v_add_u32 v60, v60, v62
    v_lshlrev_b32 v61, 20, v60""")
    for j in range(8): a(f'v_or_b32 v{48+j}, v61, v{48+j}')
    a(f"""ds_write_b128 v37, v[48:51] offset:{L_CNT}
    ds_write_b128 v37, v[52:55] offset:{L_CNT+16}
    v_lshlrev_b32 v62, 4, v60
    ds_write_b128 v62, v[64:67] offset:{L_INFO}
    v_lshlrev_b32 v62, 5, v60
    v_add_u32 v62, {L_RHO-65024}, v62
    ds_write_b32 v62, v58 offset:65024
    v_cmp_lt_u32 vcc, {CAP}, v65
    s_and_b64 exec, exec, vcc
    s_cbranch_execz p2_n3
    v_subrev_u32 v56, {CAP}, v65
    v_mov_b32 v62, {L_RED}
    ds_add_rtn_u32 v63, v62, v56
    v_lshlrev_b32 v62, 2, v60
    s_waitcnt lgkmcnt(0)
    ds_write_b32 v62, v63 offset:{L_INF2}
    s_branch p2_n3
    p2_n2:""")
    offs(regs)
    a('p2_n3:\ns_mov_b64 exec, -1')
    a('s_waitcnt lgkmcnt(0)\ns_barrier')
    stamp('nd')
    def pass2(regs,slow):
        cur={e:40+k for k,e in enumerate(regs)}; ad={e:80+k for k,e in enumerate(regs)}
        each_entry(lambda e: a(f'ds_add_rtn_u32 v{cur[e]}, v{ad[e]}, v21 offset:{L_CNT}'),regs,base)
        if not slow:
            a(f"""v_mov_b32 v62, {L_RED}
            ds_read_b32 v63, v62
            s_cmp_ge_u32 s4, 4
            s_cbranch_scc1 p2_o2""")
            offs(regs)
            a(f"""p2_o2:
            s_movk_i32 s64, 160
            s_mov_b32 s65, 0xfffff
            s_waitcnt lgkmcnt(0)
            v_readfirstlane_b32 s59, v63
            s_cmp_lg_u32 s59, 0
            s_cbranch_scc1 p2_ovf""")
            for e in regs:
                a(f"""v_lshrrev_b32 v26, 20, v{cur[e]}
                v_and_b32 v{cur[e]}, s65, v{cur[e]}
                v_mul_u32_u24 v26, s64, v26
                v_lshl_add_u32 v{cur[e]}, v{cur[e]}, 2, v26""")
            each_entry(lambda e: a(f'ds_write_b32 v{cur[e]}, v{e} offset:{L_LIST}'),regs,base)
        else:
            a('s_waitcnt lgkmcnt(0)')
            slow2(regs)
    def slow2(regs):
        cur={e:40+k for k,e in enumerate(regs)}
        for r,e in enumerate(regs):
            l=a.lab('ov')
            a(f"""v_cmp_lt_i32 s[70:71], {base[r]}, v20
            v_lshrrev_b32 v26, 20, v{cur[e]}
            v_and_b32 v25, s65, v{cur[e]}
            v_cmp_gt_u32 vcc, {CAP}, v25
            v_mul_u32_u24 v22, s64, v26
            v_lshl_add_u32 v22, v25, 2, v22
            s_and_b64 exec, s[70:71], vcc
            ds_write_b32 v22, v{e} offset:{L_LIST}
            s_andn2_b64 exec, s[70:71], vcc
            s_cbranch_execz {l}
            v_lshlrev_b32 v26, 2, v26
            ds_read_b32 v26, v26 offset:{L_INF2}
            v_subrev_u32 v25, {CAP}, v25
            s_waitcnt lgkmcnt(0)
            v_add_lshl_u32 v25, v25, v26, 2
            buffer_store_dword v{e}, v25, s[40:43], s59 offen
            {l}:
            s_mov_b64 exec, -1""")
    pass2(regs,False)
    a('p2_ovd:')
    def long2(regs):
        for k,e in enumerate(regs): a(f'v_lshrrev_b32 v{80+k}, 16, v{e}\nv_and_b32 v{80+k}, 0x1ffc, v{80+k}')
        offs(regs); pass2(regs,True)
    longseg('ls2',long2)
    def ovf_tail():
        a(f"""p2_ovf:
        v_cmp_eq_u32 vcc, 0, v3
        s_mov_b64 exec, vcc
        ds_add_u32 v62, v9 offset:4
        s_mov_b64 exec, -1
        s_waitcnt lgkmcnt(0)
        s_barrier
        ds_read_b32 v63, v62 offset:4
        s_waitcnt lgkmcnt(0)
        v_readfirstlane_b32 s59, v63
        s_lshl_b32 s59, s59, 2
        s_add_u32 s59, s59, {OVF}""")
        slow2(regs)
        a('s_branch p2_ovd')
    tails.append(ovf_tail)
    a('s_waitcnt vmcnt(0) lgkmcnt(0)\ns_barrier')
    stamp('c2')
    a('s_cmp_ge_u32 s4, 13\ns_cbranch_scc1 k_hx')
    a(f"""v_mov_b32 v0, v7
    v_lshrrev_b32 v115, 3, v0
    s_lshl_b32 s64, s4, 4
    v_add_u32 v115, s64, v115
    v_and_b32 v114, 3, v0
    v_mul_u32_u24 v6, 160, v115
    v_lshl_add_u32 v7, v114, 3, v6
    v_lshl_add_u32 v6, v114, 4, v6
    ds_read_b128 v[16:19], v6 offset:{L_LIST}
    ds_read_b128 v[26:29], v6 offset:{L_LIST+1280}
    v_lshlrev_b32 v116, 4, v115
    v_and_b32 v1, 7, v0
    v_lshlrev_b32 v1, 4, v1""")
    for s in range(2):
        o=16+10*s
        a(f"""ds_read_b128 v[{100+4*s}:{103+4*s}], v116 offset:{L_INFO+128*s}
        ds_read_b128 v[{o+4}:{o+7}], v6 offset:{L_LIST+1280*s+64}
        ds_read_b64 v[{o+8}:{o+9}], v7 offset:{L_LIST+1280*s+128}""")
    a(f"""s_mov_b32 s32, s36
    s_mov_b32 s33, s37
    s_mov_b32 s34, s38
    s_mov_b32 s35, 0x20000
    s_mov_b32 s3, 1
    v_mov_b32 v126, -1
    s_waitcnt lgkmcnt(6)""")
    stamp('p2')
    def deferred():
        a(f"""v_lshlrev_b32 v116, 2, v115
        ds_read_b32 v122, v116 offset:{L_INF2}
        ds_read_b32 v123, v116 offset:{L_INF2+32}
        v_mov_b32 v6, 0x3f80
        v_mov_b32 v7, 0x3f800000
        v_cmp_eq_u32 s[70:71], 0, v114
        v_cmp_eq_u32 s[64:65], 1, v114
        v_cmp_eq_u32 s[66:67], 2, v114
        v_cmp_eq_u32 s[68:69], 3, v114
        v_cndmask_b32 v2, 0, v6, s[70:71]
        v_cndmask_b32 v3, 0, v6, s[66:67]
        v_cndmask_b32 v2, v2, v7, s[64:65]
        v_cndmask_b32 v3, v3, v7, s[68:69]
        s_movk_i32 s64, {BS}
        v_cmp_gt_u32 s[48:49], s64, v115
        s_movk_i32 s64, {BS-8}
        v_cmp_gt_u32 s[50:51], s64, v115
        v_lshlrev_b32 v116, 7, v115
        v_lshlrev_b32 v117, 5, v115
        v_add_u32 v117, {L_RHO}, v117
        s_waitcnt lgkmcnt(0)
        v_max_u32 v4, v101, v105
        v_mov_b32 v120, v101
        v_mov_b32 v121, v105
        v_max_u32_dpp v4, v4, v4 row_shr:8 {DPP} bound_ctrl:0
        s_nop 1
        v_max_u32_dpp v4, v4, v4 row_bcast:15 row_mask:0xa bank_mask:0xf
        s_nop 1
        v_max_u32_dpp v4, v4, v4 row_bcast:31 row_mask:0xc bank_mask:0xf
        s_nop 1
        v_readlane_b32 s53, v4, 63""")
        for s in range(2):
            i=100+4*s
            a(f"""v_add_u32 v{8+s}, v{i+2}, v1
            v_add_u32 v{10+s}, v{i+3}, v1
            v_and_b32 v4, 0xffff0000, v{i}
            v_mul_f32 v{12+s}, v4, v4
            v_cmp_eq_f32 s[64:65], 0, v4
            v_and_b32 v5, 0xffff, v{i}
            v_add_u32 v5, s54, v5
            v_cndmask_b32 v{124+s}, v4, 1.0, s[64:65]
            v_lshl_add_u32 v{118+s}, v5, 7, v1
            v_cmp_gt_u32 s[64:65], s38, v{i+2}
            v_rcp_f32 v{14+s}, v{124+s}
            s_nop 0
            v_cndmask_b32 v{118+s}, v{i+2}, v{118+s}, s[64:65]""")
        a(f"""s_max_u32 s52, s53, {K//2}
        s_min_u32 s52, s52, {CAP}
        s_add_u32 s36, s36, {TSTR}
        s_addc_u32 s37, s37, 0
        s_mov_b32 s76, 0x3f803f80
        v_lshrrev_b32 v4, 4, v0
        v_lshlrev_b32 v4, 4, v4
        global_load_dwordx4 v[84:87], v4, s[24:25]
        global_load_dwordx4 v[88:91], v4, s[24:25] offset:64""")
    def late():
        a(f"""s_mul_i32 s95, s4, {STG}
        s_add_u32 s95, s95, {L_STAGE}
        s_xor_b32 s63, s61, 1
        s_mov_b32 s62, 0""")
        a('s_cmp_lg_u32 s4, 0\ns_cbranch_scc1 f_nb')
        baraddr(a,BARP)
        if stamps: a('s_mov_b32 s94, s60')
        a('f_nb:')
        if stag>=4: a(f'v_mov_b32 v4, {L_END}\nv_mov_b32 v5, 0\nds_write_b32 v4, v5')
        if pf:
            a(f"""v_lshrrev_b32 v4, 4, v0
            v_lshl_add_u32 v4, v4, 5, s5
            v_and_b32 v4, 0xff, v4
            v_mul_u32_u24 v4, {BS}, v4
            v_and_b32 v5, 15, v0
            s_lshl_b32 s64, s4, 4
            s_sub_u32 s64, s64, 16
            v_add3_u32 v4, v4, v5, s64""")
            line_calc(a,126,4,5,6)
            a(f"""v_lshrrev_b32 v5, 14, v126
            v_bfe_u32 v5, s58, v5, 1
            v_lshrrev_b32 v6, 7, v4
            v_and_b32 v5, v5, v6
            v_lshl_add_u32 v126, v5, 6, v126
            v_lshlrev_b32 v126, 7, v126""")
    def late2():
        for s_ in range(2):
            a(f"""s_mov_b64 exec, s[{48+2*s_}:{49+2*s_}]
            v_lshrrev_b32 v4, 3, v116
            v_add_u32 v4, {L_ND+128*s_}, v4
            v_mov_b32 v52, v{124+s_}
            v_mov_b32 v53, v{14+s_}
            v_sub_u32 v54, v{118+s_}, v1
            v_mov_b32 v55, 0
            ds_write_b128 v4, v[52:55]""")
        a('s_mov_b64 exec, -1')
    if dump:
        deferred()
        a(f's_lshl_b32 s64, s2, 4\ns_add_u32 s64, s64, s4\ns_mul_i32 s64, s64, {40*256}\ns_add_u32 s64, s64, {DUMP}\nv_lshlrev_b32 v4, 2, v0\nv_add_u32 v4, s64, v4')
        for i,r in enumerate(list(range(8,36))+list(range(118,126))):
            a(f'global_store_dword v4, v{r}, s[30:31]\nv_add_u32 v4, 256, v4')
        a('v_mov_b32 v5, s53\nglobal_store_dword v4, v5, s[30:31]\nv_add_u32 v4, 256, v4\nv_mov_b32 v5, s60\nglobal_store_dword v4, v5, s[30:31]\nv_add_u32 v4, 256, v4\nds_read_b32 v5, v117\ns_waitcnt lgkmcnt(0)\nglobal_store_dword v4, v5, s[30:31]')
    if stop=='p2': a('s_endpgm')
    a('h_top:')
    XA=52; XB=68; TA=120; TB=[40,41,42,43,48,49,50,51]; TQ=10; WB=[18,22,26]; Z=10; ST=[84,88]; BA=92; BB=96; BO=100
    vW,vOq,vA,vTr,vRk,vRq,vNd,vNs,vBw,vBr,vNo,vS=range(104,116); vAq=114+11
    mRA,mRT,mVA,mVB,mH0,mRH,mCA,mCB='s[10:11]','s[12:13]','s[14:15]','s[16:17]','s[18:19]','s[20:21]','s[22:23]','s[8:9]'
    t0_,t1_,cq,dq=2,3,4,5; sv=6; vo=7
    def tokaddr(dst,n,h,ch,t1,t2,mask):
        a(f"""v_lshlrev_b32 v{t1}, 4, v{ch}
        v_lshl_add_u32 v{t1}, v{n}, 7, v{t1}
        v_and_b32 v{t2}, 3, v{h}
        v_lshl_add_u32 v{t1}, v{t2}, 6, v{t1}
        v_lshrrev_b32 v{t2}, 2, v{h}
        v_lshl_add_u32 v{t1}, v{t2}, 5, v{t1}
        v_subrev_u32 v{t2}, 1, v{h}
        v_cmp_gt_u32 {mask}, 4, v{t2}
        v_mul_u32_u24 v{t2}, {PL2}, v{t2}
        v_add3_u32 v{t2}, v{t2}, v{t1}, s64
        v_subrev_u32 v{dst}, 4, v{h}
        v_max_i32 v{dst}, 0, v{dst}
        v_lshl_add_u32 v{dst}, v{dst}, 9, v{t1}
        v_add_u32 v{dst}, s95, v{dst}
        v_cndmask_b32 v{dst}, v{dst}, v{t2}, {mask}""")
    J,Q,C3,Q16,H,NN,QH,T1,T2,T3,T4,T5=4,5,6,7,56,57,58,59,60,61,62,63
    def fsetup():
        a(f"""v_and_b32 v{J}, 15, v0
        v_lshrrev_b32 v{Q}, 4, v0
        v_lshlrev_b32 v{Q16}, 4, v{Q}
        s_lshl_b32 s64, s4, 11
        v_and_b32 v{H}, 7, v0
        v_lshrrev_b32 v{NN}, 3, v{J}
        v_bfe_u32 v{T1}, v0, 3, 2
        v_lshl_add_u32 v{T1}, v{T1}, 7, v1
        v_add_u32 v{vS}, s95, v{T1}""")
        tokaddr(vA,NN,H,Q,T1,T2,mRA)
        a(f"""v_lshrrev_b32 v{QH}, 1, v{Q}
        v_and_b32 v{T3}, 1, v{Q}
        v_bfe_u32 v{T4}, v0, 2, 2
        v_lshl_add_u32 v{T3}, v{T3}, 2, v{T4}
        v_and_b32 v{C3}, 3, v0
        v_lshlrev_b32 v{T4}, 8, v{NN}
        v_sub_u32 v{vAq}, v{vA}, v{T4}
        v_add_u32 v{vAq}, 0x180, v{vAq}""")
        tokaddr(vTr,QH,T3,C3,T1,T2,mRT)
        a(f"""v_cmp_eq_u32 {mVA}, v{QH}, v{NN}
        v_cmp_ne_u32 {mVB}, v{QH}, v{NN}
        v_cmp_eq_u32 {mH0}, 0, v{H}
        v_cmp_gt_u32 {mRH}, 2, v{Q}
        v_cmp_gt_u32 s[66:67], 2, v{J}
        s_lshl_b32 s64, s4, 9
        s_add_u32 s64, s64, {L_RHO}
        s_lshl_b32 s65, s4, 8
        s_add_u32 s65, s65, {L_ND}
        v_lshlrev_b32 v{T1}, 2, v{J}
        v_xor_b32 v{T2}, 0x60, v{T1}
        v_add_u32 v{T4}, 64, v{Q16}
        v_cndmask_b32 v{vRk}, v{T4}, v{Q16}, {mVA}
        v_cndmask_b32 v{vRq}, v{T2}, v{T1}, {mVA}
        v_cndmask_b32 v{vBw}, v{T2}, v{T1}, {mRH}
        v_cndmask_b32 v{vBr}, v{T4}, v{Q16}, s[66:67]
        v_lshlrev_b32 v{T1}, 4, v{NN}
        v_xor_b32 v{T2}, 0x30, v{T1}
        v_cndmask_b32 v{vNd}, v{T2}, v{T1}, {mVA}
        v_cndmask_b32 v{vNs}, v{T2}, v{T1}, {mRH}
        v_lshlrev_b32 v{vNo}, 4, v{C3}""")
        for r in (vRk,vRq,vBw,vBr): a(f'v_add_u32 v{r}, s64, v{r}')
        for r in (vNd,vNs,vNo): a(f'v_add_u32 v{r}, s65, v{r}')
    def fsetup2():
        a(f"""v_and_b32 v{J}, 15, v0
        v_lshrrev_b32 v{Q}, 4, v0
        v_lshlrev_b32 v{Q16}, 4, v{Q}
        v_lshrrev_b32 v{QH}, 1, v{Q}
        v_and_b32 v{C3}, 3, v0
        v_lshlrev_b32 v{T1}, 2, v{Q}
        v_sub_u32 v{T2}, v{J}, v{T1}
        v_xor_b32 v{T3}, 8, v{J}
        v_sub_u32 v{T3}, v{T3}, v{T1}
        v_mov_b32 v{T4}, 0x3f80
        v_mov_b32 v{T5}, 0x3f800000""")
        for B_,d in ((BA,T2),(BB,T3)):
            for hf in range(2):
                a(f"""v_cmp_eq_u32 s[66:67], {2*hf}, v{d}
                v_cmp_eq_u32 s[68:69], {2*hf+1}, v{d}
                v_mov_b32 v{B_+2+hf}, 0
                v_cndmask_b32 v{B_+hf}, 0, v{T4}, s[66:67]
                v_cndmask_b32 v{B_+hf}, v{B_+hf}, v{T5}, s[68:69]""")
        for i in range(4): a(f'v_mov_b32 v{BO+i}, 0')
        a(f"""v_cmp_eq_u32 {mCA}, v{J}, v{QH}
        v_add_u32 v{QH}, 2, v{QH}
        v_cmp_eq_u32 {mCB}, v{J}, v{QH}
        v_mov_b32 v{vOq}, v{Q16}
        v_lshlrev_b32 v{vW}, 4, v0
        v_add_u32 v{vW}, {L_W}, v{vW}
        v_cmp_eq_u32 s[66:67], 0, v{C3}
        v_cmp_eq_u32 s[68:69], 1, v{C3}
        v_mov_b32 v{T1}, s76
        v_dot2_f32_bf16 v{T3}, v{ST[0]}, s76, 0""")
        for r in [ST[0]+1,ST[0]+2,ST[0]+3,ST[1],ST[1]+1,ST[1]+2,ST[1]+3]: a(f'v_dot2_f32_bf16 v{T3}, v{r}, s76, v{T3}')
        for b in ST:
            for i in range(4): a(f'v_cndmask_b32 v{b+i}, 0, v{b+i}, s[68:69]\nv_cndmask_b32 v{b+i}, v{b+i}, v{T1}, s[66:67]')
        a(f"""v_readlane_b32 s64, v{T3}, 0
        v_readlane_b32 s65, v{T3}, 16
        v_readlane_b32 s66, v{T3}, 32
        v_readlane_b32 s67, v{T3}, 48
        v_mov_b32 v{T1}, s64
        v_add_f32 v{T1}, s65, v{T1}
        v_add_f32 v{T1}, s66, v{T1}
        v_add_f32 v{T1}, s67, v{T1}
        v_mul_f32 v{T1}, 0x3c800000, v{T1}
        s_mov_b32 s74, 0x3e38aa3b
        v_readfirstlane_b32 s55, v{T1}""")
    acc=[36,44]; d0=52; off=[16,26]; va=[4,5,6,7]
    def mf(s_,sl):
        a(f'v_mfma_f32_4x4x4_16b_bf16 v[{acc[s_]}:{acc[s_]+3}], v[2:3], v[{sl}:{sl+1}], v[{acc[s_]}:{acc[s_]+3}]')
        a(f'v_mfma_f32_4x4x4_16b_bf16 v[{acc[s_]+4}:{acc[s_]+7}], v[2:3], v[{sl+2}:{sl+3}], v[{acc[s_]+4}:{acc[s_]+7}]')
    def dma(pair):
        sl=pair>>1; hf=pair&1
        a(f's_mov_b32 exec_lo, {0 if hf else -1}\ns_mov_b32 exec_hi, {-1 if hf else 0}')
        for (srd,v,o) in ((44,118+sl,0),(96,8+sl,608),(32,8+sl,1184)):
            a(f's_add_u32 m0, s95, {o-512*hf}' if o-512*hf>=0 else f's_sub_u32 m0, s95, {512*hf-o}')
            a(f's_nop 0\nbuffer_load_dwordx4 v{v}, s[{srd}:{srd+3}], 0 offen {"" if srd==44 else "sc1"} lds')
        a('s_mov_b64 exec, -1')
    a(f"""s_cmp_lg_u32 s3, 7
    s_cbranch_scc1 h_nx
""")
    dma(0)
    a('s_setprio 3')
    if stag==1:
        a('s_setprio 3\ns_cmp_ge_u32 s4, 8\ns_cbranch_scc1 h_nx\ns_setprio 2\ns_cmp_ge_u32 s4, 4\ns_cbranch_scc1 h_nx\ns_setprio 1')
    if stag==2: a('s_setprio 3')
    if stag>=4:
        G={4:(8,4,5,9),5:(6,6,7,7),6:(10,5,3,8),7:(9,5,4,8)}[stag]
        a(f'''s_setprio 3
        s_cmp_ge_u32 s4, {G[0]}
        s_cbranch_scc1 h_nx
        s_cmp_ge_u32 s4, {G[1]}
        s_cselect_b32 s64, {G[2]}, {G[3]}
        v_mov_b32 v4, {L_END}
        s_mov_b32 s65, 0
        h_g7:
        ds_read_b32 v5, v4
        s_waitcnt lgkmcnt(0)
        v_readfirstlane_b32 s66, v5
        s_cmp_ge_u32 s66, s64
        s_cbranch_scc1 h_nx
        s_sleep 1
        s_add_u32 s65, s65, 1
        s_cmp_lt_u32 s65, 0x1000000
        s_cbranch_scc1 h_g7''')
    if stag==3:
        a('s_setprio 1\ns_cmp_ge_u32 s4, 8\ns_cbranch_scc1 h_nx\ns_setprio 2\ns_cmp_ge_u32 s4, 4\ns_cbranch_scc1 h_nx\ns_setprio 3')
    a('h_nx:')
    hstamp('hs')
    handlers=[]
    for u in range(CAP//2):
        j=2*u; t0=4*u
        if j<32: q=(j>>2)&3; rb=4*(j>>4)+(j&3)
        else: q=(j-32)>>1; rb=8
        if t0>=K: a(f's_cmp_ge_u32 {j}, s52\ns_cbranch_scc1 h_drain{"" if not pdrain else (u%(K//4))}')
        if u==1:
            a('s_cmp_eq_u32 s3, 1\ns_cbranch_scc1 h_def\nh_defr:')
            for i in range(16): a(f'v_mov_b32 v{36+i}, 0')
            a('s_mov_b32 s77, s52\ns_mov_b32 s78, 0')
            if stag: a(f's_cmp_eq_u32 s3, 7\ns_cselect_b32 s78, {RB}, 0')
        if u>0:
            h=f'h_ev{u}'; a(f's_sub_u32 s77, s77, {2*R}\ns_cbranch_scc1 {h}\n{h}_r:'); handlers.append(h)
        for hh in range(2):
            for s_ in range(2):
                a(f'v_add_u32_dpp v{va[hh*2+s_]}, v{off[s_]+rb+hh}, v1 quad_perm:[{q},{q},{q},{q}] {DPP}')
        if t0>=K:
            a(f's_waitcnt vmcnt({K-4})')
            for hh in range(2):
                for s_ in range(2): mf(s_,d0+4*((t0+hh*2+s_)%K))
        for hh in range(2):
            for s_ in range(2):
                sl=d0+4*((t0+hh*2+s_)%K)
                a(f'buffer_load_dwordx4 v[{sl}:{sl+3}], v{va[hh*2+s_]}, s[32:35], 0 offen sc1')
    if pdrain:
        f0=(CAP//2)%(K//4)
        for v in [f0]+[v for v in range(K//4) if v!=f0]: a(f'h_drain{v}:\ns_mov_b32 s79, {v}\ns_branch h_drain')
    a('h_drain:')
    if stag>=4:
        a(f's_cmp_lg_u32 s3, 7\ns_cbranch_scc1 h_rb\nv_mov_b32 v4, {L_END}\nv_mov_b32 v5, 1\ns_mov_b64 exec, 1\nds_add_u32 v4, v5\ns_mov_b64 exec, -1')
    a(f"""h_rb:
    s_cmp_ge_u32 s78, {RB}
    s_cbranch_scc1 h_rbd
    s_barrier
    s_add_u32 s78, s78, 1
    s_branch h_rb
    h_rbd:""")
    hstamp('hi')
    if pdrain:
        for par in range(1,K//4): a(f's_cmp_eq_u32 s79, {par}\ns_cbranch_scc1 h_dr{par}')
        for par in range(K//4):
            if par: a(f'h_dr{par}:')
            for n in range(K//2):
                a(f's_waitcnt vmcnt({K-2-2*n})')
                for t in (2*n,2*n+1): mf(t%2,d0+4*((t+4*par)%K))
            if par<K//4-1: a('s_branch h_drx')
        a('h_drx:')
        hstamp('hd')
    else:
        a('s_waitcnt vmcnt(0)')
        hstamp('hd')
        for t in range(K): mf(t%2,d0+4*t)
    a(f's_cmp_gt_u32 s53, {CAP}\ns_cbranch_scc1 h_slow\nh_slow_r:\ns_nop 4')
    for s_ in range(2):
        for i in range(4): a(f'v_pk_mul_f32 v[{acc[s_]+2*i}:{acc[s_]+2*i+1}], v[{acc[s_]+2*i}:{acc[s_]+2*i+1}], v[12:13] op_sel:[0,{s_}] op_sel_hi:[1,{s_}]')
        for i in range(4): a(f'v_cvt_pk_bf16_f32 v{acc[s_]+i}, v{acc[s_]+2*i}, v{acc[s_]+2*i+1}')
    a('s_cmp_eq_u32 s3, 7\ns_cbranch_scc1 h_ns')
    for s_ in range(2):
        a(f'buffer_store_dwordx4 v[{acc[s_]}:{acc[s_]+3}], v{8+s_}, s[36:39], 0 offen sc1')
        a(f'buffer_store_dwordx4 v[{acc[s_]}:{acc[s_]+3}], v{10+s_}, s[36:39], 0 offen sc1')
    a(f"""h_ns:
    s_lshl_b32 s64, s3, 2
    s_sub_u32 s66, s3, 1
    s_mul_i32 s66, s66, {PL2}
    s_and_b32 s65, s3, 3
    s_lshl_b32 s65, s65, 6
    s_add_u32 s66, s66, s65
    s_lshr_b32 s65, s3, 2
    s_lshl_b32 s65, s65, 5
    s_add_u32 s66, s66, s65
    v_add_u32 v52, s64, v117
    v_add3_u32 v53, v1, v116, s66""")
    for s_ in range(2):
        l=a.lab('ep'); l2=a.lab('ep')
        rho_calc(a,acc[s_],54,55,14+s_,'s76')
        a(f"""s_mov_b64 exec, s[{48+2*s_}:{49+2*s_}]
        s_cbranch_execz {l}
        ds_write_b32 v52, v54 offset:{256*s_}
        s_cmp_gt_u32 s3, 4
        s_cbranch_scc1 {l}
        ds_write_b128 v53, v[{acc[s_]}:{acc[s_]+3}] offset:{1024*s_}
        {l}:
        s_mov_b64 exec, -1""")
    a('s_cmp_eq_u32 s3, 7\ns_cbranch_scc1 f_top\ns_cmp_le_u32 s3, 3\ns_cbranch_scc1 f_set\nf_setr:\ns_waitcnt vmcnt(0)')
    hstamp('ha')
    if xh:
        a(f'''s_cmp_lg_u32 s3, {xh}
        s_cbranch_scc1 h_nxp
        s_mov_b32 exec_lo, 0x01010101
        s_mov_b32 exec_hi, 0x01010101
        buffer_load_dword v127, v118, s[44:47], 0 offen
        buffer_load_dword v127, v119, s[44:47], 0 offen
        s_mov_b64 exec, -1
        h_nxp:''')
    gbarrier(a,'gb1',pf=pf)
    hstamp('hr')
    a(f"""s_mov_b32 s32, s36
    s_mov_b32 s33, s37
    s_add_u32 s36, s36, {TSTR}
    s_addc_u32 s37, s37, 0
    s_add_u32 s3, s3, 1
    s_branch h_top""")
    a('f_top:')
    a('''s_lshl_b32 s64, s2, 4
    s_add_u32 s64, s64, s4
    s_cmp_lg_u32 s64, 0xffc
    s_cbranch_scc1 h_nc
    v_mov_b32 v4, 0
    s_mov_b64 exec, 1
    global_store_dword v4, v4, s[28:29] sc1
    s_mov_b64 exec, -1
    h_nc:''')
    stamp('h')
    if stop=='hops': a('s_endpgm')
    a(f"""s_mov_b32 exec_lo, 0x01010101
    s_mov_b32 exec_hi, 0x01010101
    buffer_load_dword v117, v118, s[44:47], 0 offen
    buffer_load_dword v117, v8, s[96:99], 0 offen sc1
    buffer_load_dword v117, v8, s[32:35], 0 offen sc1
    buffer_load_dword v117, v119, s[44:47], 0 offen
    buffer_load_dword v117, v9, s[96:99], 0 offen sc1
    buffer_load_dword v117, v9, s[32:35], 0 offen sc1
    s_mov_b64 exec, -1
    s_mov_b32 s36, s26
    s_mov_b32 s37, s27
    s_mov_b32 s38, {N*128}
    s_mov_b32 s70, 0x000f000f
    s_mov_b32 s71, 0x000f000f
    v_mov_b32 v116, v{vAq}
    f_loop:""")
    vAq=116
    stamp('fl')
    order=[(0,T,s_) for T in range(4) for s_ in range(2)]+[(1,T,s_) for T in (0,2,3,1) for s_ in range(2)]
    def pk(op,d,x,y,z=None,bc=False,neg=False):
        m=' op_sel_hi:[1,0]' if bc and z is None else (' op_sel_hi:[1,0,0]' if bc else '')
        if neg: m+=' neg_lo:[0,0,1] neg_hi:[0,0,1]'
        a(f'v_pk_{op}_f32 v[{d}:{d+1}], v[{x}:{x+1}], v[{y}:{y+1}]'+(f', v[{z}:{z+1}]' if z is not None else '')+m)
    for pair in range(npairs):
        q_=[]
        ro=128*pair; no=64*pair
        def wait_for(names):
            idx=max(q_.index(n) for n in names if n in q_) if any(n in q_ for n in names) else -1
            if idx>=0:
                left=len(q_)-idx-1
                a(f's_waitcnt lgkmcnt({left})'); del q_[:idx+1]
        def issue(txt,name): a(txt); q_.append(name)
        u7=36+8*(pair>>1)
        if fprio: a(f's_setprio {fprio[0]}')
        a(f"""s_mov_b32 exec_lo, {0 if pair&1 else -1}
        s_mov_b32 exec_hi, {-1 if pair&1 else 0}
        ds_write_b128 v{vS}, v[{u7}:{u7+3}] offset:1760
        s_mov_b64 exec, -1""")
        issue(f'ds_read_b128 v[{WB[0]}:{WB[0]+3}], v{vW}','f0')
        issue(f'ds_read_b128 v[{WB[1]}:{WB[1]+3}], v{vW} offset:1024','f1')
        issue(f'ds_read_b128 v[{WB[2]}:{WB[2]+3}], v{vW} offset:2048','f2')
        if pair: a('s_waitcnt vmcnt(2)')
        issue(f'ds_read_b128 v[{TA}:{TA+3}], v{vA}','ta0')
        issue(f'ds_read_b128 v[{TQ}:{TQ+3}], v{vAq}','tq0')
        issue(f'ds_read_b128 v[{TA+4}:{TA+7}], v{vA} offset:64','ta1')
        issue(f'ds_read_b128 v[{TQ+4}:{TQ+7}], v{vAq} offset:64','tq1')
        issue(f'ds_read_b128 v[{TB[0]}:{TB[3]}], v{vA} offset:256','tb0')
        issue(f'ds_read_b128 v[{TB[4]}:{TB[7]}], v{vA} offset:320','tb1')
        Sm=TQ; RK=TQ+4
        def packV(T,tro):
            for X_,o in ((XA,0),(XB,256)):
                A=X_+4*T
                a(f'v_cvt_pk_bf16_f32 v{A+3}, v{A+2}, v{A+3}\nv_cvt_pk_bf16_f32 v{A+2}, v{A}, v{A+1}')
                issue(f'ds_read_b64_tr_b16 v[{A}:{A+1}], v{vTr} offset:{o+tro}',f'u{T}{o}')
        for n,(m,T,s_) in enumerate(order):
            b=WB[n%3]
            need=[f'f{n}']
            if n==0: need+=['ta0','tq0']
            if n==1: need+=['ta1','tq1']
            if n==8 and fprio: a(f's_setprio {fprio[3]}')
            wait_for(need)
            for X_,tk in ((XA,TA+4*s_),(XB,TQ+4*s_ if m==0 else TB[4*s_])):
                c=f'v[{X_+4*T}:{X_+4*T+3}]' if s_ else '0'
                if m==0: a(f'v_mfma_f32_16x16x32_bf16 v[{X_+4*T}:{X_+4*T+3}], v[{b}:{b+3}], v[{tk}:{tk+3}], {c}')
                else: a(f'v_mfma_f32_16x16x32_bf16 v[{X_+4*T}:{X_+4*T+3}], v[{tk}:{tk+3}], v[{b}:{b+3}], {c}')
            if n+3<16:
                m2,Tn,s2=order[n+3]
                issue(f'ds_read_b128 v[{b}:{b+3}], v{vW} offset:{8192*m2+2048*Tn+1024*s2}',f'f{n+3}')
            if n==5:
                for X_ in (XA,XB):
                    a(f'v_cvt_pk_bf16_f32 v{X_}, v{X_}, v{X_+1}\nv_cvt_pk_bf16_f32 v{X_+1}, v{X_+2}, v{X_+3}\nv_cvt_pk_bf16_f32 v{X_+2}, v{X_+4}, v{X_+5}\nv_cvt_pk_bf16_f32 v{X_+3}, v{X_+6}, v{X_+7}')
            if n==7:
                wait_for(['tb0','tb1'])
                a(f'v_mfma_f32_16x16x32_bf16 v[{XA+4}:{XA+7}], v[{TA}:{TA+3}], v[{XA}:{XA+3}], 0\nv_mfma_f32_16x16x32_bf16 v[{XB+4}:{XB+7}], v[{TB[0]}:{TB[3]}], v[{XB}:{XB+3}], 0')
                issue(f'ds_read_b128 v[{RK}:{RK+3}], v{vRk} offset:{ro}','rk')
                issue(f'ds_read_b32 v{cq}, v{vRq} offset:{ro}','rq')
                issue(f'ds_read_b32 v{dq}, v{vNd} offset:{no}','nd')
                a('s_nop 0')
                for X_ in (XA,XB):
                    A=X_+8
                    a(f'v_cvt_pk_bf16_f32 v{A}, v{A}, v{A+1}\nv_cvt_pk_bf16_f32 v{A+1}, v{A+2}, v{A+3}\nv_cvt_pk_bf16_f32 v{A+2}, v{A+4}, v{A+5}\nv_cvt_pk_bf16_f32 v{A+3}, v{A+6}, v{A+7}')
                a(f's_nop 0\nv_mfma_f32_16x16x32_bf16 v[{XA+4}:{XA+7}], v[{TA+4}:{TA+7}], v[{XA+8}:{XA+11}], v[{XA+4}:{XA+7}]\nv_mfma_f32_16x16x32_bf16 v[{XB+4}:{XB+7}], v[{TB[4]}:{TB[7]}], v[{XB+8}:{XB+11}], v[{XB+4}:{XB+7}]')
            if n==10:
                wait_for(['rk','rq','nd'])
                a(f's_mov_b64 exec, {mVA}')
                pk('mul',Sm,XA+4,RK); pk('mul',Sm+2,XA+6,RK+2)
                a(f's_mov_b64 exec, {mVB}')
                pk('mul',Sm,XB+4,RK); pk('mul',Sm+2,XB+6,RK+2)
                a(f's_mov_b64 exec, -1\nv_mul_f32 v{cq}, s74, v{cq}\nv_cndmask_b32 v{dq}, v{dq}, 1.0, {mH0}')
                a(f'v_max3_f32 v{t0_}, v{Sm}, v{Sm+1}, v{Sm+2}\nv_max_f32 v{t0_}, v{t0_}, v{Sm+3}\nv_mov_b32 v{t1_}, v{t0_}')
            if n==11:
                a(f'v_permlane16_swap_b32 v{t0_}, v{t1_}\nv_max_f32 v{t0_}, v{t0_}, v{t1_}\nv_mul_f32 v{t0_}, v{cq}, v{t0_}')
                pk('fma',Sm,Sm,cq,t0_,bc=True,neg=True); pk('fma',Sm+2,Sm+2,cq,t0_,bc=True,neg=True)
                for r in range(4): a(f'v_exp_f32 v{Sm+r}, v{Sm+r}')
            if n==12:
                a(f'v_add_f32 v{t0_}, v{Sm}, v{Sm+1}\nv_add_f32 v{t1_}, v{Sm+2}, v{Sm+3}\nv_add_f32 v{t0_}, v{t0_}, v{t1_}\nv_mov_b32 v{t1_}, v{t0_}')
                pk('mul',Sm,Sm,RK); pk('mul',Sm+2,Sm+2,RK+2)
            if n==13:
                a(f'v_permlane16_swap_b32 v{t0_}, v{t1_}\nv_add_f32 v{t0_}, v{t0_}, v{t1_}\nv_rcp_f32 v{t0_}, v{t0_}')
                packV(0,0)
                a(f'v_mul_f32 v{t0_}, v{dq}, v{t0_}')
                pk('mul',Sm,Sm,t0_,bc=True); pk('mul',Sm+2,Sm+2,t0_,bc=True)
            if n==14:
                a(f"""s_mov_b64 exec, {mVA}
                v_cvt_pk_bf16_f32 v{BA+2}, v{Sm}, v{Sm+1}
                v_cvt_pk_bf16_f32 v{BA+3}, v{Sm+2}, v{Sm+3}
                s_mov_b64 exec, {mVB}
                v_cvt_pk_bf16_f32 v{BB+2}, v{Sm}, v{Sm+1}
                v_cvt_pk_bf16_f32 v{BB+3}, v{Sm+2}, v{Sm+3}
                s_mov_b64 exec, -1""")
                packV(2,64)
        packV(3,72)
        issue(f'ds_read_b32 v{sv}, v{vNs} offset:{no+4}','ns')
        issue(f'ds_read_b32 v{vo}, v{vNo} offset:{no+8}','no')
        packV(1,8)
        if fprio: a(f's_setprio {fprio[1]}')
        for T in (0,2,3,1):
            wait_for([f'u{T}0'])
            a(f'v_mfma_f32_16x16x32_bf16 v[{Z+4*T}:{Z+4*T+3}], v[{XA+4*T}:{XA+4*T+3}], v[{BA}:{BA+3}], 0')
        for T in (0,2,3,1):
            wait_for([f'u{T}256'])
            a(f'v_mfma_f32_16x16x32_bf16 v[{XA+4*T}:{XA+4*T+3}], v[{XB+4*T}:{XB+4*T+3}], v[{BB}:{BB+3}], 0')
        a(f'v_cndmask_b32 v{sv}, v{sv}, 1.0, {mH0}\nv_add_u32 v{vo}, v{vo}, v{vOq}')
        for i in (0,1,4,5,6,7,2,3): a(f'v_cvt_pk_bf16_f32 v{TA+i}, v{Z+2*i}, v{Z+2*i+1}')
        issue(f'ds_write_b128 v{vA}, v[{TA}:{TA+3}]','w0'); issue(f'ds_write_b128 v{vA}, v[{TA+4}:{TA+7}] offset:64','w1')
        for i in (0,1,4,5,6,7,2,3): a(f'v_cvt_pk_bf16_f32 v{TB[i]}, v{XA+2*i}, v{XA+2*i+1}')
        issue(f'ds_write_b128 v{vAq}, v[{TB[0]}:{TB[3]}]','w2'); issue(f'ds_write_b128 v{vAq}, v[{TB[4]}:{TB[7]}] offset:64','w3')
        a(f"""v_mfma_f32_16x16x32_bf16 v[{XB}:{XB+3}], v[{ST[0]}:{ST[0]+3}], v[{TA}:{TA+3}], 0
        v_mfma_f32_16x16x32_bf16 v[{XB+4}:{XB+7}], v[{ST[0]}:{ST[0]+3}], v[{TB[0]}:{TB[3]}], 0
        v_mfma_f32_16x16x32_bf16 v[{XB}:{XB+3}], v[{ST[1]}:{ST[1]+3}], v[{TA+4}:{TA+7}], v[{XB}:{XB+3}]
        v_mfma_f32_16x16x32_bf16 v[{XB+4}:{XB+7}], v[{ST[1]}:{ST[1]+3}], v[{TB[4]}:{TB[7]}], v[{XB+4}:{XB+7}]""")
        for T in range(4):
            o=(0,8,64,72)[T]
            issue(f'ds_read_b64_tr_b16 v[{Z+4*T}:{Z+4*T+1}], v{vTr} offset:{o}',f'o{T}a')
            issue(f'ds_read_b64_tr_b16 v[{Z+4*T+2}:{Z+4*T+3}], v{vTr} offset:{256+o}',f'o{T}b')
        qa,qb,t2,t3=XB+12,XB+13,XB+14,XB+15
        if fprio: a(f's_setprio {fprio[2]}')
        for i in range(8):
            a(f'v_dot2_f32_bf16 v{qa}, v{TA+i}, v{TA+i}, {"0" if i==0 else f"v{qa}"}\nv_dot2_f32_bf16 v{qb}, v{TB[i]}, v{TB[i]}, {"0" if i==0 else f"v{qb}"}')
        a(f"""v_cndmask_b32 v{XB}, v{XB+4}, v{XB}, {mRH}
        v_cndmask_b32 v{XB+1}, v{XB+5}, v{XB+1}, {mRH}
        v_mul_f32 v{t2}, 0x3e000000, v{XB}
        v_permlane32_swap_b32 v{qa}, v{qb}
        v_add_f32 v{qa}, v{qa}, v{qb}
        v_mov_b32 v{qb}, v{qa}
        v_fma_f32 v{t3}, -v{XB}, s55, v{XB+1}
        v_mul_f32 v{XB}, 0x3e000000, v{sv}
        v_permlane16_swap_b32 v{qa}, v{qb}
        v_add_f32 v{qa}, v{qa}, v{qb}
        v_mul_f32 v{XB}, v{XB}, v{XB}
        v_fma_f32 v{qa}, -v{t2}, v{t2}, v{qa}
        v_max_f32 v{qa}, 0, v{qa}
        v_fmaak_f32 v{qa}, v{XB}, v{qa}, {EPS}
        v_rsq_f32 v{qa}, v{qa}
        v_mul_f32 v{t3}, v{sv}, v{t3}
        v_mul_f32 v{t3}, 0x3fb8aa3b, v{t3}
        v_mul_f32 v{qa}, v{qa}, v{t3}""")
        if pair<npairs-1: a(f's_mov_b64 exec, {mRA}\nv_add_u32 v{vA}, 0x200, v{vA}\nv_add_u32 v{vAq}, 0x200, v{vAq}\ns_mov_b64 exec, -1')
        else: a('s_nop 1')
        a(f"""v_max_f32_dpp v{qb}, v{qa}, v{qa} quad_perm:[1,0,3,2] {DPP}
        s_nop 1
        v_max_f32_dpp v{qb}, v{qb}, v{qb} quad_perm:[2,3,0,1] {DPP}
        s_nop 1
        v_max_f32_dpp v{qb}, v{qb}, v{qb} row_half_mirror {DPP}
        v_sub_f32 v{qa}, v{qa}, v{qb}
        v_exp_f32 v{qa}, v{qa}""")
        if pair<npairs-1: a(f's_mov_b64 exec, {mRT}\nv_add_u32 v{vTr}, 0x200, v{vTr}\ns_mov_b64 exec, -1')
        else: a('s_nop 1')
        a(f"""v_add_f32_dpp v{qb}, v{qa}, v{qa} quad_perm:[1,0,3,2] {DPP}
        s_nop 1
        v_add_f32_dpp v{qb}, v{qb}, v{qb} quad_perm:[2,3,0,1] {DPP}
        s_nop 1
        v_add_f32_dpp v{qb}, v{qb}, v{qb} row_half_mirror {DPP}
        v_rcp_f32 v{qb}, v{qb}
        v_mul_f32 v{qa}, v{sv}, v{qa}
        v_mul_f32 v{qa}, v{qa}, v{qb}
        ds_write_b32 v{vBw}, v{qa} offset:{ro}
        ds_read_b128 v[{XB}:{XB+3}], v{vBr} offset:{ro}
        s_waitcnt lgkmcnt(2)""")
        if pair==0: a('s_cmp_eq_u32 s4, 12\ns_cbranch_scc1 f_nd0')
        if pair<npairs-1: dma(pair+1)
        if pair==0: a('f_nd0:')
        if fprio: a(f's_setprio {fprio[4]}')
        a(f"""s_waitcnt lgkmcnt(0)
        s_mov_b64 exec, {mCA}
        v_cvt_pk_bf16_f32 v{BO}, v{XB}, v{XB+1}
        v_cvt_pk_bf16_f32 v{BO+1}, v{XB+2}, v{XB+3}
        s_mov_b64 exec, {mCB}
        v_cvt_pk_bf16_f32 v{BO+2}, v{XB}, v{XB+1}
        v_cvt_pk_bf16_f32 v{BO+3}, v{XB+2}, v{XB+3}
        s_mov_b64 exec, -1
        s_nop 0""")
        for T in range(4):
            a(f'v_mfma_f32_16x16x32_bf16 v[{XA+4*T}:{XA+4*T+3}], v[{Z+4*T}:{Z+4*T+3}], v[{BO}:{BO+3}], 0')
        a('s_nop 4')
        for i in range(8): a(f'v_cvt_pk_bf16_f32 v{XB+8+i}, v{XA+2*i}, v{XA+2*i+1}')
        a(f"""s_mov_b64 exec, s[70:71]
        buffer_store_dwordx4 v[{XB+8}:{XB+11}], v{vo}, s[36:39], 0 offen {OUTPOL}
        buffer_store_dwordx4 v[{XB+12}:{XB+15}], v{vo}, s[36:39], 0 offen offset:64 {OUTPOL}
        s_mov_b64 exec, -1""")
        if pair==0: a('s_cmp_eq_u32 s4, 12\ns_cbranch_scc1 f_done')
    a('f_done:')
    stamp('f')
    if side is not None:
        a('s_waitcnt vmcnt(0)')
        stamp('e')
        a('s_waitcnt lgkmcnt(0)')
        if side=='xcc':
            a('s_and_b32 s64, s2, 7\ns_cmp_lg_u32 s64, s7\ns_cselect_b32 s64, 5000, 0')
        elif side=='zero': a('s_mov_b32 s64, 0')
        else:
            a('s_sub_u32 s64, s82, s80\ns_lshl_b32 s64, s64, 2\ns_cmp_lg_u32 s2, 100\ns_cselect_b32 s64, 0, s64')
        a('s_add_u32 s64, s64, 15000\nsd_l:\ns_memrealtime s[66:67]\ns_waitcnt lgkmcnt(0)\ns_sub_u32 s66, s66, s80\ns_cmp_lt_u32 s66, s64\ns_cbranch_scc1 sd_l\ns_endpgm')
    if stamps:
        a('s_waitcnt vmcnt(0)')
        stamp('e')
        a(f's_waitcnt lgkmcnt(0)\ns_lshl_b32 s64, s2, 4\ns_add_u32 s64, s64, s4\ns_lshl_b32 s64, s64, 7\ns_add_u32 s64, s64, {DUMP}\nv_mov_b32 v4, s64\ns_mov_b64 exec, 1')
        if dbgst:
            a('v_mov_b32 v6, 0\ns_not_b32 s65, s80\nv_mov_b32 v5, s65\nglobal_atomic_umax v6, v5, s[28:29] offset:8 sc1')
            for i in range(len(stamps)): a(f'v_mov_b32 v5, s{80+2*i}\nglobal_atomic_umax v6, v5, s[28:29] offset:{12+4*i} sc1')
            a('s_or_b32 s65, s2, s4\ns_cbranch_scc1 k_nv\nv_mov_b32 v5, s94\nglobal_store_dword v6, v5, s[28:29] offset:4 sc1\nk_nv:')
        a('v_mov_b32 v5, s94\nglobal_store_dword v4, v5, s[30:31] offset:64')
        for i in range(len(stamps)): a(f'v_mov_b32 v5, s{80+2*i}\nglobal_store_dword v4, v5, s[30:31] offset:{4*i}')
    a('k_end:\ns_endpgm')
    for h in handlers:
        a(f'{h}:\ns_cmp_ge_u32 s78, {RB}\ns_cbranch_scc1 {h}_r\ns_add_u32 s78, s78, 1\ns_barrier\ns_add_u32 s77, s77, s52\ns_cbranch_scc0 {h}\ns_branch {h}_r')
    a(f"""h_slow:
    s_mov_b32 s64, {CAP}
    v_and_b32 v4, 3, v0
    v_lshlrev_b32 v4, 2, v4
    h_sl:""")
    for s_ in range(2):
        a(f"""v_add_u32 v5, s64, v4
        v_add_u32 v6, v5, v{122+s_}
        v_subrev_u32 v6, {CAP}, v6
        v_lshlrev_b32 v6, 2, v6
        v_sub_u32 v5, v{120+s_}, v5
        v_mov_b32 v7, {OOBV}
        buffer_load_dwordx4 v[68:71], v6, s[40:43], s59 offen
        s_waitcnt vmcnt(0)""")
        for r in range(4): a(f'v_cmp_lt_i32 vcc, {r}, v5\ns_nop 1\nv_cndmask_b32 v{68+r}, v7, v{68+r}, vcc')
        for hb in range(4):
            a('s_nop 1')
            for t in range(4):
                a(f'v_add_u32_dpp v7, v{68+t}, v1 quad_perm:[{hb},{hb},{hb},{hb}] {DPP}\nbuffer_load_dwordx4 v[{d0+4*t}:{d0+4*t+3}], v7, s[32:35], 0 offen sc1')
            a('s_waitcnt vmcnt(0)')
            for t in range(4): mf(s_,d0+4*t); a('s_nop 0')
    a('s_add_u32 s64, s64, 16\ns_cmp_lt_u32 s64, s53\ns_cbranch_scc1 h_sl\ns_branch h_slow_r')
    a(f"""k_hx:
    s_cmp_lg_u32 s4, 13
    s_cbranch_scc1 k_end
    v_lshlrev_b32 v2, 21, v7
    v_add_u32 v3, 0x1fff80, v2
    v_cmpx_gt_u32 vcc, 42, v7
    global_load_dword v4, v3, s[30:31] sc1
    v_cmpx_gt_u32 vcc, 4, v7
    global_load_dword v4, v2, s[26:27] sc1
    s_endpgm""")
    vAq=125
    a('f_set:\ns_cmp_eq_u32 s3, 2\ns_cbranch_scc1 f_set2\ns_cmp_eq_u32 s3, 3\ns_cbranch_scc1 f_set3'); late(); late2(); a('s_branch f_setr')
    a('f_set2:'); fsetup(); a('s_branch f_setr')
    a('f_set3:'); fsetup2(); a('s_branch f_setr')
    a('h_def:'); deferred(); a('s_branch h_defr')
    for t in tails: t()
    t=a.text()
    t=t.replace('    PB3\n','    s_barrier\n    s_barrier\n').replace('    PBMID\n',f'    s_cmp_lg_u32 s72, {pa}\n    s_cbranch_scc1 p1_pm\n    s_barrier\np1_pm:\n')
    return t

HDR=open('gather_scatter__hybrid_graph_tf_nagphormer__graph.s.ref').read().split('; Override launch')[0]
def wrap(body):
    return HDR+f'''; @launch grid=(256,1,1) block=(1024,1,1) lds={LDS_BYTES}
.amdgcn_target "amdgcn-amd-amdhsa--gfx950"
.text
.globl {KNAME}
.p2align 8
.type {KNAME},@function
{KNAME}:
'''+body+f'''.section .rodata,"a"
.p2align 6
.amdhsa_kernel {KNAME}
  .amdhsa_next_free_vgpr 128
  .amdhsa_next_free_sgpr 102
  .amdhsa_accum_offset 128
  .amdhsa_group_segment_fixed_size 0
  .amdhsa_kernarg_size 96
  .amdhsa_user_sgpr_count 2
  .amdhsa_user_sgpr_kernarg_segment_ptr 1
  .amdhsa_system_sgpr_workgroup_id_x 1
  .amdhsa_float_denorm_mode_32 3
.end_amdhsa_kernel
'''
if __name__=='__main__':
    import ast
    kw=dict(x.split('=') for x in sys.argv[2:])
    for k in kw:
        try: kw[k]=ast.literal_eval(kw[k])
        except Exception: pass
    if 'stamps' in kw: kw['stamps']=kw['stamps'].split(',')
    open(sys.argv[1],'w').write(wrap(gen(**kw)))
```

```python
import sys
from lay import *
KNAME='gather_scatter__hybrid_graph_tf_nagphormer__graph_kernel'
class Asm:
    def __init__(s): s.l=[]; s.u=0
    def __call__(s,t):
        for x in t.strip('\n').split('\n'):
            x=x.strip()
            if x: s.l.append(x if x.endswith(':') else '    '+x)
    def lab(s,p='L'): s.u+=1; return f'{p}{s.u}'
    def text(s): return '\n'.join(s.l)+'\n'
DPP='row_mask:0xf bank_mask:0xf'
EPS='0x3727c5ac'
OUTPOL='sc1'

def line_calc(a,dst,n,t,u):
    a(f'''v_lshrrev_b32 v{t}, 8, v{n}
    v_mul_u32_u24 v{u}, 205, v{t}
    v_lshl_add_u32 v{dst}, v{t}, 7, v{n}
    v_lshrrev_b32 v{u}, 13, v{u}
    v_lshrrev_b32 v{t}, 1, v{n}
    v_lshl_add_u32 v{dst}, v{u}, 10, v{dst}
    v_bitop3_b32 v{t}, v{t}, v{n}, 64 bitop3:0x80
    v_add_u32 v{dst}, v{dst}, v{t}''')

def rho_calc(a,X,sm,sq,vs,sones):
    a(f'v_dot2_f32_bf16 v{sm}, v{X}, {sones}, 0\nv_dot2_f32_bf16 v{sq}, v{X}, v{X}, 0')
    for i in range(1,4):
        a(f'v_dot2_f32_bf16 v{sm}, v{X+i}, {sones}, v{sm}\nv_dot2_f32_bf16 v{sq}, v{X+i}, v{X+i}, v{sq}')
    a('s_nop 2')
    for m in ('quad_perm:[1,0,3,2]','quad_perm:[2,3,0,1]','row_half_mirror'):
        a(f'v_add_f32_dpp v{sm}, v{sm}, v{sm} {m} {DPP}\nv_add_f32_dpp v{sq}, v{sq}, v{sq} {m} {DPP}\ns_nop 0')
    a(f'''v_mul_f32 v{sm}, 0x3c800000, v{sm}
    v_mul_f32 v{sq}, 0x3c800000, v{sq}
    v_fma_f32 v{sq}, -v{sm}, v{sm}, v{sq}
    v_max_f32 v{sq}, 0, v{sq}''')
    if vs is not None: a(f'v_mul_f32 v{sq}, v{vs}, v{sq}\nv_mul_f32 v{sq}, v{vs}, v{sq}')
    a(f'v_add_f32 v{sq}, {EPS}, v{sq}\nv_rsq_f32 v{sm}, v{sq}\ns_nop 0')
    if vs is not None: a(f'v_mul_f32 v{sm}, v{vs}, v{sm}')

def baraddr(a,base):
    a(f'''s_and_b32 s64, s2, 7
    s_lshr_b32 s65, s64, 2
    s_xor_b32 s65, s65, s63
    s_lshl_b32 s65, s65, 13
    s_lshl_b32 s64, s64, 8
    s_add_u32 s64, s64, s65
    s_add_u32 s56, s64, {base}
    s_xor_b32 s65, s6, s63
    s_lshl_b32 s65, s65, 13
    s_and_b32 s64, s7, 7
    s_lshl_b32 s64, s64, 8
    s_add_u32 s64, s64, s65
    s_mov_b32 s75, {base+4096}
    s_add_u32 s57, s64, s75''')

def bar_l2(a,nm):
    a(f"""s_mov_b64 exec, 0xff
    v_mbcnt_lo_u32_b32 v58, -1, 0
    v_lshrrev_b32 v59, 2, v58
    v_xor_b32 v59, s63, v59
    v_lshlrev_b32 v59, 13, v59
    v_lshl_add_u32 v58, v58, 8, v59
    v_add_u32 v58, s75, v58
    v_mov_b32 v57, s65
    global_atomic_add v58, v57, s[30:31] sc1
    s_mov_b64 exec, 1
    {nm}_np:""")
def bar_poll(a,nm,votes=False):
    a(f"""s_mov_b32 s65, 0
    {nm}_p:
    global_load_dword v58, v56, s[30:31] sc1
    s_waitcnt vmcnt(0)""")
    if votes: a('v_and_b32 v59, 0xff, v58\nv_cmp_gt_u32 vcc, s64, v59')
    else: a('v_cmp_gt_u32 vcc, s64, v58')
    a(f"""s_cbranch_vccz {nm}_pd
    s_add_u32 s65, s65, 1
    s_cmp_lt_u32 s65, 0x800000
    s_cbranch_scc1 {nm}_p
    {nm}_pd:""")
def bar_arrive(a,nm):
    a(f"""v_mov_b32 v56, s56
    v_mov_b32 v57, 1
    global_atomic_add v58, v56, v57, s[30:31] sc0 sc1
    s_lshl_b32 s64, s62, 5
    s_sub_u32 s64, s64, 1
    v_mov_b32 v56, s57
    s_waitcnt vmcnt(0)
    v_readfirstlane_b32 s65, v58
    s_cmp_lg_u32 s65, s64
    s_cbranch_scc1 {nm}_np
    s_mov_b32 s65, 1""")
    bar_l2(a,nm)

def gbarrier(a,nm,pf=None,fill=None):
    a(f's_add_u32 s62, s62, 1\ns_barrier\ns_cmp_lg_u32 s4, 0\ns_cbranch_scc1 {nm}_f')
    a('s_mov_b64 exec, 1')
    bar_arrive(a,nm)
    a('s_lshl_b32 s64, s62, 3')
    bar_poll(a,nm)
    a(f's_mov_b64 exec, -1\ns_branch {nm}_w\n{nm}_f:')
    if pf:
        n0,n1,sl=pf
        def ex(lo,hi):
            m=((1<<(16*hi))-1)^((1<<(16*lo))-1)
            a(f's_mov_b32 exec_lo, {m&0xffffffff:#x}\ns_mov_b32 exec_hi, {m>>32:#x}')
        if n0: ex(0,n0); a('buffer_load_dword v127, v126, s[36:39], 0 offen sc1')
        if n1>n0:
            if sl: a(f's_sleep {sl}')
            ex(n0,n1); a('buffer_load_dword v127, v126, s[36:39], 0 offen sc1')
        a('s_mov_b64 exec, -1')
    a(f"""{nm}_w:
    s_barrier""")

def probe(a,nm,voff,res):
    a(f'v_add_u32 v{voff+1}, 0x2000, v{voff}\nv_mov_b32 v{voff+2}, 0\ns_mov_b32 s66, -1\ns_mov_b32 s67, -1\ns_mov_b32 s72, 0\n{nm}:')
    for s in range(2):
        a(f'''s_memtime s[68:69]
        s_waitcnt lgkmcnt(0)
        global_atomic_add v{voff+3}, v{voff+s}, v{voff+2}, s[30:31] sc0 sc1
        s_waitcnt vmcnt(0)
        s_memtime s[70:71]
        s_waitcnt lgkmcnt(0)
        s_sub_u32 s70, s70, s68
        s_min_u32 s{66+s}, s{66+s}, s70''')
    a(f's_add_u32 s72, s72, 1\ns_cmp_lt_u32 s72, 3\ns_cbranch_scc1 {nm}')
    a(f's_cmp_gt_u32 s66, s67\ns_cselect_b32 s{res}, 1, 0\ns_xor_b32 s{res}, s{res}, s6')

def gen(side=None,xh=0,ent='nt',xnt='',fprio=(0,1,0,2,0),dbgst=False,K=8,R=12,RB=7,pf=(0,1,6),pdrain=True,stop=None,dump=False,stamps=False,npairs=4,stag=0,nprobe=4,xpos=2,xpf=0,pa=2):
    a=Asm()
    if RB is None: RB=R-1
    def stamp(nm):
        if stamps and nm in stamps:
            i=stamps.index(nm); a(f's_memrealtime s[{80+2*i}:{81+2*i}]')
        if stamps and nm+'c' in stamps:
            i=stamps.index(nm+'c'); a(f's_memtime s[{80+2*i}:{81+2*i}]')
    def hstamp(nm):
        if stamps and nm in stamps:
            l=a.lab('hs'); i=stamps.index(nm)
            a(f's_cmp_lg_u32 s3, 4\ns_cbranch_scc1 {l}\ns_memrealtime s[{80+2*i}:{81+2*i}]\n{l}:')
    a(f"""s_cmp_ge_u32 s2, 256
    s_cbranch_scc1 k_end
    s_load_dwordx16 s[8:23], s[0:1], 0
    s_load_dwordx8 s[24:31], s[0:1], 64
    v_lshrrev_b32 v1, 6, v0
    s_and_b32 s5, s2, 7
    v_readfirstlane_b32 s4, v1
    s_lshl_b32 s5, s5, 5
    s_lshr_b32 s3, s2, 3
    s_add_u32 s5, s5, s3
    s_mov_b32 s62, 0
    s_mul_i32 s54, s5, {BS}
    v_lshlrev_b32 v10, 4, v0""")
    stamp('s')
    def wsinit():
        a(f"""s_add_u32 s30, s30, 0x1fffff
        s_addc_u32 s31, s31, 0
        s_and_b32 s30, s30, 0xffe00000
        s_mov_b32 s36, s30
        s_mov_b32 s37, s31
        s_mov_b32 s38, {TBYTES}
        s_mov_b32 s39, 0x20000
        s_add_u32 s40, s30, {SMALL}
        s_addc_u32 s41, s31, 0
        s_mov_b32 s42, {SMALL_BYTES}
        s_mov_b32 s43, 0x20000
        s_getreg_b32 s7, hwreg(HW_REG_XCC_ID, 0, 4)
        s_lshr_b32 s6, s7, 2
        s_mov_b64 s[56:57], 0
        s_mov_b32 s44, s8
        s_mov_b32 s45, s9
        s_mov_b32 s46, {N*128}
        s_mov_b32 s47, 0x20000
        s_add_u32 s96, s30, {5*TSTR}
        s_addc_u32 s97, s31, 0
        s_mov_b32 s98, {TBYTES}
        s_mov_b32 s99, 0x20000
        s_mov_b32 s60, 0
        s_and_b32 s6, s6, 1""")
    def ldsinit(z):
        for k in range(4): a(f'v_mov_b32 v{z+k}, 0\nv_mov_b32 v{z+4+k}, {OOBV}')
        o=f'v[{z+4}:{z+7}]'; zz=f'v[{z}:{z+3}]'
        a(f"""ds_write_b128 v10, {o} offset:{L_LIST}
        v_add_u32 v1, 13312, v10
        ds_write_b128 v1, {o} offset:{L_LIST}
        v_add_u32 v1, 26624, v10
        s_movk_i32 s64, 416
        v_cmpx_gt_u32 vcc, s64, v0
        ds_write_b128 v1, {o} offset:{L_LIST}
        ds_write_b128 v10, {zz} offset:{L_CNT}
        s_movk_i32 s64, 208
        v_cmpx_gt_u32 vcc, s64, v0
        ds_write_b128 v10, v[{z+2}:{z+5}] offset:{L_INFO}
        s_movk_i32 s64, 84
        v_cmpx_gt_u32 vcc, s64, v0
        ds_write_b128 v10, {zz} offset:{L_HIST}
        s_mov_b64 exec, -1""")
    a(f"""s_cmp_ge_u32 s4, 13
    s_cbranch_scc1 p1_help
    v_lshrrev_b32 v2, 3, v0
    v_add_u32 v3, s54, v2
    v_add_u32 v4, 104, v3
    v_and_b32 v5, 7, v0
    v_lshlrev_b32 v5, 4, v5
    v_lshl_add_u32 v6, v3, 7, v5
    v_lshl_add_u32 v7, v4, 7, v5
    v_lshlrev_b32 v8, 1, v3
    v_lshlrev_b32 v9, 1, v4
    s_mul_i32 s55, s2, {CHE*4}
    v_add_u32 v11, s55, v10
    s_add_u32 s55, s55, {CHUNK}
    s_mov_b32 s64, {N}
    v_cmp_gt_u32 s[48:49], s64, v3
    v_cmp_gt_u32 s[50:51], s64, v4
    s_movk_i32 s64, 736
    v_cmp_gt_u32 vcc, s64, v0
    s_and_b64 s[50:51], s[50:51], vcc
    s_movk_i32 s64, 800
    v_cmp_gt_u32 s[52:53], s64, v0
    s_cmp_ge_u32 s2, {NCH}
    s_cselect_b64 s[52:53], 0, s[52:53]
    s_waitcnt lgkmcnt(0)""")
    a(f"""s_mov_b64 exec, s[52:53]
    s_cbranch_execz p1_ne
    global_load_dwordx4 v[12:15], v11, s[12:13] {ent}
    global_load_dwordx4 v[16:19], v11, s[10:11] {ent}
    p1_ne:
""")
    XL=f"""    s_mov_b64 exec, s[48:49]
    s_cbranch_execz p1_nxa
    global_load_dwordx4 v[20:23], v6, s[8:9] {xnt}
    global_load_ushort v28, v8, s[14:15]
    p1_nxa:
    s_mov_b64 exec, s[50:51]
    s_cbranch_execz p1_nxb
    global_load_dwordx4 v[24:27], v7, s[8:9] {xnt}
    global_load_ushort v29, v9, s[14:15]
    p1_nxb:
    s_mov_b64 exec, -1"""
    if xpos==0: a(XL)
    else: a('s_mov_b64 exec, -1')
    wsinit()
    a(f"""s_lshl_b32 s64, s2, 4
    s_add_u32 s64, s64, s4
    s_cmp_lg_u32 s64, {255*16}
    s_cbranch_scc1 p1_nz
    v_and_b32 v40, 15, v0
    v_lshrrev_b32 v41, 4, v0
    v_lshlrev_b32 v40, 8, v40
    v_and_b32 v42, 1, v41
    v_lshrrev_b32 v41, 1, v41
    v_lshl_add_u32 v40, v42, 12, v40
    v_lshl_add_u32 v40, v41, 13, v40
    v_add_u32 v40, {BARP}, v40
    v_mov_b32 v41, 0
    global_store_dword v40, v41, s[30:31] sc1
    v_add_u32 v40, 0x4000, v40
    global_store_dword v40, v41, s[30:31] sc1
    v_add_u32 v40, 0x4000, v40
    global_store_dword v40, v41, s[30:31] sc1
    s_waitcnt vmcnt(0)
    s_mov_b64 exec, 1
    v_mov_b32 v40, 0
    v_mov_b32 v41, 1
    global_store_dword v40, v41, s[28:29] sc1
    s_mov_b64 exec, -1
    p1_nz:""")
    ldsinit(32)
    for n,d in ((3,76),(4,78)):
        line_calc(a,d,n,64,65)
        a(f"""v_lshl_add_u32 v{d}, v{d}, 7, v5
        v_and_b32 v64, 128, v{n}
        v_cmp_ne_u32 vcc, 0, v64
        v_add_u32 v{d+1}, 0x2000, v{d}
        v_cndmask_b32 v{d+1}, v36, v{d+1}, vcc""".replace('v_add_u32 v{0}'.format(d+1),'s_nop 0\nv_add_u32 v{0}'.format(d+1)))
    a('s_waitcnt lgkmcnt(0)\ns_barrier')
    stamp('B1')
    if xpos==1: a(XL)
    a(f"""s_mov_b64 exec, s[52:53]
    s_cbranch_execz p1_e1
    s_movk_i32 s64, -{BS}
    v_mov_b32 v33, 1
""")
    if xpos<2: a('s_cmp_lt_u32 s4, 12\ns_cbranch_scc1 p1_w4\ns_waitcnt vmcnt(2)\np1_w4:\ns_waitcnt vmcnt(4)')
    else: a('s_waitcnt vmcnt(0)')
    stamp('ed')
    for i in range(4):
        d=12+i; b=40+i
        a(f"""v_mul_u32_u24 v30, 85599, v{d}
        v_lshrrev_b32 v{52+i}, 24, v30
        v_lshlrev_b32 v{b}, 2, v{52+i}
        ds_add_rtn_u32 v{48+i}, v{b}, v33 offset:{L_HIST}""")
    a('p1_e1:')
    if xpos==2: a(XL)
    a('s_mov_b64 exec, -1\ns_waitcnt lgkmcnt(0)\ns_barrier')
    stamp('B2')
    a(f"""s_cmp_lg_u32 s4, 0
    s_cbranch_scc1 p1_ns
    ds_read_b128 v[72:75], v10 offset:{L_HIST}
    s_waitcnt lgkmcnt(0)
    v_add_u32 v57, v72, v73
    v_add_u32 v58, v57, v74
    v_add_u32 v59, v58, v75
    v_mov_b32 v60, v59
    s_nop 1""")
    for m in ('row_shr:1','row_shr:2','row_shr:4','row_shr:8'):
        a(f'v_add_u32_dpp v60, v60, v60 {m} {DPP} bound_ctrl:0\ns_nop 1')
    a(f"""v_add_u32_dpp v60, v60, v60 row_bcast:15 row_mask:0xa bank_mask:0xf
    s_nop 1
    v_add_u32_dpp v60, v60, v60 row_bcast:31 row_mask:0xc bank_mask:0xf
    v_sub_u32 v60, v60, v59
    v_add_u32 v61, v60, v72
    v_add_u32 v62, v60, v57
    v_add_u32 v63, v60, v58
    ds_write_b128 v10, v[60:63] offset:{L_HIST}
    v_lshl_or_b32 v56, v72, 16, v60
    v_lshl_or_b32 v57, v73, 16, v61
    v_lshl_or_b32 v58, v74, 16, v62
    v_lshl_or_b32 v59, v75, 16, v63
    s_cmp_ge_u32 s2, {NCH}
    s_cbranch_scc1 p1_ns
    s_lshl_b32 s65, s2, 10
    s_add_u32 s65, s65, {OFFS}
    buffer_store_dwordx4 v[56:59], v10, s[40:43], s65 offen sc1
    p1_ns:""")
    for i in range(4):
        d=12+i; s_=16+i; b=52+i; e=44+i
        a(f"""v_mul_u32_u24 v31, 10700, v{s_}
        v_lshrrev_b32 v30, 5, v{b}
        v_lshrrev_b32 v31, 26, v31
        v_mad_i32_i24 v{d}, v{b}, s64, v{d}
        v_sub_u32 v31, v31, v30
        v_and_b32 v31, 7, v31
        v_lshl_add_u32 v{d}, v{d}, 3, v31""")
        line_calc(a,e,s_,30,31)
        a(f"""v_and_b32 v30, 128, v{s_}
        v_lshl_or_b32 v{e}, v30, 10, v{e}
        v_lshl_or_b32 v{e}, v{d}, 18, v{e}""")
    a('s_waitcnt lgkmcnt(0)\ns_barrier')
    stamp('B3')
    a('s_mov_b64 exec, s[52:53]')
    for i in range(4): a(f'ds_read_b32 v{40+i}, v{40+i} offset:{L_HIST}')
    for i in range(4):
        a(f's_waitcnt lgkmcnt(3)\nv_add_lshl_u32 v{40+i}, v{40+i}, v{48+i}, 2')
        a(f'ds_write_b32 v{40+i}, v{44+i} offset:{L_ESTG}')
    a('s_mov_b64 exec, -1\ns_waitcnt lgkmcnt(0)\ns_barrier')
    a(f"""s_mov_b64 exec, s[52:53]
    s_cbranch_execz p1_e3
    ds_read_b128 v[40:43], v10 offset:{L_ESTG}
    s_waitcnt lgkmcnt(0)
    buffer_store_dwordx4 v[40:43], v10, s[40:43], s55 offen sc1
    p1_e3:
    s_mov_b64 exec, -1""")
    if xpos==3:
        a(XL)
        a('s_cmp_lt_u32 s4, 12\ns_cbranch_scc1 p1_w4\ns_waitcnt vmcnt(2)\np1_w4:\ns_waitcnt vmcnt(4)')
    else: a('s_waitcnt vmcnt(0)')
    stamp('pa')
    a('s_barrier\ns_mov_b32 s66, 0x3f803f80\ns_waitcnt vmcnt(0)')
    for (X,D,n,m,off) in ((20,28,3,48,0),(24,29,4,50,832)):
        l=a.lab('xc')
        a(f's_mov_b64 exec, s[{m}:{m+1}]\ns_cbranch_execz {l}')
        a(f'v_lshlrev_b32 v{D}, 16, v{D}')
        for i in range(4):
            a(f"""v_lshlrev_b32 v64, 16, v{X+i}
            v_and_b32 v65, 0xffff0000, v{X+i}
            v_mul_f32 v64, v{D}, v64
            v_mul_f32 v65, v{D}, v65
            v_cvt_pk_bf16_f32 v{(68 if off==0 else 72)+i}, v64, v65""")
        ad=76 if off==0 else 78
        o=68 if off==0 else 72
        a(f"""buffer_store_dwordx4 v[{o}:{o+3}], v{ad}, s[36:39], 0 offen sc1
        buffer_store_dwordx4 v[{o}:{o+3}], v{ad+1}, s[36:39], 0 offen sc1
        {l}:""")
    for (X,D,n,m,off) in ((20,28,3,48,0),(24,29,4,50,832)):
        l=a.lab('xr')
        a(f's_mov_b64 exec, s[{m}:{m+1}]\ns_cbranch_execz {l}')
        rho_calc(a,X,64,65,None,'s66')
        a(f"""v_mov_b32 v65, v{D}
        v_lshlrev_b32 v66, 3, v2
        ds_write_b64 v66, v[64:65] offset:{L_R0+off}
        {l}:""")
    a('s_mov_b64 exec, -1\ns_branch p1_done')
    a(f"""p1_help:
    v_and_b32 v2, 63, v0
    v_and_b32 v3, 15, v0
    v_bfe_u32 v4, v0, 4, 2
    v_lshrrev_b32 v5, 2, v3
    v_and_b32 v6, 3, v0
    v_lshl_add_u32 v5, v5, 3, v6
    v_lshlrev_b32 v5, 7, v5
    v_lshl_add_u32 v5, v4, 4, v5
    v_add_u32 v7, 0x1000, v5
    s_waitcnt lgkmcnt(0)
    s_cmp_eq_u32 s4, 13
    s_cbranch_scc1 p1_probe
    s_barrier
    s_cmp_eq_u32 s4, 14
    s_cselect_b32 s64, s16, s20
    s_cselect_b32 s65, s17, s21""")
    WA=12; WBx=44; WD=[76,92,108,44]
    for t in range(4):
        for s_ in range(2):
            r=WA+8*t+4*s_
            a(f'global_load_dwordx4 v[{r}:{r+3}], v{5 if t<2 else 7}, s[64:65] offset:{512*(t&1)+64*s_}')
    a('s_cbranch_scc0 p1_wo')
    for t in range(4):
        for s_ in range(2):
            r=WBx+8*t+4*s_
            a(f'global_load_dwordx4 v[{r}:{r+3}], v{5 if t<2 else 7}, s[18:19] offset:{512*(t&1)+64*s_}')
    wsinit()
    XP=f"""v_add_u32 v8, s54, v2
    v_lshlrev_b32 v9, 7, v8
    s_mov_b32 s44, s8
    s_mov_b32 s45, s9
    s_mov_b32 s46, {N*128}
    s_mov_b32 s47, 0x20000
    s_movk_i32 s64, 0x2000
    s_movk_i32 s65, 0x4000
    buffer_load_dword v126, v9, s[44:47], 0 offen {xnt}
    buffer_load_dword v126, v9, s[44:47], s64 offen {xnt}
    buffer_load_dword v126, v9, s[44:47], s65 offen {xnt}
    s_movk_i32 s64, 0x6000
    s_mov_b64 exec, 15
    buffer_load_dword v126, v9, s[44:47], s64 offen {xnt}
    v_lshlrev_b32 v9, 7, v2
    s_lshl_b32 s64, s54, 1
    s_mov_b32 s44, s14
    s_mov_b32 s45, s15
    s_mov_b32 s46, {N*2}
    buffer_load_dword v126, v9, s[44:47], s64 offen {xnt}
    s_mov_b64 exec, -1"""
    if xpf==1: a(XP)
    a('s_barrier')
    if xpf==2: a(XP)
    a(f's_barrier\ns_barrier\ns_barrier\ns_waitcnt vmcnt({5 if xpf else 0})')
    a('s_branch p1_wm\np1_wo:\nv_lshlrev_b32 v8, 4, v2\nv_add_u32 v9, 0x1000, v8')
    for k in range(8):
        a(f'global_load_dwordx4 v[{76+4*k}:{79+4*k}], v{8 if k<4 else 9}, s[22:23] offset:{1024*(k&3)}')
    wsinit()
    a(f"""v_add_u32 v8, {L_WP}, v8
    v_bfe_u32 v9, v0, 2, 2
    v_lshl_add_u32 v9, v4, 3, v9
    v_lshlrev_b32 v9, 7, v9
    v_lshl_add_u32 v9, v6, 4, v9
    v_add_u32 v9, {L_WP}, v9
    s_barrier
    s_barrier
    s_barrier
    s_waitcnt vmcnt(0)""")
    for k in range(8): a(f'ds_write_b128 v8, v[{76+4*k}:{79+4*k}] offset:{1024*k}')
    a('s_waitcnt lgkmcnt(0)')
    for T in range(4):
        for s_ in range(2):
            for hf in range(2):
                r=WBx+8*T+4*s_+2*hf
                a(f'ds_read_b64_tr_b16 v[{r}:{r+1}], v9 offset:{4096*s_+512*hf+64*(T>>1)+8*(T&1)}')
        if T==2: a('s_waitcnt lgkmcnt(8)')
    a('s_waitcnt lgkmcnt(0)\np1_wm:')
    for T in range(4):
        for s_ in range(2):
            for t in range(4):
                d=WD[T]+4*t
                a(f'v_mfma_f32_16x16x32_bf16 v[{d}:{d+3}], v[{WA+8*t+4*s_}:{WA+8*t+4*s_+3}], v[{WBx+8*T+4*s_}:{WBx+8*T+4*s_+3}], '+(f'v[{d}:{d+3}]' if s_ else '0'))
    a('s_nop 7')
    for T in range(4):
        d=WD[T]
        a(f'v_pk_add_f32 v[{20+2*T}:{21+2*T}], v[{d}:{d+1}], v[{d+2}:{d+3}]')
    for k in range(2,8):
        for T in range(4):
            d=WD[T]; a(f'v_pk_add_f32 v[{20+2*T}:{21+2*T}], v[{20+2*T}:{21+2*T}], v[{d+2*k}:{d+2*k+1}]')
    for T in range(4): a(f'v_add_f32 v{12+T}, v{20+2*T}, v{21+2*T}')
    for sw in ('v_permlane16_swap_b32','v_permlane32_swap_b32'):
        for T in range(4): a(f'v_mov_b32 v{16+T}, v{12+T}')
        a('s_nop 1')
        for T in range(4): a(f'{sw} v{12+T}, v{16+T}')
        for T in range(4): a(f'v_add_f32 v{12+T}, v{12+T}, v{16+T}')
    for T in range(4): a(f'v_mul_f32 v{20+2*T}, 0xbc800000, v{12+T}')
    a('s_cmp_eq_u32 s4, 14\ns_cbranch_scc0 p1_wc')
    for k in range(8):
        a(f'v_pk_add_f32 v[{28+2*k}:{29+2*k}], v[{WD[0]+2*k}:{WD[0]+2*k+1}], v[{WD[1]+2*k}:{WD[1]+2*k+1}]')
    for T in (2,3):
        for k in range(8): a(f'v_pk_add_f32 v[{28+2*k}:{29+2*k}], v[{28+2*k}:{29+2*k}], v[{WD[T]+2*k}:{WD[T]+2*k+1}]')
    a('v_add_f32 v12, v20, v22\nv_add_f32 v13, v24, v26\nv_add_f32 v12, v12, v13\ns_nop 1')
    for m in ('quad_perm:[1,0,3,2]','quad_perm:[2,3,0,1]','row_half_mirror','row_mirror'):
        a(f'v_add_f32_dpp v12, v12, v12 {m} {DPP}')
        for k in range(16): a(f'v_add_f32_dpp v{28+k}, v{28+k}, v{28+k} {m} {DPP}')
    a('v_mul_f32 v12, 0xbc800000, v12\nv_mov_b32 v14, 0xbc800000')
    for T in range(4): a(f'v_add_f32 v{20+2*T}, v{20+2*T}, v12')
    for T in range(4):
        for k in range(8):
            d=WD[T]+2*k
            a(f'v_pk_fma_f32 v[{d}:{d+1}], v[{28+2*k}:{29+2*k}], v[14:15], v[{d}:{d+1}] op_sel_hi:[1,0,1]')
    a(f"""p1_wc:
    s_sub_u32 s64, s4, 14
    s_lshl_b32 s64, s64, 13
    s_add_u32 s64, s64, {L_W}
    v_lshlrev_b32 v8, 4, v2
    v_add_u32 v8, s64, v8""")
    for T in range(4):
        for k in range(8):
            d=WD[T]+2*k
            a(f'v_pk_add_f32 v[{d}:{d+1}], v[{d}:{d+1}], v[{20+2*T}:{21+2*T}] op_sel_hi:[1,0]')
        for s_ in range(2):
            d=WD[T]+8*s_
            for k in range(4): a(f'v_cvt_pk_bf16_f32 v{d+k}, v{d+2*k}, v{d+2*k+1}')
            a(f'ds_write_b128 v8, v[{d}:{d+3}] offset:{2048*T+1024*s_}')
    a(f"""s_cmp_eq_u32 s4, 14
    s_cbranch_scc1 p1_done
    s_mov_b64 exec, 1
    v_mov_b32 v56, 0
    global_load_dword v58, v56, s[28:29] sc1
    s_mov_b32 s63, 0
    s_mov_b32 s62, 1""")
    baraddr(a,BARP+16384)
    a(f"""s_mov_b32 s64, 0
    s_waitcnt vmcnt(0)
    s_barrier
    gb0_i:
    v_readfirstlane_b32 s65, v58
    s_cmp_lg_u32 s65, 0
    s_cbranch_scc1 gb0_id
    s_sleep 2
    global_load_dword v58, v56, s[28:29] sc1
    s_add_u32 s64, s64, 1
    s_cmp_lt_u32 s64, 0x400000
    s_waitcnt vmcnt(0)
    s_cbranch_scc1 gb0_i
    gb0_id:""")
    bar_arrive(a,'gb0')
    a('s_mov_b32 s64, 8')
    bar_poll(a,'gb0')
    baraddr(a,BARP+32768)
    a('s_mov_b64 exec, -1\ns_branch p1_done')
    a('p1_probe:')
    wsinit()
    a(f"""s_and_b32 s64, s2, 3
    s_and_b32 s74, s2, 1
    s_lshl_b32 s64, s64, 21
    s_lshr_b32 s65, s2, 2
    s_lshl_b32 s65, s65, 7
    s_add_u32 s64, s64, s65
    s_add_u32 s64, s64, {254*8192}
    v_mov_b32 v40, s64
    v_add_u32 v41, 0x2000, v40
    v_mov_b32 v42, 0
    v_cmp_gt_u32 vcc, 5, v2
    v_add_u32 v45, 37, v2
    v_cmp_eq_u32 s[66:67], 5, v2
    v_cndmask_b32 v45, v45, v2, vcc
    v_cmp_eq_u32 vcc, 8, v2
    v_mov_b32 v46, 0x1fff80
    v_cndmask_b32 v46, v46, 0, s[66:67]
    v_cndmask_b32 v45, v45, 47, vcc
    v_lshl_add_u32 v45, v45, 21, v46
    s_mov_b64 exec, 0x1ff
    global_load_dword v47, v45, s[30:31] sc1
    s_mov_b64 exec, 1
    global_load_dword v47, v42, s[28:29] sc1
    global_atomic_add v43, v40, v42, s[30:31] sc0 sc1
    global_atomic_add v44, v41, v42, s[30:31] sc0 sc1
    s_barrier
    s_barrier
    PB3
    s_mov_b32 s72, 0
    s_mov_b32 s67, 0
    s_waitcnt vmcnt(0)
    p1_pl:
    global_atomic_add v43, v40, v42, s[30:31] sc0 sc1
    global_atomic_add v44, v41, v42, s[30:31] sc0 sc1
    s_waitcnt vmcnt(1)
    s_memtime s[68:69]
    s_waitcnt vmcnt(0)
    s_memtime s[70:71]
    v_swap_b32 v40, v41
    s_waitcnt lgkmcnt(0)
    s_sub_u32 s66, s70, s68
    s_sub_u32 s67, s66, s67
    s_add_u32 s72, s72, 1
    PBMID
    s_cmp_lt_u32 s72, {nprobe}
    s_cbranch_scc1 p1_pl
    s_cmp_gt_i32 s67, 0
    s_cselect_b32 s65, 1, 0
    s_xor_b32 s65, s65, s6
    s_xor_b32 s65, s65, s74
    s_lshl_b32 s65, s65, 8
    s_or_b32 s65, s65, 1
    v_mov_b32 v41, s65
    v_mov_b32 v40, {L_RED}
    ds_write_b32 v40, v41 offset:12
    s_mov_b64 exec, -1""")
    a(f"""p1_done:
    v_lshrrev_b32 v2, 2, v0
    v_and_b32 v3, 3, v0
    v_lshlrev_b32 v70, 10, v2
    s_lshl_b32 s92, s5, 2
    s_add_u32 s92, s92, {OFFS}
    s_movk_i32 s65, {NCH}
    v_cmp_gt_u32 s[48:49], s65, v2
    v_mov_b32 v72, {OOBV}
    v_and_b32 v73, 63, v0
    v_lshlrev_b32 v8, 2, v73
    v_cndmask_b32 v70, v72, v70, s[48:49]
    v_mul_u32_u24 v71, {CHE*4}, v2
    v_lshl_add_u32 v71, v3, 4, v71
    v_add_u32 v71, {CHUNK}, v71
    v_lshlrev_b32 v3, 2, v3
    v_mov_b32 v21, 1
    s_waitcnt vmcnt(0) lgkmcnt(0)""")
    stamp('p1')
    a('s_barrier')
    stamp('b0')
    if stop=='p1': a('s_endpgm')
    a(f"""buffer_load_dword v5, v70, s[40:43], s92 offen sc1
    s_cmp_lg_u32 s4, 15
    s_cbranch_scc1 p2_na
    s_mov_b64 exec, 1
    v_mov_b32 v56, {L_RED}
    ds_read_b32 v57, v56 offset:12
    v_mov_b32 v56, s56
    s_waitcnt lgkmcnt(0)
    global_atomic_add v58, v56, v57, s[30:31] sc0 sc1
    s_mov_b64 exec, -1
    p2_na:
    s_waitcnt vmcnt(0)
    v_and_b32 v9, 0xffff, v5
    v_lshrrev_b32 v11, 16, v5
    v_lshl_add_u32 v4, v9, 2, v71
    v_cndmask_b32 v4, v72, v4, s[48:49]
    buffer_load_dwordx4 v[12:15], v4, s[40:43], 0 offen sc1
    buffer_load_dwordx4 v[16:19], v4, s[40:43], 0 offen offset:64 sc1
    v_sub_u32 v20, v11, v3
    v_mov_b32 v6, v72
    v_mov_b32 v7, v73
    s_cmp_lg_u32 s4, 15
    s_cbranch_scc1 p2_nw
    s_mov_b64 exec, 1
    v_add_u32 v57, v57, v58
    v_mov_b32 v56, s57
    v_readfirstlane_b32 s65, v57
    s_and_b32 s64, s65, 0xff
    s_cmp_lg_u32 s64, 32
    s_cbranch_scc1 gbb_np
    s_sub_u32 s65, s65, 31""")
    bar_l2(a,'gbb')
    a('s_mov_b64 exec, -1\np2_nw:')
    def each_entry(body,regs,base):
        for r,e in enumerate(regs):
            a(f'v_cmpx_lt_i32 vcc, {base[r]}, v20')
            body(e)
        a('s_mov_b64 exec, -1')
    regs=list(range(12,20)); base=[0,1,2,3,16,17,18,19]
    def pass1(regs):
        for k,e in enumerate(regs): a(f'v_lshrrev_b32 v{80+k}, 16, v{e}\nv_and_b32 v{80+k}, 0x1ffc, v{80+k}')
        ad={e:80+k for k,e in enumerate(regs)}
        each_entry(lambda e: a(f'ds_add_u32 v{ad[e]}, v21 offset:{L_CNT}'),regs,base)
    a('s_waitcnt vmcnt(0)')
    stamp('sg')
    pass1(regs)
    def longseg(nm,whole):
        a(f"""v_cmp_lt_i32 vcc, 32, v20
        s_cbranch_vccnz {nm}
        {nm}_d:""")
        def tail():
            a(f"""{nm}:
            v_mov_b32 v23, v20
            v_mov_b32 v24, v4
            {nm}_l:
            v_subrev_u32 v20, 32, v20
            v_add_u32 v24, 128, v24
            v_cmp_lt_i32 vcc, 0, v20
            s_cbranch_vccz {nm}_r
            buffer_load_dwordx4 v[28:31], v24, s[40:43], 0 offen sc1
            buffer_load_dwordx4 v[32:35], v24, s[40:43], 0 offen offset:64 sc1
            s_waitcnt vmcnt(0)""")
            whole(list(range(28,36)))
            a(f"""s_branch {nm}_l
            {nm}_r:
            v_mov_b32 v20, v23""")
            for k,e in enumerate(regs): a(f'v_lshrrev_b32 v{80+k}, 16, v{e}\nv_and_b32 v{80+k}, 0x1ffc, v{80+k}')
            a(f's_branch {nm}_d')
        tails.append(tail)
    tails=[]
    longseg('ls1',pass1)
    a('s_waitcnt lgkmcnt(0)\ns_barrier')
    stamp('c1')
    a(f"""s_cmp_ge_u32 s4, 4
    s_cbranch_scc1 p2_n1
    v_add_u32 v36, s54, v0
    s_mov_b32 s64, {N}
    v_cmp_gt_u32 vcc, s64, v36
    s_movk_i32 s64, {BS}
    v_cmp_gt_u32 s[64:65], s64, v0
    s_and_b64 s[66:67], vcc, s[64:65]
    s_mov_b64 exec, s[66:67]
    v_lshlrev_b32 v37, 5, v0
    v_lshlrev_b32 v38, 3, v0
    ds_read_b128 v[40:43], v37 offset:{L_CNT}
    ds_read_b128 v[44:47], v37 offset:{L_CNT+16}
    ds_read_b64 v[58:59], v38 offset:{L_R0}""")
    line_calc(a,66,36,62,63)
    a(f"""v_lshlrev_b32 v66, 7, v66
    v_and_b32 v62, 128, v36
    v_add_u32 v67, 0x2000, v66
    v_cmp_ne_u32 vcc, 0, v62
    v_mov_b32 v48, 0
    s_waitcnt lgkmcnt(1)
    v_cndmask_b32 v67, v6, v67, vcc
    v_mov_b32 v49, v40
    v_add_u32 v50, v49, v41
    v_add_u32 v51, v50, v42
    v_add_u32 v52, v51, v43
    v_add_u32 v53, v52, v44
    v_add_u32 v54, v53, v45
    v_add_u32 v55, v54, v46
    v_add_u32 v65, v55, v47
    v_min_u32 v57, 63, v65
    v_sub_u32 v57, 63, v57
    v_lshlrev_b32 v57, 2, v57
    ds_add_rtn_u32 v60, v57, v21 offset:{L_DH}
    s_mov_b64 exec, -1
    p2_n1:""")
    def offs(regs):
        for e in regs:
            a(f"""v_bfe_u32 v26, v{e}, 14, 3
            v_lshrrev_b32 v27, 17, v{e}
            v_bfe_u32 v26, s58, v26, 1
            v_and_b32 v{e}, 0x1ffff, v{e}
            v_and_b32 v26, v26, v27
            v_lshl_add_u32 v{e}, v26, 6, v{e}
            v_lshlrev_b32 v{e}, 7, v{e}""")
    a('s_cmp_lg_u32 s4, 15\ns_cbranch_scc1 p2_nq\ns_mov_b64 exec, 1\nv_mov_b32 v56, s57\ns_mov_b32 s64, 8')
    bar_poll(a,'gbb',votes=True)
    a(f"""v_mov_b32 v62, {L_RED}
    ds_write_b32 v62, v58 offset:8
    s_mov_b64 exec, -1
    p2_nq:
    v_mov_b32 v62, {L_RED}
    s_waitcnt lgkmcnt(0)
    s_barrier
    ds_read_b32 v63, v62 offset:8
    ds_read_b32 v61, v8 offset:{L_DH}
    s_waitcnt lgkmcnt(0)
    v_readfirstlane_b32 s60, v63
    s_cmp_ge_u32 s60, 0x8000
    s_cselect_b32 s61, 1, 0
    s_xor_b32 s58, s61, s6
    s_cmp_eq_u32 s58, 0
    s_cselect_b32 s58, 10, 21
    s_cmp_ge_u32 s4, 4
    s_cbranch_scc1 p2_n2
    v_mov_b32 v62, v61
    s_nop 1""")
    for m in ('row_shr:1','row_shr:2','row_shr:4','row_shr:8'):
        a(f'v_add_u32_dpp v62, v62, v62 {m} {DPP} bound_ctrl:0\ns_nop 1')
    a(f"""v_add_u32_dpp v62, v62, v62 row_bcast:15 row_mask:0xa bank_mask:0xf
    s_nop 1
    v_add_u32_dpp v62, v62, v62 row_bcast:31 row_mask:0xc bank_mask:0xf
    v_sub_u32 v62, v62, v61
    ds_bpermute_b32 v62, v57, v62
    s_mov_b64 exec, s[66:67]
    v_or_b32 v64, v59, v0
    s_waitcnt lgkmcnt(0)
    v_add_u32 v60, v60, v62
    v_lshlrev_b32 v61, 20, v60""")
    for j in range(8): a(f'v_or_b32 v{48+j}, v61, v{48+j}')
    a(f"""ds_write_b128 v37, v[48:51] offset:{L_CNT}
    ds_write_b128 v37, v[52:55] offset:{L_CNT+16}
    v_lshlrev_b32 v62, 4, v60
    ds_write_b128 v62, v[64:67] offset:{L_INFO}
    v_lshlrev_b32 v62, 5, v60
    v_add_u32 v62, {L_RHO-65024}, v62
    ds_write_b32 v62, v58 offset:65024
    v_cmp_lt_u32 vcc, {CAP}, v65
    s_and_b64 exec, exec, vcc
    s_cbranch_execz p2_n3
    v_subrev_u32 v56, {CAP}, v65
    v_mov_b32 v62, {L_RED}
    ds_add_rtn_u32 v63, v62, v56
    v_lshlrev_b32 v62, 2, v60
    s_waitcnt lgkmcnt(0)
    ds_write_b32 v62, v63 offset:{L_INF2}
    s_branch p2_n3
    p2_n2:""")
    offs(regs)
    a('p2_n3:\ns_mov_b64 exec, -1')
    a('s_waitcnt lgkmcnt(0)\ns_barrier')
    stamp('nd')
    def pass2(regs,slow):
        cur={e:40+k for k,e in enumerate(regs)}; ad={e:80+k for k,e in enumerate(regs)}
        each_entry(lambda e: a(f'ds_add_rtn_u32 v{cur[e]}, v{ad[e]}, v21 offset:{L_CNT}'),regs,base)
        if not slow:
            a(f"""v_mov_b32 v62, {L_RED}
            ds_read_b32 v63, v62
            s_cmp_ge_u32 s4, 4
            s_cbranch_scc1 p2_o2""")
            offs(regs)
            a(f"""p2_o2:
            s_movk_i32 s64, 160
            s_mov_b32 s65, 0xfffff
            s_waitcnt lgkmcnt(0)
            v_readfirstlane_b32 s59, v63
            s_cmp_lg_u32 s59, 0
            s_cbranch_scc1 p2_ovf""")
            for e in regs:
                a(f"""v_lshrrev_b32 v26, 20, v{cur[e]}
                v_and_b32 v{cur[e]}, s65, v{cur[e]}
                v_mul_u32_u24 v26, s64, v26
                v_lshl_add_u32 v{cur[e]}, v{cur[e]}, 2, v26""")
            each_entry(lambda e: a(f'ds_write_b32 v{cur[e]}, v{e} offset:{L_LIST}'),regs,base)
        else:
            a('s_waitcnt lgkmcnt(0)')
            slow2(regs)
    def slow2(regs):
        cur={e:40+k for k,e in enumerate(regs)}
        for r,e in enumerate(regs):
            l=a.lab('ov')
            a(f"""v_cmp_lt_i32 s[70:71], {base[r]}, v20
            v_lshrrev_b32 v26, 20, v{cur[e]}
            v_and_b32 v25, s65, v{cur[e]}
            v_cmp_gt_u32 vcc, {CAP}, v25
            v_mul_u32_u24 v22, s64, v26
            v_lshl_add_u32 v22, v25, 2, v22
            s_and_b64 exec, s[70:71], vcc
            ds_write_b32 v22, v{e} offset:{L_LIST}
            s_andn2_b64 exec, s[70:71], vcc
            s_cbranch_execz {l}
            v_lshlrev_b32 v26, 2, v26
            ds_read_b32 v26, v26 offset:{L_INF2}
            v_subrev_u32 v25, {CAP}, v25
            s_waitcnt lgkmcnt(0)
            v_add_lshl_u32 v25, v25, v26, 2
            buffer_store_dword v{e}, v25, s[40:43], s59 offen
            {l}:
            s_mov_b64 exec, -1""")
    pass2(regs,False)
    a('p2_ovd:')
    def long2(regs):
        for k,e in enumerate(regs): a(f'v_lshrrev_b32 v{80+k}, 16, v{e}\nv_and_b32 v{80+k}, 0x1ffc, v{80+k}')
        offs(regs); pass2(regs,True)
    longseg('ls2',long2)
    def ovf_tail():
        a(f"""p2_ovf:
        v_cmp_eq_u32 vcc, 0, v3
        s_mov_b64 exec, vcc
        ds_add_u32 v62, v9 offset:4
        s_mov_b64 exec, -1
        s_waitcnt lgkmcnt(0)
        s_barrier
        ds_read_b32 v63, v62 offset:4
        s_waitcnt lgkmcnt(0)
        v_readfirstlane_b32 s59, v63
        s_lshl_b32 s59, s59, 2
        s_add_u32 s59, s59, {OVF}""")
        slow2(regs)
        a('s_branch p2_ovd')
    tails.append(ovf_tail)
    a('s_waitcnt vmcnt(0) lgkmcnt(0)\ns_barrier')
    stamp('c2')
    a('s_cmp_ge_u32 s4, 13\ns_cbranch_scc1 k_hx')
    a(f"""v_mov_b32 v0, v7
    v_lshrrev_b32 v115, 3, v0
    s_lshl_b32 s64, s4, 4
    v_add_u32 v115, s64, v115
    v_and_b32 v114, 3, v0
    v_mul_u32_u24 v6, 160, v115
    v_lshl_add_u32 v7, v114, 3, v6
    v_lshl_add_u32 v6, v114, 4, v6
    ds_read_b128 v[16:19], v6 offset:{L_LIST}
    ds_read_b128 v[26:29], v6 offset:{L_LIST+1280}
    v_lshlrev_b32 v116, 4, v115
    v_and_b32 v1, 7, v0
    v_lshlrev_b32 v1, 4, v1""")
    for s in range(2):
        o=16+10*s
        a(f"""ds_read_b128 v[{100+4*s}:{103+4*s}], v116 offset:{L_INFO+128*s}
        ds_read_b128 v[{o+4}:{o+7}], v6 offset:{L_LIST+1280*s+64}
        ds_read_b64 v[{o+8}:{o+9}], v7 offset:{L_LIST+1280*s+128}""")
    a(f"""s_mov_b32 s32, s36
    s_mov_b32 s33, s37
    s_mov_b32 s34, s38
    s_mov_b32 s35, 0x20000
    s_mov_b32 s3, 1
    v_mov_b32 v126, -1
    s_waitcnt lgkmcnt(6)""")
    stamp('p2')
    def deferred():
        a(f"""v_lshlrev_b32 v116, 2, v115
        ds_read_b32 v122, v116 offset:{L_INF2}
        ds_read_b32 v123, v116 offset:{L_INF2+32}
        v_mov_b32 v6, 0x3f80
        v_mov_b32 v7, 0x3f800000
        v_cmp_eq_u32 s[70:71], 0, v114
        v_cmp_eq_u32 s[64:65], 1, v114
        v_cmp_eq_u32 s[66:67], 2, v114
        v_cmp_eq_u32 s[68:69], 3, v114
        v_cndmask_b32 v2, 0, v6, s[70:71]
        v_cndmask_b32 v3, 0, v6, s[66:67]
        v_cndmask_b32 v2, v2, v7, s[64:65]
        v_cndmask_b32 v3, v3, v7, s[68:69]
        s_movk_i32 s64, {BS}
        v_cmp_gt_u32 s[48:49], s64, v115
        s_movk_i32 s64, {BS-8}
        v_cmp_gt_u32 s[50:51], s64, v115
        v_lshlrev_b32 v116, 7, v115
        v_lshlrev_b32 v117, 5, v115
        v_add_u32 v117, {L_RHO}, v117
        s_waitcnt lgkmcnt(0)
        v_max_u32 v4, v101, v105
        v_mov_b32 v120, v101
        v_mov_b32 v121, v105
        v_max_u32_dpp v4, v4, v4 row_shr:8 {DPP} bound_ctrl:0
        s_nop 1
        v_max_u32_dpp v4, v4, v4 row_bcast:15 row_mask:0xa bank_mask:0xf
        s_nop 1
        v_max_u32_dpp v4, v4, v4 row_bcast:31 row_mask:0xc bank_mask:0xf
        s_nop 1
        v_readlane_b32 s53, v4, 63""")
        for s in range(2):
            i=100+4*s
            a(f"""v_add_u32 v{8+s}, v{i+2}, v1
            v_add_u32 v{10+s}, v{i+3}, v1
            v_and_b32 v4, 0xffff0000, v{i}
            v_mul_f32 v{12+s}, v4, v4
            v_cmp_eq_f32 s[64:65], 0, v4
            v_and_b32 v5, 0xffff, v{i}
            v_add_u32 v5, s54, v5
            v_cndmask_b32 v{124+s}, v4, 1.0, s[64:65]
            v_lshl_add_u32 v{118+s}, v5, 7, v1
            v_cmp_gt_u32 s[64:65], s38, v{i+2}
            v_rcp_f32 v{14+s}, v{124+s}
            s_nop 0
            v_cndmask_b32 v{118+s}, v{i+2}, v{118+s}, s[64:65]""")
        a(f"""s_max_u32 s52, s53, {K//2}
        s_min_u32 s52, s52, {CAP}
        s_add_u32 s36, s36, {TSTR}
        s_addc_u32 s37, s37, 0
        s_mov_b32 s76, 0x3f803f80
        v_lshrrev_b32 v4, 4, v0
        v_lshlrev_b32 v4, 4, v4
        global_load_dwordx4 v[84:87], v4, s[24:25]
        global_load_dwordx4 v[88:91], v4, s[24:25] offset:64""")
    def late():
        a(f"""s_mul_i32 s95, s4, {STG}
        s_add_u32 s95, s95, {L_STAGE}
        s_xor_b32 s63, s61, 1
        s_mov_b32 s62, 0""")
        a('s_cmp_lg_u32 s4, 0\ns_cbranch_scc1 f_nb')
        baraddr(a,BARP)
        if stamps: a('s_mov_b32 s94, s60')
        a('f_nb:')
        if stag>=4: a(f'v_mov_b32 v4, {L_END}\nv_mov_b32 v5, 0\nds_write_b32 v4, v5')
        if pf:
            a(f"""v_lshrrev_b32 v4, 4, v0
            v_lshl_add_u32 v4, v4, 5, s5
            v_and_b32 v4, 0xff, v4
            v_mul_u32_u24 v4, {BS}, v4
            v_and_b32 v5, 15, v0
            s_lshl_b32 s64, s4, 4
            s_sub_u32 s64, s64, 16
            v_add3_u32 v4, v4, v5, s64""")
            line_calc(a,126,4,5,6)
            a(f"""v_lshrrev_b32 v5, 14, v126
            v_bfe_u32 v5, s58, v5, 1
            v_lshrrev_b32 v6, 7, v4
            v_and_b32 v5, v5, v6
            v_lshl_add_u32 v126, v5, 6, v126
            v_lshlrev_b32 v126, 7, v126""")
    def late2():
        for s_ in range(2):
            a(f"""s_mov_b64 exec, s[{48+2*s_}:{49+2*s_}]
            v_lshrrev_b32 v4, 3, v116
            v_add_u32 v4, {L_ND+128*s_}, v4
            v_mov_b32 v52, v{124+s_}
            v_mov_b32 v53, v{14+s_}
            v_sub_u32 v54, v{118+s_}, v1
            v_mov_b32 v55, 0
            ds_write_b128 v4, v[52:55]""")
        a('s_mov_b64 exec, -1')
    if dump:
        deferred()
        a(f's_lshl_b32 s64, s2, 4\ns_add_u32 s64, s64, s4\ns_mul_i32 s64, s64, {40*256}\ns_add_u32 s64, s64, {DUMP}\nv_lshlrev_b32 v4, 2, v0\nv_add_u32 v4, s64, v4')
        for i,r in enumerate(list(range(8,36))+list(range(118,126))):
            a(f'global_store_dword v4, v{r}, s[30:31]\nv_add_u32 v4, 256, v4')
        a('v_mov_b32 v5, s53\nglobal_store_dword v4, v5, s[30:31]\nv_add_u32 v4, 256, v4\nv_mov_b32 v5, s60\nglobal_store_dword v4, v5, s[30:31]\nv_add_u32 v4, 256, v4\nds_read_b32 v5, v117\ns_waitcnt lgkmcnt(0)\nglobal_store_dword v4, v5, s[30:31]')
    if stop=='p2': a('s_endpgm')
    if side in ('min','minb'):
        a('s_waitcnt lgkmcnt(0)\ns_cmp_lg_u32 s4, 0\ns_cbranch_scc1 sd_n\ns_not_b32 s64, s80\nv_mov_b32 v4, 0\nv_mov_b32 v5, s64\ns_mov_b64 exec, 1\nglobal_atomic_umax v4, v5, s[28:29] offset:8 sc1\ns_mov_b64 exec, -1\nsd_n:')
    a('h_top:')
    XA=52; XB=68; TA=120; TB=[40,41,42,43,48,49,50,51]; TQ=10; WB=[18,22,26]; Z=10; ST=[84,88]; BA=92; BB=96; BO=100
    vW,vOq,vA,vTr,vRk,vRq,vNd,vNs,vBw,vBr,vNo,vS=range(104,116); vAq=114+11
    mRA,mRT,mVA,mVB,mH0,mRH,mCA,mCB='s[10:11]','s[12:13]','s[14:15]','s[16:17]','s[18:19]','s[20:21]','s[22:23]','s[8:9]'
    t0_,t1_,cq,dq=2,3,4,5; sv=6; vo=7
    def tokaddr(dst,n,h,ch,t1,t2,mask):
        a(f"""v_lshlrev_b32 v{t1}, 4, v{ch}
        v_lshl_add_u32 v{t1}, v{n}, 7, v{t1}
        v_and_b32 v{t2}, 3, v{h}
        v_lshl_add_u32 v{t1}, v{t2}, 6, v{t1}
        v_lshrrev_b32 v{t2}, 2, v{h}
        v_lshl_add_u32 v{t1}, v{t2}, 5, v{t1}
        v_subrev_u32 v{t2}, 1, v{h}
        v_cmp_gt_u32 {mask}, 4, v{t2}
        v_mul_u32_u24 v{t2}, {PL2}, v{t2}
        v_add3_u32 v{t2}, v{t2}, v{t1}, s64
        v_subrev_u32 v{dst}, 4, v{h}
        v_max_i32 v{dst}, 0, v{dst}
        v_lshl_add_u32 v{dst}, v{dst}, 9, v{t1}
        v_add_u32 v{dst}, s95, v{dst}
        v_cndmask_b32 v{dst}, v{dst}, v{t2}, {mask}""")
    J,Q,C3,Q16,H,NN,QH,T1,T2,T3,T4,T5=4,5,6,7,56,57,58,59,60,61,62,63
    def fsetup():
        a(f"""v_and_b32 v{J}, 15, v0
        v_lshrrev_b32 v{Q}, 4, v0
        v_lshlrev_b32 v{Q16}, 4, v{Q}
        s_lshl_b32 s64, s4, 11
        v_and_b32 v{H}, 7, v0
        v_lshrrev_b32 v{NN}, 3, v{J}
        v_bfe_u32 v{T1}, v0, 3, 2
        v_lshl_add_u32 v{T1}, v{T1}, 7, v1
        v_add_u32 v{vS}, s95, v{T1}""")
        tokaddr(vA,NN,H,Q,T1,T2,mRA)
        a(f"""v_lshrrev_b32 v{QH}, 1, v{Q}
        v_and_b32 v{T3}, 1, v{Q}
        v_bfe_u32 v{T4}, v0, 2, 2
        v_lshl_add_u32 v{T3}, v{T3}, 2, v{T4}
        v_and_b32 v{C3}, 3, v0
        v_lshlrev_b32 v{T4}, 8, v{NN}
        v_sub_u32 v{vAq}, v{vA}, v{T4}
        v_add_u32 v{vAq}, 0x180, v{vAq}""")
        tokaddr(vTr,QH,T3,C3,T1,T2,mRT)
        a(f"""v_cmp_eq_u32 {mVA}, v{QH}, v{NN}
        v_cmp_ne_u32 {mVB}, v{QH}, v{NN}
        v_cmp_eq_u32 {mH0}, 0, v{H}
        v_cmp_gt_u32 {mRH}, 2, v{Q}
        v_cmp_gt_u32 s[66:67], 2, v{J}
        s_lshl_b32 s64, s4, 9
        s_add_u32 s64, s64, {L_RHO}
        s_lshl_b32 s65, s4, 8
        s_add_u32 s65, s65, {L_ND}
        v_lshlrev_b32 v{T1}, 2, v{J}
        v_xor_b32 v{T2}, 0x60, v{T1}
        v_add_u32 v{T4}, 64, v{Q16}
        v_cndmask_b32 v{vRk}, v{T4}, v{Q16}, {mVA}
        v_cndmask_b32 v{vRq}, v{T2}, v{T1}, {mVA}
        v_cndmask_b32 v{vBw}, v{T2}, v{T1}, {mRH}
        v_cndmask_b32 v{vBr}, v{T4}, v{Q16}, s[66:67]
        v_lshlrev_b32 v{T1}, 4, v{NN}
        v_xor_b32 v{T2}, 0x30, v{T1}
        v_cndmask_b32 v{vNd}, v{T2}, v{T1}, {mVA}
        v_cndmask_b32 v{vNs}, v{T2}, v{T1}, {mRH}
        v_lshlrev_b32 v{vNo}, 4, v{C3}""")
        for r in (vRk,vRq,vBw,vBr): a(f'v_add_u32 v{r}, s64, v{r}')
        for r in (vNd,vNs,vNo): a(f'v_add_u32 v{r}, s65, v{r}')
    def fsetup2():
        a(f"""v_and_b32 v{J}, 15, v0
        v_lshrrev_b32 v{Q}, 4, v0
        v_lshlrev_b32 v{Q16}, 4, v{Q}
        v_lshrrev_b32 v{QH}, 1, v{Q}
        v_and_b32 v{C3}, 3, v0
        v_lshlrev_b32 v{T1}, 2, v{Q}
        v_sub_u32 v{T2}, v{J}, v{T1}
        v_xor_b32 v{T3}, 8, v{J}
        v_sub_u32 v{T3}, v{T3}, v{T1}
        v_mov_b32 v{T4}, 0x3f80
        v_mov_b32 v{T5}, 0x3f800000""")
        for B_,d in ((BA,T2),(BB,T3)):
            for hf in range(2):
                a(f"""v_cmp_eq_u32 s[66:67], {2*hf}, v{d}
                v_cmp_eq_u32 s[68:69], {2*hf+1}, v{d}
                v_mov_b32 v{B_+2+hf}, 0
                v_cndmask_b32 v{B_+hf}, 0, v{T4}, s[66:67]
                v_cndmask_b32 v{B_+hf}, v{B_+hf}, v{T5}, s[68:69]""")
        for i in range(4): a(f'v_mov_b32 v{BO+i}, 0')
        a(f"""v_cmp_eq_u32 {mCA}, v{J}, v{QH}
        v_add_u32 v{QH}, 2, v{QH}
        v_cmp_eq_u32 {mCB}, v{J}, v{QH}
        v_mov_b32 v{vOq}, v{Q16}
        v_lshlrev_b32 v{vW}, 4, v0
        v_add_u32 v{vW}, {L_W}, v{vW}
        v_cmp_eq_u32 s[66:67], 0, v{C3}
        v_cmp_eq_u32 s[68:69], 1, v{C3}
        v_mov_b32 v{T1}, s76
        v_dot2_f32_bf16 v{T3}, v{ST[0]}, s76, 0""")
        for r in [ST[0]+1,ST[0]+2,ST[0]+3,ST[1],ST[1]+1,ST[1]+2,ST[1]+3]: a(f'v_dot2_f32_bf16 v{T3}, v{r}, s76, v{T3}')
        for b in ST:
            for i in range(4): a(f'v_cndmask_b32 v{b+i}, 0, v{b+i}, s[68:69]\nv_cndmask_b32 v{b+i}, v{b+i}, v{T1}, s[66:67]')
        a(f"""v_readlane_b32 s64, v{T3}, 0
        v_readlane_b32 s65, v{T3}, 16
        v_readlane_b32 s66, v{T3}, 32
        v_readlane_b32 s67, v{T3}, 48
        v_mov_b32 v{T1}, s64
        v_add_f32 v{T1}, s65, v{T1}
        v_add_f32 v{T1}, s66, v{T1}
        v_add_f32 v{T1}, s67, v{T1}
        v_mul_f32 v{T1}, 0x3c800000, v{T1}
        s_mov_b32 s74, 0x3e38aa3b
        v_readfirstlane_b32 s55, v{T1}""")
    acc=[36,44]; d0=52; off=[16,26]; va=[4,5,6,7]
    def mf(s_,sl):
        a(f'v_mfma_f32_4x4x4_16b_bf16 v[{acc[s_]}:{acc[s_]+3}], v[2:3], v[{sl}:{sl+1}], v[{acc[s_]}:{acc[s_]+3}]')
        a(f'v_mfma_f32_4x4x4_16b_bf16 v[{acc[s_]+4}:{acc[s_]+7}], v[2:3], v[{sl+2}:{sl+3}], v[{acc[s_]+4}:{acc[s_]+7}]')
    def dma(pair):
        sl=pair>>1; hf=pair&1
        a(f's_mov_b32 exec_lo, {0 if hf else -1}\ns_mov_b32 exec_hi, {-1 if hf else 0}')
        for (srd,v,o) in ((44,118+sl,0),(96,8+sl,608),(32,8+sl,1184)):
            a(f's_add_u32 m0, s95, {o-512*hf}' if o-512*hf>=0 else f's_sub_u32 m0, s95, {512*hf-o}')
            a(f's_nop 0\nbuffer_load_dwordx4 v{v}, s[{srd}:{srd+3}], 0 offen {"" if srd==44 else "sc1"} lds')
        a('s_mov_b64 exec, -1')
    a(f"""s_cmp_lg_u32 s3, 7
    s_cbranch_scc1 h_nx
""")
    dma(0)
    a('s_setprio 3')
    if stag==1:
        a('s_setprio 3\ns_cmp_ge_u32 s4, 8\ns_cbranch_scc1 h_nx\ns_setprio 2\ns_cmp_ge_u32 s4, 4\ns_cbranch_scc1 h_nx\ns_setprio 1')
    if stag==2: a('s_setprio 3')
    if stag>=4:
        G={4:(8,4,5,9),5:(6,6,7,7),6:(10,5,3,8),7:(9,5,4,8)}[stag]
        a(f'''s_setprio 3
        s_cmp_ge_u32 s4, {G[0]}
        s_cbranch_scc1 h_nx
        s_cmp_ge_u32 s4, {G[1]}
        s_cselect_b32 s64, {G[2]}, {G[3]}
        v_mov_b32 v4, {L_END}
        s_mov_b32 s65, 0
        h_g7:
        ds_read_b32 v5, v4
        s_waitcnt lgkmcnt(0)
        v_readfirstlane_b32 s66, v5
        s_cmp_ge_u32 s66, s64
        s_cbranch_scc1 h_nx
        s_sleep 1
        s_add_u32 s65, s65, 1
        s_cmp_lt_u32 s65, 0x1000000
        s_cbranch_scc1 h_g7''')
    if stag==3:
        a('s_setprio 1\ns_cmp_ge_u32 s4, 8\ns_cbranch_scc1 h_nx\ns_setprio 2\ns_cmp_ge_u32 s4, 4\ns_cbranch_scc1 h_nx\ns_setprio 3')
    a('h_nx:')
    hstamp('hs')
    handlers=[]
    for u in range(CAP//2):
        j=2*u; t0=4*u
        if j<32: q=(j>>2)&3; rb=4*(j>>4)+(j&3)
        else: q=(j-32)>>1; rb=8
        if t0>=K: a(f's_cmp_ge_u32 {j}, s52\ns_cbranch_scc1 h_drain{"" if not pdrain else (u%(K//4))}')
        if u==1:
            a('s_cmp_eq_u32 s3, 1\ns_cbranch_scc1 h_def\nh_defr:')
            for i in range(16): a(f'v_mov_b32 v{36+i}, 0')
            a('s_mov_b32 s77, s52\ns_mov_b32 s78, 0')
            if stag: a(f's_cmp_eq_u32 s3, 7\ns_cselect_b32 s78, {RB}, 0')
        if u>0:
            h=f'h_ev{u}'; a(f's_sub_u32 s77, s77, {2*R}\ns_cbranch_scc1 {h}\n{h}_r:'); handlers.append(h)
        for hh in range(2):
            for s_ in range(2):
                a(f'v_add_u32_dpp v{va[hh*2+s_]}, v{off[s_]+rb+hh}, v1 quad_perm:[{q},{q},{q},{q}] {DPP}')
        if t0>=K:
            a(f's_waitcnt vmcnt({K-4})')
            for hh in range(2):
                for s_ in range(2): mf(s_,d0+4*((t0+hh*2+s_)%K))
        for hh in range(2):
            for s_ in range(2):
                sl=d0+4*((t0+hh*2+s_)%K)
                a(f'buffer_load_dwordx4 v[{sl}:{sl+3}], v{va[hh*2+s_]}, s[32:35], 0 offen sc1')
    if pdrain:
        f0=(CAP//2)%(K//4)
        for v in [f0]+[v for v in range(K//4) if v!=f0]: a(f'h_drain{v}:\ns_mov_b32 s79, {v}\ns_branch h_drain')
    a('h_drain:')
    if stag>=4:
        a(f's_cmp_lg_u32 s3, 7\ns_cbranch_scc1 h_rb\nv_mov_b32 v4, {L_END}\nv_mov_b32 v5, 1\ns_mov_b64 exec, 1\nds_add_u32 v4, v5\ns_mov_b64 exec, -1')
    a(f"""h_rb:
    s_cmp_ge_u32 s78, {RB}
    s_cbranch_scc1 h_rbd
    s_barrier
    s_add_u32 s78, s78, 1
    s_branch h_rb
    h_rbd:""")
    hstamp('hi')
    if pdrain:
        for par in range(1,K//4): a(f's_cmp_eq_u32 s79, {par}\ns_cbranch_scc1 h_dr{par}')
        for par in range(K//4):
            if par: a(f'h_dr{par}:')
            for n in range(K//2):
                a(f's_waitcnt vmcnt({K-2-2*n})')
                for t in (2*n,2*n+1): mf(t%2,d0+4*((t+4*par)%K))
            if par<K//4-1: a('s_branch h_drx')
        a('h_drx:')
        hstamp('hd')
    else:
        a('s_waitcnt vmcnt(0)')
        hstamp('hd')
        for t in range(K): mf(t%2,d0+4*t)
    a(f's_cmp_gt_u32 s53, {CAP}\ns_cbranch_scc1 h_slow\nh_slow_r:\ns_nop 4')
    for s_ in range(2):
        for i in range(4): a(f'v_pk_mul_f32 v[{acc[s_]+2*i}:{acc[s_]+2*i+1}], v[{acc[s_]+2*i}:{acc[s_]+2*i+1}], v[12:13] op_sel:[0,{s_}] op_sel_hi:[1,{s_}]')
        for i in range(4): a(f'v_cvt_pk_bf16_f32 v{acc[s_]+i}, v{acc[s_]+2*i}, v{acc[s_]+2*i+1}')
    a('s_cmp_eq_u32 s3, 7\ns_cbranch_scc1 h_ns')
    for s_ in range(2):
        a(f'buffer_store_dwordx4 v[{acc[s_]}:{acc[s_]+3}], v{8+s_}, s[36:39], 0 offen sc1')
        a(f'buffer_store_dwordx4 v[{acc[s_]}:{acc[s_]+3}], v{10+s_}, s[36:39], 0 offen sc1')
    a(f"""h_ns:
    s_lshl_b32 s64, s3, 2
    s_sub_u32 s66, s3, 1
    s_mul_i32 s66, s66, {PL2}
    s_and_b32 s65, s3, 3
    s_lshl_b32 s65, s65, 6
    s_add_u32 s66, s66, s65
    s_lshr_b32 s65, s3, 2
    s_lshl_b32 s65, s65, 5
    s_add_u32 s66, s66, s65
    v_add_u32 v52, s64, v117
    v_add3_u32 v53, v1, v116, s66""")
    for s_ in range(2):
        l=a.lab('ep'); l2=a.lab('ep')
        rho_calc(a,acc[s_],54,55,14+s_,'s76')
        a(f"""s_mov_b64 exec, s[{48+2*s_}:{49+2*s_}]
        s_cbranch_execz {l}
        ds_write_b32 v52, v54 offset:{256*s_}
        s_cmp_gt_u32 s3, 4
        s_cbranch_scc1 {l}
        ds_write_b128 v53, v[{acc[s_]}:{acc[s_]+3}] offset:{1024*s_}
        {l}:
        s_mov_b64 exec, -1""")
    a('s_cmp_eq_u32 s3, 7\ns_cbranch_scc1 f_top\ns_cmp_le_u32 s3, 3\ns_cbranch_scc1 f_set\nf_setr:\ns_waitcnt vmcnt(0)')
    hstamp('ha')
    if xh:
        a(f'''s_cmp_lg_u32 s3, {xh}
        s_cbranch_scc1 h_nxp
        s_mov_b32 exec_lo, 0x01010101
        s_mov_b32 exec_hi, 0x01010101
        buffer_load_dword v127, v118, s[44:47], 0 offen
        buffer_load_dword v127, v119, s[44:47], 0 offen
        s_mov_b64 exec, -1
        h_nxp:''')
    gbarrier(a,'gb1',pf=pf)
    hstamp('hr')
    a(f"""s_mov_b32 s32, s36
    s_mov_b32 s33, s37
    s_add_u32 s36, s36, {TSTR}
    s_addc_u32 s37, s37, 0
    s_add_u32 s3, s3, 1
    s_branch h_top""")
    a('f_top:')
    a('''s_lshl_b32 s64, s2, 4
    s_add_u32 s64, s64, s4
    s_cmp_lg_u32 s64, 0xffc
    s_cbranch_scc1 h_nc
    v_mov_b32 v4, 0
    s_mov_b64 exec, 1
    global_store_dword v4, v4, s[28:29] sc1
    s_mov_b64 exec, -1
    h_nc:''')
    stamp('h')
    if stop=='hops': a('s_endpgm')
    a(f"""s_mov_b32 exec_lo, 0x01010101
    s_mov_b32 exec_hi, 0x01010101
    buffer_load_dword v117, v118, s[44:47], 0 offen
    buffer_load_dword v117, v8, s[96:99], 0 offen sc1
    buffer_load_dword v117, v8, s[32:35], 0 offen sc1
    buffer_load_dword v117, v119, s[44:47], 0 offen
    buffer_load_dword v117, v9, s[96:99], 0 offen sc1
    buffer_load_dword v117, v9, s[32:35], 0 offen sc1
    s_mov_b64 exec, -1
    s_mov_b32 s36, s26
    s_mov_b32 s37, s27
    s_mov_b32 s38, {N*128}
    s_mov_b32 s70, 0x000f000f
    s_mov_b32 s71, 0x000f000f
    v_mov_b32 v116, v{vAq}
    f_loop:""")
    vAq=116
    stamp('fl')
    order=[(0,T,s_) for T in range(4) for s_ in range(2)]+[(1,T,s_) for T in (0,2,3,1) for s_ in range(2)]
    def pk(op,d,x,y,z=None,bc=False,neg=False):
        m=' op_sel_hi:[1,0]' if bc and z is None else (' op_sel_hi:[1,0,0]' if bc else '')
        if neg: m+=' neg_lo:[0,0,1] neg_hi:[0,0,1]'
        a(f'v_pk_{op}_f32 v[{d}:{d+1}], v[{x}:{x+1}], v[{y}:{y+1}]'+(f', v[{z}:{z+1}]' if z is not None else '')+m)
    for pair in range(npairs):
        q_=[]
        ro=128*pair; no=64*pair
        def wait_for(names):
            idx=max(q_.index(n) for n in names if n in q_) if any(n in q_ for n in names) else -1
            if idx>=0:
                left=len(q_)-idx-1
                a(f's_waitcnt lgkmcnt({left})'); del q_[:idx+1]
        def issue(txt,name): a(txt); q_.append(name)
        u7=36+8*(pair>>1)
        if fprio: a(f's_setprio {fprio[0]}')
        a(f"""s_mov_b32 exec_lo, {0 if pair&1 else -1}
        s_mov_b32 exec_hi, {-1 if pair&1 else 0}
        ds_write_b128 v{vS}, v[{u7}:{u7+3}] offset:1760
        s_mov_b64 exec, -1""")
        issue(f'ds_read_b128 v[{WB[0]}:{WB[0]+3}], v{vW}','f0')
        issue(f'ds_read_b128 v[{WB[1]}:{WB[1]+3}], v{vW} offset:1024','f1')
        issue(f'ds_read_b128 v[{WB[2]}:{WB[2]+3}], v{vW} offset:2048','f2')
        if pair: a('s_waitcnt vmcnt(2)')
        issue(f'ds_read_b128 v[{TA}:{TA+3}], v{vA}','ta0')
        issue(f'ds_read_b128 v[{TQ}:{TQ+3}], v{vAq}','tq0')
        issue(f'ds_read_b128 v[{TA+4}:{TA+7}], v{vA} offset:64','ta1')
        issue(f'ds_read_b128 v[{TQ+4}:{TQ+7}], v{vAq} offset:64','tq1')
        issue(f'ds_read_b128 v[{TB[0]}:{TB[3]}], v{vA} offset:256','tb0')
        issue(f'ds_read_b128 v[{TB[4]}:{TB[7]}], v{vA} offset:320','tb1')
        Sm=TQ; RK=TQ+4
        def packV(T,tro):
            for X_,o in ((XA,0),(XB,256)):
                A=X_+4*T
                a(f'v_cvt_pk_bf16_f32 v{A+3}, v{A+2}, v{A+3}\nv_cvt_pk_bf16_f32 v{A+2}, v{A}, v{A+1}')
                issue(f'ds_read_b64_tr_b16 v[{A}:{A+1}], v{vTr} offset:{o+tro}',f'u{T}{o}')
        for n,(m,T,s_) in enumerate(order):
            b=WB[n%3]
            need=[f'f{n}']
            if n==0: need+=['ta0','tq0']
            if n==1: need+=['ta1','tq1']
            if n==8 and fprio: a(f's_setprio {fprio[3]}')
            wait_for(need)
            for X_,tk in ((XA,TA+4*s_),(XB,TQ+4*s_ if m==0 else TB[4*s_])):
                c=f'v[{X_+4*T}:{X_+4*T+3}]' if s_ else '0'
                if m==0: a(f'v_mfma_f32_16x16x32_bf16 v[{X_+4*T}:{X_+4*T+3}], v[{b}:{b+3}], v[{tk}:{tk+3}], {c}')
                else: a(f'v_mfma_f32_16x16x32_bf16 v[{X_+4*T}:{X_+4*T+3}], v[{tk}:{tk+3}], v[{b}:{b+3}], {c}')
            if n+3<16:
                m2,Tn,s2=order[n+3]
                issue(f'ds_read_b128 v[{b}:{b+3}], v{vW} offset:{8192*m2+2048*Tn+1024*s2}',f'f{n+3}')
            if n==5:
                for X_ in (XA,XB):
                    a(f'v_cvt_pk_bf16_f32 v{X_}, v{X_}, v{X_+1}\nv_cvt_pk_bf16_f32 v{X_+1}, v{X_+2}, v{X_+3}\nv_cvt_pk_bf16_f32 v{X_+2}, v{X_+4}, v{X_+5}\nv_cvt_pk_bf16_f32 v{X_+3}, v{X_+6}, v{X_+7}')
            if n==7:
                wait_for(['tb0','tb1'])
                a(f'v_mfma_f32_16x16x32_bf16 v[{XA+4}:{XA+7}], v[{TA}:{TA+3}], v[{XA}:{XA+3}], 0\nv_mfma_f32_16x16x32_bf16 v[{XB+4}:{XB+7}], v[{TB[0]}:{TB[3]}], v[{XB}:{XB+3}], 0')
                issue(f'ds_read_b128 v[{RK}:{RK+3}], v{vRk} offset:{ro}','rk')
                issue(f'ds_read_b32 v{cq}, v{vRq} offset:{ro}','rq')
                issue(f'ds_read_b32 v{dq}, v{vNd} offset:{no}','nd')
                a('s_nop 0')
                for X_ in (XA,XB):
                    A=X_+8
                    a(f'v_cvt_pk_bf16_f32 v{A}, v{A}, v{A+1}\nv_cvt_pk_bf16_f32 v{A+1}, v{A+2}, v{A+3}\nv_cvt_pk_bf16_f32 v{A+2}, v{A+4}, v{A+5}\nv_cvt_pk_bf16_f32 v{A+3}, v{A+6}, v{A+7}')
                a(f's_nop 0\nv_mfma_f32_16x16x32_bf16 v[{XA+4}:{XA+7}], v[{TA+4}:{TA+7}], v[{XA+8}:{XA+11}], v[{XA+4}:{XA+7}]\nv_mfma_f32_16x16x32_bf16 v[{XB+4}:{XB+7}], v[{TB[4]}:{TB[7]}], v[{XB+8}:{XB+11}], v[{XB+4}:{XB+7}]')
            if n==10:
                wait_for(['rk','rq','nd'])
                a(f's_mov_b64 exec, {mVA}')
                pk('mul',Sm,XA+4,RK); pk('mul',Sm+2,XA+6,RK+2)
                a(f's_mov_b64 exec, {mVB}')
                pk('mul',Sm,XB+4,RK); pk('mul',Sm+2,XB+6,RK+2)
                a(f's_mov_b64 exec, -1\nv_mul_f32 v{cq}, s74, v{cq}\nv_cndmask_b32 v{dq}, v{dq}, 1.0, {mH0}')
                a(f'v_max3_f32 v{t0_}, v{Sm}, v{Sm+1}, v{Sm+2}\nv_max_f32 v{t0_}, v{t0_}, v{Sm+3}\nv_mov_b32 v{t1_}, v{t0_}')
            if n==11:
                a(f'v_permlane16_swap_b32 v{t0_}, v{t1_}\nv_max_f32 v{t0_}, v{t0_}, v{t1_}\nv_mul_f32 v{t0_}, v{cq}, v{t0_}')
                pk('fma',Sm,Sm,cq,t0_,bc=True,neg=True); pk('fma',Sm+2,Sm+2,cq,t0_,bc=True,neg=True)
                for r in range(4): a(f'v_exp_f32 v{Sm+r}, v{Sm+r}')
            if n==12:
                a(f'v_add_f32 v{t0_}, v{Sm}, v{Sm+1}\nv_add_f32 v{t1_}, v{Sm+2}, v{Sm+3}\nv_add_f32 v{t0_}, v{t0_}, v{t1_}\nv_mov_b32 v{t1_}, v{t0_}')
                pk('mul',Sm,Sm,RK); pk('mul',Sm+2,Sm+2,RK+2)
            if n==13:
                a(f'v_permlane16_swap_b32 v{t0_}, v{t1_}\nv_add_f32 v{t0_}, v{t0_}, v{t1_}\nv_rcp_f32 v{t0_}, v{t0_}')
                packV(0,0)
                a(f'v_mul_f32 v{t0_}, v{dq}, v{t0_}')
                pk('mul',Sm,Sm,t0_,bc=True); pk('mul',Sm+2,Sm+2,t0_,bc=True)
            if n==14:
                a(f"""s_mov_b64 exec, {mVA}
                v_cvt_pk_bf16_f32 v{BA+2}, v{Sm}, v{Sm+1}
                v_cvt_pk_bf16_f32 v{BA+3}, v{Sm+2}, v{Sm+3}
                s_mov_b64 exec, {mVB}
                v_cvt_pk_bf16_f32 v{BB+2}, v{Sm}, v{Sm+1}
                v_cvt_pk_bf16_f32 v{BB+3}, v{Sm+2}, v{Sm+3}
                s_mov_b64 exec, -1""")
                packV(2,64)
        packV(3,72)
        issue(f'ds_read_b32 v{sv}, v{vNs} offset:{no+4}','ns')
        issue(f'ds_read_b32 v{vo}, v{vNo} offset:{no+8}','no')
        packV(1,8)
        if fprio: a(f's_setprio {fprio[1]}')
        for T in (0,2,3,1):
            wait_for([f'u{T}0'])
            a(f'v_mfma_f32_16x16x32_bf16 v[{Z+4*T}:{Z+4*T+3}], v[{XA+4*T}:{XA+4*T+3}], v[{BA}:{BA+3}], 0')
        for T in (0,2,3,1):
            wait_for([f'u{T}256'])
            a(f'v_mfma_f32_16x16x32_bf16 v[{XA+4*T}:{XA+4*T+3}], v[{XB+4*T}:{XB+4*T+3}], v[{BB}:{BB+3}], 0')
        a(f'v_cndmask_b32 v{sv}, v{sv}, 1.0, {mH0}\nv_add_u32 v{vo}, v{vo}, v{vOq}')
        for i in (0,1,4,5,6,7,2,3): a(f'v_cvt_pk_bf16_f32 v{TA+i}, v{Z+2*i}, v{Z+2*i+1}')
        issue(f'ds_write_b128 v{vA}, v[{TA}:{TA+3}]','w0'); issue(f'ds_write_b128 v{vA}, v[{TA+4}:{TA+7}] offset:64','w1')
        for i in (0,1,4,5,6,7,2,3): a(f'v_cvt_pk_bf16_f32 v{TB[i]}, v{XA+2*i}, v{XA+2*i+1}')
        issue(f'ds_write_b128 v{vAq}, v[{TB[0]}:{TB[3]}]','w2'); issue(f'ds_write_b128 v{vAq}, v[{TB[4]}:{TB[7]}] offset:64','w3')
        a(f"""v_mfma_f32_16x16x32_bf16 v[{XB}:{XB+3}], v[{ST[0]}:{ST[0]+3}], v[{TA}:{TA+3}], 0
        v_mfma_f32_16x16x32_bf16 v[{XB+4}:{XB+7}], v[{ST[0]}:{ST[0]+3}], v[{TB[0]}:{TB[3]}], 0
        v_mfma_f32_16x16x32_bf16 v[{XB}:{XB+3}], v[{ST[1]}:{ST[1]+3}], v[{TA+4}:{TA+7}], v[{XB}:{XB+3}]
        v_mfma_f32_16x16x32_bf16 v[{XB+4}:{XB+7}], v[{ST[1]}:{ST[1]+3}], v[{TB[4]}:{TB[7]}], v[{XB+4}:{XB+7}]""")
        for T in range(4):
            o=(0,8,64,72)[T]
            issue(f'ds_read_b64_tr_b16 v[{Z+4*T}:{Z+4*T+1}], v{vTr} offset:{o}',f'o{T}a')
            issue(f'ds_read_b64_tr_b16 v[{Z+4*T+2}:{Z+4*T+3}], v{vTr} offset:{256+o}',f'o{T}b')
        qa,qb,t2,t3=XB+12,XB+13,XB+14,XB+15
        if fprio: a(f's_setprio {fprio[2]}')
        for i in range(8):
            a(f'v_dot2_f32_bf16 v{qa}, v{TA+i}, v{TA+i}, {"0" if i==0 else f"v{qa}"}\nv_dot2_f32_bf16 v{qb}, v{TB[i]}, v{TB[i]}, {"0" if i==0 else f"v{qb}"}')
        a(f"""v_cndmask_b32 v{XB}, v{XB+4}, v{XB}, {mRH}
        v_cndmask_b32 v{XB+1}, v{XB+5}, v{XB+1}, {mRH}
        v_mul_f32 v{t2}, 0x3e000000, v{XB}
        v_permlane32_swap_b32 v{qa}, v{qb}
        v_add_f32 v{qa}, v{qa}, v{qb}
        v_mov_b32 v{qb}, v{qa}
        v_fma_f32 v{t3}, -v{XB}, s55, v{XB+1}
        v_mul_f32 v{XB}, 0x3e000000, v{sv}
        v_permlane16_swap_b32 v{qa}, v{qb}
        v_add_f32 v{qa}, v{qa}, v{qb}
        v_mul_f32 v{XB}, v{XB}, v{XB}
        v_fma_f32 v{qa}, -v{t2}, v{t2}, v{qa}
        v_max_f32 v{qa}, 0, v{qa}
        v_fmaak_f32 v{qa}, v{XB}, v{qa}, {EPS}
        v_rsq_f32 v{qa}, v{qa}
        v_mul_f32 v{t3}, v{sv}, v{t3}
        v_mul_f32 v{t3}, 0x3fb8aa3b, v{t3}
        v_mul_f32 v{qa}, v{qa}, v{t3}""")
        if pair<npairs-1: a(f's_mov_b64 exec, {mRA}\nv_add_u32 v{vA}, 0x200, v{vA}\nv_add_u32 v{vAq}, 0x200, v{vAq}\ns_mov_b64 exec, -1')
        else: a('s_nop 1')
        a(f"""v_max_f32_dpp v{qb}, v{qa}, v{qa} quad_perm:[1,0,3,2] {DPP}
        s_nop 1
        v_max_f32_dpp v{qb}, v{qb}, v{qb} quad_perm:[2,3,0,1] {DPP}
        s_nop 1
        v_max_f32_dpp v{qb}, v{qb}, v{qb} row_half_mirror {DPP}
        v_sub_f32 v{qa}, v{qa}, v{qb}
        v_exp_f32 v{qa}, v{qa}""")
        if pair<npairs-1: a(f's_mov_b64 exec, {mRT}\nv_add_u32 v{vTr}, 0x200, v{vTr}\ns_mov_b64 exec, -1')
        else: a('s_nop 1')
        a(f"""v_add_f32_dpp v{qb}, v{qa}, v{qa} quad_perm:[1,0,3,2] {DPP}
        s_nop 1
        v_add_f32_dpp v{qb}, v{qb}, v{qb} quad_perm:[2,3,0,1] {DPP}
        s_nop 1
        v_add_f32_dpp v{qb}, v{qb}, v{qb} row_half_mirror {DPP}
        v_rcp_f32 v{qb}, v{qb}
        v_mul_f32 v{qa}, v{sv}, v{qa}
        v_mul_f32 v{qa}, v{qa}, v{qb}
        ds_write_b32 v{vBw}, v{qa} offset:{ro}
        ds_read_b128 v[{XB}:{XB+3}], v{vBr} offset:{ro}
        s_waitcnt lgkmcnt(2)""")
        if pair==0: a('s_cmp_eq_u32 s4, 12\ns_cbranch_scc1 f_nd0')
        if pair<npairs-1: dma(pair+1)
        if pair==0: a('f_nd0:')
        if fprio: a(f's_setprio {fprio[4]}')
        a(f"""s_waitcnt lgkmcnt(0)
        s_mov_b64 exec, {mCA}
        v_cvt_pk_bf16_f32 v{BO}, v{XB}, v{XB+1}
        v_cvt_pk_bf16_f32 v{BO+1}, v{XB+2}, v{XB+3}
        s_mov_b64 exec, {mCB}
        v_cvt_pk_bf16_f32 v{BO+2}, v{XB}, v{XB+1}
        v_cvt_pk_bf16_f32 v{BO+3}, v{XB+2}, v{XB+3}
        s_mov_b64 exec, -1
        s_nop 0""")
        for T in range(4):
            a(f'v_mfma_f32_16x16x32_bf16 v[{XA+4*T}:{XA+4*T+3}], v[{Z+4*T}:{Z+4*T+3}], v[{BO}:{BO+3}], 0')
        a('s_nop 4')
        for i in range(8): a(f'v_cvt_pk_bf16_f32 v{XB+8+i}, v{XA+2*i}, v{XA+2*i+1}')
        a(f"""s_mov_b64 exec, s[70:71]
        buffer_store_dwordx4 v[{XB+8}:{XB+11}], v{vo}, s[36:39], 0 offen {OUTPOL}
        buffer_store_dwordx4 v[{XB+12}:{XB+15}], v{vo}, s[36:39], 0 offen offset:64 {OUTPOL}
        s_mov_b64 exec, -1""")
        if pair==0: a('s_cmp_eq_u32 s4, 12\ns_cbranch_scc1 f_done')
    a('f_done:')
    stamp('f')
    if side is not None:
        a('s_waitcnt vmcnt(0)')
        stamp('e')
        a('s_waitcnt lgkmcnt(0)')
        if side=='xcc':
            a('s_and_b32 s64, s2, 7\ns_cmp_lg_u32 s64, s7\ns_cselect_b32 s64, 5000, 0')
        elif side=='zero': a('s_mov_b32 s64, 0')
        elif side in ('min','minb'):
            a('v_mov_b32 v4, 0\nglobal_load_dword v5, v4, s[28:29] offset:8 sc1\ns_waitcnt vmcnt(0)\nv_readfirstlane_b32 s80, v5\ns_not_b32 s80, s80\ns_mov_b32 s64, 0')
            if side=='minb': a('s_sub_u32 s64, s82, s80\ns_lshl_b32 s64, s64, 2')
        else:
            a('s_sub_u32 s64, s82, s80\ns_lshl_b32 s64, s64, 2\ns_cmp_lg_u32 s2, 100\ns_cselect_b32 s64, 0, s64')
        a('s_add_u32 s64, s64, 15000\nsd_l:\ns_memrealtime s[66:67]\ns_waitcnt lgkmcnt(0)\ns_sub_u32 s66, s66, s80\ns_cmp_lt_u32 s66, s64\ns_cbranch_scc1 sd_l\ns_endpgm')
    if stamps:
        a('s_waitcnt vmcnt(0)')
        stamp('e')
        a(f's_waitcnt lgkmcnt(0)\ns_lshl_b32 s64, s2, 4\ns_add_u32 s64, s64, s4\ns_lshl_b32 s64, s64, 7\ns_add_u32 s64, s64, {DUMP}\nv_mov_b32 v4, s64\ns_mov_b64 exec, 1')
        if dbgst:
            a('v_mov_b32 v6, 0\ns_not_b32 s65, s80\nv_mov_b32 v5, s65\nglobal_atomic_umax v6, v5, s[28:29] offset:8 sc1')
            for i in range(len(stamps)): a(f'v_mov_b32 v5, s{80+2*i}\nglobal_atomic_umax v6, v5, s[28:29] offset:{12+4*i} sc1')
            a('s_or_b32 s65, s2, s4\ns_cbranch_scc1 k_nv\nv_mov_b32 v5, s94\nglobal_store_dword v6, v5, s[28:29] offset:4 sc1\nk_nv:')
        a('v_mov_b32 v5, s94\nglobal_store_dword v4, v5, s[30:31] offset:64')
        for i in range(len(stamps)): a(f'v_mov_b32 v5, s{80+2*i}\nglobal_store_dword v4, v5, s[30:31] offset:{4*i}')
    a('k_end:\ns_endpgm')
    for h in handlers:
        a(f'{h}:\ns_cmp_ge_u32 s78, {RB}\ns_cbranch_scc1 {h}_r\ns_add_u32 s78, s78, 1\ns_barrier\ns_add_u32 s77, s77, s52\ns_cbranch_scc0 {h}\ns_branch {h}_r')
    a(f"""h_slow:
    s_mov_b32 s64, {CAP}
    v_and_b32 v4, 3, v0
    v_lshlrev_b32 v4, 2, v4
    h_sl:""")
    for s_ in range(2):
        a(f"""v_add_u32 v5, s64, v4
        v_add_u32 v6, v5, v{122+s_}
        v_subrev_u32 v6, {CAP}, v6
        v_lshlrev_b32 v6, 2, v6
        v_sub_u32 v5, v{120+s_}, v5
        v_mov_b32 v7, {OOBV}
        buffer_load_dwordx4 v[68:71], v6, s[40:43], s59 offen
        s_waitcnt vmcnt(0)""")
        for r in range(4): a(f'v_cmp_lt_i32 vcc, {r}, v5\ns_nop 1\nv_cndmask_b32 v{68+r}, v7, v{68+r}, vcc')
        for hb in range(4):
            a('s_nop 1')
            for t in range(4):
                a(f'v_add_u32_dpp v7, v{68+t}, v1 quad_perm:[{hb},{hb},{hb},{hb}] {DPP}\nbuffer_load_dwordx4 v[{d0+4*t}:{d0+4*t+3}], v7, s[32:35], 0 offen sc1')
            a('s_waitcnt vmcnt(0)')
            for t in range(4): mf(s_,d0+4*t); a('s_nop 0')
    a('s_add_u32 s64, s64, 16\ns_cmp_lt_u32 s64, s53\ns_cbranch_scc1 h_sl\ns_branch h_slow_r')
    a(f"""k_hx:
    s_cmp_lg_u32 s4, 13
    s_cbranch_scc1 k_end
    v_lshlrev_b32 v2, 21, v7
    v_add_u32 v3, 0x1fff80, v2
    v_cmpx_gt_u32 vcc, 42, v7
    global_load_dword v4, v3, s[30:31] sc1
    v_cmpx_gt_u32 vcc, 4, v7
    global_load_dword v4, v2, s[26:27] sc1
    s_endpgm""")
    vAq=125
    a('f_set:\ns_cmp_eq_u32 s3, 2\ns_cbranch_scc1 f_set2\ns_cmp_eq_u32 s3, 3\ns_cbranch_scc1 f_set3'); late(); late2(); a('s_branch f_setr')
    a('f_set2:'); fsetup(); a('s_branch f_setr')
    a('f_set3:'); fsetup2(); a('s_branch f_setr')
    a('h_def:'); deferred(); a('s_branch h_defr')
    for t in tails: t()
    t=a.text()
    t=t.replace('    PB3\n','    s_barrier\n    s_barrier\n').replace('    PBMID\n',f'    s_cmp_lg_u32 s72, {pa}\n    s_cbranch_scc1 p1_pm\n    s_barrier\np1_pm:\n')
    return t

HDR=open('gather_scatter__hybrid_graph_tf_nagphormer__graph.s.ref').read().split('; Override launch')[0]
def wrap(body):
    return HDR+f'''; @launch grid=(256,1,1) block=(1024,1,1) lds={LDS_BYTES}
.amdgcn_target "amdgcn-amd-amdhsa--gfx950"
.text
.globl {KNAME}
.p2align 8
.type {KNAME},@function
{KNAME}:
'''+body+f'''.section .rodata,"a"
.p2align 6
.amdhsa_kernel {KNAME}
  .amdhsa_next_free_vgpr 128
  .amdhsa_next_free_sgpr 102
  .amdhsa_accum_offset 128
  .amdhsa_group_segment_fixed_size 0
  .amdhsa_kernarg_size 96
  .amdhsa_user_sgpr_count 2
  .amdhsa_user_sgpr_kernarg_segment_ptr 1
  .amdhsa_system_sgpr_workgroup_id_x 1
  .amdhsa_float_denorm_mode_32 3
.end_amdhsa_kernel
'''
if __name__=='__main__':
    import ast
    kw=dict(x.split('=') for x in sys.argv[2:])
    for k in kw:
        try: kw[k]=ast.literal_eval(kw[k])
        except Exception: pass
    if 'stamps' in kw: kw['stamps']=kw['stamps'].split(',')
    open(sys.argv[1],'w').write(wrap(gen(**kw)))
```

```python
import sys
from lay import *
KNAME='gather_scatter__hybrid_graph_tf_nagphormer__graph_kernel'
class Asm:
    def __init__(s): s.l=[]; s.u=0
    def __call__(s,t):
        for x in t.strip('\n').split('\n'):
            x=x.strip()
            if x: s.l.append(x if x.endswith(':') else '    '+x)
    def lab(s,p='L'): s.u+=1; return f'{p}{s.u}'
    def text(s): return '\n'.join(s.l)+'\n'
DPP='row_mask:0xf bank_mask:0xf'
EPS='0x3727c5ac'
OUTPOL='sc1'

def line_calc(a,dst,n,t,u):
    a(f'''v_lshrrev_b32 v{t}, 8, v{n}
    v_mul_u32_u24 v{u}, 205, v{t}
    v_lshl_add_u32 v{dst}, v{t}, 7, v{n}
    v_lshrrev_b32 v{u}, 13, v{u}
    v_lshrrev_b32 v{t}, 1, v{n}
    v_lshl_add_u32 v{dst}, v{u}, 10, v{dst}
    v_bitop3_b32 v{t}, v{t}, v{n}, 64 bitop3:0x80
    v_add_u32 v{dst}, v{dst}, v{t}''')

def rho_calc(a,X,sm,sq,vs,sones):
    a(f'v_dot2_f32_bf16 v{sm}, v{X}, {sones}, 0\nv_dot2_f32_bf16 v{sq}, v{X}, v{X}, 0')
    for i in range(1,4):
        a(f'v_dot2_f32_bf16 v{sm}, v{X+i}, {sones}, v{sm}\nv_dot2_f32_bf16 v{sq}, v{X+i}, v{X+i}, v{sq}')
    a('s_nop 2')
    for m in ('quad_perm:[1,0,3,2]','quad_perm:[2,3,0,1]','row_half_mirror'):
        a(f'v_add_f32_dpp v{sm}, v{sm}, v{sm} {m} {DPP}\nv_add_f32_dpp v{sq}, v{sq}, v{sq} {m} {DPP}\ns_nop 0')
    a(f'''v_mul_f32 v{sm}, 0x3c800000, v{sm}
    v_mul_f32 v{sq}, 0x3c800000, v{sq}
    v_fma_f32 v{sq}, -v{sm}, v{sm}, v{sq}
    v_max_f32 v{sq}, 0, v{sq}''')
    if vs is not None: a(f'v_mul_f32 v{sq}, v{vs}, v{sq}\nv_mul_f32 v{sq}, v{vs}, v{sq}')
    a(f'v_add_f32 v{sq}, {EPS}, v{sq}\nv_rsq_f32 v{sm}, v{sq}\ns_nop 0')
    if vs is not None: a(f'v_mul_f32 v{sm}, v{vs}, v{sm}')

def baraddr(a,base):
    a(f'''s_and_b32 s64, s2, 7
    s_lshr_b32 s65, s64, 2
    s_xor_b32 s65, s65, s63
    s_lshl_b32 s65, s65, 13
    s_lshl_b32 s64, s64, 8
    s_add_u32 s64, s64, s65
    s_add_u32 s56, s64, {base}
    s_xor_b32 s65, s6, s63
    s_lshl_b32 s65, s65, 13
    s_and_b32 s64, s7, 7
    s_lshl_b32 s64, s64, 8
    s_add_u32 s64, s64, s65
    s_mov_b32 s75, {base+4096}
    s_add_u32 s57, s64, s75''')

def bar_l2(a,nm):
    a(f"""s_mov_b64 exec, 0xff
    v_mbcnt_lo_u32_b32 v58, -1, 0
    v_lshrrev_b32 v59, 2, v58
    v_xor_b32 v59, s63, v59
    v_lshlrev_b32 v59, 13, v59
    v_lshl_add_u32 v58, v58, 8, v59
    v_add_u32 v58, s75, v58
    v_mov_b32 v57, s65
    global_atomic_add v58, v57, s[30:31] sc1
    s_mov_b64 exec, 1
    {nm}_np:""")
def bar_poll(a,nm,votes=False):
    a(f"""s_mov_b32 s65, 0
    {nm}_p:
    global_load_dword v58, v56, s[30:31] sc1
    s_waitcnt vmcnt(0)""")
    if votes: a('v_and_b32 v59, 0xff, v58\nv_cmp_gt_u32 vcc, s64, v59')
    else: a('v_cmp_gt_u32 vcc, s64, v58')
    a(f"""s_cbranch_vccz {nm}_pd
    s_add_u32 s65, s65, 1
    s_cmp_lt_u32 s65, 0x800000
    s_cbranch_scc1 {nm}_p
    {nm}_pd:""")
def bar_arrive(a,nm):
    a(f"""v_mov_b32 v56, s56
    v_mov_b32 v57, 1
    global_atomic_add v58, v56, v57, s[30:31] sc0 sc1
    s_lshl_b32 s64, s62, 5
    s_sub_u32 s64, s64, 1
    v_mov_b32 v56, s57
    s_waitcnt vmcnt(0)
    v_readfirstlane_b32 s65, v58
    s_cmp_lg_u32 s65, s64
    s_cbranch_scc1 {nm}_np
    s_mov_b32 s65, 1""")
    bar_l2(a,nm)

def gbarrier(a,nm,pf=None,fill=None):
    a(f's_add_u32 s62, s62, 1\ns_barrier\ns_cmp_lg_u32 s4, 0\ns_cbranch_scc1 {nm}_f')
    a('s_mov_b64 exec, 1')
    bar_arrive(a,nm)
    a('s_lshl_b32 s64, s62, 3')
    bar_poll(a,nm)
    a(f's_mov_b64 exec, -1\ns_branch {nm}_w\n{nm}_f:')
    if pf:
        n0,n1,sl=pf
        def ex(lo,hi):
            m=((1<<(16*hi))-1)^((1<<(16*lo))-1)
            a(f's_mov_b32 exec_lo, {m&0xffffffff:#x}\ns_mov_b32 exec_hi, {m>>32:#x}')
        if n0: ex(0,n0); a('buffer_load_dword v127, v126, s[36:39], 0 offen sc1')
        if n1>n0:
            if sl: a(f's_sleep {sl}')
            ex(n0,n1); a('buffer_load_dword v127, v126, s[36:39], 0 offen sc1')
        a('s_mov_b64 exec, -1')
    a(f"""{nm}_w:
    s_barrier""")

def probe(a,nm,voff,res):
    a(f'v_add_u32 v{voff+1}, 0x2000, v{voff}\nv_mov_b32 v{voff+2}, 0\ns_mov_b32 s66, -1\ns_mov_b32 s67, -1\ns_mov_b32 s72, 0\n{nm}:')
    for s in range(2):
        a(f'''s_memtime s[68:69]
        s_waitcnt lgkmcnt(0)
        global_atomic_add v{voff+3}, v{voff+s}, v{voff+2}, s[30:31] sc0 sc1
        s_waitcnt vmcnt(0)
        s_memtime s[70:71]
        s_waitcnt lgkmcnt(0)
        s_sub_u32 s70, s70, s68
        s_min_u32 s{66+s}, s{66+s}, s70''')
    a(f's_add_u32 s72, s72, 1\ns_cmp_lt_u32 s72, 3\ns_cbranch_scc1 {nm}')
    a(f's_cmp_gt_u32 s66, s67\ns_cselect_b32 s{res}, 1, 0\ns_xor_b32 s{res}, s{res}, s6')

def gen(upos=1,side=None,xh=0,ent='nt',xnt='',fprio=(0,1,0,2,0),dbgst=False,K=8,R=12,RB=7,pf=(0,1,6),pdrain=True,stop=None,dump=False,stamps=False,npairs=4,stag=0,nprobe=4,xpos=2,xpf=0,pa=2):
    a=Asm()
    if RB is None: RB=R-1
    def stamp(nm):
        if stamps and nm in stamps:
            i=stamps.index(nm); a(f's_memrealtime s[{80+2*i}:{81+2*i}]')
        if stamps and nm+'c' in stamps:
            i=stamps.index(nm+'c'); a(f's_memtime s[{80+2*i}:{81+2*i}]')
    def hstamp(nm):
        if stamps and nm in stamps:
            l=a.lab('hs'); i=stamps.index(nm)
            a(f's_cmp_lg_u32 s3, 4\ns_cbranch_scc1 {l}\ns_memrealtime s[{80+2*i}:{81+2*i}]\n{l}:')
    a(f"""s_cmp_ge_u32 s2, 256
    s_cbranch_scc1 k_end
    s_load_dwordx16 s[8:23], s[0:1], 0
    s_load_dwordx8 s[24:31], s[0:1], 64
    v_lshrrev_b32 v1, 6, v0
    s_and_b32 s5, s2, 7
    v_readfirstlane_b32 s4, v1
    s_lshl_b32 s5, s5, 5
    s_lshr_b32 s3, s2, 3
    s_add_u32 s5, s5, s3
    s_mov_b32 s62, 0
    s_mul_i32 s54, s5, {BS}
    v_lshlrev_b32 v10, 4, v0""")
    stamp('s')
    def wsinit():
        a(f"""s_add_u32 s30, s30, 0x1fffff
        s_addc_u32 s31, s31, 0
        s_and_b32 s30, s30, 0xffe00000
        s_mov_b32 s36, s30
        s_mov_b32 s37, s31
        s_mov_b32 s38, {TBYTES}
        s_mov_b32 s39, 0x20000
        s_add_u32 s40, s30, {SMALL}
        s_addc_u32 s41, s31, 0
        s_mov_b32 s42, {SMALL_BYTES}
        s_mov_b32 s43, 0x20000
        s_getreg_b32 s7, hwreg(HW_REG_XCC_ID, 0, 4)
        s_lshr_b32 s6, s7, 2
        s_mov_b64 s[56:57], 0
        s_mov_b32 s44, s8
        s_mov_b32 s45, s9
        s_mov_b32 s46, {N*128}
        s_mov_b32 s47, 0x20000
        s_add_u32 s96, s30, {5*TSTR}
        s_addc_u32 s97, s31, 0
        s_mov_b32 s98, {TBYTES}
        s_mov_b32 s99, 0x20000
        s_mov_b32 s60, 0
        s_and_b32 s6, s6, 1""")
    def ldsinit(z):
        for k in range(4): a(f'v_mov_b32 v{z+k}, 0\nv_mov_b32 v{z+4+k}, {OOBV}')
        o=f'v[{z+4}:{z+7}]'; zz=f'v[{z}:{z+3}]'
        a(f"""ds_write_b128 v10, {o} offset:{L_LIST}
        v_add_u32 v1, 13312, v10
        ds_write_b128 v1, {o} offset:{L_LIST}
        v_add_u32 v1, 26624, v10
        s_movk_i32 s64, 416
        v_cmpx_gt_u32 vcc, s64, v0
        ds_write_b128 v1, {o} offset:{L_LIST}
        ds_write_b128 v10, {zz} offset:{L_CNT}
        s_movk_i32 s64, 208
        v_cmpx_gt_u32 vcc, s64, v0
        ds_write_b128 v10, v[{z+2}:{z+5}] offset:{L_INFO}
        s_movk_i32 s64, 84
        v_cmpx_gt_u32 vcc, s64, v0
        ds_write_b128 v10, {zz} offset:{L_HIST}
        s_mov_b64 exec, -1""")
    a(f"""s_cmp_ge_u32 s4, 13
    s_cbranch_scc1 p1_help
    v_lshrrev_b32 v2, 3, v0
    v_add_u32 v3, s54, v2
    v_add_u32 v4, 104, v3
    v_and_b32 v5, 7, v0
    v_lshlrev_b32 v5, 4, v5
    v_lshl_add_u32 v6, v3, 7, v5
    v_lshl_add_u32 v7, v4, 7, v5
    v_lshlrev_b32 v8, 1, v3
    v_lshlrev_b32 v9, 1, v4
    s_mul_i32 s55, s2, {CHE*4}
    v_add_u32 v11, s55, v10
    s_add_u32 s55, s55, {CHUNK}
    s_mov_b32 s64, {N}
    v_cmp_gt_u32 s[48:49], s64, v3
    v_cmp_gt_u32 s[50:51], s64, v4
    s_movk_i32 s64, 736
    v_cmp_gt_u32 vcc, s64, v0
    s_and_b64 s[50:51], s[50:51], vcc
    s_movk_i32 s64, 800
    v_cmp_gt_u32 s[52:53], s64, v0
    s_cmp_ge_u32 s2, {NCH}
    s_cselect_b64 s[52:53], 0, s[52:53]
    s_waitcnt lgkmcnt(0)""")
    a(f"""s_mov_b64 exec, s[52:53]
    s_cbranch_execz p1_ne
    global_load_dwordx4 v[12:15], v11, s[12:13] {ent}
    global_load_dwordx4 v[16:19], v11, s[10:11] {ent}
    p1_ne:
""")
    XL=f"""    s_mov_b64 exec, s[48:49]
    s_cbranch_execz p1_nxa
    global_load_dwordx4 v[20:23], v6, s[8:9] {xnt}
    global_load_ushort v28, v8, s[14:15]
    p1_nxa:
    s_mov_b64 exec, s[50:51]
    s_cbranch_execz p1_nxb
    global_load_dwordx4 v[24:27], v7, s[8:9] {xnt}
    global_load_ushort v29, v9, s[14:15]
    p1_nxb:
    s_mov_b64 exec, -1"""
    if xpos==0: a(XL)
    else: a('s_mov_b64 exec, -1')
    wsinit()
    a(f"""s_lshl_b32 s64, s2, 4
    s_add_u32 s64, s64, s4
    s_cmp_lg_u32 s64, {255*16}
    s_cbranch_scc1 p1_nz
    v_and_b32 v40, 15, v0
    v_lshrrev_b32 v41, 4, v0
    v_lshlrev_b32 v40, 8, v40
    v_and_b32 v42, 1, v41
    v_lshrrev_b32 v41, 1, v41
    v_lshl_add_u32 v40, v42, 12, v40
    v_lshl_add_u32 v40, v41, 13, v40
    v_add_u32 v40, {BARP}, v40
    v_mov_b32 v41, 0
    global_store_dword v40, v41, s[30:31] sc1
    v_add_u32 v40, 0x4000, v40
    global_store_dword v40, v41, s[30:31] sc1
    v_add_u32 v40, 0x4000, v40
    global_store_dword v40, v41, s[30:31] sc1
    s_waitcnt vmcnt(0)
    s_mov_b64 exec, 1
    v_mov_b32 v40, 0
    v_mov_b32 v41, 1
    global_store_dword v40, v41, s[28:29] sc1
    s_mov_b64 exec, -1
    p1_nz:""")
    ldsinit(32)
    for n,d in ((3,76),(4,78)):
        line_calc(a,d,n,64,65)
        a(f"""v_lshl_add_u32 v{d}, v{d}, 7, v5
        v_cndmask_b32 v{d}, v36, v{d}, s[{48 if n==3 else 50}:{49 if n==3 else 51}]
        v_and_b32 v64, 128, v{n}
        v_cmp_ne_u32 vcc, 0, v64
        v_add_u32 v{d+1}, 0x2000, v{d}
        v_cndmask_b32 v{d+1}, v36, v{d+1}, vcc""".replace('v_add_u32 v{0}'.format(d+1),'s_nop 0\nv_add_u32 v{0}'.format(d+1)))
    a('s_waitcnt lgkmcnt(0)\ns_barrier')
    stamp('B1')
    if xpos==1: a(XL)
    a(f"""s_mov_b64 exec, s[52:53]
    s_cbranch_execz p1_e1
    s_movk_i32 s64, -{BS}
    v_mov_b32 v33, 1
""")
    if xpos<2: a('s_cmp_lt_u32 s4, 12\ns_cbranch_scc1 p1_w4\ns_waitcnt vmcnt(2)\np1_w4:\ns_waitcnt vmcnt(4)')
    else: a('s_waitcnt vmcnt(0)')
    stamp('ed')
    for i in range(4):
        d=12+i; b=40+i
        a(f"""v_mul_u32_u24 v30, 85599, v{d}
        v_lshrrev_b32 v{52+i}, 24, v30
        v_lshlrev_b32 v{b}, 2, v{52+i}
        ds_add_rtn_u32 v{48+i}, v{b}, v33 offset:{L_HIST}""")
    a('p1_e1:')
    if xpos==2: a(XL)
    a('s_mov_b64 exec, -1\ns_waitcnt lgkmcnt(0)\ns_barrier')
    stamp('B2')
    a(f"""s_cmp_lg_u32 s4, 0
    s_cbranch_scc1 p1_ns
    ds_read_b128 v[72:75], v10 offset:{L_HIST}
    s_waitcnt lgkmcnt(0)
    v_add_u32 v57, v72, v73
    v_add_u32 v58, v57, v74
    v_add_u32 v59, v58, v75
    v_mov_b32 v60, v59
    s_nop 1""")
    for m in ('row_shr:1','row_shr:2','row_shr:4','row_shr:8'):
        a(f'v_add_u32_dpp v60, v60, v60 {m} {DPP} bound_ctrl:0\ns_nop 1')
    a(f"""v_add_u32_dpp v60, v60, v60 row_bcast:15 row_mask:0xa bank_mask:0xf
    s_nop 1
    v_add_u32_dpp v60, v60, v60 row_bcast:31 row_mask:0xc bank_mask:0xf
    v_sub_u32 v60, v60, v59
    v_add_u32 v61, v60, v72
    v_add_u32 v62, v60, v57
    v_add_u32 v63, v60, v58
    ds_write_b128 v10, v[60:63] offset:{L_HIST}
    v_lshl_or_b32 v56, v72, 16, v60
    v_lshl_or_b32 v57, v73, 16, v61
    v_lshl_or_b32 v58, v74, 16, v62
    v_lshl_or_b32 v59, v75, 16, v63
    s_cmp_ge_u32 s2, {NCH}
    s_cbranch_scc1 p1_ns
    s_lshl_b32 s65, s2, 10
    s_add_u32 s65, s65, {OFFS}
    buffer_store_dwordx4 v[56:59], v10, s[40:43], s65 offen sc1
    p1_ns:""")
    for i in range(4):
        d=12+i; s_=16+i; b=52+i; e=44+i
        a(f"""v_mul_u32_u24 v31, 10700, v{s_}
        v_lshrrev_b32 v30, 5, v{b}
        v_lshrrev_b32 v31, 26, v31
        v_mad_i32_i24 v{d}, v{b}, s64, v{d}
        v_sub_u32 v31, v31, v30
        v_and_b32 v31, 7, v31
        v_lshl_add_u32 v{d}, v{d}, 3, v31""")
        line_calc(a,e,s_,30,31)
        a(f"""v_and_b32 v30, 128, v{s_}
        v_lshl_or_b32 v{e}, v30, 10, v{e}
        v_lshl_or_b32 v{e}, v{d}, 18, v{e}""")
    a('s_waitcnt lgkmcnt(0)\ns_barrier')
    stamp('B3')
    a('s_mov_b64 exec, s[52:53]')
    for i in range(4): a(f'ds_read_b32 v{40+i}, v{40+i} offset:{L_HIST}')
    for i in range(4):
        a(f's_waitcnt lgkmcnt(3)\nv_add_lshl_u32 v{40+i}, v{40+i}, v{48+i}, 2')
        a(f'ds_write_b32 v{40+i}, v{44+i} offset:{L_ESTG}')
    a('s_mov_b64 exec, -1\ns_waitcnt lgkmcnt(0)\ns_barrier')
    a(f"""s_mov_b64 exec, s[52:53]
    s_cbranch_execz p1_e3
    ds_read_b128 v[40:43], v10 offset:{L_ESTG}
    s_waitcnt lgkmcnt(0)
    buffer_store_dwordx4 v[40:43], v10, s[40:43], s55 offen sc1
    p1_e3:
    s_mov_b64 exec, -1""")
    if xpos==3:
        a(XL)
        a('s_cmp_lt_u32 s4, 12\ns_cbranch_scc1 p1_w4\ns_waitcnt vmcnt(2)\np1_w4:\ns_waitcnt vmcnt(4)')
    else: a('s_waitcnt vmcnt(0)')
    stamp('pa')
    a('s_barrier\ns_mov_b32 s66, 0x3f803f80\ns_waitcnt vmcnt(0)')
    for (X,D,n,m,off) in ((20,28,3,48,0),(24,29,4,50,832)):
        l=a.lab('xc')
        a(f's_mov_b64 exec, s[{m}:{m+1}]\ns_cbranch_execz {l}')
        a(f'v_lshlrev_b32 v{D}, 16, v{D}')
        for i in range(4):
            a(f"""v_lshlrev_b32 v64, 16, v{X+i}
            v_and_b32 v65, 0xffff0000, v{X+i}
            v_mul_f32 v64, v{D}, v64
            v_mul_f32 v65, v{D}, v65
            v_cvt_pk_bf16_f32 v{(100 if off==0 else 104)+i}, v64, v65""")
        a(f'{l}:')
    for (X,D,n,m,off) in ((20,28,3,48,0),(24,29,4,50,832)):
        l=a.lab('xr')
        a(f's_mov_b64 exec, s[{m}:{m+1}]\ns_cbranch_execz {l}')
        rho_calc(a,X,64,65,None,'s66')
        a(f"""v_mov_b32 v65, v{D}
        v_lshlrev_b32 v66, 3, v2
        ds_write_b64 v66, v[64:65] offset:{L_R0+off}
        {l}:""")
    a('s_mov_b64 exec, -1\ns_branch p1_done')
    a(f"""p1_help:
    v_and_b32 v2, 63, v0
    v_and_b32 v3, 15, v0
    v_bfe_u32 v4, v0, 4, 2
    v_lshrrev_b32 v5, 2, v3
    v_and_b32 v6, 3, v0
    v_lshl_add_u32 v5, v5, 3, v6
    v_lshlrev_b32 v5, 7, v5
    v_lshl_add_u32 v5, v4, 4, v5
    v_add_u32 v7, 0x1000, v5
    s_waitcnt lgkmcnt(0)
    s_cmp_eq_u32 s4, 13
    s_cbranch_scc1 p1_probe
    s_barrier
    s_cmp_eq_u32 s4, 14
    s_cselect_b32 s64, s16, s20
    s_cselect_b32 s65, s17, s21""")
    WA=12; WBx=44; WD=[76,92,108,44]
    for t in range(4):
        for s_ in range(2):
            r=WA+8*t+4*s_
            a(f'global_load_dwordx4 v[{r}:{r+3}], v{5 if t<2 else 7}, s[64:65] offset:{512*(t&1)+64*s_}')
    a('s_cbranch_scc0 p1_wo')
    for t in range(4):
        for s_ in range(2):
            r=WBx+8*t+4*s_
            a(f'global_load_dwordx4 v[{r}:{r+3}], v{5 if t<2 else 7}, s[18:19] offset:{512*(t&1)+64*s_}')
    wsinit()
    XP=f"""v_add_u32 v8, s54, v2
    v_lshlrev_b32 v9, 7, v8
    s_mov_b32 s44, s8
    s_mov_b32 s45, s9
    s_mov_b32 s46, {N*128}
    s_mov_b32 s47, 0x20000
    s_movk_i32 s64, 0x2000
    s_movk_i32 s65, 0x4000
    buffer_load_dword v126, v9, s[44:47], 0 offen {xnt}
    buffer_load_dword v126, v9, s[44:47], s64 offen {xnt}
    buffer_load_dword v126, v9, s[44:47], s65 offen {xnt}
    s_movk_i32 s64, 0x6000
    s_mov_b64 exec, 15
    buffer_load_dword v126, v9, s[44:47], s64 offen {xnt}
    v_lshlrev_b32 v9, 7, v2
    s_lshl_b32 s64, s54, 1
    s_mov_b32 s44, s14
    s_mov_b32 s45, s15
    s_mov_b32 s46, {N*2}
    buffer_load_dword v126, v9, s[44:47], s64 offen {xnt}
    s_mov_b64 exec, -1"""
    if xpf==1: a(XP)
    a('s_barrier')
    if xpf==2: a(XP)
    a(f's_barrier\ns_barrier\ns_barrier\ns_waitcnt vmcnt({5 if xpf else 0})')
    a('s_branch p1_wm\np1_wo:\nv_lshlrev_b32 v8, 4, v2\nv_add_u32 v9, 0x1000, v8')
    for k in range(8):
        a(f'global_load_dwordx4 v[{76+4*k}:{79+4*k}], v{8 if k<4 else 9}, s[22:23] offset:{1024*(k&3)}')
    wsinit()
    a(f"""v_add_u32 v8, {L_WP}, v8
    v_bfe_u32 v9, v0, 2, 2
    v_lshl_add_u32 v9, v4, 3, v9
    v_lshlrev_b32 v9, 7, v9
    v_lshl_add_u32 v9, v6, 4, v9
    v_add_u32 v9, {L_WP}, v9
    s_barrier
    s_barrier
    s_barrier
    s_waitcnt vmcnt(0)""")
    for k in range(8): a(f'ds_write_b128 v8, v[{76+4*k}:{79+4*k}] offset:{1024*k}')
    a('s_waitcnt lgkmcnt(0)')
    for T in range(4):
        for s_ in range(2):
            for hf in range(2):
                r=WBx+8*T+4*s_+2*hf
                a(f'ds_read_b64_tr_b16 v[{r}:{r+1}], v9 offset:{4096*s_+512*hf+64*(T>>1)+8*(T&1)}')
        if T==2: a('s_waitcnt lgkmcnt(8)')
    a('s_waitcnt lgkmcnt(0)\np1_wm:')
    for T in range(4):
        for s_ in range(2):
            for t in range(4):
                d=WD[T]+4*t
                a(f'v_mfma_f32_16x16x32_bf16 v[{d}:{d+3}], v[{WA+8*t+4*s_}:{WA+8*t+4*s_+3}], v[{WBx+8*T+4*s_}:{WBx+8*T+4*s_+3}], '+(f'v[{d}:{d+3}]' if s_ else '0'))
    a('s_nop 7')
    for T in range(4):
        d=WD[T]
        a(f'v_pk_add_f32 v[{20+2*T}:{21+2*T}], v[{d}:{d+1}], v[{d+2}:{d+3}]')
    for k in range(2,8):
        for T in range(4):
            d=WD[T]; a(f'v_pk_add_f32 v[{20+2*T}:{21+2*T}], v[{20+2*T}:{21+2*T}], v[{d+2*k}:{d+2*k+1}]')
    for T in range(4): a(f'v_add_f32 v{12+T}, v{20+2*T}, v{21+2*T}')
    for sw in ('v_permlane16_swap_b32','v_permlane32_swap_b32'):
        for T in range(4): a(f'v_mov_b32 v{16+T}, v{12+T}')
        a('s_nop 1')
        for T in range(4): a(f'{sw} v{12+T}, v{16+T}')
        for T in range(4): a(f'v_add_f32 v{12+T}, v{12+T}, v{16+T}')
    for T in range(4): a(f'v_mul_f32 v{20+2*T}, 0xbc800000, v{12+T}')
    a('s_cmp_eq_u32 s4, 14\ns_cbranch_scc0 p1_wc')
    for k in range(8):
        a(f'v_pk_add_f32 v[{28+2*k}:{29+2*k}], v[{WD[0]+2*k}:{WD[0]+2*k+1}], v[{WD[1]+2*k}:{WD[1]+2*k+1}]')
    for T in (2,3):
        for k in range(8): a(f'v_pk_add_f32 v[{28+2*k}:{29+2*k}], v[{28+2*k}:{29+2*k}], v[{WD[T]+2*k}:{WD[T]+2*k+1}]')
    a('v_add_f32 v12, v20, v22\nv_add_f32 v13, v24, v26\nv_add_f32 v12, v12, v13\ns_nop 1')
    for m in ('quad_perm:[1,0,3,2]','quad_perm:[2,3,0,1]','row_half_mirror','row_mirror'):
        a(f'v_add_f32_dpp v12, v12, v12 {m} {DPP}')
        for k in range(16): a(f'v_add_f32_dpp v{28+k}, v{28+k}, v{28+k} {m} {DPP}')
    a('v_mul_f32 v12, 0xbc800000, v12\nv_mov_b32 v14, 0xbc800000')
    for T in range(4): a(f'v_add_f32 v{20+2*T}, v{20+2*T}, v12')
    for T in range(4):
        for k in range(8):
            d=WD[T]+2*k
            a(f'v_pk_fma_f32 v[{d}:{d+1}], v[{28+2*k}:{29+2*k}], v[14:15], v[{d}:{d+1}] op_sel_hi:[1,0,1]')
    a(f"""p1_wc:
    s_sub_u32 s64, s4, 14
    s_lshl_b32 s64, s64, 13
    s_add_u32 s64, s64, {L_W}
    v_lshlrev_b32 v8, 4, v2
    v_add_u32 v8, s64, v8""")
    for T in range(4):
        for k in range(8):
            d=WD[T]+2*k
            a(f'v_pk_add_f32 v[{d}:{d+1}], v[{d}:{d+1}], v[{20+2*T}:{21+2*T}] op_sel_hi:[1,0]')
        for s_ in range(2):
            d=WD[T]+8*s_
            for k in range(4): a(f'v_cvt_pk_bf16_f32 v{d+k}, v{d+2*k}, v{d+2*k+1}')
            a(f'ds_write_b128 v8, v[{d}:{d+3}] offset:{2048*T+1024*s_}')
    a(f"""s_cmp_eq_u32 s4, 14
    s_cbranch_scc1 p1_done
    s_mov_b64 exec, 1
    v_mov_b32 v56, 0
    global_load_dword v58, v56, s[28:29] sc1
    s_mov_b32 s63, 0
    s_mov_b32 s62, 1""")
    baraddr(a,BARP+16384)
    a(f"""s_mov_b32 s64, 0
    s_waitcnt vmcnt(0)
    s_barrier
    gb0_i:
    v_readfirstlane_b32 s65, v58
    s_cmp_lg_u32 s65, 0
    s_cbranch_scc1 gb0_id
    s_sleep 2
    global_load_dword v58, v56, s[28:29] sc1
    s_add_u32 s64, s64, 1
    s_cmp_lt_u32 s64, 0x400000
    s_waitcnt vmcnt(0)
    s_cbranch_scc1 gb0_i
    gb0_id:
    v_mov_b32 v56, {L_RED}
    ds_read_b32 v57, v56 offset:12
    v_mov_b32 v56, s56
    s_waitcnt lgkmcnt(0)
    global_atomic_add v58, v56, v57, s[30:31] sc0 sc1
    v_mov_b32 v56, s57
    s_waitcnt vmcnt(0)
    v_add_u32 v57, v57, v58
    s_nop 0
    v_readfirstlane_b32 s65, v57
    s_and_b32 s64, s65, 0xff
    s_cmp_lg_u32 s64, 32
    s_cbranch_scc1 gb0_np
    s_sub_u32 s65, s65, 31""")
    bar_l2(a,'gb0')
    a('s_mov_b32 s64, 8')
    bar_poll(a,'gb0',votes=True)
    a(f'v_mov_b32 v56, {L_RED}\nds_write_b32 v56, v58 offset:8')
    baraddr(a,BARP+32768)
    a('s_mov_b64 exec, -1\ns_branch p1_done')
    a('p1_probe:')
    wsinit()
    a(f"""s_and_b32 s64, s2, 3
    s_and_b32 s74, s2, 1
    s_lshl_b32 s64, s64, 21
    s_lshr_b32 s65, s2, 2
    s_lshl_b32 s65, s65, 7
    s_add_u32 s64, s64, s65
    s_add_u32 s64, s64, {254*8192}
    v_mov_b32 v40, s64
    v_add_u32 v41, 0x2000, v40
    v_mov_b32 v42, 0
    v_mov_b32 v76, -1
    v_mov_b32 v77, -1
    v_mov_b32 v78, -1
    v_mov_b32 v79, -1
    v_cmp_gt_u32 vcc, 5, v2
    v_add_u32 v45, 37, v2
    v_cmp_eq_u32 s[66:67], 5, v2
    v_cndmask_b32 v45, v45, v2, vcc
    v_cmp_eq_u32 vcc, 8, v2
    v_mov_b32 v46, 0x1fff80
    v_cndmask_b32 v46, v46, 0, s[66:67]
    v_cndmask_b32 v45, v45, 47, vcc
    v_lshl_add_u32 v45, v45, 21, v46
    s_mov_b64 exec, 0x1ff
    global_load_dword v47, v45, s[30:31] sc1
    s_mov_b64 exec, 1
    global_load_dword v47, v42, s[28:29] sc1
    global_atomic_add v43, v40, v42, s[30:31] sc0 sc1
    global_atomic_add v44, v41, v42, s[30:31] sc0 sc1
    s_barrier
    s_barrier
    PB3
    s_mov_b32 s72, 0
    s_mov_b32 s67, 0
    s_waitcnt vmcnt(0)
    p1_pl:
    global_atomic_add v43, v40, v42, s[30:31] sc0 sc1
    global_atomic_add v44, v41, v42, s[30:31] sc0 sc1
    s_waitcnt vmcnt(1)
    s_memtime s[68:69]
    s_waitcnt vmcnt(0)
    s_memtime s[70:71]
    v_swap_b32 v40, v41
    s_waitcnt lgkmcnt(0)
    s_sub_u32 s66, s70, s68
    s_sub_u32 s67, s66, s67
    s_add_u32 s72, s72, 1
    PBMID
    s_cmp_lt_u32 s72, {nprobe}
    s_cbranch_scc1 p1_pl
    s_cmp_gt_i32 s67, 0
    s_cselect_b32 s65, 1, 0
    s_xor_b32 s65, s65, s6
    s_xor_b32 s65, s65, s74
    s_lshl_b32 s65, s65, 8
    s_or_b32 s65, s65, 1
    v_mov_b32 v41, s65
    v_mov_b32 v40, {L_RED}
    ds_write_b32 v40, v41 offset:12
    s_waitcnt lgkmcnt(0)
    s_barrier
    s_mov_b64 exec, -1""")
    a(f"""p1_done:
    v_lshrrev_b32 v2, 2, v0
    v_and_b32 v3, 3, v0
    v_lshlrev_b32 v70, 10, v2
    s_lshl_b32 s92, s5, 2
    s_add_u32 s92, s92, {OFFS}
    s_movk_i32 s65, {NCH}
    v_cmp_gt_u32 s[48:49], s65, v2
    v_mov_b32 v72, {OOBV}
    v_and_b32 v73, 63, v0
    v_lshlrev_b32 v8, 2, v73
    v_cndmask_b32 v70, v72, v70, s[48:49]
    v_mul_u32_u24 v71, {CHE*4}, v2
    v_lshl_add_u32 v71, v3, 4, v71
    v_add_u32 v71, {CHUNK}, v71
    v_lshlrev_b32 v3, 2, v3
    v_mov_b32 v21, 1
    s_waitcnt lgkmcnt(0)""")
    stamp('p1')
    a('s_barrier')
    stamp('b0')
    if stop=='p1': a('s_endpgm')
    a(f"""buffer_load_dword v5, v70, s[40:43], s92 offen sc1
    v_mov_b32 v62, {L_RED}
    ds_read_b32 v63, v62 offset:8
    s_waitcnt vmcnt(0)
    v_and_b32 v9, 0xffff, v5
    v_lshrrev_b32 v11, 16, v5
    v_lshl_add_u32 v4, v9, 2, v71
    v_cndmask_b32 v4, v72, v4, s[48:49]
    buffer_load_dwordx4 v[12:15], v4, s[40:43], 0 offen sc1
    buffer_load_dwordx4 v[16:19], v4, s[40:43], 0 offen offset:64 sc1
    v_sub_u32 v20, v11, v3
    v_mov_b32 v6, v72
    v_mov_b32 v7, v73
    s_waitcnt lgkmcnt(0)
    v_readfirstlane_b32 s60, v63
    s_cmp_ge_u32 s60, 0x8000
    s_cselect_b32 s61, 1, 0
    s_xor_b32 s58, s61, s6
    s_cmp_eq_u32 s58, 0
    s_cselect_b32 s58, 10, 21
    s_cmp_ge_u32 s4, 13
    s_cbranch_scc1 p2_x0
    USTORE1
    s_waitcnt vmcnt(UW)
    s_branch p2_x1
    p2_x0:
    s_waitcnt vmcnt(0)
    p2_x1:""")
    def each_entry(body,regs,base):
        for r,e in enumerate(regs):
            a(f'v_cmpx_lt_i32 vcc, {base[r]}, v20')
            body(e)
        a('s_mov_b64 exec, -1')
    regs=list(range(12,20)); base=[0,1,2,3,16,17,18,19]
    def pass1(regs):
        for k,e in enumerate(regs): a(f'v_lshrrev_b32 v{80+k}, 16, v{e}\nv_and_b32 v{80+k}, 0x1ffc, v{80+k}')
        ad={e:80+k for k,e in enumerate(regs)}
        each_entry(lambda e: a(f'ds_add_u32 v{ad[e]}, v21 offset:{L_CNT}'),regs,base)
    stamp('sg')
    pass1(regs)
    def longseg(nm,whole):
        a(f"""v_cmp_lt_i32 vcc, 32, v20
        s_cbranch_vccnz {nm}
        {nm}_d:""")
        def tail():
            a(f"""{nm}:
            v_mov_b32 v23, v20
            v_mov_b32 v24, v4
            {nm}_l:
            v_subrev_u32 v20, 32, v20
            v_add_u32 v24, 128, v24
            v_cmp_lt_i32 vcc, 0, v20
            s_cbranch_vccz {nm}_r
            buffer_load_dwordx4 v[28:31], v24, s[40:43], 0 offen sc1
            buffer_load_dwordx4 v[32:35], v24, s[40:43], 0 offen offset:64 sc1
            s_waitcnt vmcnt(0)""")
            whole(list(range(28,36)))
            a(f"""s_branch {nm}_l
            {nm}_r:
            v_mov_b32 v20, v23""")
            for k,e in enumerate(regs): a(f'v_lshrrev_b32 v{80+k}, 16, v{e}\nv_and_b32 v{80+k}, 0x1ffc, v{80+k}')
            a(f's_branch {nm}_d')
        tails.append(tail)
    tails=[]
    a('s_cmp_ge_u32 s4, 13\ns_cbranch_scc1 p2_x2\nUSTORE2\np2_x2:')
    longseg('ls1',pass1)
    a('s_waitcnt lgkmcnt(0)\ns_barrier')
    stamp('c1')
    a(f"""s_cmp_ge_u32 s4, 4
    s_cbranch_scc1 p2_n1
    v_add_u32 v36, s54, v0
    s_mov_b32 s64, {N}
    v_cmp_gt_u32 vcc, s64, v36
    s_movk_i32 s64, {BS}
    v_cmp_gt_u32 s[64:65], s64, v0
    s_and_b64 s[66:67], vcc, s[64:65]
    s_mov_b64 exec, s[66:67]
    v_lshlrev_b32 v37, 5, v0
    v_lshlrev_b32 v38, 3, v0
    ds_read_b128 v[40:43], v37 offset:{L_CNT}
    ds_read_b128 v[44:47], v37 offset:{L_CNT+16}
    ds_read_b64 v[58:59], v38 offset:{L_R0}""")
    line_calc(a,66,36,62,63)
    a(f"""v_lshlrev_b32 v66, 7, v66
    v_and_b32 v62, 128, v36
    v_add_u32 v67, 0x2000, v66
    v_cmp_ne_u32 vcc, 0, v62
    v_mov_b32 v48, 0
    s_waitcnt lgkmcnt(1)
    v_cndmask_b32 v67, v6, v67, vcc
    v_mov_b32 v49, v40
    v_add_u32 v50, v49, v41
    v_add_u32 v51, v50, v42
    v_add_u32 v52, v51, v43
    v_add_u32 v53, v52, v44
    v_add_u32 v54, v53, v45
    v_add_u32 v55, v54, v46
    v_add_u32 v65, v55, v47
    v_min_u32 v57, 63, v65
    v_sub_u32 v57, 63, v57
    v_lshlrev_b32 v57, 2, v57
    ds_add_rtn_u32 v60, v57, v21 offset:{L_DH}
    s_mov_b64 exec, -1
    p2_n1:""")
    def offs(regs):
        for e in regs:
            a(f"""v_bfe_u32 v26, v{e}, 14, 3
            v_lshrrev_b32 v27, 17, v{e}
            v_bfe_u32 v26, s58, v26, 1
            v_and_b32 v{e}, 0x1ffff, v{e}
            v_and_b32 v26, v26, v27
            v_lshl_add_u32 v{e}, v26, 6, v{e}
            v_lshlrev_b32 v{e}, 7, v{e}""")
    a(f"""s_waitcnt lgkmcnt(0)
    s_barrier
    s_cmp_ge_u32 s4, 4
    s_cbranch_scc1 p2_n2
    ds_read_b32 v61, v8 offset:{L_DH}
    s_waitcnt lgkmcnt(0)
    v_mov_b32 v62, v61
    s_nop 1""")
    for m in ('row_shr:1','row_shr:2','row_shr:4','row_shr:8'):
        a(f'v_add_u32_dpp v62, v62, v62 {m} {DPP} bound_ctrl:0\ns_nop 1')
    a(f"""v_add_u32_dpp v62, v62, v62 row_bcast:15 row_mask:0xa bank_mask:0xf
    s_nop 1
    v_add_u32_dpp v62, v62, v62 row_bcast:31 row_mask:0xc bank_mask:0xf
    v_sub_u32 v62, v62, v61
    ds_bpermute_b32 v62, v57, v62
    s_mov_b64 exec, s[66:67]
    v_or_b32 v64, v59, v0
    s_waitcnt lgkmcnt(0)
    v_add_u32 v60, v60, v62
    v_lshlrev_b32 v61, 20, v60""")
    for j in range(8): a(f'v_or_b32 v{48+j}, v61, v{48+j}')
    a(f"""ds_write_b128 v37, v[48:51] offset:{L_CNT}
    ds_write_b128 v37, v[52:55] offset:{L_CNT+16}
    v_lshlrev_b32 v62, 4, v60
    ds_write_b128 v62, v[64:67] offset:{L_INFO}
    v_lshlrev_b32 v62, 5, v60
    v_add_u32 v62, {L_RHO-65024}, v62
    ds_write_b32 v62, v58 offset:65024
    v_cmp_lt_u32 vcc, {CAP}, v65
    s_and_b64 exec, exec, vcc
    s_cbranch_execz p2_n3
    v_subrev_u32 v56, {CAP}, v65
    v_mov_b32 v62, {L_RED}
    ds_add_rtn_u32 v63, v62, v56
    v_lshlrev_b32 v62, 2, v60
    s_waitcnt lgkmcnt(0)
    ds_write_b32 v62, v63 offset:{L_INF2}
    s_branch p2_n3
    p2_n2:""")
    offs(regs)
    a('p2_n3:\ns_mov_b64 exec, -1')
    a('s_waitcnt lgkmcnt(0)\ns_barrier')
    stamp('nd')
    def pass2(regs,slow):
        cur={e:40+k for k,e in enumerate(regs)}; ad={e:80+k for k,e in enumerate(regs)}
        each_entry(lambda e: a(f'ds_add_rtn_u32 v{cur[e]}, v{ad[e]}, v21 offset:{L_CNT}'),regs,base)
        if not slow:
            a(f"""v_mov_b32 v62, {L_RED}
            ds_read_b32 v63, v62
            s_cmp_ge_u32 s4, 4
            s_cbranch_scc1 p2_o2""")
            offs(regs)
            a(f"""p2_o2:
            s_movk_i32 s64, 160
            s_mov_b32 s65, 0xfffff
            s_waitcnt lgkmcnt(0)
            v_readfirstlane_b32 s59, v63
            s_cmp_lg_u32 s59, 0
            s_cbranch_scc1 p2_ovf""")
            for e in regs:
                a(f"""v_lshrrev_b32 v26, 20, v{cur[e]}
                v_and_b32 v{cur[e]}, s65, v{cur[e]}
                v_mul_u32_u24 v26, s64, v26
                v_lshl_add_u32 v{cur[e]}, v{cur[e]}, 2, v26""")
            each_entry(lambda e: a(f'ds_write_b32 v{cur[e]}, v{e} offset:{L_LIST}'),regs,base)
        else:
            a('s_waitcnt lgkmcnt(0)')
            slow2(regs)
    def slow2(regs):
        cur={e:40+k for k,e in enumerate(regs)}
        for r,e in enumerate(regs):
            l=a.lab('ov')
            a(f"""v_cmp_lt_i32 s[70:71], {base[r]}, v20
            v_lshrrev_b32 v26, 20, v{cur[e]}
            v_and_b32 v25, s65, v{cur[e]}
            v_cmp_gt_u32 vcc, {CAP}, v25
            v_mul_u32_u24 v22, s64, v26
            v_lshl_add_u32 v22, v25, 2, v22
            s_and_b64 exec, s[70:71], vcc
            ds_write_b32 v22, v{e} offset:{L_LIST}
            s_andn2_b64 exec, s[70:71], vcc
            s_cbranch_execz {l}
            v_lshlrev_b32 v26, 2, v26
            ds_read_b32 v26, v26 offset:{L_INF2}
            v_subrev_u32 v25, {CAP}, v25
            s_waitcnt lgkmcnt(0)
            v_add_lshl_u32 v25, v25, v26, 2
            buffer_store_dword v{e}, v25, s[40:43], s59 offen
            {l}:
            s_mov_b64 exec, -1""")
    pass2(regs,False)
    a('p2_ovd:')
    def long2(regs):
        for k,e in enumerate(regs): a(f'v_lshrrev_b32 v{80+k}, 16, v{e}\nv_and_b32 v{80+k}, 0x1ffc, v{80+k}')
        offs(regs); pass2(regs,True)
    longseg('ls2',long2)
    def ovf_tail():
        a(f"""p2_ovf:
        v_cmp_eq_u32 vcc, 0, v3
        s_mov_b64 exec, vcc
        ds_add_u32 v62, v9 offset:4
        s_mov_b64 exec, -1
        s_waitcnt lgkmcnt(0)
        s_barrier
        ds_read_b32 v63, v62 offset:4
        s_waitcnt lgkmcnt(0)
        v_readfirstlane_b32 s59, v63
        s_lshl_b32 s59, s59, 2
        s_add_u32 s59, s59, {OVF}""")
        slow2(regs)
        a('s_branch p2_ovd')
    tails.append(ovf_tail)
    a('s_waitcnt vmcnt(0) lgkmcnt(0)\ns_barrier')
    stamp('c2')
    a('s_cmp_ge_u32 s4, 13\ns_cbranch_scc1 k_hx')
    a(f"""v_mov_b32 v0, v7
    v_lshrrev_b32 v115, 3, v0
    s_lshl_b32 s64, s4, 4
    v_add_u32 v115, s64, v115
    v_and_b32 v114, 3, v0
    v_mul_u32_u24 v6, 160, v115
    v_lshl_add_u32 v7, v114, 3, v6
    v_lshl_add_u32 v6, v114, 4, v6
    ds_read_b128 v[16:19], v6 offset:{L_LIST}
    ds_read_b128 v[26:29], v6 offset:{L_LIST+1280}
    v_lshlrev_b32 v116, 4, v115
    v_and_b32 v1, 7, v0
    v_lshlrev_b32 v1, 4, v1""")
    for s in range(2):
        o=16+10*s
        a(f"""ds_read_b128 v[{100+4*s}:{103+4*s}], v116 offset:{L_INFO+128*s}
        ds_read_b128 v[{o+4}:{o+7}], v6 offset:{L_LIST+1280*s+64}
        ds_read_b64 v[{o+8}:{o+9}], v7 offset:{L_LIST+1280*s+128}""")
    a(f"""s_mov_b32 s32, s36
    s_mov_b32 s33, s37
    s_mov_b32 s34, s38
    s_mov_b32 s35, 0x20000
    s_mov_b32 s3, 1
    v_mov_b32 v126, -1
""")
    stamp('p2')
    def deferred():
        a(f"""v_lshlrev_b32 v116, 2, v115
        ds_read_b32 v122, v116 offset:{L_INF2}
        ds_read_b32 v123, v116 offset:{L_INF2+32}
        v_mov_b32 v6, 0x3f80
        v_mov_b32 v7, 0x3f800000
        v_cmp_eq_u32 s[70:71], 0, v114
        v_cmp_eq_u32 s[64:65], 1, v114
        v_cmp_eq_u32 s[66:67], 2, v114
        v_cmp_eq_u32 s[68:69], 3, v114
        v_cndmask_b32 v2, 0, v6, s[70:71]
        v_cndmask_b32 v3, 0, v6, s[66:67]
        v_cndmask_b32 v2, v2, v7, s[64:65]
        v_cndmask_b32 v3, v3, v7, s[68:69]
        s_movk_i32 s64, {BS}
        v_cmp_gt_u32 s[48:49], s64, v115
        s_movk_i32 s64, {BS-8}
        v_cmp_gt_u32 s[50:51], s64, v115
        v_lshlrev_b32 v116, 7, v115
        v_lshlrev_b32 v117, 5, v115
        v_add_u32 v117, {L_RHO}, v117
        s_waitcnt lgkmcnt(0)
        v_max_u32 v4, v101, v105
        v_mov_b32 v120, v101
        v_mov_b32 v121, v105
        v_max_u32_dpp v4, v4, v4 row_shr:8 {DPP} bound_ctrl:0
        s_nop 1
        v_max_u32_dpp v4, v4, v4 row_bcast:15 row_mask:0xa bank_mask:0xf
        s_nop 1
        v_max_u32_dpp v4, v4, v4 row_bcast:31 row_mask:0xc bank_mask:0xf
        s_nop 1
        v_readlane_b32 s53, v4, 63""")
        for s in range(2):
            i=100+4*s
            a(f"""v_add_u32 v{8+s}, v{i+2}, v1
            v_add_u32 v{10+s}, v{i+3}, v1
            v_and_b32 v4, 0xffff0000, v{i}
            v_mul_f32 v{12+s}, v4, v4
            v_cmp_eq_f32 s[64:65], 0, v4
            v_and_b32 v5, 0xffff, v{i}
            v_add_u32 v5, s54, v5
            v_cndmask_b32 v{124+s}, v4, 1.0, s[64:65]
            v_lshl_add_u32 v{118+s}, v5, 7, v1
            v_cmp_gt_u32 s[64:65], s38, v{i+2}
            v_rcp_f32 v{14+s}, v{124+s}
            s_nop 0
            v_cndmask_b32 v{118+s}, v{i+2}, v{118+s}, s[64:65]""")
        a(f"""s_max_u32 s52, s53, {K//2}
        s_min_u32 s52, s52, {CAP}
        s_add_u32 s36, s36, {TSTR}
        s_addc_u32 s37, s37, 0
        s_mov_b32 s76, 0x3f803f80
        v_lshrrev_b32 v4, 4, v0
        v_lshlrev_b32 v4, 4, v4
        global_load_dwordx4 v[84:87], v4, s[24:25]
        global_load_dwordx4 v[88:91], v4, s[24:25] offset:64""")
    def late():
        a(f"""s_mul_i32 s95, s4, {STG}
        s_add_u32 s95, s95, {L_STAGE}
        s_xor_b32 s63, s61, 1
        s_mov_b32 s62, 0""")
        a('s_cmp_lg_u32 s4, 0\ns_cbranch_scc1 f_nb')
        baraddr(a,BARP)
        if stamps: a('s_mov_b32 s94, s60')
        a('f_nb:')
        if stag>=4: a(f'v_mov_b32 v4, {L_END}\nv_mov_b32 v5, 0\nds_write_b32 v4, v5')
        if pf:
            a(f"""v_lshrrev_b32 v4, 4, v0
            v_lshl_add_u32 v4, v4, 5, s5
            v_and_b32 v4, 0xff, v4
            v_mul_u32_u24 v4, {BS}, v4
            v_and_b32 v5, 15, v0
            s_lshl_b32 s64, s4, 4
            s_sub_u32 s64, s64, 16
            v_add3_u32 v4, v4, v5, s64""")
            line_calc(a,126,4,5,6)
            a(f"""v_lshrrev_b32 v5, 14, v126
            v_bfe_u32 v5, s58, v5, 1
            v_lshrrev_b32 v6, 7, v4
            v_and_b32 v5, v5, v6
            v_lshl_add_u32 v126, v5, 6, v126
            v_lshlrev_b32 v126, 7, v126""")
    def late2():
        for s_ in range(2):
            a(f"""s_mov_b64 exec, s[{48+2*s_}:{49+2*s_}]
            v_lshrrev_b32 v4, 3, v116
            v_add_u32 v4, {L_ND+128*s_}, v4
            v_mov_b32 v52, v{124+s_}
            v_mov_b32 v53, v{14+s_}
            v_sub_u32 v54, v{118+s_}, v1
            v_mov_b32 v55, 0
            ds_write_b128 v4, v[52:55]""")
        a('s_mov_b64 exec, -1')
    if dump:
        deferred()
        a(f's_lshl_b32 s64, s2, 4\ns_add_u32 s64, s64, s4\ns_mul_i32 s64, s64, {40*256}\ns_add_u32 s64, s64, {DUMP}\nv_lshlrev_b32 v4, 2, v0\nv_add_u32 v4, s64, v4')
        for i,r in enumerate(list(range(8,36))+list(range(118,126))):
            a(f'global_store_dword v4, v{r}, s[30:31]\nv_add_u32 v4, 256, v4')
        a('v_mov_b32 v5, s53\nglobal_store_dword v4, v5, s[30:31]\nv_add_u32 v4, 256, v4\nv_mov_b32 v5, s60\nglobal_store_dword v4, v5, s[30:31]\nv_add_u32 v4, 256, v4\nds_read_b32 v5, v117\ns_waitcnt lgkmcnt(0)\nglobal_store_dword v4, v5, s[30:31]')
    if stop=='p2': a('s_endpgm')
    deferred()
    late(); late2()
    a('s_barrier')
    stamp('h0')
    if side in ('min','minb'):
        a('s_waitcnt lgkmcnt(0)\ns_cmp_lg_u32 s4, 0\ns_cbranch_scc1 sd_n\ns_not_b32 s64, s80\nv_mov_b32 v4, 0\nv_mov_b32 v5, s64\ns_mov_b64 exec, 1\nglobal_atomic_umax v4, v5, s[28:29] offset:8 sc1\ns_mov_b64 exec, -1\nsd_n:')
    a('h_top:')
    XA=52; XB=68; TA=120; TB=[40,41,42,43,48,49,50,51]; TQ=10; WB=[18,22,26]; Z=10; ST=[84,88]; BA=92; BB=96; BO=100
    vW,vOq,vA,vTr,vRk,vRq,vNd,vNs,vBw,vBr,vNo,vS=range(104,116); vAq=114+11
    mRA,mRT,mVA,mVB,mH0,mRH,mCA,mCB='s[10:11]','s[12:13]','s[14:15]','s[16:17]','s[18:19]','s[20:21]','s[22:23]','s[8:9]'
    t0_,t1_,cq,dq=2,3,4,5; sv=6; vo=7
    def tokaddr(dst,n,h,ch,t1,t2,mask):
        a(f"""v_lshlrev_b32 v{t1}, 4, v{ch}
        v_lshl_add_u32 v{t1}, v{n}, 7, v{t1}
        v_and_b32 v{t2}, 3, v{h}
        v_lshl_add_u32 v{t1}, v{t2}, 6, v{t1}
        v_lshrrev_b32 v{t2}, 2, v{h}
        v_lshl_add_u32 v{t1}, v{t2}, 5, v{t1}
        v_subrev_u32 v{t2}, 1, v{h}
        v_cmp_gt_u32 {mask}, 4, v{t2}
        v_mul_u32_u24 v{t2}, {PL2}, v{t2}
        v_add3_u32 v{t2}, v{t2}, v{t1}, s64
        v_subrev_u32 v{dst}, 4, v{h}
        v_max_i32 v{dst}, 0, v{dst}
        v_lshl_add_u32 v{dst}, v{dst}, 9, v{t1}
        v_add_u32 v{dst}, s95, v{dst}
        v_cndmask_b32 v{dst}, v{dst}, v{t2}, {mask}""")
    J,Q,C3,Q16,H,NN,QH,T1,T2,T3,T4,T5=4,5,6,7,56,57,58,59,60,61,62,63
    def fsetup():
        a(f"""v_and_b32 v{J}, 15, v0
        v_lshrrev_b32 v{Q}, 4, v0
        v_lshlrev_b32 v{Q16}, 4, v{Q}
        s_lshl_b32 s64, s4, 11
        v_and_b32 v{H}, 7, v0
        v_lshrrev_b32 v{NN}, 3, v{J}
        v_bfe_u32 v{T1}, v0, 3, 2
        v_lshl_add_u32 v{T1}, v{T1}, 7, v1
        v_add_u32 v{vS}, s95, v{T1}""")
        tokaddr(vA,NN,H,Q,T1,T2,mRA)
        a(f"""v_lshrrev_b32 v{QH}, 1, v{Q}
        v_and_b32 v{T3}, 1, v{Q}
        v_bfe_u32 v{T4}, v0, 2, 2
        v_lshl_add_u32 v{T3}, v{T3}, 2, v{T4}
        v_and_b32 v{C3}, 3, v0
        v_lshlrev_b32 v{T4}, 8, v{NN}
        v_sub_u32 v{vAq}, v{vA}, v{T4}
        v_add_u32 v{vAq}, 0x180, v{vAq}""")
        tokaddr(vTr,QH,T3,C3,T1,T2,mRT)
        a(f"""v_cmp_eq_u32 {mVA}, v{QH}, v{NN}
        v_cmp_ne_u32 {mVB}, v{QH}, v{NN}
        v_cmp_eq_u32 {mH0}, 0, v{H}
        v_cmp_gt_u32 {mRH}, 2, v{Q}
        v_cmp_gt_u32 s[66:67], 2, v{J}
        s_lshl_b32 s64, s4, 9
        s_add_u32 s64, s64, {L_RHO}
        s_lshl_b32 s65, s4, 8
        s_add_u32 s65, s65, {L_ND}
        v_lshlrev_b32 v{T1}, 2, v{J}
        v_xor_b32 v{T2}, 0x60, v{T1}
        v_add_u32 v{T4}, 64, v{Q16}
        v_cndmask_b32 v{vRk}, v{T4}, v{Q16}, {mVA}
        v_cndmask_b32 v{vRq}, v{T2}, v{T1}, {mVA}
        v_cndmask_b32 v{vBw}, v{T2}, v{T1}, {mRH}
        v_cndmask_b32 v{vBr}, v{T4}, v{Q16}, s[66:67]
        v_lshlrev_b32 v{T1}, 4, v{NN}
        v_xor_b32 v{T2}, 0x30, v{T1}
        v_cndmask_b32 v{vNd}, v{T2}, v{T1}, {mVA}
        v_cndmask_b32 v{vNs}, v{T2}, v{T1}, {mRH}
        v_lshlrev_b32 v{vNo}, 4, v{C3}""")
        for r in (vRk,vRq,vBw,vBr): a(f'v_add_u32 v{r}, s64, v{r}')
        for r in (vNd,vNs,vNo): a(f'v_add_u32 v{r}, s65, v{r}')
    def fsetup2():
        a(f"""v_and_b32 v{J}, 15, v0
        v_lshrrev_b32 v{Q}, 4, v0
        v_lshlrev_b32 v{Q16}, 4, v{Q}
        v_lshrrev_b32 v{QH}, 1, v{Q}
        v_and_b32 v{C3}, 3, v0
        v_lshlrev_b32 v{T1}, 2, v{Q}
        v_sub_u32 v{T2}, v{J}, v{T1}
        v_xor_b32 v{T3}, 8, v{J}
        v_sub_u32 v{T3}, v{T3}, v{T1}
        v_mov_b32 v{T4}, 0x3f80
        v_mov_b32 v{T5}, 0x3f800000""")
        for B_,d in ((BA,T2),(BB,T3)):
            for hf in range(2):
                a(f"""v_cmp_eq_u32 s[66:67], {2*hf}, v{d}
                v_cmp_eq_u32 s[68:69], {2*hf+1}, v{d}
                v_mov_b32 v{B_+2+hf}, 0
                v_cndmask_b32 v{B_+hf}, 0, v{T4}, s[66:67]
                v_cndmask_b32 v{B_+hf}, v{B_+hf}, v{T5}, s[68:69]""")
        for i in range(4): a(f'v_mov_b32 v{BO+i}, 0')
        a(f"""v_cmp_eq_u32 {mCA}, v{J}, v{QH}
        v_add_u32 v{QH}, 2, v{QH}
        v_cmp_eq_u32 {mCB}, v{J}, v{QH}
        v_mov_b32 v{vOq}, v{Q16}
        v_lshlrev_b32 v{vW}, 4, v0
        v_add_u32 v{vW}, {L_W}, v{vW}
        v_cmp_eq_u32 s[66:67], 0, v{C3}
        v_cmp_eq_u32 s[68:69], 1, v{C3}
        v_mov_b32 v{T1}, s76
        v_dot2_f32_bf16 v{T3}, v{ST[0]}, s76, 0""")
        for r in [ST[0]+1,ST[0]+2,ST[0]+3,ST[1],ST[1]+1,ST[1]+2,ST[1]+3]: a(f'v_dot2_f32_bf16 v{T3}, v{r}, s76, v{T3}')
        for b in ST:
            for i in range(4): a(f'v_cndmask_b32 v{b+i}, 0, v{b+i}, s[68:69]\nv_cndmask_b32 v{b+i}, v{b+i}, v{T1}, s[66:67]')
        a(f"""v_readlane_b32 s64, v{T3}, 0
        v_readlane_b32 s65, v{T3}, 16
        v_readlane_b32 s66, v{T3}, 32
        v_readlane_b32 s67, v{T3}, 48
        v_mov_b32 v{T1}, s64
        v_add_f32 v{T1}, s65, v{T1}
        v_add_f32 v{T1}, s66, v{T1}
        v_add_f32 v{T1}, s67, v{T1}
        v_mul_f32 v{T1}, 0x3c800000, v{T1}
        s_mov_b32 s74, 0x3e38aa3b
        v_readfirstlane_b32 s55, v{T1}""")
    acc=[36,44]; d0=52; off=[16,26]; va=[4,5,6,7]
    def mf(s_,sl):
        a(f'v_mfma_f32_4x4x4_16b_bf16 v[{acc[s_]}:{acc[s_]+3}], v[2:3], v[{sl}:{sl+1}], v[{acc[s_]}:{acc[s_]+3}]')
        a(f'v_mfma_f32_4x4x4_16b_bf16 v[{acc[s_]+4}:{acc[s_]+7}], v[2:3], v[{sl+2}:{sl+3}], v[{acc[s_]+4}:{acc[s_]+7}]')
    def dma(pair):
        sl=pair>>1; hf=pair&1
        a(f's_mov_b32 exec_lo, {0 if hf else -1}\ns_mov_b32 exec_hi, {-1 if hf else 0}')
        for (srd,v,o) in ((44,118+sl,0),(96,8+sl,608),(32,8+sl,1184)):
            a(f's_add_u32 m0, s95, {o-512*hf}' if o-512*hf>=0 else f's_sub_u32 m0, s95, {512*hf-o}')
            a(f's_nop 0\nbuffer_load_dwordx4 v{v}, s[{srd}:{srd+3}], 0 offen {"" if srd==44 else "sc1"} lds')
        a('s_mov_b64 exec, -1')
    a(f"""s_cmp_lg_u32 s3, 7
    s_cbranch_scc1 h_nx
""")
    dma(0)
    a('s_setprio 3')
    if stag==1:
        a('s_setprio 3\ns_cmp_ge_u32 s4, 8\ns_cbranch_scc1 h_nx\ns_setprio 2\ns_cmp_ge_u32 s4, 4\ns_cbranch_scc1 h_nx\ns_setprio 1')
    if stag==2: a('s_setprio 3')
    if stag>=4:
        G={4:(8,4,5,9),5:(6,6,7,7),6:(10,5,3,8),7:(9,5,4,8)}[stag]
        a(f'''s_setprio 3
        s_cmp_ge_u32 s4, {G[0]}
        s_cbranch_scc1 h_nx
        s_cmp_ge_u32 s4, {G[1]}
        s_cselect_b32 s64, {G[2]}, {G[3]}
        v_mov_b32 v4, {L_END}
        s_mov_b32 s65, 0
        h_g7:
        ds_read_b32 v5, v4
        s_waitcnt lgkmcnt(0)
        v_readfirstlane_b32 s66, v5
        s_cmp_ge_u32 s66, s64
        s_cbranch_scc1 h_nx
        s_sleep 1
        s_add_u32 s65, s65, 1
        s_cmp_lt_u32 s65, 0x1000000
        s_cbranch_scc1 h_g7''')
    if stag==3:
        a('s_setprio 1\ns_cmp_ge_u32 s4, 8\ns_cbranch_scc1 h_nx\ns_setprio 2\ns_cmp_ge_u32 s4, 4\ns_cbranch_scc1 h_nx\ns_setprio 3')
    a('h_nx:')
    hstamp('hs')
    handlers=[]
    for u in range(CAP//2):
        j=2*u; t0=4*u
        if j<32: q=(j>>2)&3; rb=4*(j>>4)+(j&3)
        else: q=(j-32)>>1; rb=8
        if t0>=K: a(f's_cmp_ge_u32 {j}, s52\ns_cbranch_scc1 h_drain{"" if not pdrain else (u%(K//4))}')
        if u==1:
            for i in range(16): a(f'v_mov_b32 v{36+i}, 0')
            a('s_mov_b32 s77, s52\ns_mov_b32 s78, 0')
            if stag: a(f's_cmp_eq_u32 s3, 7\ns_cselect_b32 s78, {RB}, 0')
        if u>0:
            h=f'h_ev{u}'; a(f's_sub_u32 s77, s77, {2*R}\ns_cbranch_scc1 {h}\n{h}_r:'); handlers.append(h)
        for hh in range(2):
            for s_ in range(2):
                a(f'v_add_u32_dpp v{va[hh*2+s_]}, v{off[s_]+rb+hh}, v1 quad_perm:[{q},{q},{q},{q}] {DPP}')
        if t0>=K:
            a(f's_waitcnt vmcnt({K-4})')
            for hh in range(2):
                for s_ in range(2): mf(s_,d0+4*((t0+hh*2+s_)%K))
        for hh in range(2):
            for s_ in range(2):
                sl=d0+4*((t0+hh*2+s_)%K)
                a(f'buffer_load_dwordx4 v[{sl}:{sl+3}], v{va[hh*2+s_]}, s[32:35], 0 offen sc1')
    if pdrain:
        f0=(CAP//2)%(K//4)
        for v in [f0]+[v for v in range(K//4) if v!=f0]: a(f'h_drain{v}:\ns_mov_b32 s79, {v}\ns_branch h_drain')
    a('h_drain:')
    if stag>=4:
        a(f's_cmp_lg_u32 s3, 7\ns_cbranch_scc1 h_rb\nv_mov_b32 v4, {L_END}\nv_mov_b32 v5, 1\ns_mov_b64 exec, 1\nds_add_u32 v4, v5\ns_mov_b64 exec, -1')
    a(f"""h_rb:
    s_cmp_ge_u32 s78, {RB}
    s_cbranch_scc1 h_rbd
    s_barrier
    s_add_u32 s78, s78, 1
    s_branch h_rb
    h_rbd:""")
    hstamp('hi')
    if pdrain:
        for par in range(1,K//4): a(f's_cmp_eq_u32 s79, {par}\ns_cbranch_scc1 h_dr{par}')
        for par in range(K//4):
            if par: a(f'h_dr{par}:')
            for n in range(K//2):
                a(f's_waitcnt vmcnt({K-2-2*n})')
                for t in (2*n,2*n+1): mf(t%2,d0+4*((t+4*par)%K))
            if par<K//4-1: a('s_branch h_drx')
        a('h_drx:')
        hstamp('hd')
    else:
        a('s_waitcnt vmcnt(0)')
        hstamp('hd')
        for t in range(K): mf(t%2,d0+4*t)
    a(f's_cmp_gt_u32 s53, {CAP}\ns_cbranch_scc1 h_slow\nh_slow_r:\ns_nop 4')
    for s_ in range(2):
        for i in range(4): a(f'v_pk_mul_f32 v[{acc[s_]+2*i}:{acc[s_]+2*i+1}], v[{acc[s_]+2*i}:{acc[s_]+2*i+1}], v[12:13] op_sel:[0,{s_}] op_sel_hi:[1,{s_}]')
        for i in range(4): a(f'v_cvt_pk_bf16_f32 v{acc[s_]+i}, v{acc[s_]+2*i}, v{acc[s_]+2*i+1}')
    a('s_cmp_eq_u32 s3, 7\ns_cbranch_scc1 h_ns')
    for s_ in range(2):
        a(f'buffer_store_dwordx4 v[{acc[s_]}:{acc[s_]+3}], v{8+s_}, s[36:39], 0 offen sc1')
        a(f'buffer_store_dwordx4 v[{acc[s_]}:{acc[s_]+3}], v{10+s_}, s[36:39], 0 offen sc1')
    a(f"""h_ns:
    s_lshl_b32 s64, s3, 2
    s_sub_u32 s66, s3, 1
    s_mul_i32 s66, s66, {PL2}
    s_and_b32 s65, s3, 3
    s_lshl_b32 s65, s65, 6
    s_add_u32 s66, s66, s65
    s_lshr_b32 s65, s3, 2
    s_lshl_b32 s65, s65, 5
    s_add_u32 s66, s66, s65
    v_add_u32 v52, s64, v117
    v_add3_u32 v53, v1, v116, s66""")
    for s_ in range(2):
        l=a.lab('ep'); l2=a.lab('ep')
        rho_calc(a,acc[s_],54,55,14+s_,'s76')
        a(f"""s_mov_b64 exec, s[{48+2*s_}:{49+2*s_}]
        s_cbranch_execz {l}
        ds_write_b32 v52, v54 offset:{256*s_}
        s_cmp_gt_u32 s3, 4
        s_cbranch_scc1 {l}
        ds_write_b128 v53, v[{acc[s_]}:{acc[s_]+3}] offset:{1024*s_}
        {l}:
        s_mov_b64 exec, -1""")
    a('s_cmp_eq_u32 s3, 7\ns_cbranch_scc1 f_top\ns_cmp_le_u32 s3, 2\ns_cbranch_scc1 f_set\nf_setr:\ns_waitcnt vmcnt(0)')
    hstamp('ha')
    if xh:
        a(f'''s_cmp_lg_u32 s3, {xh}
        s_cbranch_scc1 h_nxp
        s_mov_b32 exec_lo, 0x01010101
        s_mov_b32 exec_hi, 0x01010101
        buffer_load_dword v127, v118, s[44:47], 0 offen
        buffer_load_dword v127, v119, s[44:47], 0 offen
        s_mov_b64 exec, -1
        h_nxp:''')
    gbarrier(a,'gb1',pf=pf)
    hstamp('hr')
    a(f"""s_mov_b32 s32, s36
    s_mov_b32 s33, s37
    s_add_u32 s36, s36, {TSTR}
    s_addc_u32 s37, s37, 0
    s_add_u32 s3, s3, 1
    s_branch h_top""")
    a('f_top:')
    a('''s_lshl_b32 s64, s2, 4
    s_add_u32 s64, s64, s4
    s_cmp_lg_u32 s64, 0xffc
    s_cbranch_scc1 h_nc
    v_mov_b32 v4, 0
    s_mov_b64 exec, 1
    global_store_dword v4, v4, s[28:29] sc1
    s_mov_b64 exec, -1
    h_nc:''')
    stamp('h')
    if stop=='hops': a('s_endpgm')
    a(f"""s_mov_b32 exec_lo, 0x01010101
    s_mov_b32 exec_hi, 0x01010101
    buffer_load_dword v117, v118, s[44:47], 0 offen
    buffer_load_dword v117, v8, s[96:99], 0 offen sc1
    buffer_load_dword v117, v8, s[32:35], 0 offen sc1
    buffer_load_dword v117, v119, s[44:47], 0 offen
    buffer_load_dword v117, v9, s[96:99], 0 offen sc1
    buffer_load_dword v117, v9, s[32:35], 0 offen sc1
    s_mov_b64 exec, -1
    s_mov_b32 s36, s26
    s_mov_b32 s37, s27
    s_mov_b32 s38, {N*128}
    s_mov_b32 s70, 0x000f000f
    s_mov_b32 s71, 0x000f000f
    v_mov_b32 v116, v{vAq}
    f_loop:""")
    vAq=116
    stamp('fl')
    order=[(0,T,s_) for T in range(4) for s_ in range(2)]+[(1,T,s_) for T in (0,2,3,1) for s_ in range(2)]
    def pk(op,d,x,y,z=None,bc=False,neg=False):
        m=' op_sel_hi:[1,0]' if bc and z is None else (' op_sel_hi:[1,0,0]' if bc else '')
        if neg: m+=' neg_lo:[0,0,1] neg_hi:[0,0,1]'
        a(f'v_pk_{op}_f32 v[{d}:{d+1}], v[{x}:{x+1}], v[{y}:{y+1}]'+(f', v[{z}:{z+1}]' if z is not None else '')+m)
    for pair in range(npairs):
        q_=[]
        ro=128*pair; no=64*pair
        def wait_for(names):
            idx=max(q_.index(n) for n in names if n in q_) if any(n in q_ for n in names) else -1
            if idx>=0:
                left=len(q_)-idx-1
                a(f's_waitcnt lgkmcnt({left})'); del q_[:idx+1]
        def issue(txt,name): a(txt); q_.append(name)
        u7=36+8*(pair>>1)
        if fprio: a(f's_setprio {fprio[0]}')
        a(f"""s_mov_b32 exec_lo, {0 if pair&1 else -1}
        s_mov_b32 exec_hi, {-1 if pair&1 else 0}
        ds_write_b128 v{vS}, v[{u7}:{u7+3}] offset:1760
        s_mov_b64 exec, -1""")
        issue(f'ds_read_b128 v[{WB[0]}:{WB[0]+3}], v{vW}','f0')
        issue(f'ds_read_b128 v[{WB[1]}:{WB[1]+3}], v{vW} offset:1024','f1')
        issue(f'ds_read_b128 v[{WB[2]}:{WB[2]+3}], v{vW} offset:2048','f2')
        if pair: a('s_waitcnt vmcnt(2)')
        issue(f'ds_read_b128 v[{TA}:{TA+3}], v{vA}','ta0')
        issue(f'ds_read_b128 v[{TQ}:{TQ+3}], v{vAq}','tq0')
        issue(f'ds_read_b128 v[{TA+4}:{TA+7}], v{vA} offset:64','ta1')
        issue(f'ds_read_b128 v[{TQ+4}:{TQ+7}], v{vAq} offset:64','tq1')
        issue(f'ds_read_b128 v[{TB[0]}:{TB[3]}], v{vA} offset:256','tb0')
        issue(f'ds_read_b128 v[{TB[4]}:{TB[7]}], v{vA} offset:320','tb1')
        Sm=TQ; RK=TQ+4
        def packV(T,tro):
            for X_,o in ((XA,0),(XB,256)):
                A=X_+4*T
                a(f'v_cvt_pk_bf16_f32 v{A+3}, v{A+2}, v{A+3}\nv_cvt_pk_bf16_f32 v{A+2}, v{A}, v{A+1}')
                issue(f'ds_read_b64_tr_b16 v[{A}:{A+1}], v{vTr} offset:{o+tro}',f'u{T}{o}')
        for n,(m,T,s_) in enumerate(order):
            b=WB[n%3]
            need=[f'f{n}']
            if n==0: need+=['ta0','tq0']
            if n==1: need+=['ta1','tq1']
            if n==8 and fprio: a(f's_setprio {fprio[3]}')
            wait_for(need)
            for X_,tk in ((XA,TA+4*s_),(XB,TQ+4*s_ if m==0 else TB[4*s_])):
                c=f'v[{X_+4*T}:{X_+4*T+3}]' if s_ else '0'
                if m==0: a(f'v_mfma_f32_16x16x32_bf16 v[{X_+4*T}:{X_+4*T+3}], v[{b}:{b+3}], v[{tk}:{tk+3}], {c}')
                else: a(f'v_mfma_f32_16x16x32_bf16 v[{X_+4*T}:{X_+4*T+3}], v[{tk}:{tk+3}], v[{b}:{b+3}], {c}')
            if n+3<16:
                m2,Tn,s2=order[n+3]
                issue(f'ds_read_b128 v[{b}:{b+3}], v{vW} offset:{8192*m2+2048*Tn+1024*s2}',f'f{n+3}')
            if n==5:
                for X_ in (XA,XB):
                    a(f'v_cvt_pk_bf16_f32 v{X_}, v{X_}, v{X_+1}\nv_cvt_pk_bf16_f32 v{X_+1}, v{X_+2}, v{X_+3}\nv_cvt_pk_bf16_f32 v{X_+2}, v{X_+4}, v{X_+5}\nv_cvt_pk_bf16_f32 v{X_+3}, v{X_+6}, v{X_+7}')
            if n==7:
                wait_for(['tb0','tb1'])
                a(f'v_mfma_f32_16x16x32_bf16 v[{XA+4}:{XA+7}], v[{TA}:{TA+3}], v[{XA}:{XA+3}], 0\nv_mfma_f32_16x16x32_bf16 v[{XB+4}:{XB+7}], v[{TB[0]}:{TB[3]}], v[{XB}:{XB+3}], 0')
                issue(f'ds_read_b128 v[{RK}:{RK+3}], v{vRk} offset:{ro}','rk')
                issue(f'ds_read_b32 v{cq}, v{vRq} offset:{ro}','rq')
                issue(f'ds_read_b32 v{dq}, v{vNd} offset:{no}','nd')
                a('s_nop 0')
                for X_ in (XA,XB):
                    A=X_+8
                    a(f'v_cvt_pk_bf16_f32 v{A}, v{A}, v{A+1}\nv_cvt_pk_bf16_f32 v{A+1}, v{A+2}, v{A+3}\nv_cvt_pk_bf16_f32 v{A+2}, v{A+4}, v{A+5}\nv_cvt_pk_bf16_f32 v{A+3}, v{A+6}, v{A+7}')
                a(f's_nop 0\nv_mfma_f32_16x16x32_bf16 v[{XA+4}:{XA+7}], v[{TA+4}:{TA+7}], v[{XA+8}:{XA+11}], v[{XA+4}:{XA+7}]\nv_mfma_f32_16x16x32_bf16 v[{XB+4}:{XB+7}], v[{TB[4]}:{TB[7]}], v[{XB+8}:{XB+11}], v[{XB+4}:{XB+7}]')
            if n==10:
                wait_for(['rk','rq','nd'])
                a(f's_mov_b64 exec, {mVA}')
                pk('mul',Sm,XA+4,RK); pk('mul',Sm+2,XA+6,RK+2)
                a(f's_mov_b64 exec, {mVB}')
                pk('mul',Sm,XB+4,RK); pk('mul',Sm+2,XB+6,RK+2)
                a(f's_mov_b64 exec, -1\nv_mul_f32 v{cq}, s74, v{cq}\nv_cndmask_b32 v{dq}, v{dq}, 1.0, {mH0}')
                a(f'v_max3_f32 v{t0_}, v{Sm}, v{Sm+1}, v{Sm+2}\nv_max_f32 v{t0_}, v{t0_}, v{Sm+3}\nv_mov_b32 v{t1_}, v{t0_}')
            if n==11:
                a(f'v_permlane16_swap_b32 v{t0_}, v{t1_}\nv_max_f32 v{t0_}, v{t0_}, v{t1_}\nv_mul_f32 v{t0_}, v{cq}, v{t0_}')
                pk('fma',Sm,Sm,cq,t0_,bc=True,neg=True); pk('fma',Sm+2,Sm+2,cq,t0_,bc=True,neg=True)
                for r in range(4): a(f'v_exp_f32 v{Sm+r}, v{Sm+r}')
            if n==12:
                a(f'v_add_f32 v{t0_}, v{Sm}, v{Sm+1}\nv_add_f32 v{t1_}, v{Sm+2}, v{Sm+3}\nv_add_f32 v{t0_}, v{t0_}, v{t1_}\nv_mov_b32 v{t1_}, v{t0_}')
                pk('mul',Sm,Sm,RK); pk('mul',Sm+2,Sm+2,RK+2)
            if n==13:
                a(f'v_permlane16_swap_b32 v{t0_}, v{t1_}\nv_add_f32 v{t0_}, v{t0_}, v{t1_}\nv_rcp_f32 v{t0_}, v{t0_}')
                packV(0,0)
                a(f'v_mul_f32 v{t0_}, v{dq}, v{t0_}')
                pk('mul',Sm,Sm,t0_,bc=True); pk('mul',Sm+2,Sm+2,t0_,bc=True)
            if n==14:
                a(f"""s_mov_b64 exec, {mVA}
                v_cvt_pk_bf16_f32 v{BA+2}, v{Sm}, v{Sm+1}
                v_cvt_pk_bf16_f32 v{BA+3}, v{Sm+2}, v{Sm+3}
                s_mov_b64 exec, {mVB}
                v_cvt_pk_bf16_f32 v{BB+2}, v{Sm}, v{Sm+1}
                v_cvt_pk_bf16_f32 v{BB+3}, v{Sm+2}, v{Sm+3}
                s_mov_b64 exec, -1""")
                packV(2,64)
        packV(3,72)
        issue(f'ds_read_b32 v{sv}, v{vNs} offset:{no+4}','ns')
        issue(f'ds_read_b32 v{vo}, v{vNo} offset:{no+8}','no')
        packV(1,8)
        if fprio: a(f's_setprio {fprio[1]}')
        for T in (0,2,3,1):
            wait_for([f'u{T}0'])
            a(f'v_mfma_f32_16x16x32_bf16 v[{Z+4*T}:{Z+4*T+3}], v[{XA+4*T}:{XA+4*T+3}], v[{BA}:{BA+3}], 0')
        for T in (0,2,3,1):
            wait_for([f'u{T}256'])
            a(f'v_mfma_f32_16x16x32_bf16 v[{XA+4*T}:{XA+4*T+3}], v[{XB+4*T}:{XB+4*T+3}], v[{BB}:{BB+3}], 0')
        a(f'v_cndmask_b32 v{sv}, v{sv}, 1.0, {mH0}\nv_add_u32 v{vo}, v{vo}, v{vOq}')
        for i in (0,1,4,5,6,7,2,3): a(f'v_cvt_pk_bf16_f32 v{TA+i}, v{Z+2*i}, v{Z+2*i+1}')
        issue(f'ds_write_b128 v{vA}, v[{TA}:{TA+3}]','w0'); issue(f'ds_write_b128 v{vA}, v[{TA+4}:{TA+7}] offset:64','w1')
        for i in (0,1,4,5,6,7,2,3): a(f'v_cvt_pk_bf16_f32 v{TB[i]}, v{XA+2*i}, v{XA+2*i+1}')
        issue(f'ds_write_b128 v{vAq}, v[{TB[0]}:{TB[3]}]','w2'); issue(f'ds_write_b128 v{vAq}, v[{TB[4]}:{TB[7]}] offset:64','w3')
        a(f"""v_mfma_f32_16x16x32_bf16 v[{XB}:{XB+3}], v[{ST[0]}:{ST[0]+3}], v[{TA}:{TA+3}], 0
        v_mfma_f32_16x16x32_bf16 v[{XB+4}:{XB+7}], v[{ST[0]}:{ST[0]+3}], v[{TB[0]}:{TB[3]}], 0
        v_mfma_f32_16x16x32_bf16 v[{XB}:{XB+3}], v[{ST[1]}:{ST[1]+3}], v[{TA+4}:{TA+7}], v[{XB}:{XB+3}]
        v_mfma_f32_16x16x32_bf16 v[{XB+4}:{XB+7}], v[{ST[1]}:{ST[1]+3}], v[{TB[4]}:{TB[7]}], v[{XB+4}:{XB+7}]""")
        for T in range(4):
            o=(0,8,64,72)[T]
            issue(f'ds_read_b64_tr_b16 v[{Z+4*T}:{Z+4*T+1}], v{vTr} offset:{o}',f'o{T}a')
            issue(f'ds_read_b64_tr_b16 v[{Z+4*T+2}:{Z+4*T+3}], v{vTr} offset:{256+o}',f'o{T}b')
        qa,qb,t2,t3=XB+12,XB+13,XB+14,XB+15
        if fprio: a(f's_setprio {fprio[2]}')
        for i in range(8):
            a(f'v_dot2_f32_bf16 v{qa}, v{TA+i}, v{TA+i}, {"0" if i==0 else f"v{qa}"}\nv_dot2_f32_bf16 v{qb}, v{TB[i]}, v{TB[i]}, {"0" if i==0 else f"v{qb}"}')
        a(f"""v_cndmask_b32 v{XB}, v{XB+4}, v{XB}, {mRH}
        v_cndmask_b32 v{XB+1}, v{XB+5}, v{XB+1}, {mRH}
        v_mul_f32 v{t2}, 0x3e000000, v{XB}
        v_permlane32_swap_b32 v{qa}, v{qb}
        v_add_f32 v{qa}, v{qa}, v{qb}
        v_mov_b32 v{qb}, v{qa}
        v_fma_f32 v{t3}, -v{XB}, s55, v{XB+1}
        v_mul_f32 v{XB}, 0x3e000000, v{sv}
        v_permlane16_swap_b32 v{qa}, v{qb}
        v_add_f32 v{qa}, v{qa}, v{qb}
        v_mul_f32 v{XB}, v{XB}, v{XB}
        v_fma_f32 v{qa}, -v{t2}, v{t2}, v{qa}
        v_max_f32 v{qa}, 0, v{qa}
        v_fmaak_f32 v{qa}, v{XB}, v{qa}, {EPS}
        v_rsq_f32 v{qa}, v{qa}
        v_mul_f32 v{t3}, v{sv}, v{t3}
        v_mul_f32 v{t3}, 0x3fb8aa3b, v{t3}
        v_mul_f32 v{qa}, v{qa}, v{t3}""")
        if pair<npairs-1: a(f's_mov_b64 exec, {mRA}\nv_add_u32 v{vA}, 0x200, v{vA}\nv_add_u32 v{vAq}, 0x200, v{vAq}\ns_mov_b64 exec, -1')
        else: a('s_nop 1')
        a(f"""v_max_f32_dpp v{qb}, v{qa}, v{qa} quad_perm:[1,0,3,2] {DPP}
        s_nop 1
        v_max_f32_dpp v{qb}, v{qb}, v{qb} quad_perm:[2,3,0,1] {DPP}
        s_nop 1
        v_max_f32_dpp v{qb}, v{qb}, v{qb} row_half_mirror {DPP}
        v_sub_f32 v{qa}, v{qa}, v{qb}
        v_exp_f32 v{qa}, v{qa}""")
        if pair<npairs-1: a(f's_mov_b64 exec, {mRT}\nv_add_u32 v{vTr}, 0x200, v{vTr}\ns_mov_b64 exec, -1')
        else: a('s_nop 1')
        a(f"""v_add_f32_dpp v{qb}, v{qa}, v{qa} quad_perm:[1,0,3,2] {DPP}
        s_nop 1
        v_add_f32_dpp v{qb}, v{qb}, v{qb} quad_perm:[2,3,0,1] {DPP}
        s_nop 1
        v_add_f32_dpp v{qb}, v{qb}, v{qb} row_half_mirror {DPP}
        v_rcp_f32 v{qb}, v{qb}
        v_mul_f32 v{qa}, v{sv}, v{qa}
        v_mul_f32 v{qa}, v{qa}, v{qb}
        ds_write_b32 v{vBw}, v{qa} offset:{ro}
        ds_read_b128 v[{XB}:{XB+3}], v{vBr} offset:{ro}
        s_waitcnt lgkmcnt(2)""")
        if pair==0: a('s_cmp_eq_u32 s4, 12\ns_cbranch_scc1 f_nd0')
        if pair<npairs-1: dma(pair+1)
        if pair==0: a('f_nd0:')
        if fprio: a(f's_setprio {fprio[4]}')
        a(f"""s_waitcnt lgkmcnt(0)
        s_mov_b64 exec, {mCA}
        v_cvt_pk_bf16_f32 v{BO}, v{XB}, v{XB+1}
        v_cvt_pk_bf16_f32 v{BO+1}, v{XB+2}, v{XB+3}
        s_mov_b64 exec, {mCB}
        v_cvt_pk_bf16_f32 v{BO+2}, v{XB}, v{XB+1}
        v_cvt_pk_bf16_f32 v{BO+3}, v{XB+2}, v{XB+3}
        s_mov_b64 exec, -1
        s_nop 0""")
        for T in range(4):
            a(f'v_mfma_f32_16x16x32_bf16 v[{XA+4*T}:{XA+4*T+3}], v[{Z+4*T}:{Z+4*T+3}], v[{BO}:{BO+3}], 0')
        a('s_nop 4')
        for i in range(8): a(f'v_cvt_pk_bf16_f32 v{XB+8+i}, v{XA+2*i}, v{XA+2*i+1}')
        a(f"""s_mov_b64 exec, s[70:71]
        buffer_store_dwordx4 v[{XB+8}:{XB+11}], v{vo}, s[36:39], 0 offen {OUTPOL}
        buffer_store_dwordx4 v[{XB+12}:{XB+15}], v{vo}, s[36:39], 0 offen offset:64 {OUTPOL}
        s_mov_b64 exec, -1""")
        if pair==0: a('s_cmp_eq_u32 s4, 12\ns_cbranch_scc1 f_done')
    a('f_done:')
    stamp('f')
    if side is not None:
        a('s_waitcnt vmcnt(0)')
        stamp('e')
        a('s_waitcnt lgkmcnt(0)')
        if side=='xcc':
            a('s_and_b32 s64, s2, 7\ns_cmp_lg_u32 s64, s7\ns_cselect_b32 s64, 5000, 0')
        elif side=='zero': a('s_mov_b32 s64, 0')
        elif side in ('min','minb'):
            a('v_mov_b32 v4, 0\nglobal_load_dword v5, v4, s[28:29] offset:8 sc1\ns_waitcnt vmcnt(0)\nv_readfirstlane_b32 s80, v5\ns_not_b32 s80, s80\ns_mov_b32 s64, 0')
            if side=='minb': a('s_sub_u32 s64, s82, s80\ns_lshl_b32 s64, s64, 2')
        else:
            a('s_sub_u32 s64, s82, s80\ns_lshl_b32 s64, s64, 2\ns_cmp_lg_u32 s2, 100\ns_cselect_b32 s64, 0, s64')
        a('s_min_u32 s64, s64, 40000\ns_add_u32 s64, s64, 15000\nsd_l:\ns_memrealtime s[66:67]\ns_waitcnt lgkmcnt(0)\ns_sub_u32 s66, s66, s80\ns_cmp_lt_u32 s66, s64\ns_cbranch_scc1 sd_l\ns_endpgm')
    if stamps:
        a('s_waitcnt vmcnt(0)')
        stamp('e')
        a(f's_waitcnt lgkmcnt(0)\ns_lshl_b32 s64, s2, 4\ns_add_u32 s64, s64, s4\ns_lshl_b32 s64, s64, 7\ns_add_u32 s64, s64, {DUMP}\nv_mov_b32 v4, s64\ns_mov_b64 exec, 1')
        if dbgst:
            a('v_mov_b32 v6, 0\ns_not_b32 s65, s80\nv_mov_b32 v5, s65\nglobal_atomic_umax v6, v5, s[28:29] offset:8 sc1')
            for i in range(len(stamps)): a(f'v_mov_b32 v5, s{80+2*i}\nglobal_atomic_umax v6, v5, s[28:29] offset:{12+4*i} sc1')
            a('s_or_b32 s65, s2, s4\ns_cbranch_scc1 k_nv\nv_mov_b32 v5, s94\nglobal_store_dword v6, v5, s[28:29] offset:4 sc1\nk_nv:')
        a('v_mov_b32 v5, s94\nglobal_store_dword v4, v5, s[30:31] offset:64')
        for i in range(len(stamps)): a(f'v_mov_b32 v5, s{80+2*i}\nglobal_store_dword v4, v5, s[30:31] offset:{4*i}')
    a('k_end:\ns_endpgm')
    for h in handlers:
        a(f'{h}:\ns_cmp_ge_u32 s78, {RB}\ns_cbranch_scc1 {h}_r\ns_add_u32 s78, s78, 1\ns_barrier\ns_add_u32 s77, s77, s52\ns_cbranch_scc0 {h}\ns_branch {h}_r')
    a(f"""h_slow:
    s_mov_b32 s64, {CAP}
    v_and_b32 v4, 3, v0
    v_lshlrev_b32 v4, 2, v4
    h_sl:""")
    for s_ in range(2):
        a(f"""v_add_u32 v5, s64, v4
        v_add_u32 v6, v5, v{122+s_}
        v_subrev_u32 v6, {CAP}, v6
        v_lshlrev_b32 v6, 2, v6
        v_sub_u32 v5, v{120+s_}, v5
        v_mov_b32 v7, {OOBV}
        buffer_load_dwordx4 v[68:71], v6, s[40:43], s59 offen
        s_waitcnt vmcnt(0)""")
        for r in range(4): a(f'v_cmp_lt_i32 vcc, {r}, v5\ns_nop 1\nv_cndmask_b32 v{68+r}, v7, v{68+r}, vcc')
        for hb in range(4):
            a('s_nop 1')
            for t in range(4):
                a(f'v_add_u32_dpp v7, v{68+t}, v1 quad_perm:[{hb},{hb},{hb},{hb}] {DPP}\nbuffer_load_dwordx4 v[{d0+4*t}:{d0+4*t+3}], v7, s[32:35], 0 offen sc1')
            a('s_waitcnt vmcnt(0)')
            for t in range(4): mf(s_,d0+4*t); a('s_nop 0')
    a('s_add_u32 s64, s64, 16\ns_cmp_lt_u32 s64, s53\ns_cbranch_scc1 h_sl\ns_branch h_slow_r')
    a(f"""k_hx:
    s_cmp_eq_u32 s4, 15
    s_cbranch_scc1 k_hb
    s_cmp_lg_u32 s4, 13
    s_cbranch_scc1 k_end
    v_lshlrev_b32 v2, 21, v7
    v_add_u32 v3, 0x1fff80, v2
    v_cmpx_gt_u32 vcc, 42, v7
    global_load_dword v4, v3, s[30:31] sc1
    v_cmpx_gt_u32 vcc, 4, v7
    global_load_dword v4, v2, s[26:27] sc1
    s_endpgm
    k_hb:
    s_mov_b64 exec, 1""")
    bar_arrive(a,'gbb')
    a('s_mov_b32 s64, 8')
    bar_poll(a,'gbb')
    a('s_barrier\ns_endpgm')
    vAq=125
    a('f_set:\ns_cmp_eq_u32 s3, 2\ns_cbranch_scc1 f_set3'); fsetup(); a('s_branch f_setr')
    a('f_set3:'); fsetup2(); a('s_branch f_setr')
    for t in tails: t()
    t=a.text()
    US=''.join(f'    buffer_store_dwordx4 v[{d}:{d+3}], v{r}, s[36:39], 0 offen sc1\n' for d,r in ((100,76),(100,77),(104,78),(104,79)))
    if upos==1: t=t.replace('    USTORE1\n',US).replace('(UW)','(4)').replace('    USTORE2\n','')
    else: t=t.replace('    USTORE1\n','').replace('(UW)','(0)').replace('    USTORE2\n',US)
    t=t.replace('    PB3\n','    s_barrier\n    s_barrier\n').replace('    PBMID\n','')
    return t

HDR=open('gather_scatter__hybrid_graph_tf_nagphormer__graph.s.ref').read().split('; Override launch')[0]
def wrap(body):
    return HDR+f'''; @launch grid=(256,1,1) block=(1024,1,1) lds={LDS_BYTES}
.amdgcn_target "amdgcn-amd-amdhsa--gfx950"
.text
.globl {KNAME}
.p2align 8
.type {KNAME},@function
{KNAME}:
'''+body+f'''.section .rodata,"a"
.p2align 6
.amdhsa_kernel {KNAME}
  .amdhsa_next_free_vgpr 128
  .amdhsa_next_free_sgpr 102
  .amdhsa_accum_offset 128
  .amdhsa_group_segment_fixed_size 0
  .amdhsa_kernarg_size 96
  .amdhsa_user_sgpr_count 2
  .amdhsa_user_sgpr_kernarg_segment_ptr 1
  .amdhsa_system_sgpr_workgroup_id_x 1
  .amdhsa_float_denorm_mode_32 3
.end_amdhsa_kernel
'''
if __name__=='__main__':
    import ast
    kw=dict(x.split('=') for x in sys.argv[2:])
    for k in kw:
        try: kw[k]=ast.literal_eval(kw[k])
        except Exception: pass
    if 'stamps' in kw: kw['stamps']=kw['stamps'].split(',')
    open(sys.argv[1],'w').write(wrap(gen(**kw)))
```

```python
N=50000; E=800000; BS=196; NCH=250; CHE=3200
MB=1<<20
import os
BIG=bool(os.environ.get('BIG'))
TSTR=(16 if BIG else 12)*MB; TBYTES=(14 if BIG else 10)*MB
SMALL=(112 if BIG else 84)*MB
CHUNK=128; OFFS=4*MB; WFR=4*MB+512*1024; PARR=4*MB+768*1024; OVF=5*MB
SMALL_BYTES=10*MB
BARP=SMALL+10*MB
DUMP=128*MB
CAP=40
OOBV=0x7ffff000
PLANE=BS*128
PL2=PLANE+256
STG=2304
L_RHO=4*PL2
L_ND=L_RHO+BS*32
L_W=L_ND+BS*16
L_STAGE=(L_W+16384+255)//256*256
L_END=L_STAGE+13*STG
LDS_BYTES=160*1024
L_HIST=PL2
L_DH=L_HIST+1024
L_RED=L_DH+256
L_R0=L_RED+64
L_INFO=L_R0+256*8
L_INF2=L_INFO+208*16
L_CNT=L_INF2+208*4
L_ESTG=L_CNT+6656
L_LIST=L_ESTG+12800
L_WP=L_LIST+208*160
def line_of(n):
    import numpy as np
    n=np.asarray(n); t=n>>8; page=(t*205)>>13
    return n+128*t+1024*page+64*(((n>>6)&3)==3), ((n>>7)&1).astype(bool), page
```

```python
import sys
from lay import *
KNAME='gather_scatter__hybrid_graph_tf_nagphormer__graph_kernel'
class Asm:
    def __init__(s): s.l=[]; s.u=0
    def __call__(s,t):
        for x in t.strip('\n').split('\n'):
            x=x.strip()
            if x: s.l.append(x if x.endswith(':') else '    '+x)
    def lab(s,p='L'): s.u+=1; return f'{p}{s.u}'
    def text(s): return '\n'.join(s.l)+'\n'
DPP='row_mask:0xf bank_mask:0xf'
EPS='0x3727c5ac'

DUP='23'
def dup128(a,dst,n):
    if DUP=='23': a(f'v_and_b32 v{dst}, 128, v{n}')
    if DUP=='3': a(f'v_lshlrev_b32 v{dst}, 1, v{n}\nv_and_b32 v{dst}, v{dst}, v{n}\nv_and_b32 v{dst}, 128, v{dst}')
    if DUP=='none': a(f'v_mov_b32 v{dst}, 0')
    if DUP=='all': a(f'v_mov_b32 v{dst}, 128')
    if DUP=='123': a(f'v_lshlrev_b32 v{dst}, 1, v{n}\nv_or_b32 v{dst}, v{dst}, v{n}\nv_and_b32 v{dst}, 128, v{dst}')
def line_calc(a,dst,n,t,u):
    if DUP in ('all','123'):
        a(f"""v_lshrrev_b32 v{t}, 8, v{n}
        v_mul_u32_u24 v{u}, 547, v{t}
        v_and_b32 v{dst}, 0xffc0, v{n}
        v_lshrrev_b32 v{u}, 14, v{u}
        v_add_u32 v{dst}, v{dst}, v{n}
        v_lshl_add_u32 v{dst}, v{u}, 10, v{dst}""")
        if DUP=='123':
            a(f"""v_and_b32 v{u}, 0x1c0, v{n}
            v_cmp_eq_u32 vcc, 0x100, v{u}
            v_add_u32 v{t}, 64, v{dst}
            s_nop 0
            v_cndmask_b32 v{dst}, v{dst}, v{t}, vcc""")
        return
    a(f'''v_lshrrev_b32 v{t}, 8, v{n}
    v_mul_u32_u24 v{u}, 205, v{t}
    v_lshl_add_u32 v{dst}, v{t}, 7, v{n}
    v_lshrrev_b32 v{u}, 13, v{u}
    v_lshrrev_b32 v{t}, 1, v{n}
    v_lshl_add_u32 v{dst}, v{u}, 10, v{dst}
    v_bitop3_b32 v{t}, v{t}, v{n}, 64 bitop3:0x80
    v_add_u32 v{dst}, v{dst}, v{t}''')

def rho_calc(a,X,sm,sq,vs,sones):
    a(f'v_dot2_f32_bf16 v{sm}, v{X}, {sones}, 0\nv_dot2_f32_bf16 v{sq}, v{X}, v{X}, 0')
    for i in range(1,4):
        a(f'v_dot2_f32_bf16 v{sm}, v{X+i}, {sones}, v{sm}\nv_dot2_f32_bf16 v{sq}, v{X+i}, v{X+i}, v{sq}')
    a('s_nop 2')
    for m in ('quad_perm:[1,0,3,2]','quad_perm:[2,3,0,1]','row_half_mirror'):
        a(f'v_add_f32_dpp v{sm}, v{sm}, v{sm} {m} {DPP}\nv_add_f32_dpp v{sq}, v{sq}, v{sq} {m} {DPP}\ns_nop 0')
    a(f'''v_mul_f32 v{sm}, 0x3c800000, v{sm}
    v_mul_f32 v{sq}, 0x3c800000, v{sq}
    v_fma_f32 v{sq}, -v{sm}, v{sm}, v{sq}
    v_max_f32 v{sq}, 0, v{sq}''')
    if vs is not None: a(f'v_mul_f32 v{sq}, v{vs}, v{sq}\nv_mul_f32 v{sq}, v{vs}, v{sq}')
    a(f'v_add_f32 v{sq}, {EPS}, v{sq}\nv_rsq_f32 v{sm}, v{sq}\ns_nop 0')
    if vs is not None: a(f'v_mul_f32 v{sm}, v{vs}, v{sm}')

def baraddr(a,base):
    a(f'''s_and_b32 s64, s2, 7
    s_lshr_b32 s65, s64, 2
    s_xor_b32 s65, s65, s63
    s_lshl_b32 s65, s65, 13
    s_lshl_b32 s64, s64, 8
    s_add_u32 s64, s64, s65
    s_add_u32 s56, s64, {base}
    s_xor_b32 s65, s6, s63
    s_lshl_b32 s65, s65, 13
    s_and_b32 s64, s7, 7
    s_lshl_b32 s64, s64, 8
    s_add_u32 s64, s64, s65
    s_mov_b32 s75, {base+4096}
    s_add_u32 s57, s64, s75''')

def bar_l2(a,nm):
    a(f"""s_mov_b64 exec, 0xff
    v_mbcnt_lo_u32_b32 v58, -1, 0
    v_lshrrev_b32 v59, 2, v58
    v_xor_b32 v59, s63, v59
    v_lshlrev_b32 v59, 13, v59
    v_lshl_add_u32 v58, v58, 8, v59
    v_add_u32 v58, s75, v58
    v_mov_b32 v57, s65
    global_atomic_add v58, v57, s[30:31] sc1
    s_mov_b64 exec, 1
    {nm}_np:""")
def bar_poll(a,nm,votes=False):
    a(f"""s_mov_b32 s65, 0
    {nm}_p:
    global_load_dword v58, v56, s[30:31] sc1
    s_waitcnt vmcnt(0)""")
    if votes: a('v_and_b32 v59, 0xff, v58\nv_cmp_gt_u32 vcc, s64, v59')
    else: a('v_cmp_gt_u32 vcc, s64, v58')
    a(f"""s_cbranch_vccz {nm}_pd
    s_add_u32 s65, s65, 1
    s_cmp_lt_u32 s65, 0x800000
    s_cbranch_scc1 {nm}_p
    {nm}_pd:""")
def bar_arrive(a,nm):
    a(f"""v_mov_b32 v56, s56
    v_mov_b32 v57, 1
    global_atomic_add v58, v56, v57, s[30:31] sc0 sc1
    s_lshl_b32 s64, s62, 5
    s_sub_u32 s64, s64, 1
    v_mov_b32 v56, s57
    s_waitcnt vmcnt(0)
    v_readfirstlane_b32 s65, v58
    s_cmp_lg_u32 s65, s64
    s_cbranch_scc1 {nm}_np
    s_mov_b32 s65, 1""")
    bar_l2(a,nm)

def gbarrier(a,nm,pf=None,poll2=0):
    a(f"""s_add_u32 s62, s62, 1
    v_mov_b32 v56, s56
    v_mov_b32 v57, 1
    v_mov_b32 v59, s57
    s_lshl_b32 s64, s62, 5
    s_sub_u32 s64, s64, 1
    s_lshl_b32 s66, s62, 3
    s_mov_b32 s65, 0
    s_cmp_lg_u32 s4, 0
    s_waitcnt vmcnt(0)
    HSTAMP_HA
    s_barrier
    s_cbranch_scc1 {nm}_f
    s_mov_b64 exec, 1
    global_atomic_add v58, v56, v57, s[30:31] sc0 sc1
    s_waitcnt vmcnt(0)
    v_cmp_ne_u32 vcc, s64, v58
    s_cbranch_vccnz {nm}_p
    s_mov_b64 exec, 0xff
    global_atomic_add v124, v57, s[30:31] sc1
    s_mov_b64 exec, 1""")
    if poll2:
        a(f"""{nm}_p:
        global_load_dword v58, v59, s[30:31] sc1
        s_sleep {poll2}
        {nm}_q:
        global_load_dword v60, v59, s[30:31] sc1
        s_waitcnt vmcnt(1)
        v_cmp_gt_u32 vcc, s66, v58
        s_cbranch_vccz {nm}_pd
        global_load_dword v58, v59, s[30:31] sc1
        s_waitcnt vmcnt(1)
        v_cmp_gt_u32 vcc, s66, v60
        s_cbranch_vccz {nm}_pd
        s_add_u32 s65, s65, 1
        s_cmp_lt_u32 s65, 0x800000
        s_cbranch_scc1 {nm}_q""")
    else:
        a(f"""{nm}_p:
        global_load_dword v58, v59, s[30:31] sc1
        s_add_u32 s65, s65, 1
        s_cmp_ge_u32 s65, 0x800000
        s_cbranch_scc1 {nm}_pd
        s_waitcnt vmcnt(0)
        v_cmp_gt_u32 vcc, s66, v58
        s_cbranch_vccnz {nm}_p""")
    a(f'{nm}_pd:\ns_mov_b64 exec, -1\ns_barrier')
    if poll2: a('s_waitcnt vmcnt(0)')
    a(f's_branch h_top\n{nm}_f:')
    if pf:
        n0,n1,sl=pf
        def ex(lo,hi):
            m=((1<<(16*hi))-1)^((1<<(16*lo))-1)
            a(f's_mov_b32 exec_lo, {m&0xffffffff:#x}\ns_mov_b32 exec_hi, {m>>32:#x}')
        if n0: ex(0,n0); a('buffer_load_dword v127, v126, s[32:35], 0 offen sc1')
        if n1>n0:
            if sl: a(f's_sleep {sl}')
            ex(n0,n1); a('buffer_load_dword v127, v126, s[32:35], 0 offen sc1')
        a('s_mov_b64 exec, -1')
    a('s_barrier\ns_branch h_top')

def probe(a,nm,voff,res):
    a(f'v_add_u32 v{voff+1}, 0x2000, v{voff}\nv_mov_b32 v{voff+2}, 0\ns_mov_b32 s66, -1\ns_mov_b32 s67, -1\ns_mov_b32 s72, 0\n{nm}:')
    for s in range(2):
        a(f'''s_memtime s[68:69]
        s_waitcnt lgkmcnt(0)
        global_atomic_add v{voff+3}, v{voff+s}, v{voff+2}, s[30:31] sc0 sc1
        s_waitcnt vmcnt(0)
        s_memtime s[70:71]
        s_waitcnt lgkmcnt(0)
        s_sub_u32 s70, s70, s68
        s_min_u32 s{66+s}, s{66+s}, s70''')
    a(f's_add_u32 s72, s72, 1\ns_cmp_lt_u32 s72, 3\ns_cbranch_scc1 {nm}')
    a(f's_cmp_gt_u32 s66, s67\ns_cselect_b32 s{res}, 1, 0\ns_xor_b32 s{res}, s{res}, s6')

def gen(late7=False,OUTPOL='sc1',u0pf=False,poll2=0,side=None,xh=0,ent='nt',xnt='',fprio=(0,1,0,2,0),dbgst=False,K=8,R=12,RB=8,pf=(1,1,0),pdrain=True,stop=None,dump=False,stamps=False,npairs=4,stag=8,nprobe=2,xpos=2,xpf=0,pa=0):
    a=Asm()
    if RB is None: RB=R-1
    def stamp(nm):
        if stamps and nm in stamps:
            i=stamps.index(nm); a(f's_memrealtime s[{80+2*i}:{81+2*i}]')
        if stamps and nm+'c' in stamps:
            i=stamps.index(nm+'c'); a(f's_memtime s[{80+2*i}:{81+2*i}]')
    def hstamp(nm):
        if stamps and nm in stamps:
            l=a.lab('hs'); i=stamps.index(nm)
            a(f's_cmp_lg_u32 s3, 4\ns_cbranch_scc1 {l}\ns_memrealtime s[{80+2*i}:{81+2*i}]\n{l}:')
    a(f"""s_cmp_ge_u32 s2, 256
    s_cbranch_scc1 k_end
    s_load_dwordx16 s[8:23], s[0:1], 0
    s_load_dwordx8 s[24:31], s[0:1], 64
    v_lshrrev_b32 v1, 6, v0
    s_and_b32 s5, s2, 7
    v_readfirstlane_b32 s4, v1
    s_lshl_b32 s5, s5, 5
    s_lshr_b32 s3, s2, 3
    s_add_u32 s5, s5, s3
    s_mov_b32 s62, 0
    s_mul_i32 s54, s5, {BS}
    v_lshlrev_b32 v10, 4, v0""")
    stamp('s')
    def wsinit():
        a(f"""s_add_u32 s30, s30, 0x1fffff
        s_addc_u32 s31, s31, 0
        s_and_b32 s30, s30, 0xffe00000
        s_mov_b32 s36, s30
        s_mov_b32 s37, s31
        s_mov_b32 s38, {TBYTES}
        s_mov_b32 s39, 0x20000
        s_add_u32 s40, s30, {SMALL}
        s_addc_u32 s41, s31, 0
        s_mov_b32 s42, {SMALL_BYTES}
        s_mov_b32 s43, 0x20000
        s_getreg_b32 s7, hwreg(HW_REG_XCC_ID, 0, 4)
        s_lshr_b32 s6, s7, 2
        s_mov_b64 s[56:57], 0
        s_mov_b32 s44, s8
        s_mov_b32 s45, s9
        s_mov_b32 s46, {N*128}
        s_mov_b32 s47, 0x20000
        s_add_u32 s96, s30, {5*TSTR}
        s_addc_u32 s97, s31, 0
        s_mov_b32 s98, {TBYTES}
        s_mov_b32 s99, 0x20000
        s_mov_b32 s60, 0
        s_mov_b32 s93, 0
        s_and_b32 s6, s6, 1""")
    def ldsinit(z):
        for k in range(4): a(f'v_mov_b32 v{z+k}, 0\nv_mov_b32 v{z+4+k}, {OOBV}')
        o=f'v[{z+4}:{z+7}]'; zz=f'v[{z}:{z+3}]'
        a(f"""ds_write_b128 v10, {o} offset:{L_LIST}
        v_add_u32 v1, 13312, v10
        ds_write_b128 v1, {o} offset:{L_LIST}
        v_add_u32 v1, 26624, v10
        s_movk_i32 s64, 416
        v_cmpx_gt_u32 vcc, s64, v0
        ds_write_b128 v1, {o} offset:{L_LIST}
        ds_write_b128 v10, {zz} offset:{L_CNT}
        s_movk_i32 s64, 208
        v_cmpx_gt_u32 vcc, s64, v0
        ds_write_b128 v10, v[{z+2}:{z+5}] offset:{L_INFO}
        s_movk_i32 s64, 84
        v_cmpx_gt_u32 vcc, s64, v0
        ds_write_b128 v10, {zz} offset:{L_HIST}
        s_mov_b64 exec, -1""")
    a(f"""s_cmp_ge_u32 s4, 13
    s_cbranch_scc1 p1_help
    v_lshrrev_b32 v2, 3, v0
    v_add_u32 v3, s54, v2
    v_add_u32 v4, 104, v3
    v_and_b32 v5, 7, v0
    v_lshlrev_b32 v5, 4, v5
    v_lshl_add_u32 v6, v3, 7, v5
    v_lshl_add_u32 v7, v4, 7, v5
    v_lshlrev_b32 v8, 1, v3
    v_lshlrev_b32 v9, 1, v4
    s_mul_i32 s55, s2, {CHE*4}
    v_add_u32 v11, s55, v10
    s_add_u32 s55, s55, {CHUNK}
    s_mov_b32 s64, {N}
    v_cmp_gt_u32 s[48:49], s64, v3
    v_cmp_gt_u32 s[50:51], s64, v4
    s_movk_i32 s64, 736
    v_cmp_gt_u32 vcc, s64, v0
    s_and_b64 s[50:51], s[50:51], vcc
    s_movk_i32 s64, 800
    v_cmp_gt_u32 s[52:53], s64, v0
    s_cmp_ge_u32 s2, {NCH}
    s_cselect_b64 s[52:53], 0, s[52:53]
    s_waitcnt lgkmcnt(0)""")
    a(f"""s_mov_b64 exec, s[52:53]
    s_cbranch_execz p1_ne
    global_load_dwordx4 v[12:15], v11, s[12:13] {ent}
    global_load_dwordx4 v[16:19], v11, s[10:11] {ent}
    p1_ne:
""")
    XL=f"""    s_mov_b64 exec, s[48:49]
    s_cbranch_execz p1_nxa
    global_load_dwordx4 v[20:23], v6, s[8:9] {xnt}
    global_load_ushort v28, v8, s[14:15]
    p1_nxa:
    s_mov_b64 exec, s[50:51]
    s_cbranch_execz p1_nxb
    global_load_dwordx4 v[24:27], v7, s[8:9] {xnt}
    global_load_ushort v29, v9, s[14:15]
    p1_nxb:
    s_mov_b64 exec, -1"""
    if xpos==0: a(XL)
    else: a('s_mov_b64 exec, -1')
    wsinit()
    a(f"""s_lshl_b32 s64, s2, 4
    s_add_u32 s64, s64, s4
    s_cmp_lg_u32 s64, {255*16}
    s_cbranch_scc1 p1_nz
    v_and_b32 v40, 15, v0
    v_lshrrev_b32 v41, 4, v0
    v_lshlrev_b32 v40, 8, v40
    v_and_b32 v42, 1, v41
    v_lshrrev_b32 v41, 1, v41
    v_lshl_add_u32 v40, v42, 12, v40
    v_lshl_add_u32 v40, v41, 13, v40
    v_add_u32 v40, {BARP}, v40
    v_mov_b32 v41, 0
    global_store_dword v40, v41, s[30:31] sc1
    v_add_u32 v40, 0x4000, v40
    global_store_dword v40, v41, s[30:31] sc1
    v_add_u32 v40, 0x4000, v40
    global_store_dword v40, v41, s[30:31] sc1
    s_waitcnt vmcnt(0)
    s_mov_b64 exec, 1
    v_mov_b32 v40, 0
    v_mov_b32 v41, 1
    global_store_dword v40, v41, s[28:29] sc1
    s_mov_b64 exec, -1
    p1_nz:""")
    ldsinit(32)
    for n,d in ((3,76),(4,78)):
        line_calc(a,d,n,64,65)
        a(f"""v_lshl_add_u32 v{d}, v{d}, 7, v5
        v_cndmask_b32 v{d}, v36, v{d}, s[{48 if n==3 else 50}:{49 if n==3 else 51}]
        DUP128 64 {n}
        v_cmp_ne_u32 vcc, 0, v64
        v_add_u32 v{d+1}, 0x2000, v{d}
        v_cndmask_b32 v{d+1}, v36, v{d+1}, vcc""".replace('v_add_u32 v{0}'.format(d+1),'s_nop 0\nv_add_u32 v{0}'.format(d+1)))
    a('s_waitcnt lgkmcnt(0)\ns_barrier')
    stamp('B1')
    if xpos==1: a(XL)
    a(f"""s_mov_b64 exec, s[52:53]
    s_cbranch_execz p1_e1
    s_movk_i32 s64, -{BS}
    v_mov_b32 v33, 1
""")
    if xpos<2: a('s_cmp_lt_u32 s4, 12\ns_cbranch_scc1 p1_w4\ns_waitcnt vmcnt(2)\np1_w4:\ns_waitcnt vmcnt(4)')
    else: a('s_waitcnt vmcnt(0)')
    stamp('ed')
    for i in range(4):
        d=12+i; b=40+i
        a(f"""v_mul_u32_u24 v30, 85599, v{d}
        v_lshrrev_b32 v{52+i}, 24, v30
        v_lshlrev_b32 v{b}, 2, v{52+i}
        ds_add_rtn_u32 v{48+i}, v{b}, v33 offset:{L_HIST}""")
    a('p1_e1:')
    if xpos==2: a(XL)
    a('s_mov_b64 exec, -1\ns_waitcnt lgkmcnt(0)\ns_barrier')
    stamp('B2')
    a(f"""s_cmp_lg_u32 s4, 0
    s_cbranch_scc1 p1_ns
    ds_read_b128 v[72:75], v10 offset:{L_HIST}
    s_waitcnt lgkmcnt(0)
    v_add_u32 v57, v72, v73
    v_add_u32 v58, v57, v74
    v_add_u32 v59, v58, v75
    v_mov_b32 v60, v59
    s_nop 1""")
    for m in ('row_shr:1','row_shr:2','row_shr:4','row_shr:8'):
        a(f'v_add_u32_dpp v60, v60, v60 {m} {DPP} bound_ctrl:0\ns_nop 1')
    a(f"""v_add_u32_dpp v60, v60, v60 row_bcast:15 row_mask:0xa bank_mask:0xf
    s_nop 1
    v_add_u32_dpp v60, v60, v60 row_bcast:31 row_mask:0xc bank_mask:0xf
    v_sub_u32 v60, v60, v59
    v_add_u32 v61, v60, v72
    v_add_u32 v62, v60, v57
    v_add_u32 v63, v60, v58
    ds_write_b128 v10, v[60:63] offset:{L_HIST}
    v_lshl_or_b32 v56, v72, 16, v60
    v_lshl_or_b32 v57, v73, 16, v61
    v_lshl_or_b32 v58, v74, 16, v62
    v_lshl_or_b32 v59, v75, 16, v63
    s_cmp_ge_u32 s2, {NCH}
    s_cbranch_scc1 p1_ns
    s_lshl_b32 s65, s2, 10
    s_add_u32 s65, s65, {OFFS}
    buffer_store_dwordx4 v[56:59], v10, s[40:43], s65 offen sc1
    p1_ns:""")
    for i in range(4):
        d=12+i; s_=16+i; b=52+i; e=44+i
        a(f"""v_mul_u32_u24 v31, 10700, v{s_}
        v_lshrrev_b32 v30, 5, v{b}
        v_lshrrev_b32 v31, 26, v31
        v_mad_i32_i24 v{d}, v{b}, s64, v{d}
        v_sub_u32 v31, v31, v30
        v_and_b32 v31, 7, v31
        v_lshl_add_u32 v{d}, v{d}, 3, v31""")
        line_calc(a,e,s_,30,31)
        dup128(a,30,s_)
        a(f"""        v_lshl_or_b32 v{e}, v30, 10, v{e}
        v_lshl_or_b32 v{e}, v{d}, 18, v{e}""")
    a('s_waitcnt lgkmcnt(0)\ns_barrier')
    stamp('B3')
    a('s_mov_b64 exec, s[52:53]')
    for i in range(4): a(f'ds_read_b32 v{40+i}, v{40+i} offset:{L_HIST}')
    for i in range(4):
        a(f's_waitcnt lgkmcnt(3)\nv_add_lshl_u32 v{40+i}, v{40+i}, v{48+i}, 2')
        a(f'ds_write_b32 v{40+i}, v{44+i} offset:{L_ESTG}')
    a('s_mov_b64 exec, -1\ns_waitcnt lgkmcnt(0)\ns_barrier')
    stamp('B4')
    a(f"""s_mov_b64 exec, s[52:53]
    s_cbranch_execz p1_e3
    ds_read_b128 v[40:43], v10 offset:{L_ESTG}
    s_waitcnt lgkmcnt(0)
    buffer_store_dwordx4 v[40:43], v10, s[40:43], s55 offen sc1
    p1_e3:
    s_mov_b64 exec, -1""")
    if xpos==3:
        a(XL)
        a('s_cmp_lt_u32 s4, 12\ns_cbranch_scc1 p1_w4\ns_waitcnt vmcnt(2)\np1_w4:\ns_waitcnt vmcnt(4)')
    else: a('s_waitcnt vmcnt(0)')
    stamp('pa')
    a('s_barrier')
    stamp('aa')
    a('s_mov_b32 s66, 0x3f803f80\ns_waitcnt vmcnt(0)')
    for (X,D,n,m,off) in ((20,28,3,48,0),(24,29,4,50,832)):
        l=a.lab('xc')
        a(f's_mov_b64 exec, s[{m}:{m+1}]\ns_cbranch_execz {l}')
        a(f'v_lshlrev_b32 v{D}, 16, v{D}')
        for i in range(4):
            a(f"""v_lshlrev_b32 v64, 16, v{X+i}
            v_and_b32 v65, 0xffff0000, v{X+i}
            v_mul_f32 v64, v{D}, v64
            v_mul_f32 v65, v{D}, v65
            v_cvt_pk_bf16_f32 v{(68 if off==0 else 72)+i}, v64, v65""")
        ad=76 if off==0 else 78
        o=68 if off==0 else 72
        a(f"""buffer_store_dwordx4 v[{o}:{o+3}], v{ad}, s[36:39], 0 offen sc1
        buffer_store_dwordx4 v[{o}:{o+3}], v{ad+1}, s[36:39], 0 offen sc1
        {l}:""")
    for (X,D,n,m,off) in ((20,28,3,48,0),(24,29,4,50,832)):
        l=a.lab('xr')
        a(f's_mov_b64 exec, s[{m}:{m+1}]\ns_cbranch_execz {l}')
        rho_calc(a,X,64,65,None,'s66')
        a(f"""v_mov_b32 v65, v{D}
        v_lshlrev_b32 v66, 3, v2
        ds_write_b64 v66, v[64:65] offset:{L_R0+off}
        {l}:""")
    a('s_mov_b64 exec, -1\ns_branch p1_done')
    def P1D():
        a(f"""v_lshrrev_b32 v2, 2, v0
        v_and_b32 v3, 3, v0
        v_lshlrev_b32 v70, 10, v2
        s_lshl_b32 s92, s5, 2
        s_add_u32 s92, s92, {OFFS}
        s_movk_i32 s65, {NCH}
        v_cmp_gt_u32 s[48:49], s65, v2
        v_mov_b32 v72, {OOBV}
        v_and_b32 v73, 63, v0
        v_lshlrev_b32 v8, 2, v73
        v_cndmask_b32 v70, v72, v70, s[48:49]
        v_mul_u32_u24 v71, {CHE*4}, v2
        v_lshl_add_u32 v71, v3, 4, v71
        v_add_u32 v71, {CHUNK}, v71
        v_lshlrev_b32 v3, 2, v3
        v_mov_b32 v21, 1""")
    a(f"""p1_help:
    v_and_b32 v2, 63, v0
    v_and_b32 v3, 15, v0
    v_bfe_u32 v4, v0, 4, 2
    v_lshrrev_b32 v5, 2, v3
    v_and_b32 v6, 3, v0
    v_lshl_add_u32 v5, v5, 3, v6
    v_lshlrev_b32 v5, 7, v5
    v_lshl_add_u32 v5, v4, 4, v5
    v_add_u32 v7, 0x1000, v5
    s_waitcnt lgkmcnt(0)
    s_cmp_eq_u32 s4, 15
    s_cbranch_scc1 p1_probe
    s_barrier
    s_cmp_eq_u32 s4, 14
    s_cselect_b32 s64, s16, s20
    s_cselect_b32 s65, s17, s21""")
    WA=12; WBx=44; WD=[76,92,108,44]
    for t in range(4):
        for s_ in range(2):
            r=WA+8*t+4*s_
            a(f'global_load_dwordx4 v[{r}:{r+3}], v{5 if t<2 else 7}, s[64:65] offset:{512*(t&1)+64*s_}')
    a('s_cbranch_scc0 p1_wo')
    for t in range(4):
        for s_ in range(2):
            r=WBx+8*t+4*s_
            a(f'global_load_dwordx4 v[{r}:{r+3}], v{5 if t<2 else 7}, s[18:19] offset:{512*(t&1)+64*s_}')
    wsinit()
    XP=f"""v_add_u32 v8, s54, v2
    v_lshlrev_b32 v9, 7, v8
    s_mov_b32 s44, s8
    s_mov_b32 s45, s9
    s_mov_b32 s46, {N*128}
    s_mov_b32 s47, 0x20000
    s_movk_i32 s64, 0x2000
    s_movk_i32 s65, 0x4000
    buffer_load_dword v126, v9, s[44:47], 0 offen {xnt}
    buffer_load_dword v126, v9, s[44:47], s64 offen {xnt}
    buffer_load_dword v126, v9, s[44:47], s65 offen {xnt}
    s_movk_i32 s64, 0x6000
    s_mov_b64 exec, 15
    buffer_load_dword v126, v9, s[44:47], s64 offen {xnt}
    v_lshlrev_b32 v9, 7, v2
    s_lshl_b32 s64, s54, 1
    s_mov_b32 s44, s14
    s_mov_b32 s45, s15
    s_mov_b32 s46, {N*2}
    buffer_load_dword v126, v9, s[44:47], s64 offen {xnt}
    s_mov_b64 exec, -1"""
    if xpf==1: a(XP)
    a('s_barrier')
    if xpf==2: a(XP)
    a(f's_barrier\ns_barrier\ns_barrier\ns_waitcnt vmcnt({5 if xpf else 0})')
    a('s_branch p1_wm\np1_wo:\nv_lshlrev_b32 v8, 4, v2\nv_add_u32 v9, 0x1000, v8')
    for k in range(8):
        a(f'global_load_dwordx4 v[{76+4*k}:{79+4*k}], v{8 if k<4 else 9}, s[22:23] offset:{1024*(k&3)}')
    wsinit()
    a(f"""v_add_u32 v8, {L_WP}, v8
    v_bfe_u32 v9, v0, 2, 2
    v_lshl_add_u32 v9, v4, 3, v9
    v_lshlrev_b32 v9, 7, v9
    v_lshl_add_u32 v9, v6, 4, v9
    v_add_u32 v9, {L_WP}, v9
    s_barrier""")
    a('s_barrier\ns_barrier\ns_barrier\ns_waitcnt vmcnt(0)')
    for k in range(8): a(f'ds_write_b128 v8, v[{76+4*k}:{79+4*k}] offset:{1024*k}')
    a('s_waitcnt lgkmcnt(0)')
    for T in range(4):
        for s_ in range(2):
            for hf in range(2):
                r=WBx+8*T+4*s_+2*hf
                a(f'ds_read_b64_tr_b16 v[{r}:{r+1}], v9 offset:{4096*s_+512*hf+64*(T>>1)+8*(T&1)}')
        if T==2: a('s_waitcnt lgkmcnt(8)')
    a('s_waitcnt lgkmcnt(0)\np1_wm:')
    for T in range(4):
        for s_ in range(2):
            for t in range(4):
                d=WD[T]+4*t
                a(f'v_mfma_f32_16x16x32_bf16 v[{d}:{d+3}], v[{WA+8*t+4*s_}:{WA+8*t+4*s_+3}], v[{WBx+8*T+4*s_}:{WBx+8*T+4*s_+3}], '+(f'v[{d}:{d+3}]' if s_ else '0'))
    a('s_nop 7')
    for T in range(4):
        d=WD[T]
        a(f'v_pk_add_f32 v[{20+2*T}:{21+2*T}], v[{d}:{d+1}], v[{d+2}:{d+3}]')
    for k in range(2,8):
        for T in range(4):
            d=WD[T]; a(f'v_pk_add_f32 v[{20+2*T}:{21+2*T}], v[{20+2*T}:{21+2*T}], v[{d+2*k}:{d+2*k+1}]')
    for T in range(4): a(f'v_add_f32 v{12+T}, v{20+2*T}, v{21+2*T}')
    for sw in ('v_permlane16_swap_b32','v_permlane32_swap_b32'):
        for T in range(4): a(f'v_mov_b32 v{16+T}, v{12+T}')
        a('s_nop 1')
        for T in range(4): a(f'{sw} v{12+T}, v{16+T}')
        for T in range(4): a(f'v_add_f32 v{12+T}, v{12+T}, v{16+T}')
    for T in range(4): a(f'v_mul_f32 v{20+2*T}, 0xbc800000, v{12+T}')
    a('s_cmp_eq_u32 s4, 14\ns_cbranch_scc0 p1_wc')
    for k in range(8):
        a(f'v_pk_add_f32 v[{28+2*k}:{29+2*k}], v[{WD[0]+2*k}:{WD[0]+2*k+1}], v[{WD[1]+2*k}:{WD[1]+2*k+1}]')
    for T in (2,3):
        for k in range(8): a(f'v_pk_add_f32 v[{28+2*k}:{29+2*k}], v[{28+2*k}:{29+2*k}], v[{WD[T]+2*k}:{WD[T]+2*k+1}]')
    a('v_add_f32 v12, v20, v22\nv_add_f32 v13, v24, v26\nv_add_f32 v12, v12, v13\ns_nop 1')
    for m in ('quad_perm:[1,0,3,2]','quad_perm:[2,3,0,1]','row_half_mirror','row_mirror'):
        a(f'v_add_f32_dpp v12, v12, v12 {m} {DPP}')
        for k in range(16): a(f'v_add_f32_dpp v{28+k}, v{28+k}, v{28+k} {m} {DPP}')
    a('v_mul_f32 v12, 0xbc800000, v12\nv_mov_b32 v14, 0xbc800000')
    for T in range(4): a(f'v_add_f32 v{20+2*T}, v{20+2*T}, v12')
    for T in range(4):
        for k in range(8):
            d=WD[T]+2*k
            a(f'v_pk_fma_f32 v[{d}:{d+1}], v[{28+2*k}:{29+2*k}], v[14:15], v[{d}:{d+1}] op_sel_hi:[1,0,1]')
    a(f"""p1_wc:
    s_sub_u32 s64, 14, s4
    s_lshl_b32 s64, s64, 13
    s_add_u32 s64, s64, {L_W}
    v_lshlrev_b32 v8, 4, v2
    v_add_u32 v8, s64, v8""")
    for T in range(4):
        for k in range(8):
            d=WD[T]+2*k
            a(f'v_pk_add_f32 v[{d}:{d+1}], v[{d}:{d+1}], v[{20+2*T}:{21+2*T}] op_sel_hi:[1,0]')
        for s_ in range(2):
            d=WD[T]+8*s_
            for k in range(4): a(f'v_cvt_pk_bf16_f32 v{d+k}, v{d+2*k}, v{d+2*k+1}')
            a(f'ds_write_b128 v8, v[{d}:{d+3}] offset:{2048*T+1024*s_}')
    a('s_branch p1_done')
    a('p1_probe:')
    wsinit()
    a(f"""s_and_b32 s64, s2, 3
    s_and_b32 s74, s2, 1
    s_lshl_b32 s64, s64, 21
    s_lshr_b32 s65, s2, 2
    s_lshl_b32 s65, s65, 7
    s_add_u32 s64, s64, s65
    s_add_u32 s64, s64, {254*8192}
    v_mov_b32 v40, s64
    v_add_u32 v41, 0x2000, v40
    v_mov_b32 v42, 0
    v_mov_b32 v76, -1
    v_mov_b32 v77, -1
    v_mov_b32 v78, -1
    v_mov_b32 v79, -1
    v_cmp_gt_u32 vcc, 7, v2
    v_add_u32 v45, {SMALL//(2*MB)-7}, v2
    v_cmp_eq_u32 s[66:67], 7, v2
    v_cndmask_b32 v45, v45, v2, vcc
    v_cmp_eq_u32 vcc, 10, v2
    v_mov_b32 v46, 0x1fff80
    v_cndmask_b32 v46, v46, 0, s[66:67]
    v_cndmask_b32 v45, v45, {BARP//(2*MB)}, vcc
    v_lshl_add_u32 v45, v45, 21, v46
    s_mov_b64 exec, 0x7ff
    global_load_dword v47, v45, s[30:31] sc1
    s_mov_b64 exec, 1
    global_load_dword v47, v42, s[28:29] sc1
    global_atomic_add v43, v40, v42, s[30:31] sc0 sc1
    global_atomic_add v44, v41, v42, s[30:31] sc0 sc1
    s_mov_b32 s63, 0
    s_mov_b32 s62, 1""")
    baraddr(a,BARP+16384)
    def rounds(nm,n):
        a(f"""s_mov_b32 s72, 0
        {nm}:
        global_atomic_add v43, v40, v42, s[30:31] sc0 sc1
        global_atomic_add v44, v41, v42, s[30:31] sc0 sc1
        s_waitcnt vmcnt(1)
        s_memtime s[68:69]
        s_waitcnt vmcnt(0)
        s_memtime s[70:71]
        v_swap_b32 v40, v41
        s_waitcnt lgkmcnt(0)
        s_sub_u32 s66, s70, s68
        s_sub_u32 s67, s66, s67
        s_add_u32 s72, s72, 1
        s_cmp_lt_u32 s72, {n}
        s_cbranch_scc1 {nm}""")
    a("""s_barrier
    s_barrier
    s_barrier
    global_load_dword v58, v42, s[28:29] sc1
    s_barrier
    s_mov_b32 s67, 0
    s_waitcnt vmcnt(0)""")
    if pa: rounds('p1_pl',pa)
    a(f"""s_mov_b32 s64, 0
    s_barrier
    gb0_i:
    v_readfirstlane_b32 s65, v58
    s_cmp_lg_u32 s65, 0
    s_cbranch_scc1 gb0_id
    s_sleep 2
    global_load_dword v58, v42, s[28:29] sc1
    s_add_u32 s64, s64, 1
    s_cmp_lt_u32 s64, 0x400000
    s_waitcnt vmcnt(0)
    s_cbranch_scc1 gb0_i
    gb0_id:""")
    bar_arrive(a,'gb0')
    rounds('p1_pm',nprobe-pa)
    a(f"""s_cmp_gt_i32 s67, 0
    s_cselect_b32 s65, 1, 0
    s_xor_b32 s65, s65, s6
    s_xor_b32 s65, s65, s74
    s_lshl_b32 s65, s65, 8
    s_or_b32 s93, s65, 1""")
    baraddr(a,BARP+32768)
    a('s_mov_b64 exec, -1')
    P1D()
    a('s_mov_b64 exec, 1\ns_mov_b32 s64, 8')
    bar_poll(a,'gb0')
    a('s_mov_b64 exec, -1\ns_branch p1_d9')
    a('p1_done:')
    P1D()
    a('p1_d9:\ns_waitcnt vmcnt(0) lgkmcnt(0)')
    stamp('p1')
    a('s_barrier')
    stamp('b0')
    if stop=='p1': a('s_endpgm')
    a(f"""buffer_load_dword v5, v70, s[40:43], s92 offen sc1
    s_cmp_lg_u32 s4, 15
    s_cbranch_scc1 p2_na
    s_mov_b64 exec, 1
    v_mov_b32 v57, s93
    v_mov_b32 v56, s56
    global_atomic_add v58, v56, v57, s[30:31] sc0 sc1
    s_mov_b64 exec, -1
    p2_na:
    s_waitcnt vmcnt(0)
    v_and_b32 v9, 0xffff, v5
    v_lshrrev_b32 v11, 16, v5
    v_lshl_add_u32 v4, v9, 2, v71
    v_cndmask_b32 v4, v72, v4, s[48:49]
    buffer_load_dwordx4 v[12:15], v4, s[40:43], 0 offen sc1
    buffer_load_dwordx4 v[16:19], v4, s[40:43], 0 offen offset:64 sc1
    v_sub_u32 v20, v11, v3
    v_mov_b32 v6, v72
    v_mov_b32 v7, v73
    s_cmp_lg_u32 s4, 15
    s_cbranch_scc1 p2_nw
    s_mov_b64 exec, 1
    v_add_u32 v57, v57, v58
    v_mov_b32 v56, s57
    v_readfirstlane_b32 s65, v57
    s_and_b32 s64, s65, 0xff
    s_cmp_lg_u32 s64, 32
    s_cbranch_scc1 gbb_np
    s_sub_u32 s65, s65, 31""")
    bar_l2(a,'gbb')
    a('s_mov_b64 exec, -1\np2_nw:')
    if u0pf:
        a('s_cmp_ge_u32 s4, 13\ns_cbranch_scc1 p2_np\ns_mov_b32 exec_lo, 0x01010101\ns_mov_b32 exec_hi, 0x01010101')
        for r in (76,77,78,79): a(f'buffer_load_dword v127, v{r}, s[36:39], 0 offen sc1')
        a('s_mov_b64 exec, -1\ns_waitcnt vmcnt(4)\ns_branch p2_np2\np2_np:\ns_waitcnt vmcnt(0)\np2_np2:')
    def each_entry(body,regs,base):
        for r,e in enumerate(regs):
            a(f'v_cmpx_lt_i32 vcc, {base[r]}, v20')
            body(e)
        a('s_mov_b64 exec, -1')
    regs=list(range(12,20)); base=[0,1,2,3,16,17,18,19]
    def pass1(regs):
        for k,e in enumerate(regs): a(f'v_lshrrev_b32 v{80+k}, 16, v{e}\nv_and_b32 v{80+k}, 0x1ffc, v{80+k}')
        ad={e:80+k for k,e in enumerate(regs)}
        each_entry(lambda e: a(f'ds_add_u32 v{ad[e]}, v21 offset:{L_CNT}'),regs,base)
    if not u0pf: a('s_waitcnt vmcnt(0)')
    stamp('sg')
    pass1(regs)
    def longseg(nm,whole):
        a(f"""v_cmp_lt_i32 vcc, 32, v20
        s_cbranch_vccnz {nm}
        {nm}_d:""")
        def tail():
            a(f"""{nm}:
            v_mov_b32 v23, v20
            v_mov_b32 v24, v4
            {nm}_l:
            v_subrev_u32 v20, 32, v20
            v_add_u32 v24, 128, v24
            v_cmp_lt_i32 vcc, 0, v20
            s_cbranch_vccz {nm}_r
            buffer_load_dwordx4 v[28:31], v24, s[40:43], 0 offen sc1
            buffer_load_dwordx4 v[32:35], v24, s[40:43], 0 offen offset:64 sc1
            s_waitcnt vmcnt(0)""")
            whole(list(range(28,36)))
            a(f"""s_branch {nm}_l
            {nm}_r:
            v_mov_b32 v20, v23""")
            for k,e in enumerate(regs): a(f'v_lshrrev_b32 v{80+k}, 16, v{e}\nv_and_b32 v{80+k}, 0x1ffc, v{80+k}')
            a(f's_branch {nm}_d')
        tails.append(tail)
    tails=[]
    longseg('ls1',pass1)
    a('s_waitcnt lgkmcnt(0)\ns_barrier')
    stamp('c1')
    a(f"""s_cmp_ge_u32 s4, 4
    s_cbranch_scc1 p2_n1
    v_add_u32 v36, s54, v0
    s_mov_b32 s64, {N}
    v_cmp_gt_u32 vcc, s64, v36
    s_movk_i32 s64, {BS}
    v_cmp_gt_u32 s[64:65], s64, v0
    s_and_b64 s[66:67], vcc, s[64:65]
    s_mov_b64 exec, s[66:67]
    v_lshlrev_b32 v37, 5, v0
    v_lshlrev_b32 v38, 3, v0
    ds_read_b128 v[40:43], v37 offset:{L_CNT}
    ds_read_b128 v[44:47], v37 offset:{L_CNT+16}
    ds_read_b64 v[58:59], v38 offset:{L_R0}""")
    line_calc(a,66,36,62,63)
    a(f"""v_lshlrev_b32 v66, 7, v66
    DUP128 62 36
    v_add_u32 v67, 0x2000, v66
    v_cmp_ne_u32 vcc, 0, v62
    v_mov_b32 v48, 0
    s_waitcnt lgkmcnt(1)
    v_cndmask_b32 v67, v6, v67, vcc
    v_mov_b32 v49, v40
    v_add_u32 v50, v49, v41
    v_add_u32 v51, v50, v42
    v_add_u32 v52, v51, v43
    v_add_u32 v53, v52, v44
    v_add_u32 v54, v53, v45
    v_add_u32 v55, v54, v46
    v_add_u32 v65, v55, v47
    v_min_u32 v57, 63, v65
    v_sub_u32 v57, 63, v57
    v_lshlrev_b32 v57, 2, v57
    ds_add_rtn_u32 v60, v57, v21 offset:{L_DH}
    s_mov_b64 exec, -1
    p2_n1:""")
    def offs(regs):
        for e in regs:
            a(f"""v_bfe_u32 v26, v{e}, 14, 3
            v_lshrrev_b32 v27, 17, v{e}
            v_bfe_u32 v26, s58, v26, 1
            v_and_b32 v{e}, 0x1ffff, v{e}
            v_and_b32 v26, v26, v27
            v_lshl_add_u32 v{e}, v26, 6, v{e}
            v_lshlrev_b32 v{e}, 7, v{e}""")
    a('s_cmp_lg_u32 s4, 15\ns_cbranch_scc1 p2_nq\ns_mov_b64 exec, 1\nv_mov_b32 v56, s57\ns_mov_b32 s64, 8')
    bar_poll(a,'gbb',votes=True)
    a(f"""v_mov_b32 v62, {L_RED}
    ds_write_b32 v62, v58 offset:8
    s_mov_b64 exec, -1
    p2_nq:
    v_mov_b32 v62, {L_RED}
    s_waitcnt lgkmcnt(0)
    s_barrier
    ds_read_b32 v63, v62 offset:8
    ds_read_b32 v61, v8 offset:{L_DH}
    s_waitcnt lgkmcnt(0)
    v_readfirstlane_b32 s60, v63
    s_cmp_ge_u32 s60, 0x8000
    s_cselect_b32 s61, 1, 0
    s_xor_b32 s58, s61, s6
    s_lshr_b32 s58, 0xaa, s58
    s_cmp_ge_u32 s4, 4
    s_cbranch_scc1 p2_n2
    v_mov_b32 v62, v61
    s_nop 1""")
    for m in ('row_shr:1','row_shr:2','row_shr:4','row_shr:8'):
        a(f'v_add_u32_dpp v62, v62, v62 {m} {DPP} bound_ctrl:0\ns_nop 1')
    a(f"""v_add_u32_dpp v62, v62, v62 row_bcast:15 row_mask:0xa bank_mask:0xf
    s_nop 1
    v_add_u32_dpp v62, v62, v62 row_bcast:31 row_mask:0xc bank_mask:0xf
    v_sub_u32 v62, v62, v61
    ds_bpermute_b32 v62, v57, v62
    s_mov_b64 exec, s[66:67]
    v_or_b32 v64, v59, v0
    s_waitcnt lgkmcnt(0)
    v_add_u32 v60, v60, v62
    v_lshlrev_b32 v61, 20, v60""")
    for j in range(8): a(f'v_or_b32 v{48+j}, v61, v{48+j}')
    a(f"""ds_write_b128 v37, v[48:51] offset:{L_CNT}
    ds_write_b128 v37, v[52:55] offset:{L_CNT+16}
    v_lshlrev_b32 v62, 4, v60
    ds_write_b128 v62, v[64:67] offset:{L_INFO}
    v_lshlrev_b32 v62, 5, v60
    v_add_u32 v62, {L_RHO-65024}, v62
    ds_write_b32 v62, v58 offset:65024
    v_cmp_lt_u32 vcc, {CAP}, v65
    s_and_b64 exec, exec, vcc
    s_cbranch_execz p2_n3
    v_subrev_u32 v56, {CAP}, v65
    v_mov_b32 v62, {L_RED}
    ds_add_rtn_u32 v63, v62, v56
    v_lshlrev_b32 v62, 2, v60
    s_waitcnt lgkmcnt(0)
    ds_write_b32 v62, v63 offset:{L_INF2}
    s_branch p2_n3
    p2_n2:""")
    offs(regs)
    a('p2_n3:\ns_mov_b64 exec, -1')
    a('s_waitcnt lgkmcnt(0)\ns_barrier')
    stamp('nd')
    def pass2(regs,slow):
        cur={e:40+k for k,e in enumerate(regs)}; ad={e:80+k for k,e in enumerate(regs)}
        each_entry(lambda e: a(f'ds_add_rtn_u32 v{cur[e]}, v{ad[e]}, v21 offset:{L_CNT}'),regs,base)
        if not slow:
            a(f"""v_mov_b32 v62, {L_RED}
            ds_read_b32 v63, v62
            s_cmp_ge_u32 s4, 4
            s_cbranch_scc1 p2_o2""")
            offs(regs)
            a(f"""p2_o2:
            s_movk_i32 s64, 160
            s_mov_b32 s65, 0xfffff
            s_waitcnt lgkmcnt(0)
            v_readfirstlane_b32 s59, v63
            s_cmp_lg_u32 s59, 0
            s_cbranch_scc1 p2_ovf""")
            for e in regs:
                a(f"""v_lshrrev_b32 v26, 20, v{cur[e]}
                v_and_b32 v{cur[e]}, s65, v{cur[e]}
                v_mul_u32_u24 v26, s64, v26
                v_lshl_add_u32 v{cur[e]}, v{cur[e]}, 2, v26""")
            each_entry(lambda e: a(f'ds_write_b32 v{cur[e]}, v{e} offset:{L_LIST}'),regs,base)
        else:
            a('s_waitcnt lgkmcnt(0)')
            slow2(regs)
    def slow2(regs):
        cur={e:40+k for k,e in enumerate(regs)}
        for r,e in enumerate(regs):
            l=a.lab('ov')
            a(f"""v_cmp_lt_i32 s[70:71], {base[r]}, v20
            v_lshrrev_b32 v26, 20, v{cur[e]}
            v_and_b32 v25, s65, v{cur[e]}
            v_cmp_gt_u32 vcc, {CAP}, v25
            v_mul_u32_u24 v22, s64, v26
            v_lshl_add_u32 v22, v25, 2, v22
            s_and_b64 exec, s[70:71], vcc
            ds_write_b32 v22, v{e} offset:{L_LIST}
            s_andn2_b64 exec, s[70:71], vcc
            s_cbranch_execz {l}
            v_lshlrev_b32 v26, 2, v26
            ds_read_b32 v26, v26 offset:{L_INF2}
            v_subrev_u32 v25, {CAP}, v25
            s_waitcnt lgkmcnt(0)
            v_add_lshl_u32 v25, v25, v26, 2
            buffer_store_dword v{e}, v25, s[40:43], s59 offen
            {l}:
            s_mov_b64 exec, -1""")
    pass2(regs,False)
    a('p2_ovd:')
    def long2(regs):
        for k,e in enumerate(regs): a(f'v_lshrrev_b32 v{80+k}, 16, v{e}\nv_and_b32 v{80+k}, 0x1ffc, v{80+k}')
        offs(regs); pass2(regs,True)
    longseg('ls2',long2)
    def ovf_tail():
        a(f"""p2_ovf:
        v_cmp_eq_u32 vcc, 0, v3
        s_mov_b64 exec, vcc
        ds_add_u32 v62, v9 offset:4
        s_mov_b64 exec, -1
        s_waitcnt lgkmcnt(0)
        s_barrier
        ds_read_b32 v63, v62 offset:4
        s_waitcnt lgkmcnt(0)
        v_readfirstlane_b32 s59, v63
        s_lshl_b32 s59, s59, 2
        s_add_u32 s59, s59, {OVF}""")
        slow2(regs)
        a('s_branch p2_ovd')
    tails.append(ovf_tail)
    a('s_waitcnt vmcnt(0) lgkmcnt(0)\ns_barrier')
    stamp('c2')
    a('s_cmp_ge_u32 s4, 13\ns_cbranch_scc1 k_hx')
    a(f"""v_mov_b32 v0, v7
    v_lshrrev_b32 v115, 3, v0
    s_lshl_b32 s64, s4, 4
    v_add_u32 v115, s64, v115
    v_and_b32 v114, 3, v0
    v_mul_u32_u24 v6, 160, v115
    v_lshl_add_u32 v7, v114, 3, v6
    v_lshl_add_u32 v6, v114, 4, v6
    ds_read_b128 v[16:19], v6 offset:{L_LIST}
    ds_read_b128 v[26:29], v6 offset:{L_LIST+1280}
    v_lshlrev_b32 v116, 4, v115
    v_and_b32 v1, 7, v0
    v_lshlrev_b32 v1, 4, v1""")
    for s in range(2):
        o=16+10*s
        a(f"""ds_read_b128 v[{100+4*s}:{103+4*s}], v116 offset:{L_INFO+128*s}
        ds_read_b128 v[{o+4}:{o+7}], v6 offset:{L_LIST+1280*s+64}
        ds_read_b64 v[{o+8}:{o+9}], v7 offset:{L_LIST+1280*s+128}""")
    a(f"""s_mov_b32 s32, s36
    s_mov_b32 s33, s37
    s_mov_b32 s34, s38
    s_mov_b32 s35, 0x20000
    s_mov_b32 s3, 1
    v_mov_b32 v126, -1
    s_waitcnt lgkmcnt(6)""")
    stamp('p2')
    def deferred():
        a(f"""v_lshlrev_b32 v116, 2, v115
        ds_read_b32 v122, v116 offset:{L_INF2}
        ds_read_b32 v123, v116 offset:{L_INF2+32}
        v_mov_b32 v6, 0x3f80
        v_mov_b32 v7, 0x3f800000
        v_cmp_eq_u32 s[70:71], 0, v114
        v_cmp_eq_u32 s[64:65], 1, v114
        v_cmp_eq_u32 s[66:67], 2, v114
        v_cmp_eq_u32 s[68:69], 3, v114
        v_cndmask_b32 v2, 0, v6, s[70:71]
        v_cndmask_b32 v3, 0, v6, s[66:67]
        v_cndmask_b32 v2, v2, v7, s[64:65]
        v_cndmask_b32 v3, v3, v7, s[68:69]
        s_movk_i32 s64, {BS}
        v_cmp_gt_u32 s[48:49], s64, v115
        s_movk_i32 s64, {BS-8}
        v_cmp_gt_u32 s[50:51], s64, v115
        v_lshlrev_b32 v116, 7, v115
        v_lshlrev_b32 v117, 5, v115
        v_add_u32 v117, {L_RHO}, v117
        s_waitcnt lgkmcnt(0)
        v_max_u32 v4, v101, v105
        v_mov_b32 v120, v101
        v_mov_b32 v121, v105
        v_max_u32_dpp v4, v4, v4 row_shr:8 {DPP} bound_ctrl:0
        s_nop 1
        v_max_u32_dpp v4, v4, v4 row_bcast:15 row_mask:0xa bank_mask:0xf
        s_nop 1
        v_max_u32_dpp v4, v4, v4 row_bcast:31 row_mask:0xc bank_mask:0xf
        s_nop 1
        v_readlane_b32 s53, v4, 63""")
        for s in range(2):
            i=100+4*s
            a(f"""v_add_u32 v{8+s}, v{i+2}, v1
            v_add_u32 v{10+s}, v{i+3}, v1
            v_and_b32 v4, 0xffff0000, v{i}
            v_mul_f32 v{12+s}, v4, v4
            v_cmp_eq_f32 s[64:65], 0, v4
            v_and_b32 v5, 0xffff, v{i}
            v_add_u32 v5, s54, v5
            v_cndmask_b32 v{124+s}, v4, 1.0, s[64:65]
            v_lshl_add_u32 v{118+s}, v5, 7, v1
            v_cmp_gt_u32 s[64:65], s38, v{i+2}
            v_rcp_f32 v{14+s}, v{124+s}
            s_nop 0
            v_cndmask_b32 v{118+s}, v{i+2}, v{118+s}, s[64:65]""")
        a(f"""s_max_u32 s52, s53, {K//2}
        s_min_u32 s52, s52, {CAP}
        s_add_u32 s36, s36, {TSTR}
        s_addc_u32 s37, s37, 0
        s_mov_b32 s76, 0x3f803f80
        v_lshrrev_b32 v4, 4, v0
        v_lshlrev_b32 v4, 4, v4
        global_load_dwordx4 v[84:87], v4, s[24:25]
        global_load_dwordx4 v[88:91], v4, s[24:25] offset:64""")
    def late():
        a(f"""s_mul_i32 s95, s4, {STG}
        s_add_u32 s95, s95, {L_STAGE}
        s_xor_b32 s63, s61, 1
        s_mov_b32 s62, 0""")
        a('s_cmp_lg_u32 s4, 0\ns_cbranch_scc1 f_nb')
        baraddr(a,BARP)
        if stamps: a('s_mov_b32 s94, s60')
        a('f_nb:')
        if stag>=4: a(f'v_mov_b32 v4, {L_END}\nv_mov_b32 v5, 0\nds_write_b32 v4, v5')
        if pf:
            a(f"""v_lshrrev_b32 v4, 4, v0
            v_lshl_add_u32 v4, v4, 5, s5
            v_and_b32 v4, 0xff, v4
            v_mul_u32_u24 v4, {BS}, v4
            v_and_b32 v5, 15, v0
            s_lshl_b32 s64, s4, 4
            s_sub_u32 s64, s64, 16
            v_add3_u32 v4, v4, v5, s64""")
            line_calc(a,126,4,5,6)
            a(f"""v_lshrrev_b32 v5, 14, v126
            v_bfe_u32 v5, s58, v5, 1
            DUP128 6 4
            v_lshrrev_b32 v6, 7, v6
            v_and_b32 v5, v5, v6
            v_lshl_add_u32 v126, v5, 6, v126
            v_lshlrev_b32 v126, 7, v126""")
    def late2():
        for s_ in range(2):
            a(f"""s_mov_b64 exec, s[{48+2*s_}:{49+2*s_}]
            v_lshrrev_b32 v4, 3, v116
            v_add_u32 v4, {L_ND+128*s_}, v4
            v_mov_b32 v52, v{124+s_}
            v_mov_b32 v53, v{14+s_}
            v_sub_u32 v54, v{118+s_}, v1
            v_mov_b32 v55, 0
            ds_write_b128 v4, v[52:55]""")
        a(f"""s_mov_b64 exec, -1
        v_lshrrev_b32 v4, 2, v0
        v_xor_b32 v4, s63, v4
        v_and_b32 v4, 1, v4
        v_lshlrev_b32 v4, 13, v4
        v_lshl_add_u32 v4, v0, 8, v4
        v_add_u32 v124, {BARP+4096}, v4""")
    if dump:
        deferred()
        a(f's_lshl_b32 s64, s2, 4\ns_add_u32 s64, s64, s4\ns_mul_i32 s64, s64, {40*256}\ns_add_u32 s64, s64, {DUMP}\nv_lshlrev_b32 v4, 2, v0\nv_add_u32 v4, s64, v4')
        for i,r in enumerate(list(range(8,36))+list(range(118,126))):
            a(f'global_store_dword v4, v{r}, s[30:31]\nv_add_u32 v4, 256, v4')
        a('v_mov_b32 v5, s53\nglobal_store_dword v4, v5, s[30:31]\nv_add_u32 v4, 256, v4\nv_mov_b32 v5, s60\nglobal_store_dword v4, v5, s[30:31]\nv_add_u32 v4, 256, v4\nds_read_b32 v5, v117\ns_waitcnt lgkmcnt(0)\nglobal_store_dword v4, v5, s[30:31]')
    if stop=='p2': a('s_endpgm')
    for k,(r,o) in enumerate(((4,16),(5,26),(6,17),(7,27))): a(f'v_add_u32_dpp v{r}, v{o}, v1 quad_perm:[0,0,0,0] {DPP}')
    if side in ('min','minb'):
        a('s_waitcnt lgkmcnt(0)\ns_cmp_lg_u32 s4, 0\ns_cbranch_scc1 sd_n\ns_not_b32 s64, s80\nv_mov_b32 v4, 0\nv_mov_b32 v5, s64\ns_mov_b64 exec, 1\nglobal_atomic_umax v4, v5, s[28:29] offset:8 sc1\ns_mov_b64 exec, -1\nsd_n:')
    a('h_top:')
    XA=52; XB=68; TA=120; TB=[40,41,42,43,48,49,50,51]; TQ=10; WB=[18,22,26]; Z=10; ST=[84,88]; BA=92; BB=96; BO=100
    vW,vOq,vA,vTr,vRk,vRq,vNd,vNs,vBw,vBr,vNo,vS=range(104,116); vAq=114+11
    mRA,mRT,mVA,mVB,mH0,mRH,mCA,mCB='s[10:11]','s[12:13]','s[14:15]','s[16:17]','s[18:19]','s[20:21]','s[22:23]','s[8:9]'
    t0_,t1_,cq,dq=2,3,4,5; sv=6; vo=7
    def tokaddr(dst,n,h,ch,t1,t2,mask):
        a(f"""v_lshlrev_b32 v{t1}, 4, v{ch}
        v_lshl_add_u32 v{t1}, v{n}, 7, v{t1}
        v_and_b32 v{t2}, 3, v{h}
        v_lshl_add_u32 v{t1}, v{t2}, 6, v{t1}
        v_lshrrev_b32 v{t2}, 2, v{h}
        v_lshl_add_u32 v{t1}, v{t2}, 5, v{t1}
        v_subrev_u32 v{t2}, 1, v{h}
        v_cmp_gt_u32 {mask}, 4, v{t2}
        v_mul_u32_u24 v{t2}, {PL2}, v{t2}
        v_add3_u32 v{t2}, v{t2}, v{t1}, s64
        v_subrev_u32 v{dst}, 4, v{h}
        v_max_i32 v{dst}, 0, v{dst}
        v_lshl_add_u32 v{dst}, v{dst}, 9, v{t1}
        v_add_u32 v{dst}, s95, v{dst}
        v_cndmask_b32 v{dst}, v{dst}, v{t2}, {mask}""")
    J,Q,C3,Q16,H,NN,QH,T1,T2,T3,T4,T5=4,5,6,7,56,57,58,59,60,61,62,63
    def fsetup():
        a(f"""v_and_b32 v{J}, 15, v0
        v_lshrrev_b32 v{Q}, 4, v0
        v_lshlrev_b32 v{Q16}, 4, v{Q}
        s_lshl_b32 s64, s4, 11
        v_and_b32 v{H}, 7, v0
        v_lshrrev_b32 v{NN}, 3, v{J}
        v_bfe_u32 v{T1}, v0, 3, 2
        v_lshl_add_u32 v{T1}, v{T1}, 7, v1
        v_add_u32 v{vS}, s95, v{T1}""")
        tokaddr(vA,NN,H,Q,T1,T2,mRA)
        a(f"""v_lshrrev_b32 v{QH}, 1, v{Q}
        v_and_b32 v{T3}, 1, v{Q}
        v_bfe_u32 v{T4}, v0, 2, 2
        v_lshl_add_u32 v{T3}, v{T3}, 2, v{T4}
        v_and_b32 v{C3}, 3, v0
        v_lshlrev_b32 v{T4}, 8, v{NN}
        v_sub_u32 v{vAq}, v{vA}, v{T4}
        v_add_u32 v{vAq}, 0x180, v{vAq}""")
        tokaddr(vTr,QH,T3,C3,T1,T2,mRT)
        a(f"""v_cmp_eq_u32 {mVA}, v{QH}, v{NN}
        v_cmp_ne_u32 {mVB}, v{QH}, v{NN}
        v_cmp_eq_u32 {mH0}, 0, v{H}
        v_cmp_gt_u32 {mRH}, 2, v{Q}
        v_cmp_gt_u32 s[66:67], 2, v{J}
        s_lshl_b32 s64, s4, 9
        s_add_u32 s64, s64, {L_RHO}
        s_lshl_b32 s65, s4, 8
        s_add_u32 s65, s65, {L_ND}
        v_lshlrev_b32 v{T1}, 2, v{J}
        v_xor_b32 v{T2}, 0x60, v{T1}
        v_add_u32 v{T4}, 64, v{Q16}
        v_cndmask_b32 v{vRk}, v{T4}, v{Q16}, {mVA}
        v_cndmask_b32 v{vRq}, v{T2}, v{T1}, {mVA}
        v_cndmask_b32 v{vBw}, v{T2}, v{T1}, {mRH}
        v_cndmask_b32 v{vBr}, v{T4}, v{Q16}, s[66:67]
        v_lshlrev_b32 v{T1}, 4, v{NN}
        v_xor_b32 v{T2}, 0x30, v{T1}
        v_cndmask_b32 v{vNd}, v{T2}, v{T1}, {mVA}
        v_cndmask_b32 v{vNs}, v{T2}, v{T1}, {mRH}
        v_lshlrev_b32 v{vNo}, 4, v{C3}""")
        for r in (vRk,vRq,vBw,vBr): a(f'v_add_u32 v{r}, s64, v{r}')
        for r in (vNd,vNs,vNo): a(f'v_add_u32 v{r}, s65, v{r}')
    def fsetup2():
        a(f"""v_and_b32 v{J}, 15, v0
        v_lshrrev_b32 v{Q}, 4, v0
        v_lshlrev_b32 v{Q16}, 4, v{Q}
        v_lshrrev_b32 v{QH}, 1, v{Q}
        v_and_b32 v{C3}, 3, v0
        v_lshlrev_b32 v{T1}, 2, v{Q}
        v_sub_u32 v{T2}, v{J}, v{T1}
        v_xor_b32 v{T3}, 8, v{J}
        v_sub_u32 v{T3}, v{T3}, v{T1}
        v_mov_b32 v{T4}, 0x3f80
        v_mov_b32 v{T5}, 0x3f800000""")
        for B_,d in ((BA,T2),(BB,T3)):
            for hf in range(2):
                a(f"""v_cmp_eq_u32 s[66:67], {2*hf}, v{d}
                v_cmp_eq_u32 s[68:69], {2*hf+1}, v{d}
                v_mov_b32 v{B_+2+hf}, 0
                v_cndmask_b32 v{B_+hf}, 0, v{T4}, s[66:67]
                v_cndmask_b32 v{B_+hf}, v{B_+hf}, v{T5}, s[68:69]""")
        for i in range(4): a(f'v_mov_b32 v{BO+i}, 0')
        a(f"""v_cmp_eq_u32 {mCA}, v{J}, v{QH}
        v_add_u32 v{QH}, 2, v{QH}
        v_cmp_eq_u32 {mCB}, v{J}, v{QH}
        v_mov_b32 v{vOq}, v{Q16}
        v_lshlrev_b32 v{vW}, 4, v0
        v_add_u32 v{vW}, {L_W}, v{vW}
        v_cmp_eq_u32 s[66:67], 0, v{C3}
        v_cmp_eq_u32 s[68:69], 1, v{C3}
        v_mov_b32 v{T1}, s76
        v_dot2_f32_bf16 v{T3}, v{ST[0]}, s76, 0""")
        for r in [ST[0]+1,ST[0]+2,ST[0]+3,ST[1],ST[1]+1,ST[1]+2,ST[1]+3]: a(f'v_dot2_f32_bf16 v{T3}, v{r}, s76, v{T3}')
        for b in ST:
            for i in range(4): a(f'v_cndmask_b32 v{b+i}, 0, v{b+i}, s[68:69]\nv_cndmask_b32 v{b+i}, v{b+i}, v{T1}, s[66:67]')
        a(f"""v_readlane_b32 s64, v{T3}, 0
        v_readlane_b32 s65, v{T3}, 16
        v_readlane_b32 s66, v{T3}, 32
        v_readlane_b32 s67, v{T3}, 48
        v_mov_b32 v{T1}, s64
        v_add_f32 v{T1}, s65, v{T1}
        v_add_f32 v{T1}, s66, v{T1}
        v_add_f32 v{T1}, s67, v{T1}
        v_mul_f32 v{T1}, 0x3c800000, v{T1}
        s_mov_b32 s74, 0x3e38aa3b
        v_readfirstlane_b32 s55, v{T1}""")
    acc=[36,44]; d0=52; off=[16,26]; va=[4,5,6,7]
    def mf(s_,sl):
        a(f'v_mfma_f32_4x4x4_16b_bf16 v[{acc[s_]}:{acc[s_]+3}], v[2:3], v[{sl}:{sl+1}], v[{acc[s_]}:{acc[s_]+3}]')
        a(f'v_mfma_f32_4x4x4_16b_bf16 v[{acc[s_]+4}:{acc[s_]+7}], v[2:3], v[{sl+2}:{sl+3}], v[{acc[s_]+4}:{acc[s_]+7}]')
    def dma(pair):
        sl=pair>>1; hf=pair&1
        a(f's_mov_b32 exec_lo, {0 if hf else -1}\ns_mov_b32 exec_hi, {-1 if hf else 0}')
        for (srd,v,o) in ((44,118+sl,0),(96,8+sl,608),(32,8+sl,1184)):
            a(f's_add_u32 m0, s95, {o-512*hf}' if o-512*hf>=0 else f's_sub_u32 m0, s95, {512*hf-o}')
            a(f's_nop 0\nbuffer_load_dwordx4 v{v}, s[{srd}:{srd+3}], 0 offen {"" if srd==44 else "sc1"} lds')
        a('s_mov_b64 exec, -1')
    def hop7():
        a(f"""s_cmp_lg_u32 s3, 7
        s_cbranch_scc1 h_nx
    """)
        dma(0)
        a('s_setprio 3')
        if stag==1:
            a('s_setprio 3\ns_cmp_ge_u32 s4, 8\ns_cbranch_scc1 h_nx\ns_setprio 2\ns_cmp_ge_u32 s4, 4\ns_cbranch_scc1 h_nx\ns_setprio 1')
        if stag==2: a('s_setprio 3')
        if stag>=4:
            G={4:(8,4,5,9),5:(6,6,7,7),6:(10,5,3,8),7:(9,5,4,8),8:(8,4,4,8),9:(8,4,3,7),10:(8,4,5,8)}[stag]
            a(f'''s_setprio 3
            s_cmp_ge_u32 s4, {G[0]}
            s_cbranch_scc1 h_nx
            s_cmp_ge_u32 s4, {G[1]}
            s_cselect_b32 s64, {G[2]}, {G[3]}
            v_mov_b32 v60, {L_END}
            s_mov_b32 s65, 0
            h_g7:
            ds_read_b32 v61, v60
            s_waitcnt lgkmcnt(0)
            v_readfirstlane_b32 s66, v61
            s_cmp_ge_u32 s66, s64
            s_cbranch_scc1 h_nx
            s_sleep 1
            s_add_u32 s65, s65, 1
            s_cmp_lt_u32 s65, 0x1000000
            s_cbranch_scc1 h_g7''')
        if stag==3:
            a('s_setprio 1\ns_cmp_ge_u32 s4, 8\ns_cbranch_scc1 h_nx\ns_setprio 2\ns_cmp_ge_u32 s4, 4\ns_cbranch_scc1 h_nx\ns_setprio 3')
        a('h_nx:')
    if stag>=4: hop7()
    hstamp('hs')
    handlers=[]
    for u in range(CAP//2):
        j=2*u; t0=4*u
        if j<32: q=(j>>2)&3; rb=4*(j>>4)+(j&3)
        else: q=(j-32)>>1; rb=8
        if t0>=K: a(f's_cmp_ge_u32 {j}, s52\ns_cbranch_scc1 h_drain{"" if not pdrain else (u%(K//4))}')
        if u==1:
            a('s_cmp_eq_u32 s3, 1\ns_cbranch_scc1 h_def\nh_defr:')
            if stag<4: hop7()
            for i in range(16): a(f'v_mov_b32 v{36+i}, 0')
            a('s_mov_b32 s77, s52\ns_mov_b32 s78, 0')
            if stag: a(f's_cmp_eq_u32 s3, 7\ns_cselect_b32 s78, {RB}, 0')
        if u>0:
            h=f'h_ev{u}'; a(f's_sub_u32 s77, s77, {2*R}\ns_cbranch_scc1 {h}\n{h}_r:'); handlers.append(h)
        for hh in range(2 if u else 0):
            for s_ in range(2):
                a(f'v_add_u32_dpp v{va[hh*2+s_]}, v{off[s_]+rb+hh}, v1 quad_perm:[{q},{q},{q},{q}] {DPP}')
        if t0>=K:
            a(f's_waitcnt vmcnt({K-4})')
            for hh in range(2):
                for s_ in range(2): mf(s_,d0+4*((t0+hh*2+s_)%K))
        for hh in range(2):
            for s_ in range(2):
                sl=d0+4*((t0+hh*2+s_)%K)
                a(f'buffer_load_dwordx4 v[{sl}:{sl+3}], v{va[hh*2+s_]}, s[32:35], 0 offen sc1')
    if pdrain:
        f0=(CAP//2)%(K//4)
        for v in [f0]+[v for v in range(K//4) if v!=f0]: a(f'h_drain{v}:\ns_mov_b32 s79, {v}\ns_branch h_drain')
    a('h_drain:')
    if stag>=4 and not late7:
        a(f's_cmp_lg_u32 s3, 7\ns_cbranch_scc1 h_rb\nv_mov_b32 v4, {L_END}\nv_mov_b32 v5, 1\ns_mov_b64 exec, 1\nds_add_u32 v4, v5\ns_mov_b64 exec, -1')
    a(f"""h_rb:
    s_cmp_ge_u32 s78, {RB}
    s_cbranch_scc1 h_rbd
    s_barrier
    s_add_u32 s78, s78, 1
    s_branch h_rb
    h_rbd:""")
    hstamp('hi')
    if pdrain:
        for par in range(1,K//4): a(f's_cmp_eq_u32 s79, {par}\ns_cbranch_scc1 h_dr{par}')
        for par in range(K//4):
            if par: a(f'h_dr{par}:')
            for n in range(K//2):
                a(f's_waitcnt vmcnt({K-2-2*n})')
                for t in (2*n,2*n+1): mf(t%2,d0+4*((t+4*par)%K))
            if par<K//4-1: a('s_branch h_drx')
        a('h_drx:')
        hstamp('hd')
    else:
        a('s_waitcnt vmcnt(0)')
        hstamp('hd')
        for t in range(K): mf(t%2,d0+4*t)
    if late7: a(f's_cmp_lg_u32 s3, 7\ns_cbranch_scc1 h_l7\nv_mov_b32 v4, {L_END}\nv_mov_b32 v5, 1\ns_mov_b64 exec, 1\nds_add_u32 v4, v5\ns_mov_b64 exec, -1\nh_l7:')
    a(f's_cmp_gt_u32 s53, {CAP}\ns_cbranch_scc1 h_slow\nh_slow_r:\ns_nop 4')
    for s_ in range(2):
        for i in range(4): a(f'v_pk_mul_f32 v[{acc[s_]+2*i}:{acc[s_]+2*i+1}], v[{acc[s_]+2*i}:{acc[s_]+2*i+1}], v[12:13] op_sel:[0,{s_}] op_sel_hi:[1,{s_}]')
        for i in range(4): a(f'v_cvt_pk_bf16_f32 v{acc[s_]+i}, v{acc[s_]+2*i}, v{acc[s_]+2*i+1}')
    a('s_cmp_eq_u32 s3, 7\ns_cbranch_scc1 h_ns')
    for s_ in range(2):
        a(f'buffer_store_dwordx4 v[{acc[s_]}:{acc[s_]+3}], v{8+s_}, s[36:39], 0 offen sc1')
        a(f'buffer_store_dwordx4 v[{acc[s_]}:{acc[s_]+3}], v{10+s_}, s[36:39], 0 offen sc1')
    a(f"""h_ns:
    s_lshl_b32 s64, s3, 2
    s_sub_u32 s66, s3, 1
    s_mul_i32 s66, s66, {PL2}
    s_and_b32 s65, s3, 3
    s_lshl_b32 s65, s65, 6
    s_add_u32 s66, s66, s65
    s_lshr_b32 s65, s3, 2
    s_lshl_b32 s65, s65, 5
    s_add_u32 s66, s66, s65
    v_add_u32 v52, s64, v117
    v_add3_u32 v53, v1, v116, s66""")
    for s_ in range(2):
        l=a.lab('ep'); l2=a.lab('ep')
        rho_calc(a,acc[s_],54,55,14+s_,'s76')
        a(f"""s_mov_b64 exec, s[{48+2*s_}:{49+2*s_}]
        s_cbranch_execz {l}
        ds_write_b32 v52, v54 offset:{256*s_}
        s_cmp_gt_u32 s3, 4
        s_cbranch_scc1 {l}
        ds_write_b128 v53, v[{acc[s_]}:{acc[s_]+3}] offset:{1024*s_}
        {l}:
        s_mov_b64 exec, -1""")
    a('s_cmp_eq_u32 s3, 7\ns_cbranch_scc1 f_top\ns_cmp_le_u32 s3, 3\ns_cbranch_scc1 f_set\nf_setr:')
    a(f"""s_mov_b32 s32, s36
    s_mov_b32 s33, s37
    s_add_u32 s36, s36, {TSTR}
    s_addc_u32 s37, s37, 0
    s_add_u32 s3, s3, 1""")
    for hh in range(2):
        for s_ in range(2):
            a(f'v_add_u32_dpp v{va[hh*2+s_]}, v{off[s_]+hh}, v1 quad_perm:[0,0,0,0] {DPP}')
    gbarrier(a,'gb1',pf=pf,poll2=poll2)
    a('f_top:')
    a('''s_lshl_b32 s64, s2, 4
    s_add_u32 s64, s64, s4
    s_cmp_lg_u32 s64, 0xffc
    s_cbranch_scc1 h_nc
    v_mov_b32 v4, 0
    s_mov_b64 exec, 1
    global_store_dword v4, v4, s[28:29] sc1
    s_mov_b64 exec, -1
    h_nc:''')
    stamp('h')
    if stop=='hops': a('s_endpgm')
    a(f"""s_mov_b32 exec_lo, 0x01010101
    s_mov_b32 exec_hi, 0x01010101
    buffer_load_dword v117, v118, s[44:47], 0 offen
    buffer_load_dword v117, v8, s[96:99], 0 offen sc1
    buffer_load_dword v117, v8, s[32:35], 0 offen sc1
    buffer_load_dword v117, v119, s[44:47], 0 offen
    buffer_load_dword v117, v9, s[96:99], 0 offen sc1
    buffer_load_dword v117, v9, s[32:35], 0 offen sc1
    s_mov_b64 exec, -1
    s_mov_b32 s36, s26
    s_mov_b32 s37, s27
    s_mov_b32 s38, {N*128}
    s_mov_b32 s70, 0x000f000f
    s_mov_b32 s71, 0x000f000f
    v_mov_b32 v116, v{vAq}
    f_loop:""")
    vAq=116
    stamp('fl')
    order=[(0,T,s_) for T in range(4) for s_ in range(2)]+[(1,T,s_) for T in (0,2,3,1) for s_ in range(2)]
    def pk(op,d,x,y,z=None,bc=False,neg=False):
        m=' op_sel_hi:[1,0]' if bc and z is None else (' op_sel_hi:[1,0,0]' if bc else '')
        if neg: m+=' neg_lo:[0,0,1] neg_hi:[0,0,1]'
        a(f'v_pk_{op}_f32 v[{d}:{d+1}], v[{x}:{x+1}], v[{y}:{y+1}]'+(f', v[{z}:{z+1}]' if z is not None else '')+m)
    for pair in range(npairs):
        q_=[]
        ro=128*pair; no=64*pair
        def wait_for(names):
            idx=max(q_.index(n) for n in names if n in q_) if any(n in q_ for n in names) else -1
            if idx>=0:
                left=len(q_)-idx-1
                a(f's_waitcnt lgkmcnt({left})'); del q_[:idx+1]
        def issue(txt,name): a(txt); q_.append(name)
        u7=36+8*(pair>>1)
        if fprio: a(f's_setprio {fprio[0]}')
        a(f"""s_mov_b32 exec_lo, {0 if pair&1 else -1}
        s_mov_b32 exec_hi, {-1 if pair&1 else 0}
        ds_write_b128 v{vS}, v[{u7}:{u7+3}] offset:1760
        s_mov_b64 exec, -1""")
        issue(f'ds_read_b128 v[{WB[0]}:{WB[0]+3}], v{vW}','f0')
        issue(f'ds_read_b128 v[{WB[1]}:{WB[1]+3}], v{vW} offset:1024','f1')
        issue(f'ds_read_b128 v[{WB[2]}:{WB[2]+3}], v{vW} offset:2048','f2')
        if pair: a('s_waitcnt vmcnt(2)')
        issue(f'ds_read_b128 v[{TA}:{TA+3}], v{vA}','ta0')
        issue(f'ds_read_b128 v[{TQ}:{TQ+3}], v{vAq}','tq0')
        issue(f'ds_read_b128 v[{TA+4}:{TA+7}], v{vA} offset:64','ta1')
        issue(f'ds_read_b128 v[{TQ+4}:{TQ+7}], v{vAq} offset:64','tq1')
        issue(f'ds_read_b128 v[{TB[0]}:{TB[3]}], v{vA} offset:256','tb0')
        issue(f'ds_read_b128 v[{TB[4]}:{TB[7]}], v{vA} offset:320','tb1')
        Sm=TQ; RK=TQ+4
        def packV(T,tro):
            for X_,o in ((XA,0),(XB,256)):
                A=X_+4*T
                a(f'v_cvt_pk_bf16_f32 v{A+3}, v{A+2}, v{A+3}\nv_cvt_pk_bf16_f32 v{A+2}, v{A}, v{A+1}')
                issue(f'ds_read_b64_tr_b16 v[{A}:{A+1}], v{vTr} offset:{o+tro}',f'u{T}{o}')
        for n,(m,T,s_) in enumerate(order):
            b=WB[n%3]
            need=[f'f{n}']
            if n==0: need+=['ta0','tq0']
            if n==1: need+=['ta1','tq1']
            if n==8 and fprio: a(f's_setprio {fprio[3]}')
            wait_for(need)
            for X_,tk in ((XA,TA+4*s_),(XB,TQ+4*s_ if m==0 else TB[4*s_])):
                c=f'v[{X_+4*T}:{X_+4*T+3}]' if s_ else '0'
                if m==0: a(f'v_mfma_f32_16x16x32_bf16 v[{X_+4*T}:{X_+4*T+3}], v[{b}:{b+3}], v[{tk}:{tk+3}], {c}')
                else: a(f'v_mfma_f32_16x16x32_bf16 v[{X_+4*T}:{X_+4*T+3}], v[{tk}:{tk+3}], v[{b}:{b+3}], {c}')
            if n+3<16:
                m2,Tn,s2=order[n+3]
                issue(f'ds_read_b128 v[{b}:{b+3}], v{vW} offset:{8192*m2+2048*Tn+1024*s2}',f'f{n+3}')
            if n==5:
                for X_ in (XA,XB):
                    a(f'v_cvt_pk_bf16_f32 v{X_}, v{X_}, v{X_+1}\nv_cvt_pk_bf16_f32 v{X_+1}, v{X_+2}, v{X_+3}\nv_cvt_pk_bf16_f32 v{X_+2}, v{X_+4}, v{X_+5}\nv_cvt_pk_bf16_f32 v{X_+3}, v{X_+6}, v{X_+7}')
            if n==7:
                wait_for(['tb0','tb1'])
                a(f'v_mfma_f32_16x16x32_bf16 v[{XA+4}:{XA+7}], v[{TA}:{TA+3}], v[{XA}:{XA+3}], 0\nv_mfma_f32_16x16x32_bf16 v[{XB+4}:{XB+7}], v[{TB[0]}:{TB[3]}], v[{XB}:{XB+3}], 0')
                issue(f'ds_read_b128 v[{RK}:{RK+3}], v{vRk} offset:{ro}','rk')
                issue(f'ds_read_b32 v{cq}, v{vRq} offset:{ro}','rq')
                issue(f'ds_read_b32 v{dq}, v{vNd} offset:{no}','nd')
                a('s_nop 0')
                for X_ in (XA,XB):
                    A=X_+8
                    a(f'v_cvt_pk_bf16_f32 v{A}, v{A}, v{A+1}\nv_cvt_pk_bf16_f32 v{A+1}, v{A+2}, v{A+3}\nv_cvt_pk_bf16_f32 v{A+2}, v{A+4}, v{A+5}\nv_cvt_pk_bf16_f32 v{A+3}, v{A+6}, v{A+7}')
                a(f's_nop 0\nv_mfma_f32_16x16x32_bf16 v[{XA+4}:{XA+7}], v[{TA+4}:{TA+7}], v[{XA+8}:{XA+11}], v[{XA+4}:{XA+7}]\nv_mfma_f32_16x16x32_bf16 v[{XB+4}:{XB+7}], v[{TB[4]}:{TB[7]}], v[{XB+8}:{XB+11}], v[{XB+4}:{XB+7}]')
            if n==10:
                wait_for(['rk','rq','nd'])
                a(f's_mov_b64 exec, {mVA}')
                pk('mul',Sm,XA+4,RK); pk('mul',Sm+2,XA+6,RK+2)
                a(f's_mov_b64 exec, {mVB}')
                pk('mul',Sm,XB+4,RK); pk('mul',Sm+2,XB+6,RK+2)
                a(f's_mov_b64 exec, -1\nv_mul_f32 v{cq}, s74, v{cq}\nv_cndmask_b32 v{dq}, v{dq}, 1.0, {mH0}')
                a(f'v_max3_f32 v{t0_}, v{Sm}, v{Sm+1}, v{Sm+2}\nv_max_f32 v{t0_}, v{t0_}, v{Sm+3}\nv_mov_b32 v{t1_}, v{t0_}')
            if n==11:
                a(f'v_permlane16_swap_b32 v{t0_}, v{t1_}\nv_max_f32 v{t0_}, v{t0_}, v{t1_}\nv_mul_f32 v{t0_}, v{cq}, v{t0_}')
                pk('fma',Sm,Sm,cq,t0_,bc=True,neg=True); pk('fma',Sm+2,Sm+2,cq,t0_,bc=True,neg=True)
                for r in range(4): a(f'v_exp_f32 v{Sm+r}, v{Sm+r}')
            if n==12:
                a(f'v_add_f32 v{t0_}, v{Sm}, v{Sm+1}\nv_add_f32 v{t1_}, v{Sm+2}, v{Sm+3}\nv_add_f32 v{t0_}, v{t0_}, v{t1_}\nv_mov_b32 v{t1_}, v{t0_}')
                pk('mul',Sm,Sm,RK); pk('mul',Sm+2,Sm+2,RK+2)
            if n==13:
                a(f'v_permlane16_swap_b32 v{t0_}, v{t1_}\nv_add_f32 v{t0_}, v{t0_}, v{t1_}\nv_rcp_f32 v{t0_}, v{t0_}')
                packV(0,0)
                a(f'v_mul_f32 v{t0_}, v{dq}, v{t0_}')
                pk('mul',Sm,Sm,t0_,bc=True); pk('mul',Sm+2,Sm+2,t0_,bc=True)
            if n==14:
                a(f"""s_mov_b64 exec, {mVA}
                v_cvt_pk_bf16_f32 v{BA+2}, v{Sm}, v{Sm+1}
                v_cvt_pk_bf16_f32 v{BA+3}, v{Sm+2}, v{Sm+3}
                s_mov_b64 exec, {mVB}
                v_cvt_pk_bf16_f32 v{BB+2}, v{Sm}, v{Sm+1}
                v_cvt_pk_bf16_f32 v{BB+3}, v{Sm+2}, v{Sm+3}
                s_mov_b64 exec, -1""")
                packV(2,64)
        packV(3,72)
        issue(f'ds_read_b32 v{sv}, v{vNs} offset:{no+4}','ns')
        issue(f'ds_read_b32 v{vo}, v{vNo} offset:{no+8}','no')
        packV(1,8)
        if fprio: a(f's_setprio {fprio[1]}')
        for T in (0,2,3,1):
            wait_for([f'u{T}0'])
            a(f'v_mfma_f32_16x16x32_bf16 v[{Z+4*T}:{Z+4*T+3}], v[{XA+4*T}:{XA+4*T+3}], v[{BA}:{BA+3}], 0')
        for T in (0,2,3,1):
            wait_for([f'u{T}256'])
            a(f'v_mfma_f32_16x16x32_bf16 v[{XA+4*T}:{XA+4*T+3}], v[{XB+4*T}:{XB+4*T+3}], v[{BB}:{BB+3}], 0')
        a(f'v_cndmask_b32 v{sv}, v{sv}, 1.0, {mH0}\nv_add_u32 v{vo}, v{vo}, v{vOq}')
        for i in (0,1,4,5,6,7,2,3): a(f'v_cvt_pk_bf16_f32 v{TA+i}, v{Z+2*i}, v{Z+2*i+1}')
        issue(f'ds_write_b128 v{vA}, v[{TA}:{TA+3}]','w0'); issue(f'ds_write_b128 v{vA}, v[{TA+4}:{TA+7}] offset:64','w1')
        for i in (0,1,4,5,6,7,2,3): a(f'v_cvt_pk_bf16_f32 v{TB[i]}, v{XA+2*i}, v{XA+2*i+1}')
        issue(f'ds_write_b128 v{vAq}, v[{TB[0]}:{TB[3]}]','w2'); issue(f'ds_write_b128 v{vAq}, v[{TB[4]}:{TB[7]}] offset:64','w3')
        a(f"""v_mfma_f32_16x16x32_bf16 v[{XB}:{XB+3}], v[{ST[0]}:{ST[0]+3}], v[{TA}:{TA+3}], 0
        v_mfma_f32_16x16x32_bf16 v[{XB+4}:{XB+7}], v[{ST[0]}:{ST[0]+3}], v[{TB[0]}:{TB[3]}], 0
        v_mfma_f32_16x16x32_bf16 v[{XB}:{XB+3}], v[{ST[1]}:{ST[1]+3}], v[{TA+4}:{TA+7}], v[{XB}:{XB+3}]
        v_mfma_f32_16x16x32_bf16 v[{XB+4}:{XB+7}], v[{ST[1]}:{ST[1]+3}], v[{TB[4]}:{TB[7]}], v[{XB+4}:{XB+7}]""")
        for T in range(4):
            o=(0,8,64,72)[T]
            issue(f'ds_read_b64_tr_b16 v[{Z+4*T}:{Z+4*T+1}], v{vTr} offset:{o}',f'o{T}a')
            issue(f'ds_read_b64_tr_b16 v[{Z+4*T+2}:{Z+4*T+3}], v{vTr} offset:{256+o}',f'o{T}b')
        qa,qb,t2,t3=XB+12,XB+13,XB+14,XB+15
        if fprio: a(f's_setprio {fprio[2]}')
        for i in range(8):
            a(f'v_dot2_f32_bf16 v{qa}, v{TA+i}, v{TA+i}, {"0" if i==0 else f"v{qa}"}\nv_dot2_f32_bf16 v{qb}, v{TB[i]}, v{TB[i]}, {"0" if i==0 else f"v{qb}"}')
        a(f"""v_cndmask_b32 v{XB}, v{XB+4}, v{XB}, {mRH}
        v_cndmask_b32 v{XB+1}, v{XB+5}, v{XB+1}, {mRH}
        v_mul_f32 v{t2}, 0x3e000000, v{XB}
        v_permlane32_swap_b32 v{qa}, v{qb}
        v_add_f32 v{qa}, v{qa}, v{qb}
        v_mov_b32 v{qb}, v{qa}
        v_fma_f32 v{t3}, -v{XB}, s55, v{XB+1}
        v_mul_f32 v{XB}, 0x3e000000, v{sv}
        v_permlane16_swap_b32 v{qa}, v{qb}
        v_add_f32 v{qa}, v{qa}, v{qb}
        v_mul_f32 v{XB}, v{XB}, v{XB}
        v_fma_f32 v{qa}, -v{t2}, v{t2}, v{qa}
        v_max_f32 v{qa}, 0, v{qa}
        v_fmaak_f32 v{qa}, v{XB}, v{qa}, {EPS}
        v_rsq_f32 v{qa}, v{qa}
        v_mul_f32 v{t3}, v{sv}, v{t3}
        v_mul_f32 v{t3}, 0x3fb8aa3b, v{t3}
        v_mul_f32 v{qa}, v{qa}, v{t3}""")
        if pair<npairs-1: a(f's_mov_b64 exec, {mRA}\nv_add_u32 v{vA}, 0x200, v{vA}\nv_add_u32 v{vAq}, 0x200, v{vAq}\ns_mov_b64 exec, -1')
        else: a('s_nop 1')
        a(f"""v_max_f32_dpp v{qb}, v{qa}, v{qa} quad_perm:[1,0,3,2] {DPP}
        s_nop 1
        v_max_f32_dpp v{qb}, v{qb}, v{qb} quad_perm:[2,3,0,1] {DPP}
        s_nop 1
        v_max_f32_dpp v{qb}, v{qb}, v{qb} row_half_mirror {DPP}
        v_sub_f32 v{qa}, v{qa}, v{qb}
        v_exp_f32 v{qa}, v{qa}""")
        if pair<npairs-1: a(f's_mov_b64 exec, {mRT}\nv_add_u32 v{vTr}, 0x200, v{vTr}\ns_mov_b64 exec, -1')
        else: a('s_nop 1')
        a(f"""v_add_f32_dpp v{qb}, v{qa}, v{qa} quad_perm:[1,0,3,2] {DPP}
        s_nop 1
        v_add_f32_dpp v{qb}, v{qb}, v{qb} quad_perm:[2,3,0,1] {DPP}
        s_nop 1
        v_add_f32_dpp v{qb}, v{qb}, v{qb} row_half_mirror {DPP}
        v_rcp_f32 v{qb}, v{qb}
        v_mul_f32 v{qa}, v{sv}, v{qa}
        v_mul_f32 v{qa}, v{qa}, v{qb}
        ds_write_b32 v{vBw}, v{qa} offset:{ro}
        ds_read_b128 v[{XB}:{XB+3}], v{vBr} offset:{ro}
        s_waitcnt lgkmcnt(2)""")
        if pair==0: a('s_cmp_eq_u32 s4, 12\ns_cbranch_scc1 f_nd0')
        if pair<npairs-1: dma(pair+1)
        if pair==0: a('f_nd0:')
        if fprio: a(f's_setprio {fprio[4]}')
        a(f"""s_waitcnt lgkmcnt(0)
        s_mov_b64 exec, {mCA}
        v_cvt_pk_bf16_f32 v{BO}, v{XB}, v{XB+1}
        v_cvt_pk_bf16_f32 v{BO+1}, v{XB+2}, v{XB+3}
        s_mov_b64 exec, {mCB}
        v_cvt_pk_bf16_f32 v{BO+2}, v{XB}, v{XB+1}
        v_cvt_pk_bf16_f32 v{BO+3}, v{XB+2}, v{XB+3}
        s_mov_b64 exec, -1
        s_nop 0""")
        for T in range(4):
            a(f'v_mfma_f32_16x16x32_bf16 v[{XA+4*T}:{XA+4*T+3}], v[{Z+4*T}:{Z+4*T+3}], v[{BO}:{BO+3}], 0')
        a('s_nop 4')
        for i in range(8): a(f'v_cvt_pk_bf16_f32 v{XB+8+i}, v{XA+2*i}, v{XA+2*i+1}')
        a(f"""s_mov_b64 exec, s[70:71]
        buffer_store_dwordx4 v[{XB+8}:{XB+11}], v{vo}, s[36:39], 0 offen {OUTPOL}
        buffer_store_dwordx4 v[{XB+12}:{XB+15}], v{vo}, s[36:39], 0 offen offset:64 {OUTPOL}
        s_mov_b64 exec, -1""")
        if pair==0: a('s_cmp_eq_u32 s4, 12\ns_cbranch_scc1 f_done')
    a('f_done:')
    stamp('f')
    if side is not None:
        a('s_waitcnt vmcnt(0)')
        stamp('e')
        a('s_waitcnt lgkmcnt(0)')
        if side=='xcc':
            a('s_and_b32 s64, s2, 7\ns_cmp_lg_u32 s64, s7\ns_cselect_b32 s64, 5000, 0')
        elif side=='zero': a('s_mov_b32 s64, 0')
        elif side in ('min','minb'):
            a('v_mov_b32 v4, 0\nglobal_load_dword v5, v4, s[28:29] offset:8 sc1\ns_waitcnt vmcnt(0)\nv_readfirstlane_b32 s80, v5\ns_not_b32 s80, s80\ns_mov_b32 s64, 0')
            if side=='minb': a('s_sub_u32 s64, s82, s80\ns_lshl_b32 s64, s64, 2')
        else:
            a('s_sub_u32 s64, s82, s80\ns_lshl_b32 s64, s64, 2\ns_cmp_lg_u32 s2, 100\ns_cselect_b32 s64, 0, s64')
        a('s_min_u32 s64, s64, 40000\ns_add_u32 s64, s64, 15000\nsd_l:\ns_memrealtime s[66:67]\ns_waitcnt lgkmcnt(0)\ns_sub_u32 s66, s66, s80\ns_cmp_lt_u32 s66, s64\ns_cbranch_scc1 sd_l\ns_endpgm')
    if stamps:
        a('s_waitcnt vmcnt(0)')
        stamp('e')
        a(f's_waitcnt lgkmcnt(0)\ns_lshl_b32 s64, s2, 4\ns_add_u32 s64, s64, s4\ns_lshl_b32 s64, s64, 7\ns_add_u32 s64, s64, {DUMP}\nv_mov_b32 v4, s64\ns_mov_b64 exec, 1')
        if dbgst:
            a('v_mov_b32 v6, 0\ns_not_b32 s65, s80\nv_mov_b32 v5, s65\nglobal_atomic_umax v6, v5, s[28:29] offset:8 sc1')
            for i in range(len(stamps)): a(f'v_mov_b32 v5, s{80+2*i}\nglobal_atomic_umax v6, v5, s[28:29] offset:{12+4*i} sc1')
            a('s_or_b32 s65, s2, s4\ns_cbranch_scc1 k_nv\nv_mov_b32 v5, s94\nglobal_store_dword v6, v5, s[28:29] offset:4 sc1\nk_nv:')
        a('v_mov_b32 v5, s94\nglobal_store_dword v4, v5, s[30:31] offset:64')
        for i in range(len(stamps)): a(f'v_mov_b32 v5, s{80+2*i}\nglobal_store_dword v4, v5, s[30:31] offset:{4*i}')
    a('k_end:\ns_endpgm')
    for h in handlers:
        a(f'{h}:\ns_cmp_ge_u32 s78, {RB}\ns_cbranch_scc1 {h}_r\ns_add_u32 s78, s78, 1\ns_barrier\ns_add_u32 s77, s77, s52\ns_cbranch_scc0 {h}\ns_branch {h}_r')
    a(f"""h_slow:
    s_mov_b32 s64, {CAP}
    v_and_b32 v4, 3, v0
    v_lshlrev_b32 v4, 2, v4
    h_sl:""")
    for s_ in range(2):
        a(f"""v_add_u32 v5, s64, v4
        v_add_u32 v6, v5, v{122+s_}
        v_subrev_u32 v6, {CAP}, v6
        v_lshlrev_b32 v6, 2, v6
        v_sub_u32 v5, v{120+s_}, v5
        v_mov_b32 v7, {OOBV}
        buffer_load_dwordx4 v[68:71], v6, s[40:43], s59 offen
        s_waitcnt vmcnt(0)""")
        for r in range(4): a(f'v_cmp_lt_i32 vcc, {r}, v5\ns_nop 1\nv_cndmask_b32 v{68+r}, v7, v{68+r}, vcc')
        for hb in range(4):
            a('s_nop 1')
            for t in range(4):
                a(f'v_add_u32_dpp v7, v{68+t}, v1 quad_perm:[{hb},{hb},{hb},{hb}] {DPP}\nbuffer_load_dwordx4 v[{d0+4*t}:{d0+4*t+3}], v7, s[32:35], 0 offen sc1')
            a('s_waitcnt vmcnt(0)')
            for t in range(4): mf(s_,d0+4*t); a('s_nop 0')
    a('s_add_u32 s64, s64, 16\ns_cmp_lt_u32 s64, s53\ns_cbranch_scc1 h_sl\ns_branch h_slow_r')
    a(f"""k_hx:
    s_cmp_lg_u32 s4, 13
    s_cbranch_scc1 k_end
    v_lshlrev_b32 v2, 21, v7
    v_add_u32 v3, 0x1fff80, v2
    v_cmpx_gt_u32 vcc, {SMALL//(2*MB)}, v7
    global_load_dword v4, v3, s[30:31] sc1
    v_cmpx_gt_u32 vcc, 4, v7
    global_load_dword v4, v2, s[26:27] sc1
    s_endpgm""")
    vAq=125
    a('f_set:\ns_cmp_eq_u32 s3, 2\ns_cbranch_scc1 f_set2\ns_cmp_eq_u32 s3, 3\ns_cbranch_scc1 f_set3'); late(); late2(); a('s_branch f_setr')
    a('f_set2:'); fsetup(); a('s_branch f_setr')
    a('f_set3:'); fsetup2(); a('s_branch f_setr')
    a('h_def:'); deferred(); a('s_branch h_defr')
    for t in tails: t()
    t=a.text()
    import re
    def _d(m):
        b=Asm(); dup128(b,int(m.group(1)),int(m.group(2))); return b.text()
    t=re.sub(r'    DUP128 (\d+) (\d+)\n',_d,t)
    hs=''
    if stamps and 'ha' in stamps:
        i=stamps.index('ha'); hs=f'    s_mov_b32 s79, s3\n    s_cmp_lg_u32 s3, 5\n    s_cbranch_scc1 hs_ha\n    s_memrealtime s[{80+2*i}:{81+2*i}]\nhs_ha:\n    s_cmp_lg_u32 s4, 0\n'
    t=t.replace('    HSTAMP_HA\n',hs)
    return t

HDR=open('gather_scatter__hybrid_graph_tf_nagphormer__graph.s.ref').read().split('; Override launch')[0]
def wrap(body):
    return HDR+f'''; @launch grid=(256,1,1) block=(1024,1,1) lds={LDS_BYTES}
.amdgcn_target "amdgcn-amd-amdhsa--gfx950"
.text
.globl {KNAME}
.p2align 8
.type {KNAME},@function
{KNAME}:
'''+body+f'''.section .rodata,"a"
.p2align 6
.amdhsa_kernel {KNAME}
  .amdhsa_next_free_vgpr 128
  .amdhsa_next_free_sgpr 102
  .amdhsa_accum_offset 128
  .amdhsa_group_segment_fixed_size 0
  .amdhsa_kernarg_size 96
  .amdhsa_user_sgpr_count 2
  .amdhsa_user_sgpr_kernarg_segment_ptr 1
  .amdhsa_system_sgpr_workgroup_id_x 1
  .amdhsa_float_denorm_mode_32 3
.end_amdhsa_kernel
'''
if __name__=='__main__':
    import ast
    kw=dict(x.split('=') for x in sys.argv[2:])
    for k in kw:
        try: kw[k]=ast.literal_eval(kw[k])
        except Exception: pass
    if 'DUP' in kw: DUP=str(kw.pop('DUP'))
    if 'stamps' in kw: kw['stamps']=kw['stamps'].split(',')
    open(sys.argv[1],'w').write(wrap(gen(**kw)))
```

```python
import sys
from lay import *
KNAME='gather_scatter__hybrid_graph_tf_nagphormer__graph_kernel'
class Asm:
    def __init__(s): s.l=[]; s.u=0
    def __call__(s,t):
        for x in t.strip('\n').split('\n'):
            x=x.strip()
            if x: s.l.append(x if x.endswith(':') else '    '+x)
    def lab(s,p='L'): s.u+=1; return f'{p}{s.u}'
    def text(s): return '\n'.join(s.l)+'\n'
DPP='row_mask:0xf bank_mask:0xf'
EPS='0x3727c5ac'

DUP='23'; OWN=False
def dup128(a,dst,n):
    if DUP=='23': a(f'v_and_b32 v{dst}, 128, v{n}')
    if DUP=='3': a(f'v_lshlrev_b32 v{dst}, 1, v{n}\nv_and_b32 v{dst}, v{dst}, v{n}\nv_and_b32 v{dst}, 128, v{dst}')
    if DUP=='none': a(f'v_mov_b32 v{dst}, 0')
    if DUP=='all': a(f'v_mov_b32 v{dst}, 128')
    if DUP=='123': a(f'v_lshlrev_b32 v{dst}, 1, v{n}\nv_or_b32 v{dst}, v{dst}, v{n}\nv_and_b32 v{dst}, 128, v{dst}')
def line_calc(a,dst,n,t,u):
    if DUP in ('all','123') or OWN:
        a(f"""v_lshrrev_b32 v{t}, 8, v{n}
        v_mul_u32_u24 v{u}, 547, v{t}
        v_and_b32 v{dst}, 0xffc0, v{n}
        v_lshrrev_b32 v{u}, 14, v{u}
        v_add_u32 v{dst}, v{dst}, v{n}
        v_lshl_add_u32 v{dst}, v{u}, 10, v{dst}""")
        if DUP=='123' and not OWN:
            a(f"""v_and_b32 v{u}, 0x1c0, v{n}
            v_cmp_eq_u32 vcc, 0x100, v{u}
            v_add_u32 v{t}, 64, v{dst}
            s_nop 0
            v_cndmask_b32 v{dst}, v{dst}, v{t}, vcc""")
        return
    a(f'''v_lshrrev_b32 v{t}, 8, v{n}
    v_mul_u32_u24 v{u}, 205, v{t}
    v_lshl_add_u32 v{dst}, v{t}, 7, v{n}
    v_lshrrev_b32 v{u}, 13, v{u}
    v_lshrrev_b32 v{t}, 1, v{n}
    v_lshl_add_u32 v{dst}, v{u}, 10, v{dst}
    v_bitop3_b32 v{t}, v{t}, v{n}, 64 bitop3:0x80
    v_add_u32 v{dst}, v{dst}, v{t}''')

def rho_calc(a,X,sm,sq,vs,sones):
    a(f'v_dot2_f32_bf16 v{sm}, v{X}, {sones}, 0\nv_dot2_f32_bf16 v{sq}, v{X}, v{X}, 0')
    for i in range(1,4):
        a(f'v_dot2_f32_bf16 v{sm}, v{X+i}, {sones}, v{sm}\nv_dot2_f32_bf16 v{sq}, v{X+i}, v{X+i}, v{sq}')
    a('s_nop 2')
    for m in ('quad_perm:[1,0,3,2]','quad_perm:[2,3,0,1]','row_half_mirror'):
        a(f'v_add_f32_dpp v{sm}, v{sm}, v{sm} {m} {DPP}\nv_add_f32_dpp v{sq}, v{sq}, v{sq} {m} {DPP}\ns_nop 0')
    a(f'''v_mul_f32 v{sm}, 0x3c800000, v{sm}
    v_mul_f32 v{sq}, 0x3c800000, v{sq}
    v_fma_f32 v{sq}, -v{sm}, v{sm}, v{sq}
    v_max_f32 v{sq}, 0, v{sq}''')
    if vs is not None: a(f'v_mul_f32 v{sq}, v{vs}, v{sq}\nv_mul_f32 v{sq}, v{vs}, v{sq}')
    a(f'v_add_f32 v{sq}, {EPS}, v{sq}\nv_rsq_f32 v{sm}, v{sq}\ns_nop 0')
    if vs is not None: a(f'v_mul_f32 v{sm}, v{vs}, v{sm}')

def baraddr(a,base):
    a(f'''s_and_b32 s64, s2, 7
    s_lshr_b32 s65, s64, 2
    s_xor_b32 s65, s65, s63
    s_lshl_b32 s65, s65, 13
    s_lshl_b32 s64, s64, 8
    s_add_u32 s64, s64, s65
    s_add_u32 s56, s64, {base}
    s_xor_b32 s65, s6, s63
    s_lshl_b32 s65, s65, 13
    s_and_b32 s64, s7, 7
    s_lshl_b32 s64, s64, 8
    s_add_u32 s64, s64, s65
    s_mov_b32 s75, {base+4096}
    s_add_u32 s57, s64, s75''')

def bar_l2(a,nm):
    a(f"""s_mov_b64 exec, 0xff
    v_mbcnt_lo_u32_b32 v58, -1, 0
    v_lshrrev_b32 v59, 2, v58
    v_xor_b32 v59, s63, v59
    v_lshlrev_b32 v59, 13, v59
    v_lshl_add_u32 v58, v58, 8, v59
    v_add_u32 v58, s75, v58
    v_mov_b32 v57, s65
    global_atomic_add v58, v57, s[30:31] sc1
    s_mov_b64 exec, 1
    {nm}_np:""")
def bar_poll(a,nm,votes=False):
    a(f"""s_mov_b32 s65, 0
    {nm}_p:
    global_load_dword v58, v56, s[30:31] sc1
    s_waitcnt vmcnt(0)""")
    if votes: a('v_and_b32 v59, 0xff, v58\nv_cmp_gt_u32 vcc, s64, v59')
    else: a('v_cmp_gt_u32 vcc, s64, v58')
    a(f"""s_cbranch_vccz {nm}_pd
    s_add_u32 s65, s65, 1
    s_cmp_lt_u32 s65, 0x800000
    s_cbranch_scc1 {nm}_p
    {nm}_pd:""")
def bar_arrive(a,nm):
    a(f"""v_mov_b32 v56, s56
    v_mov_b32 v57, 1
    global_atomic_add v58, v56, v57, s[30:31] sc0 sc1
    s_lshl_b32 s64, s62, 5
    s_sub_u32 s64, s64, 1
    v_mov_b32 v56, s57
    s_waitcnt vmcnt(0)
    v_readfirstlane_b32 s65, v58
    s_cmp_lg_u32 s65, s64
    s_cbranch_scc1 {nm}_np
    s_mov_b32 s65, 1""")
    bar_l2(a,nm)

def gbarrier(a,nm,pf=None,poll2=0):
    a(f"""s_add_u32 s62, s62, 1
    v_mov_b32 v56, s56
    v_mov_b32 v57, 1
    v_mov_b32 v59, s57
    s_lshl_b32 s64, s62, 5
    s_sub_u32 s64, s64, 1
    s_lshl_b32 s66, s62, 3
    s_mov_b32 s65, 0
    s_cmp_lg_u32 s4, 0
    s_waitcnt vmcnt(0)
    HSTAMP_HA
    s_barrier
    s_cbranch_scc1 {nm}_f
    s_mov_b64 exec, 1
    global_atomic_add v58, v56, v57, s[30:31] sc0 sc1
    s_waitcnt vmcnt(0)
    v_cmp_ne_u32 vcc, s64, v58
    s_cbranch_vccnz {nm}_p
    s_mov_b64 exec, 0xff
    global_atomic_add v124, v57, s[30:31] sc1
    s_mov_b64 exec, 1""")
    if poll2:
        a(f"""{nm}_p:
        global_load_dword v58, v59, s[30:31] sc1
        s_sleep {poll2}
        {nm}_q:
        global_load_dword v60, v59, s[30:31] sc1
        s_waitcnt vmcnt(1)
        v_cmp_gt_u32 vcc, s66, v58
        s_cbranch_vccz {nm}_pd
        global_load_dword v58, v59, s[30:31] sc1
        s_waitcnt vmcnt(1)
        v_cmp_gt_u32 vcc, s66, v60
        s_cbranch_vccz {nm}_pd
        s_add_u32 s65, s65, 1
        s_cmp_lt_u32 s65, 0x800000
        s_cbranch_scc1 {nm}_q""")
    else:
        a(f"""{nm}_p:
        global_load_dword v58, v59, s[30:31] sc1
        s_add_u32 s65, s65, 1
        s_cmp_ge_u32 s65, 0x800000
        s_cbranch_scc1 {nm}_pd
        s_waitcnt vmcnt(0)
        v_cmp_gt_u32 vcc, s66, v58
        s_cbranch_vccnz {nm}_p""")
    a(f'{nm}_pd:\ns_mov_b64 exec, -1\ns_barrier')
    if poll2: a('s_waitcnt vmcnt(0)')
    a(f's_branch h_top\n{nm}_f:')
    if pf:
        n0,n1,sl=pf
        def ex(lo,hi):
            m=((1<<(16*hi))-1)^((1<<(16*lo))-1)
            a(f's_mov_b32 exec_lo, {m&0xffffffff:#x}\ns_mov_b32 exec_hi, {m>>32:#x}')
        if n0: ex(0,n0); a('buffer_load_dword v127, v126, s[32:35], 0 offen sc1')
        if n1>n0:
            if sl: a(f's_sleep {sl}')
            ex(n0,n1); a('buffer_load_dword v127, v126, s[32:35], 0 offen sc1')
        a('s_mov_b64 exec, -1')
    a('s_barrier\ns_branch h_top')

def probe(a,nm,voff,res):
    a(f'v_add_u32 v{voff+1}, 0x2000, v{voff}\nv_mov_b32 v{voff+2}, 0\ns_mov_b32 s66, -1\ns_mov_b32 s67, -1\ns_mov_b32 s72, 0\n{nm}:')
    for s in range(2):
        a(f'''s_memtime s[68:69]
        s_waitcnt lgkmcnt(0)
        global_atomic_add v{voff+3}, v{voff+s}, v{voff+2}, s[30:31] sc0 sc1
        s_waitcnt vmcnt(0)
        s_memtime s[70:71]
        s_waitcnt lgkmcnt(0)
        s_sub_u32 s70, s70, s68
        s_min_u32 s{66+s}, s{66+s}, s70''')
    a(f's_add_u32 s72, s72, 1\ns_cmp_lt_u32 s72, 3\ns_cbranch_scc1 {nm}')
    a(f's_cmp_gt_u32 s66, s67\ns_cselect_b32 s{res}, 1, 0\ns_xor_b32 s{res}, s{res}, s6')

def gen(post=True,eprio=False,ilv=False,late7=False,OUTPOL='sc1',u0pf=False,poll2=0,side=None,xh=0,ent='nt',xnt='',fprio=(0,1,0,2,0),dbgst=False,K=8,R=12,RB=8,pf=(1,1,0),pdrain=True,stop=None,dump=False,stamps=False,npairs=4,stag=8,nprobe=2,xpos=2,xpf=0,pa=0):
    a=Asm()
    if RB is None: RB=R-1
    def stamp(nm):
        if stamps and nm in stamps:
            i=stamps.index(nm); a(f's_memrealtime s[{80+2*i}:{81+2*i}]')
        if stamps and nm+'c' in stamps:
            i=stamps.index(nm+'c'); a(f's_memtime s[{80+2*i}:{81+2*i}]')
    def hstamp(nm):
        if stamps and nm in stamps:
            l=a.lab('hs'); i=stamps.index(nm)
            a(f's_cmp_lg_u32 s3, 4\ns_cbranch_scc1 {l}\ns_memrealtime s[{80+2*i}:{81+2*i}]\n{l}:')
    a(f"""s_cmp_ge_u32 s2, 256
    s_cbranch_scc1 k_end
    s_load_dwordx16 s[8:23], s[0:1], 0
    s_load_dwordx8 s[24:31], s[0:1], 64
    v_lshrrev_b32 v1, 6, v0
    s_and_b32 s5, s2, 7
    v_readfirstlane_b32 s4, v1
    s_lshl_b32 s5, s5, 5
    s_lshr_b32 s3, s2, 3
    s_add_u32 s5, s5, s3
    s_mov_b32 s62, 0
    s_mul_i32 s54, s5, {BS}
    v_lshlrev_b32 v10, 4, v0""")
    stamp('s')
    def wsinit():
        a(f"""s_add_u32 s30, s30, 0x1fffff
        s_addc_u32 s31, s31, 0
        s_and_b32 s30, s30, 0xffe00000
        s_mov_b32 s36, s30
        s_mov_b32 s37, s31
        s_mov_b32 s38, {TBYTES}
        s_mov_b32 s39, 0x20000
        s_add_u32 s40, s30, {SMALL}
        s_addc_u32 s41, s31, 0
        s_mov_b32 s42, {SMALL_BYTES}
        s_mov_b32 s43, 0x20000
        s_getreg_b32 s7, hwreg(HW_REG_XCC_ID, 0, 4)
        s_lshr_b32 s6, s7, 2
        s_mov_b64 s[56:57], 0
        s_mov_b32 s44, s8
        s_mov_b32 s45, s9
        s_mov_b32 s46, {N*128}
        s_mov_b32 s47, 0x20000
        s_add_u32 s96, s30, {5*TSTR}
        s_addc_u32 s97, s31, 0
        s_mov_b32 s98, {TBYTES}
        s_mov_b32 s99, 0x20000
        s_mov_b32 s60, 0
        s_mov_b32 s93, 0
        s_and_b32 s6, s6, 1""")
    def ldsinit(z):
        for k in range(4): a(f'v_mov_b32 v{z+k}, 0\nv_mov_b32 v{z+4+k}, {OOBV}')
        o=f'v[{z+4}:{z+7}]'; zz=f'v[{z}:{z+3}]'
        a(f"""ds_write_b128 v10, {o} offset:{L_LIST}
        v_add_u32 v1, 13312, v10
        ds_write_b128 v1, {o} offset:{L_LIST}
        v_add_u32 v1, 26624, v10
        s_movk_i32 s64, 416
        v_cmpx_gt_u32 vcc, s64, v0
        ds_write_b128 v1, {o} offset:{L_LIST}
        ds_write_b128 v10, {zz} offset:{L_CNT}
        s_movk_i32 s64, 208
        v_cmpx_gt_u32 vcc, s64, v0
        ds_write_b128 v10, v[{z+2}:{z+5}] offset:{L_INFO}
        s_movk_i32 s64, 84
        v_cmpx_gt_u32 vcc, s64, v0
        ds_write_b128 v10, {zz} offset:{L_HIST}
        s_mov_b64 exec, -1""")
    a(f"""s_cmp_ge_u32 s4, 13
    s_cbranch_scc1 p1_help
    v_lshrrev_b32 v2, 3, v0
    v_add_u32 v3, s54, v2
    v_add_u32 v4, 104, v3
    v_and_b32 v5, 7, v0
    v_lshlrev_b32 v5, 4, v5
    v_lshl_add_u32 v6, v3, 7, v5
    v_lshl_add_u32 v7, v4, 7, v5
    v_lshlrev_b32 v8, 1, v3
    v_lshlrev_b32 v9, 1, v4
    s_mul_i32 s55, s2, {CHE*4}
    v_add_u32 v11, s55, v10
    s_add_u32 s55, s55, {CHUNK}
    s_mov_b32 s64, {N}
    v_cmp_gt_u32 s[48:49], s64, v3
    v_cmp_gt_u32 s[50:51], s64, v4
    s_movk_i32 s64, 736
    v_cmp_gt_u32 vcc, s64, v0
    s_and_b64 s[50:51], s[50:51], vcc
    s_movk_i32 s64, 800
    v_cmp_gt_u32 s[52:53], s64, v0
    s_cmp_ge_u32 s2, {NCH}
    s_cselect_b64 s[52:53], 0, s[52:53]
    s_waitcnt lgkmcnt(0)""")
    a(f"""s_mov_b64 exec, s[52:53]
    s_cbranch_execz p1_ne
    global_load_dwordx4 v[12:15], v11, s[12:13] {ent}
    global_load_dwordx4 v[16:19], v11, s[10:11] {ent}
    p1_ne:
""")
    XL=f"""    s_mov_b64 exec, s[48:49]
    s_cbranch_execz p1_nxa
    global_load_dwordx4 v[20:23], v6, s[8:9] {xnt}
    global_load_ushort v28, v8, s[14:15]
    p1_nxa:
    s_mov_b64 exec, s[50:51]
    s_cbranch_execz p1_nxb
    global_load_dwordx4 v[24:27], v7, s[8:9] {xnt}
    global_load_ushort v29, v9, s[14:15]
    p1_nxb:
    s_mov_b64 exec, -1"""
    if xpos==0: a(XL)
    else: a('s_mov_b64 exec, -1')
    wsinit()
    a('; workgroup 255 clears the barrier counters and announces that through d_debug[0]')
    a(f"""s_lshl_b32 s64, s2, 4
    s_add_u32 s64, s64, s4
    s_cmp_lg_u32 s64, {255*16}
    s_cbranch_scc1 p1_nz
    v_and_b32 v40, 15, v0
    v_lshrrev_b32 v41, 4, v0
    v_lshlrev_b32 v40, 8, v40
    v_and_b32 v42, 1, v41
    v_lshrrev_b32 v41, 1, v41
    v_lshl_add_u32 v40, v42, 12, v40
    v_lshl_add_u32 v40, v41, 13, v40
    v_add_u32 v40, {BARP}, v40
    v_mov_b32 v41, 0
    global_store_dword v40, v41, s[30:31] sc1
    v_add_u32 v40, 0x4000, v40
    global_store_dword v40, v41, s[30:31] sc1
    v_add_u32 v40, 0x4000, v40
    global_store_dword v40, v41, s[30:31] sc1
    s_waitcnt vmcnt(0)
    s_mov_b64 exec, 1
    v_mov_b32 v40, 0
    v_mov_b32 v41, 1
    global_store_dword v40, v41, s[28:29] sc1
    s_mov_b64 exec, -1
    p1_nz:""")
    ldsinit(32)
    for n,d in ((3,76),(4,78)):
        line_calc(a,d,n,64,65)
        a(f"""v_lshl_add_u32 v{d}, v{d}, 7, v5
        v_cndmask_b32 v{d}, v36, v{d}, s[{48 if n==3 else 50}:{49 if n==3 else 51}]
        DUPU0 64 {n}
        v_cmp_ne_u32 vcc, 0, v64
        v_add_u32 v{d+1}, 0x2000, v{d}
        v_cndmask_b32 v{d+1}, v36, v{d+1}, vcc""".replace('v_add_u32 v{0}'.format(d+1),'s_nop 0\nv_add_u32 v{0}'.format(d+1)))
    a('s_waitcnt lgkmcnt(0)\ns_barrier')
    stamp('B1')
    if xpos==1: a(XL)
    a(f"""s_mov_b64 exec, s[52:53]
    s_cbranch_execz p1_e1
    s_movk_i32 s64, -{BS}
    v_mov_b32 v33, 1
""")
    if xpos<2: a('s_cmp_lt_u32 s4, 12\ns_cbranch_scc1 p1_w4\ns_waitcnt vmcnt(2)\np1_w4:\ns_waitcnt vmcnt(4)')
    else: a('s_waitcnt vmcnt(0)')
    stamp('ed')
    for i in range(4):
        d=12+i; b=40+i
        a(f"""v_mul_u32_u24 v30, 85599, v{d}
        v_lshrrev_b32 v{52+i}, 24, v30
        v_lshlrev_b32 v{b}, 2, v{52+i}
        ds_add_rtn_u32 v{48+i}, v{b}, v33 offset:{L_HIST}""")
    a('p1_e1:')
    if xpos==2: a(XL)
    a('s_mov_b64 exec, -1\ns_waitcnt lgkmcnt(0)\ns_barrier')
    stamp('B2')
    a(f"""s_cmp_lg_u32 s4, 0
    s_cbranch_scc1 p1_ns
    ds_read_b128 v[72:75], v10 offset:{L_HIST}
    s_waitcnt lgkmcnt(0)
    v_add_u32 v57, v72, v73
    v_add_u32 v58, v57, v74
    v_add_u32 v59, v58, v75
    v_mov_b32 v60, v59
    s_nop 1""")
    for m in ('row_shr:1','row_shr:2','row_shr:4','row_shr:8'):
        a(f'v_add_u32_dpp v60, v60, v60 {m} {DPP} bound_ctrl:0\ns_nop 1')
    a(f"""v_add_u32_dpp v60, v60, v60 row_bcast:15 row_mask:0xa bank_mask:0xf
    s_nop 1
    v_add_u32_dpp v60, v60, v60 row_bcast:31 row_mask:0xc bank_mask:0xf
    v_sub_u32 v60, v60, v59
    v_add_u32 v61, v60, v72
    v_add_u32 v62, v60, v57
    v_add_u32 v63, v60, v58
    ds_write_b128 v10, v[60:63] offset:{L_HIST}
    v_lshl_or_b32 v56, v72, 16, v60
    v_lshl_or_b32 v57, v73, 16, v61
    v_lshl_or_b32 v58, v74, 16, v62
    v_lshl_or_b32 v59, v75, 16, v63
    s_cmp_ge_u32 s2, {NCH}
    s_cbranch_scc1 p1_ns
    s_lshl_b32 s65, s2, 10
    s_add_u32 s65, s65, {OFFS}
    buffer_store_dwordx4 v[56:59], v10, s[40:43], s65 offen sc1
    p1_ns:""")
    for i in range(4):
        d=12+i; s_=16+i; b=52+i; e=44+i
        a(f"""v_mul_u32_u24 v31, 10700, v{s_}
        v_lshrrev_b32 v30, 5, v{b}
        v_lshrrev_b32 v31, 26, v31
        v_mad_i32_i24 v{d}, v{b}, s64, v{d}
""")
        if ilv: a(f'v_xor_b32 v31, v31, v30\nv_lshrrev_b32 v30, 2, v31\nv_lshl_or_b32 v31, v31, 1, v30\nv_and_b32 v31, 7, v31')
        else: a(f'v_sub_u32 v31, v31, v30\nv_and_b32 v31, 7, v31')
        a(f'v_lshl_add_u32 v{d}, v{d}, 3, v31')
        line_calc(a,e,s_,30,31)
        a(f"""v_bfe_u32 v30, v{s_}, 7, 1
        v_lshl_or_b32 v30, v{d}, 2, v30
        v_lshl_or_b32 v{e}, v{e}, 15, v30""")
    a('s_waitcnt lgkmcnt(0)\ns_barrier')
    stamp('B3')
    a('s_mov_b64 exec, s[52:53]')
    for i in range(4): a(f'ds_read_b32 v{40+i}, v{40+i} offset:{L_HIST}')
    for i in range(4):
        a(f's_waitcnt lgkmcnt(3)\nv_add_lshl_u32 v{40+i}, v{40+i}, v{48+i}, 2')
        a(f'ds_write_b32 v{40+i}, v{44+i} offset:{L_ESTG}')
    a('s_mov_b64 exec, -1\ns_waitcnt lgkmcnt(0)\ns_barrier')
    stamp('B4')
    a(f"""s_mov_b64 exec, s[52:53]
    s_cbranch_execz p1_e3
    ds_read_b128 v[40:43], v10 offset:{L_ESTG}
    s_waitcnt lgkmcnt(0)
    buffer_store_dwordx4 v[40:43], v10, s[40:43], s55 offen sc1
    p1_e3:
    s_mov_b64 exec, -1""")
    if xpos==3:
        a(XL)
        a('s_cmp_lt_u32 s4, 12\ns_cbranch_scc1 p1_w4\ns_waitcnt vmcnt(2)\np1_w4:\ns_waitcnt vmcnt(4)')
    else: a('s_waitcnt vmcnt(0)')
    stamp('pa')
    a('s_barrier')
    stamp('aa')
    a('s_mov_b32 s66, 0x3f803f80\ns_waitcnt vmcnt(0)')
    for (X,D,n,m,off) in ((20,28,3,48,0),(24,29,4,50,832)):
        l=a.lab('xc')
        a(f's_mov_b64 exec, s[{m}:{m+1}]\ns_cbranch_execz {l}')
        a(f'v_lshlrev_b32 v{D}, 16, v{D}')
        for i in range(4):
            a(f"""v_lshlrev_b32 v64, 16, v{X+i}
            v_and_b32 v65, 0xffff0000, v{X+i}
            v_mul_f32 v64, v{D}, v64
            v_mul_f32 v65, v{D}, v65
            v_cvt_pk_bf16_f32 v{(68 if off==0 else 72)+i}, v64, v65""")
        ad=76 if off==0 else 78
        o=68 if off==0 else 72
        a(f"""buffer_store_dwordx4 v[{o}:{o+3}], v{ad}, s[36:39], 0 offen sc1
        buffer_store_dwordx4 v[{o}:{o+3}], v{ad+1}, s[36:39], 0 offen sc1
        {l}:""")
    for (X,D,n,m,off) in ((20,28,3,48,0),(24,29,4,50,832)):
        l=a.lab('xr')
        a(f's_mov_b64 exec, s[{m}:{m+1}]\ns_cbranch_execz {l}')
        rho_calc(a,X,64,65,None,'s66')
        a(f"""v_mov_b32 v65, v{D}
        v_lshlrev_b32 v66, 3, v2
        ds_write_b64 v66, v[64:65] offset:{L_R0+off}
        {l}:""")
    a('s_mov_b64 exec, -1\ns_branch p1_done')
    def P1D():
        a(f"""v_lshrrev_b32 v2, 2, v0
        v_and_b32 v3, 3, v0
        v_lshlrev_b32 v70, 10, v2
        s_lshl_b32 s92, s5, 2
        s_add_u32 s92, s92, {OFFS}
        s_movk_i32 s65, {NCH}
        v_cmp_gt_u32 s[48:49], s65, v2
        v_mov_b32 v72, {OOBV}
        v_and_b32 v73, 63, v0
        v_lshlrev_b32 v8, 2, v73
        v_cndmask_b32 v70, v72, v70, s[48:49]
        v_mul_u32_u24 v71, {CHE*4}, v2
        v_lshl_add_u32 v71, v3, 4, v71
        v_add_u32 v71, {CHUNK}, v71
        v_lshlrev_b32 v3, 2, v3
        v_mov_b32 v69, 4
        v_mov_b32 v21, 1""")
    a(f"""p1_help:
    v_and_b32 v2, 63, v0
    v_and_b32 v3, 15, v0
    v_bfe_u32 v4, v0, 4, 2
    v_lshrrev_b32 v5, 2, v3
    v_and_b32 v6, 3, v0
    v_lshl_add_u32 v5, v5, 3, v6
    v_lshlrev_b32 v5, 7, v5
    v_lshl_add_u32 v5, v4, 4, v5
    v_add_u32 v7, 0x1000, v5
    s_waitcnt lgkmcnt(0)
    s_cmp_eq_u32 s4, 15
    s_cbranch_scc1 p1_probe
    s_barrier
    s_cmp_eq_u32 s4, 14
    s_cselect_b32 s64, s16, s20
    s_cselect_b32 s65, s17, s21""")
    WA=12; WBx=44; WD=[76,92,108,44]
    for t in range(4):
        for s_ in range(2):
            r=WA+8*t+4*s_
            a(f'global_load_dwordx4 v[{r}:{r+3}], v{5 if t<2 else 7}, s[64:65] offset:{512*(t&1)+64*s_}')
    a('s_cbranch_scc0 p1_wo')
    for t in range(4):
        for s_ in range(2):
            r=WBx+8*t+4*s_
            a(f'global_load_dwordx4 v[{r}:{r+3}], v{5 if t<2 else 7}, s[18:19] offset:{512*(t&1)+64*s_}')
    wsinit()
    XP=f"""v_add_u32 v8, s54, v2
    v_lshlrev_b32 v9, 7, v8
    s_mov_b32 s44, s8
    s_mov_b32 s45, s9
    s_mov_b32 s46, {N*128}
    s_mov_b32 s47, 0x20000
    s_movk_i32 s64, 0x2000
    s_movk_i32 s65, 0x4000
    buffer_load_dword v126, v9, s[44:47], 0 offen {xnt}
    buffer_load_dword v126, v9, s[44:47], s64 offen {xnt}
    buffer_load_dword v126, v9, s[44:47], s65 offen {xnt}
    s_movk_i32 s64, 0x6000
    s_mov_b64 exec, 15
    buffer_load_dword v126, v9, s[44:47], s64 offen {xnt}
    v_lshlrev_b32 v9, 7, v2
    s_lshl_b32 s64, s54, 1
    s_mov_b32 s44, s14
    s_mov_b32 s45, s15
    s_mov_b32 s46, {N*2}
    buffer_load_dword v126, v9, s[44:47], s64 offen {xnt}
    s_mov_b64 exec, -1"""
    if xpf==1: a(XP)
    a('s_barrier')
    if xpf==2: a(XP)
    a(f's_barrier\ns_barrier\ns_barrier\ns_waitcnt vmcnt({5 if xpf else 0})')
    a('s_branch p1_wm\np1_wo:\nv_lshlrev_b32 v8, 4, v2\nv_add_u32 v9, 0x1000, v8')
    for k in range(8):
        a(f'global_load_dwordx4 v[{76+4*k}:{79+4*k}], v{8 if k<4 else 9}, s[22:23] offset:{1024*(k&3)}')
    wsinit()
    a(f"""v_add_u32 v8, {L_WP}, v8
    v_bfe_u32 v9, v0, 2, 2
    v_lshl_add_u32 v9, v4, 3, v9
    v_lshlrev_b32 v9, 7, v9
    v_lshl_add_u32 v9, v6, 4, v9
    v_add_u32 v9, {L_WP}, v9
    s_barrier""")
    a('s_barrier\ns_barrier\ns_barrier\ns_waitcnt vmcnt(0)')
    for k in range(8): a(f'ds_write_b128 v8, v[{76+4*k}:{79+4*k}] offset:{1024*k}')
    a('s_waitcnt lgkmcnt(0)')
    for T in range(4):
        for s_ in range(2):
            for hf in range(2):
                r=WBx+8*T+4*s_+2*hf
                a(f'ds_read_b64_tr_b16 v[{r}:{r+1}], v9 offset:{4096*s_+512*hf+64*(T>>1)+8*(T&1)}')
        if T==2: a('s_waitcnt lgkmcnt(8)')
    a('s_waitcnt lgkmcnt(0)\np1_wm:')
    for T in range(4):
        for s_ in range(2):
            for t in range(4):
                d=WD[T]+4*t
                a(f'v_mfma_f32_16x16x32_bf16 v[{d}:{d+3}], v[{WA+8*t+4*s_}:{WA+8*t+4*s_+3}], v[{WBx+8*T+4*s_}:{WBx+8*T+4*s_+3}], '+(f'v[{d}:{d+3}]' if s_ else '0'))
    a('s_nop 7')
    for T in range(4):
        d=WD[T]
        a(f'v_pk_add_f32 v[{20+2*T}:{21+2*T}], v[{d}:{d+1}], v[{d+2}:{d+3}]')
    for k in range(2,8):
        for T in range(4):
            d=WD[T]; a(f'v_pk_add_f32 v[{20+2*T}:{21+2*T}], v[{20+2*T}:{21+2*T}], v[{d+2*k}:{d+2*k+1}]')
    for T in range(4): a(f'v_add_f32 v{12+T}, v{20+2*T}, v{21+2*T}')
    for sw in ('v_permlane16_swap_b32','v_permlane32_swap_b32'):
        for T in range(4): a(f'v_mov_b32 v{16+T}, v{12+T}')
        a('s_nop 1')
        for T in range(4): a(f'{sw} v{12+T}, v{16+T}')
        for T in range(4): a(f'v_add_f32 v{12+T}, v{12+T}, v{16+T}')
    for T in range(4): a(f'v_mul_f32 v{20+2*T}, 0xbc800000, v{12+T}')
    a('s_cmp_eq_u32 s4, 14\ns_cbranch_scc0 p1_wc')
    for k in range(8):
        a(f'v_pk_add_f32 v[{28+2*k}:{29+2*k}], v[{WD[0]+2*k}:{WD[0]+2*k+1}], v[{WD[1]+2*k}:{WD[1]+2*k+1}]')
    for T in (2,3):
        for k in range(8): a(f'v_pk_add_f32 v[{28+2*k}:{29+2*k}], v[{28+2*k}:{29+2*k}], v[{WD[T]+2*k}:{WD[T]+2*k+1}]')
    a('v_add_f32 v12, v20, v22\nv_add_f32 v13, v24, v26\nv_add_f32 v12, v12, v13\ns_nop 1')
    for m in ('quad_perm:[1,0,3,2]','quad_perm:[2,3,0,1]','row_half_mirror','row_mirror'):
        a(f'v_add_f32_dpp v12, v12, v12 {m} {DPP}')
        for k in range(16): a(f'v_add_f32_dpp v{28+k}, v{28+k}, v{28+k} {m} {DPP}')
    a('v_mul_f32 v12, 0xbc800000, v12\nv_mov_b32 v14, 0xbc800000')
    for T in range(4): a(f'v_add_f32 v{20+2*T}, v{20+2*T}, v12')
    for T in range(4):
        for k in range(8):
            d=WD[T]+2*k
            a(f'v_pk_fma_f32 v[{d}:{d+1}], v[{28+2*k}:{29+2*k}], v[14:15], v[{d}:{d+1}] op_sel_hi:[1,0,1]')
    a(f"""p1_wc:
    s_sub_u32 s64, 14, s4
    s_lshl_b32 s64, s64, 13
    s_add_u32 s64, s64, {L_W}
    v_lshlrev_b32 v8, 4, v2
    v_add_u32 v8, s64, v8""")
    for T in range(4):
        for k in range(8):
            d=WD[T]+2*k
            a(f'v_pk_add_f32 v[{d}:{d+1}], v[{d}:{d+1}], v[{20+2*T}:{21+2*T}] op_sel_hi:[1,0]')
        for s_ in range(2):
            d=WD[T]+8*s_
            for k in range(4): a(f'v_cvt_pk_bf16_f32 v{d+k}, v{d+2*k}, v{d+2*k+1}')
            a(f'ds_write_b128 v8, v[{d}:{d+3}] offset:{2048*T+1024*s_}')
    a('s_branch p1_done')
    a('p1_probe:')
    wsinit()
    a(f"""s_and_b32 s64, s2, 3
    s_and_b32 s74, s2, 1
    s_lshl_b32 s64, s64, 21
    s_lshr_b32 s65, s2, 2
    s_lshl_b32 s65, s65, 7
    s_add_u32 s64, s64, s65
    s_add_u32 s64, s64, {254*8192}
    v_mov_b32 v40, s64
    v_add_u32 v41, 0x2000, v40
    v_mov_b32 v42, 0
    v_mov_b32 v76, -1
    v_mov_b32 v77, -1
    v_mov_b32 v78, -1
    v_mov_b32 v79, -1
    v_cmp_gt_u32 vcc, 7, v2
    v_add_u32 v45, {SMALL//(2*MB)-7}, v2
    v_cmp_eq_u32 s[66:67], 7, v2
    v_cndmask_b32 v45, v45, v2, vcc
    v_cmp_eq_u32 vcc, 10, v2
    v_mov_b32 v46, 0x1fff80
    v_cndmask_b32 v46, v46, 0, s[66:67]
    v_cndmask_b32 v45, v45, {BARP//(2*MB)}, vcc
    v_lshl_add_u32 v45, v45, 21, v46
    s_mov_b64 exec, 0x7ff
    global_load_dword v47, v45, s[30:31] sc1
    s_mov_b64 exec, 1
    global_load_dword v47, v42, s[28:29] sc1
    global_atomic_add v43, v40, v42, s[30:31] sc0 sc1
    global_atomic_add v44, v41, v42, s[30:31] sc0 sc1
    s_mov_b32 s63, 0
    s_mov_b32 s62, 1""")
    baraddr(a,BARP+16384)
    def rounds(nm,n):
        a(f"""s_mov_b32 s72, 0
        {nm}:
        global_atomic_add v43, v40, v42, s[30:31] sc0 sc1
        global_atomic_add v44, v41, v42, s[30:31] sc0 sc1
        s_waitcnt vmcnt(1)
        s_memtime s[68:69]
        s_waitcnt vmcnt(0)
        s_memtime s[70:71]
        v_swap_b32 v40, v41
        s_waitcnt lgkmcnt(0)
        s_sub_u32 s66, s70, s68
        s_sub_u32 s67, s66, s67
        s_add_u32 s72, s72, 1
        s_cmp_lt_u32 s72, {n}
        s_cbranch_scc1 {nm}""")
    a("""s_barrier
    s_barrier
    s_barrier
    global_load_dword v58, v42, s[28:29] sc1
    s_barrier
    s_mov_b32 s67, 0
    s_waitcnt vmcnt(0)""")
    if pa: rounds('p1_pl',pa)
    a(f"""s_mov_b32 s64, 0
    s_barrier
    gb0_i:
    v_readfirstlane_b32 s65, v58
    s_cmp_lg_u32 s65, 0
    s_cbranch_scc1 gb0_id
    s_sleep 2
    global_load_dword v58, v42, s[28:29] sc1
    s_add_u32 s64, s64, 1
    s_cmp_lt_u32 s64, 0x400000
    s_waitcnt vmcnt(0)
    s_cbranch_scc1 gb0_i
    gb0_id:""")
    bar_arrive(a,'gb0')
    rounds('p1_pm',nprobe-pa)
    a(f"""s_cmp_gt_i32 s67, 0
    s_cselect_b32 s65, 1, 0
    s_xor_b32 s65, s65, s6
    s_xor_b32 s65, s65, s74
    s_lshl_b32 s65, s65, 8
    s_or_b32 s93, s65, 1""")
    baraddr(a,BARP+32768)
    a('s_mov_b64 exec, -1')
    P1D()
    a('s_mov_b64 exec, 1\ns_mov_b32 s64, 8')
    bar_poll(a,'gb0')
    a('s_mov_b64 exec, -1\ns_branch p1_d9')
    a('p1_done:')
    P1D()
    a('p1_d9:\ns_waitcnt vmcnt(0) lgkmcnt(0)')
    stamp('p1')
    a('s_barrier')
    stamp('b0')
    if stop=='p1': a('s_endpgm')
    a('; P2: gather this bucket from all chunks, sort by node and source range')
    a(f"""buffer_load_dword v5, v70, s[40:43], s92 offen sc1
    s_cmp_lg_u32 s4, 15
    s_cbranch_scc1 p2_na
    s_mov_b64 exec, 1
    v_mov_b32 v57, s93
    v_mov_b32 v56, s56
    global_atomic_add v58, v56, v57, s[30:31] sc0 sc1
    s_mov_b64 exec, -1
    p2_na:
    s_waitcnt vmcnt(0)
    v_and_b32 v9, 0xffff, v5
    v_lshrrev_b32 v11, 16, v5
    v_lshl_add_u32 v4, v9, 2, v71
    v_cndmask_b32 v4, v72, v4, s[48:49]
    buffer_load_dwordx4 v[12:15], v4, s[40:43], 0 offen sc1
    buffer_load_dwordx4 v[16:19], v4, s[40:43], 0 offen offset:64 sc1
    v_sub_u32 v20, v11, v3
    v_mov_b32 v6, v72
    v_mov_b32 v7, v73
    s_cmp_lg_u32 s4, 15
    s_cbranch_scc1 p2_nw
    s_mov_b64 exec, 1
    v_add_u32 v57, v57, v58
    v_mov_b32 v56, s57
    v_readfirstlane_b32 s65, v57
    s_and_b32 s64, s65, 0xff
    s_cmp_lg_u32 s64, 32
    s_cbranch_scc1 gbb_np
    s_sub_u32 s65, s65, 31""")
    bar_l2(a,'gbb')
    a('s_mov_b64 exec, -1\np2_nw:')
    if u0pf:
        a('s_cmp_ge_u32 s4, 13\ns_cbranch_scc1 p2_np\ns_mov_b32 exec_lo, 0x01010101\ns_mov_b32 exec_hi, 0x01010101')
        for r in (76,77,78,79): a(f'buffer_load_dword v127, v{r}, s[36:39], 0 offen sc1')
        a('s_mov_b64 exec, -1\ns_waitcnt vmcnt(4)\ns_branch p2_np2\np2_np:\ns_waitcnt vmcnt(0)\np2_np2:')
    def each_entry(body,regs,base):
        for r,e in enumerate(regs):
            a(f'v_cmpx_lt_i32 vcc, {base[r]}, v20')
            body(e)
        a('s_mov_b64 exec, -1')
    regs=list(range(12,20)); base=[0,1,2,3,16,17,18,19]
    def pass1(regs):
        for k,e in enumerate(regs): a(f'v_and_b32 v{80+k}, 0x1ffc, v{e}')
        ad={e:80+k for k,e in enumerate(regs)}
        each_entry(lambda e: a(f'ds_add_u32 v{ad[e]}, v21 offset:{L_CNT}'),regs,base)
    if not u0pf: a('s_waitcnt vmcnt(0)')
    stamp('sg')
    pass1(regs)
    def longseg(nm,whole):
        a(f"""v_cmp_lt_i32 vcc, 32, v20
        s_cbranch_vccnz {nm}
        {nm}_d:""")
        def tail():
            a(f"""{nm}:
            v_mov_b32 v23, v20
            v_mov_b32 v24, v4
            {nm}_l:
            v_subrev_u32 v20, 32, v20
            v_add_u32 v24, 128, v24
            v_cmp_lt_i32 vcc, 0, v20
            s_cbranch_vccz {nm}_r
            buffer_load_dwordx4 v[28:31], v24, s[40:43], 0 offen sc1
            buffer_load_dwordx4 v[32:35], v24, s[40:43], 0 offen offset:64 sc1
            s_waitcnt vmcnt(0)""")
            whole(list(range(28,36)))
            a(f"""s_branch {nm}_l
            {nm}_r:
            v_mov_b32 v20, v23""")
            for k,e in enumerate(regs): a(f'v_and_b32 v{80+k}, 0x1ffc, v{e}')
            a(f's_branch {nm}_d')
        tails.append(tail)
    tails=[]
    longseg('ls1',pass1)
    a('s_waitcnt lgkmcnt(0)\ns_barrier')
    stamp('c1')
    a(f"""s_cmp_ge_u32 s4, 4
    s_cbranch_scc1 p2_n1
    v_add_u32 v36, s54, v0
    s_mov_b32 s64, {N}
    v_cmp_gt_u32 vcc, s64, v36
    s_movk_i32 s64, {BS}
    v_cmp_gt_u32 s[64:65], s64, v0
    s_and_b64 s[66:67], vcc, s[64:65]
    s_mov_b64 exec, s[66:67]
    v_lshlrev_b32 v37, 5, v0
    v_lshlrev_b32 v38, 3, v0
    ds_read_b128 v[40:43], v37 offset:{L_CNT}
    ds_read_b128 v[44:47], v37 offset:{L_CNT+16}
    ds_read_b64 v[58:59], v38 offset:{L_R0}""")
    line_calc(a,66,36,62,63)
    a(f"""v_lshlrev_b32 v66, 7, v66
    DUP128 62 36
    v_add_u32 v67, 0x2000, v66
    v_cmp_ne_u32 vcc, 0, v62
    v_mov_b32 v48, 0
    s_waitcnt lgkmcnt(1)
    v_cndmask_b32 v67, v6, v67, vcc
    v_mov_b32 v49, v40
    v_add_u32 v50, v49, v41
    v_add_u32 v51, v50, v42
    v_add_u32 v52, v51, v43
    v_add_u32 v53, v52, v44
    v_add_u32 v54, v53, v45
    v_add_u32 v55, v54, v46
    v_add_u32 v65, v55, v47
    v_min_u32 v57, 63, v65
    v_sub_u32 v57, 63, v57
    v_lshlrev_b32 v57, 2, v57
    ds_add_rtn_u32 v60, v57, v21 offset:{L_DH}
    s_mov_b64 exec, -1
    p2_n1:""")
    def offs(regs):
        for e in regs:
            a(f"""v_lshrrev_b32 v26, 29, v{e}
            v_lshrrev_b32 v27, 8, v{e}
            v_bfe_u32 v26, s58, v26, 1
            v_and_b32 v27, 0xffffff80, v27
            v_and_b32 v26, v26, v{e}
            v_lshl_add_u32 v{e}, v26, 13, v27""")
    a('s_cmp_lg_u32 s4, 15\ns_cbranch_scc1 p2_nq\ns_mov_b64 exec, 1\nv_mov_b32 v56, s57\ns_mov_b32 s64, 8')
    bar_poll(a,'gbb',votes=True)
    a(f"""v_mov_b32 v62, {L_RED}
    ds_write_b32 v62, v58 offset:8
    s_mov_b64 exec, -1
    p2_nq:
    v_mov_b32 v62, {L_RED}
    s_waitcnt lgkmcnt(0)
    s_barrier
    ds_read_b32 v63, v62 offset:8
    ds_read_b32 v61, v8 offset:{L_DH}
    s_waitcnt lgkmcnt(0)
    v_readfirstlane_b32 s60, v63
    s_cmp_ge_u32 s60, 0x8000
    s_cselect_b32 s61, 1, 0
    s_xor_b32 s58, s61, s6
    s_lshr_b32 s58, 0xaa, s58
    s_cmp_ge_u32 s4, 4
    s_cbranch_scc1 p2_n2
    v_mov_b32 v62, v61
    s_nop 1""")
    for m in ('row_shr:1','row_shr:2','row_shr:4','row_shr:8'):
        a(f'v_add_u32_dpp v62, v62, v62 {m} {DPP} bound_ctrl:0\ns_nop 1')
    a(f"""v_add_u32_dpp v62, v62, v62 row_bcast:15 row_mask:0xa bank_mask:0xf
    s_nop 1
    v_add_u32_dpp v62, v62, v62 row_bcast:31 row_mask:0xc bank_mask:0xf
    v_sub_u32 v62, v62, v61
    ds_bpermute_b32 v62, v57, v62
    s_mov_b64 exec, s[66:67]
    v_or_b32 v64, v59, v0
    s_waitcnt lgkmcnt(0)
    v_add_u32 v60, v60, v62
    v_mul_u32_u24 v61, {0x400000+160}, v60""")
    for j in range(8): a(f'v_lshl_add_u32 v{48+j}, v{48+j}, 2, v61')
    a(f"""ds_write_b128 v37, v[48:51] offset:{L_CNT}
    ds_write_b128 v37, v[52:55] offset:{L_CNT+16}
    v_lshlrev_b32 v62, 4, v60
    ds_write_b128 v62, v[64:67] offset:{L_INFO}
    v_lshlrev_b32 v62, 5, v60
    v_add_u32 v62, {L_RHO-65024}, v62
    ds_write_b32 v62, v58 offset:65024
    v_cmp_lt_u32 vcc, {CAP}, v65
    s_and_b64 exec, exec, vcc
    s_cbranch_execz p2_n3
    v_subrev_u32 v56, {CAP}, v65
    v_mov_b32 v62, {L_RED}
    ds_add_rtn_u32 v63, v62, v56
    v_lshlrev_b32 v62, 2, v60
    s_waitcnt lgkmcnt(0)
    ds_write_b32 v62, v63 offset:{L_INF2}
    s_branch p2_n3
    p2_n2:""")
    offs(regs)
    a('p2_n3:\ns_mov_b64 exec, -1')
    a('s_waitcnt lgkmcnt(0)\ns_barrier')
    stamp('nd')
    def pass2(regs,slow):
        cur={e:40+k for k,e in enumerate(regs)}; ad={e:80+k for k,e in enumerate(regs)}
        each_entry(lambda e: a(f'ds_add_rtn_u32 v{cur[e]}, v{ad[e]}, v69 offset:{L_CNT}'),regs,base)
        if not slow:
            a(f"""v_mov_b32 v62, {L_RED}
            ds_read_b32 v63, v62
            s_cmp_ge_u32 s4, 4
            s_cbranch_scc1 p2_o2""")
            offs(regs)
            a(f"""p2_o2:
            s_movk_i32 s64, 160
            s_mov_b32 s65, 0x3fffff
            s_waitcnt lgkmcnt(0)
            v_readfirstlane_b32 s59, v63
            s_cmp_lg_u32 s59, 0
            s_cbranch_scc1 p2_ovf""")
            for e in regs:
                a(f'v_and_b32 v{cur[e]}, s65, v{cur[e]}')
            each_entry(lambda e: a(f'ds_write_b32 v{cur[e]}, v{e} offset:{L_LIST}'),regs,base)
        else:
            a('s_waitcnt lgkmcnt(0)')
            slow2(regs)
    def slow2(regs):
        cur={e:40+k for k,e in enumerate(regs)}
        for r,e in enumerate(regs):
            l=a.lab('ov')
            a(f"""v_cmp_lt_i32 s[70:71], {base[r]}, v20
            v_lshrrev_b32 v26, 22, v{cur[e]}
            v_and_b32 v22, s65, v{cur[e]}
            v_mul_u32_u24 v25, s64, v26
            v_sub_u32 v25, v22, v25
            v_lshrrev_b32 v25, 2, v25
            v_cmp_gt_u32 vcc, {CAP}, v25
            s_and_b64 exec, s[70:71], vcc
            ds_write_b32 v22, v{e} offset:{L_LIST}
            s_andn2_b64 exec, s[70:71], vcc
            s_cbranch_execz {l}
            v_lshlrev_b32 v26, 2, v26
            ds_read_b32 v26, v26 offset:{L_INF2}
            v_subrev_u32 v25, {CAP}, v25
            s_waitcnt lgkmcnt(0)
            v_add_lshl_u32 v25, v25, v26, 2
            buffer_store_dword v{e}, v25, s[40:43], s59 offen
            {l}:
            s_mov_b64 exec, -1""")
    pass2(regs,False)
    a('p2_ovd:')
    def long2(regs):
        for k,e in enumerate(regs): a(f'v_and_b32 v{80+k}, 0x1ffc, v{e}')
        offs(regs); pass2(regs,True)
    longseg('ls2',long2)
    def ovf_tail():
        a(f"""p2_ovf:
        v_cmp_eq_u32 vcc, 0, v3
        s_mov_b64 exec, vcc
        ds_add_u32 v62, v9 offset:4
        s_mov_b64 exec, -1
        s_waitcnt lgkmcnt(0)
        s_barrier
        ds_read_b32 v63, v62 offset:4
        s_waitcnt lgkmcnt(0)
        v_readfirstlane_b32 s59, v63
        s_lshl_b32 s59, s59, 2
        s_add_u32 s59, s59, {OVF}""")
        slow2(regs)
        a('s_branch p2_ovd')
    tails.append(ovf_tail)
    a('s_waitcnt vmcnt(0) lgkmcnt(0)\ns_barrier')
    stamp('c2')
    a('s_cmp_ge_u32 s4, 13\ns_cbranch_scc1 k_hx')
    a(f"""v_mov_b32 v0, v7
    v_lshrrev_b32 v115, 3, v0
    s_lshl_b32 s64, s4, 4
    v_add_u32 v115, s64, v115
    v_and_b32 v114, 3, v0
    v_mul_u32_u24 v6, 160, v115
    v_lshl_add_u32 v7, v114, 3, v6
    v_lshl_add_u32 v6, v114, 4, v6
    ds_read_b128 v[16:19], v6 offset:{L_LIST}
    ds_read_b128 v[26:29], v6 offset:{L_LIST+1280}
    v_lshlrev_b32 v116, 4, v115
    v_and_b32 v1, 7, v0
    v_lshlrev_b32 v1, 4, v1""")
    for s in range(2):
        o=16+10*s
        a(f"""ds_read_b128 v[{100+4*s}:{103+4*s}], v116 offset:{L_INFO+128*s}
        ds_read_b128 v[{o+4}:{o+7}], v6 offset:{L_LIST+1280*s+64}
        ds_read_b64 v[{o+8}:{o+9}], v7 offset:{L_LIST+1280*s+128}""")
    a(f"""s_mov_b32 s32, s36
    s_mov_b32 s33, s37
    s_mov_b32 s34, s38
    s_mov_b32 s35, 0x20000
    s_mov_b32 s3, 1
    v_mov_b32 v126, -1
    s_waitcnt lgkmcnt(6)""")
    stamp('p2')
    def deferred():
        a(f"""v_lshlrev_b32 v116, 2, v115
        ds_read_b32 v122, v116 offset:{L_INF2}
        ds_read_b32 v123, v116 offset:{L_INF2+32}
        v_mov_b32 v6, 0x3f80
        v_mov_b32 v7, 0x3f800000
        v_cmp_eq_u32 s[70:71], 0, v114
        v_cmp_eq_u32 s[64:65], 1, v114
        v_cmp_eq_u32 s[66:67], 2, v114
        v_cmp_eq_u32 s[68:69], 3, v114
        v_cndmask_b32 v2, 0, v6, s[70:71]
        v_cndmask_b32 v3, 0, v6, s[66:67]
        v_cndmask_b32 v2, v2, v7, s[64:65]
        v_cndmask_b32 v3, v3, v7, s[68:69]
        s_movk_i32 s64, {BS}
        v_cmp_gt_u32 s[48:49], s64, v115
        s_movk_i32 s64, {BS-8}
        v_cmp_gt_u32 s[50:51], s64, v115
        v_lshlrev_b32 v116, 7, v115
        v_lshlrev_b32 v117, 5, v115
        v_add_u32 v117, {L_RHO}, v117
        s_waitcnt lgkmcnt(0)
        v_max_u32 v4, v101, v105
        v_mov_b32 v120, v101
        v_mov_b32 v121, v105
        v_max_u32_dpp v4, v4, v4 row_shr:8 {DPP} bound_ctrl:0
        s_nop 1
        v_max_u32_dpp v4, v4, v4 row_bcast:15 row_mask:0xa bank_mask:0xf
        s_nop 1
        v_max_u32_dpp v4, v4, v4 row_bcast:31 row_mask:0xc bank_mask:0xf
        s_nop 1
        v_readlane_b32 s53, v4, 63""")
        for s in range(2):
            i=100+4*s
            a(f"""v_add_u32 v{8+s}, v{i+2}, v1
            v_add_u32 v{10+s}, v{i+3}, v1
            v_and_b32 v4, 0xffff0000, v{i}
            v_mul_f32 v{12+s}, v4, v4
            v_cmp_eq_f32 s[64:65], 0, v4
            v_and_b32 v5, 0xffff, v{i}
            v_add_u32 v5, s54, v5
            v_cndmask_b32 v{124+s}, v4, 1.0, s[64:65]
            v_lshl_add_u32 v{118+s}, v5, 7, v1
            v_cmp_gt_u32 s[64:65], s38, v{i+2}
            v_rcp_f32 v{14+s}, v{124+s}
            s_nop 0
            v_cndmask_b32 v{118+s}, v{i+2}, v{118+s}, s[64:65]""")
        a(f"""s_max_u32 s52, s53, {K//2}
        s_min_u32 s52, s52, {CAP}
        s_add_u32 s36, s36, {TSTR}
        s_addc_u32 s37, s37, 0
        s_mov_b32 s76, 0x3f803f80
        v_lshrrev_b32 v4, 4, v0
        v_lshlrev_b32 v4, 4, v4
        global_load_dwordx4 v[84:87], v4, s[24:25]
        global_load_dwordx4 v[88:91], v4, s[24:25] offset:64""")
    def late():
        a(f"""s_mul_i32 s95, s4, {STG}
        s_add_u32 s95, s95, {L_STAGE}
        s_xor_b32 s63, s61, 1
        s_mov_b32 s62, 0""")
        a('s_cmp_lg_u32 s4, 0\ns_cbranch_scc1 f_nb')
        baraddr(a,BARP)
        if stamps: a('s_mov_b32 s94, s60')
        a('f_nb:')
        if stag>=4: a(f'v_mov_b32 v4, {L_END}\nv_mov_b32 v5, 0\nds_write_b32 v4, v5')
        if pf:
            a(f"""v_lshrrev_b32 v4, 4, v0
            v_lshl_add_u32 v4, v4, 5, s5
            v_and_b32 v4, 0xff, v4
            v_mul_u32_u24 v4, {BS}, v4
            v_and_b32 v5, 15, v0
            s_lshl_b32 s64, s4, 4
            s_sub_u32 s64, s64, 16
            v_add3_u32 v4, v4, v5, s64""")
            line_calc(a,126,4,5,6)
            a(f"""v_lshrrev_b32 v5, 14, v126
            v_bfe_u32 v5, s58, v5, 1""")
            if not OWN: a('DUP128 6 4\nv_lshrrev_b32 v6, 7, v6\nv_and_b32 v5, v5, v6')
            a(f"""
            v_lshl_add_u32 v126, v5, 6, v126
            v_lshlrev_b32 v126, 7, v126""")
    def late2():
        for s_ in range(2):
            a(f"""s_mov_b64 exec, s[{48+2*s_}:{49+2*s_}]
            v_lshrrev_b32 v4, 3, v116
            v_add_u32 v4, {L_ND+128*s_}, v4
            v_mov_b32 v52, v{124+s_}
            v_mov_b32 v53, v{14+s_}
            v_sub_u32 v54, v{118+s_}, v1
            v_mov_b32 v55, 0
            ds_write_b128 v4, v[52:55]""")
        a(f"""s_mov_b64 exec, -1
        v_lshrrev_b32 v4, 2, v0
        v_xor_b32 v4, s63, v4
        v_and_b32 v4, 1, v4
        v_lshlrev_b32 v4, 13, v4
        v_lshl_add_u32 v4, v0, 8, v4
        v_add_u32 v124, {BARP+4096}, v4""")
    if dump:
        deferred()
        a(f's_lshl_b32 s64, s2, 4\ns_add_u32 s64, s64, s4\ns_mul_i32 s64, s64, {40*256}\ns_add_u32 s64, s64, {DUMP}\nv_lshlrev_b32 v4, 2, v0\nv_add_u32 v4, s64, v4')
        for i,r in enumerate(list(range(8,36))+list(range(118,126))):
            a(f'global_store_dword v4, v{r}, s[30:31]\nv_add_u32 v4, 256, v4')
        a('v_mov_b32 v5, s53\nglobal_store_dword v4, v5, s[30:31]\nv_add_u32 v4, 256, v4\nv_mov_b32 v5, s60\nglobal_store_dword v4, v5, s[30:31]\nv_add_u32 v4, 256, v4\nds_read_b32 v5, v117\ns_waitcnt lgkmcnt(0)\nglobal_store_dword v4, v5, s[30:31]')
    if stop=='p2': a('s_endpgm')
    for k,(r,o) in enumerate(((4,16),(5,26),(6,17),(7,27))): a(f'v_add_u32_dpp v{r}, v{o}, v1 quad_perm:[0,0,0,0] {DPP}')
    if side in ('min','minb'):
        a('s_waitcnt lgkmcnt(0)\ns_cmp_lg_u32 s4, 0\ns_cbranch_scc1 sd_n\ns_not_b32 s64, s80\nv_mov_b32 v4, 0\nv_mov_b32 v5, s64\ns_mov_b64 exec, 1\nglobal_atomic_umax v4, v5, s[28:29] offset:8 sc1\ns_mov_b64 exec, -1\nsd_n:')
    a('h_top:')
    XA=52; XB=68; TA=120; TB=[40,41,42,43,48,49,50,51]; TQ=10; WB=[18,22,26]; Z=10; ST=[84,88]; BA=92; BB=96; BO=100
    vW,vOq,vA,vTr,vRk,vRq,vNd,vNs,vBw,vBr,vNo,vS=range(104,116); vAq=114+11
    mRA,mRT,mVA,mVB,mH0,mRH,mCA,mCB='s[10:11]','s[12:13]','s[14:15]','s[16:17]','s[18:19]','s[20:21]','s[22:23]','s[8:9]'
    t0_,t1_,cq,dq=2,3,4,5; sv=6; vo=7
    def tokaddr(dst,n,h,ch,t1,t2,mask):
        a(f"""v_lshlrev_b32 v{t1}, 4, v{ch}
        v_lshl_add_u32 v{t1}, v{n}, 7, v{t1}
        v_and_b32 v{t2}, 3, v{h}
        v_lshl_add_u32 v{t1}, v{t2}, 6, v{t1}
        v_lshrrev_b32 v{t2}, 2, v{h}
        v_lshl_add_u32 v{t1}, v{t2}, 5, v{t1}
        v_subrev_u32 v{t2}, 1, v{h}
        v_cmp_gt_u32 {mask}, 4, v{t2}
        v_mul_u32_u24 v{t2}, {PL2}, v{t2}
        v_add3_u32 v{t2}, v{t2}, v{t1}, s64
        v_subrev_u32 v{dst}, 4, v{h}
        v_max_i32 v{dst}, 0, v{dst}
        v_lshl_add_u32 v{dst}, v{dst}, 9, v{t1}
        v_add_u32 v{dst}, s95, v{dst}
        v_cndmask_b32 v{dst}, v{dst}, v{t2}, {mask}""")
    J,Q,C3,Q16,H,NN,QH,T1,T2,T3,T4,T5=4,5,6,7,56,57,58,59,60,61,62,63
    def fsetup():
        a(f"""v_and_b32 v{J}, 15, v0
        v_lshrrev_b32 v{Q}, 4, v0
        v_lshlrev_b32 v{Q16}, 4, v{Q}
        s_lshl_b32 s64, s4, 11
        v_and_b32 v{H}, 7, v0
        v_lshrrev_b32 v{NN}, 3, v{J}
        v_bfe_u32 v{T1}, v0, 3, 2
        v_lshl_add_u32 v{T1}, v{T1}, 7, v1
        v_add_u32 v{vS}, s95, v{T1}""")
        tokaddr(vA,NN,H,Q,T1,T2,mRA)
        a(f"""v_lshrrev_b32 v{QH}, 1, v{Q}
        v_and_b32 v{T3}, 1, v{Q}
        v_bfe_u32 v{T4}, v0, 2, 2
        v_lshl_add_u32 v{T3}, v{T3}, 2, v{T4}
        v_and_b32 v{C3}, 3, v0
        v_lshlrev_b32 v{T4}, 8, v{NN}
        v_sub_u32 v{vAq}, v{vA}, v{T4}
        v_add_u32 v{vAq}, 0x180, v{vAq}""")
        tokaddr(vTr,QH,T3,C3,T1,T2,mRT)
        a(f"""v_cmp_eq_u32 {mVA}, v{QH}, v{NN}
        v_cmp_ne_u32 {mVB}, v{QH}, v{NN}
        v_cmp_eq_u32 {mH0}, 0, v{H}
        v_cmp_gt_u32 {mRH}, 2, v{Q}
        v_cmp_gt_u32 s[66:67], 2, v{J}
        s_lshl_b32 s64, s4, 9
        s_add_u32 s64, s64, {L_RHO}
        s_lshl_b32 s65, s4, 8
        s_add_u32 s65, s65, {L_ND}
        v_lshlrev_b32 v{T1}, 2, v{J}
        v_xor_b32 v{T2}, 0x60, v{T1}
        v_add_u32 v{T4}, 64, v{Q16}
        v_cndmask_b32 v{vRk}, v{T4}, v{Q16}, {mVA}
        v_cndmask_b32 v{vRq}, v{T2}, v{T1}, {mVA}
        v_cndmask_b32 v{vBw}, v{T2}, v{T1}, {mRH}
        v_cndmask_b32 v{vBr}, v{T4}, v{Q16}, s[66:67]
        v_lshlrev_b32 v{T1}, 4, v{NN}
        v_xor_b32 v{T2}, 0x30, v{T1}
        v_cndmask_b32 v{vNd}, v{T2}, v{T1}, {mVA}
        v_cndmask_b32 v{vNs}, v{T2}, v{T1}, {mRH}
        v_lshlrev_b32 v{vNo}, 4, v{C3}""")
        for r in (vRk,vRq,vBw,vBr): a(f'v_add_u32 v{r}, s64, v{r}')
        for r in (vNd,vNs,vNo): a(f'v_add_u32 v{r}, s65, v{r}')
    def fsetup2():
        a(f"""v_and_b32 v{J}, 15, v0
        v_lshrrev_b32 v{Q}, 4, v0
        v_lshlrev_b32 v{Q16}, 4, v{Q}
        v_lshrrev_b32 v{QH}, 1, v{Q}
        v_and_b32 v{C3}, 3, v0
        v_lshlrev_b32 v{T1}, 2, v{Q}
        v_sub_u32 v{T2}, v{J}, v{T1}
        v_xor_b32 v{T3}, 8, v{J}
        v_sub_u32 v{T3}, v{T3}, v{T1}
        v_mov_b32 v{T4}, 0x3f80
        v_mov_b32 v{T5}, 0x3f800000""")
        for B_,d in ((BA,T2),(BB,T3)):
            for hf in range(2):
                a(f"""v_cmp_eq_u32 s[66:67], {2*hf}, v{d}
                v_cmp_eq_u32 s[68:69], {2*hf+1}, v{d}
                v_mov_b32 v{B_+2+hf}, 0
                v_cndmask_b32 v{B_+hf}, 0, v{T4}, s[66:67]
                v_cndmask_b32 v{B_+hf}, v{B_+hf}, v{T5}, s[68:69]""")
        for i in range(4): a(f'v_mov_b32 v{BO+i}, 0')
        a(f"""v_cmp_eq_u32 {mCA}, v{J}, v{QH}
        v_add_u32 v{QH}, 2, v{QH}
        v_cmp_eq_u32 {mCB}, v{J}, v{QH}
        v_mov_b32 v{vOq}, v{Q16}
        v_lshlrev_b32 v{vW}, 4, v0
        v_add_u32 v{vW}, {L_W}, v{vW}
        v_cmp_eq_u32 s[66:67], 0, v{C3}
        v_cmp_eq_u32 s[68:69], 1, v{C3}
        v_mov_b32 v{T1}, s76
        v_dot2_f32_bf16 v{T3}, v{ST[0]}, s76, 0""")
        for r in [ST[0]+1,ST[0]+2,ST[0]+3,ST[1],ST[1]+1,ST[1]+2,ST[1]+3]: a(f'v_dot2_f32_bf16 v{T3}, v{r}, s76, v{T3}')
        for b in ST:
            for i in range(4): a(f'v_cndmask_b32 v{b+i}, 0, v{b+i}, s[68:69]\nv_cndmask_b32 v{b+i}, v{b+i}, v{T1}, s[66:67]')
        a(f"""v_readlane_b32 s64, v{T3}, 0
        v_readlane_b32 s65, v{T3}, 16
        v_readlane_b32 s66, v{T3}, 32
        v_readlane_b32 s67, v{T3}, 48
        v_mov_b32 v{T1}, s64
        v_add_f32 v{T1}, s65, v{T1}
        v_add_f32 v{T1}, s66, v{T1}
        v_add_f32 v{T1}, s67, v{T1}
        v_mul_f32 v{T1}, 0x3c800000, v{T1}
        s_mov_b32 s74, 0x3e38aa3b
        v_readfirstlane_b32 s55, v{T1}""")
    acc=[36,44]; d0=52; off=[16,26]; va=[4,5,6,7]
    def mf(s_,sl):
        a(f'v_mfma_f32_4x4x4_16b_bf16 v[{acc[s_]}:{acc[s_]+3}], v[2:3], v[{sl}:{sl+1}], v[{acc[s_]}:{acc[s_]+3}]')
        a(f'v_mfma_f32_4x4x4_16b_bf16 v[{acc[s_]+4}:{acc[s_]+7}], v[2:3], v[{sl+2}:{sl+3}], v[{acc[s_]+4}:{acc[s_]+7}]')
    def dma(pair):
        sl=pair>>1; hf=pair&1
        a(f's_mov_b32 exec_lo, {0 if hf else -1}\ns_mov_b32 exec_hi, {-1 if hf else 0}')
        for (srd,v,o) in ((44,118+sl,0),(96,8+sl,608),(32,8+sl,1184)):
            a(f's_add_u32 m0, s95, {o-512*hf}' if o-512*hf>=0 else f's_sub_u32 m0, s95, {512*hf-o}')
            a(f's_nop 0\nbuffer_load_dwordx4 v{v}, s[{srd}:{srd+3}], 0 offen {"" if srd==44 else "sc1"} lds')
        a('s_mov_b64 exec, -1')
    def hop7():
        a(f"""s_cmp_lg_u32 s3, 7
        s_cbranch_scc1 h_nx
    """)
        dma(0)
        a('s_setprio 3')
        if stag==1:
            a('s_setprio 3\ns_cmp_ge_u32 s4, 8\ns_cbranch_scc1 h_nx\ns_setprio 2\ns_cmp_ge_u32 s4, 4\ns_cbranch_scc1 h_nx\ns_setprio 1')
        if stag==2: a('s_setprio 3')
        if stag>=4:
            G={4:(8,4,5,9),5:(6,6,7,7),6:(10,5,3,8),7:(9,5,4,8),8:(8,4,4,8),9:(8,4,3,7),10:(8,4,5,8)}[stag]
            a(f'''s_setprio 3
            s_cmp_ge_u32 s4, {G[0]}
            s_cbranch_scc1 h_nx
            s_cmp_ge_u32 s4, {G[1]}
            s_cselect_b32 s64, {G[2]}, {G[3]}
            v_mov_b32 v60, {L_END}
            s_mov_b32 s65, 0
            h_g7:
            ds_read_b32 v61, v60
            s_waitcnt lgkmcnt(0)
            v_readfirstlane_b32 s66, v61
            s_cmp_ge_u32 s66, s64
            s_cbranch_scc1 h_nx
            s_sleep 1
            s_add_u32 s65, s65, 1
            s_cmp_lt_u32 s65, 0x1000000
            s_cbranch_scc1 h_g7''')
        if stag==3:
            a('s_setprio 1\ns_cmp_ge_u32 s4, 8\ns_cbranch_scc1 h_nx\ns_setprio 2\ns_cmp_ge_u32 s4, 4\ns_cbranch_scc1 h_nx\ns_setprio 3')
        a('h_nx:')
    if stag>=4: hop7()
    hstamp('hs')
    if stamps and 'h5' in stamps:
        i=stamps.index('h5'); a(f's_cmp_lg_u32 s3, 5\ns_cbranch_scc1 hs_h5\ns_memrealtime s[{80+2*i}:{81+2*i}]\nhs_h5:')
    handlers=[]
    for u in range(CAP//2):
        j=2*u; t0=4*u
        if j<32: q=(j>>2)&3; rb=4*(j>>4)+(j&3)
        else: q=(j-32)>>1; rb=8
        if t0>=K: a(f's_cmp_ge_u32 {j}, s52\ns_cbranch_scc1 h_drain{"" if not pdrain else (u%(K//4))}')
        if u==1:
            a('s_cmp_eq_u32 s3, 1\ns_cbranch_scc1 h_def\nh_defr:')
            if stag<4: hop7()
            for i in range(16): a(f'v_mov_b32 v{36+i}, 0')
            a('s_mov_b32 s77, s52\ns_mov_b32 s78, 0')
            if stag: a(f's_cmp_eq_u32 s3, 7\ns_cselect_b32 s78, {RB}, 0')
        if u>0:
            h=f'h_ev{u}'; a(f's_sub_u32 s77, s77, {2*R}\ns_cbranch_scc1 {h}\n{h}_r:'); handlers.append(h)
        for hh in range(2 if u else 0):
            for s_ in range(2):
                a(f'v_add_u32_dpp v{va[hh*2+s_]}, v{off[s_]+rb+hh}, v1 quad_perm:[{q},{q},{q},{q}] {DPP}')
        if t0>=K:
            a(f's_waitcnt vmcnt({K-4})')
            for hh in range(2):
                for s_ in range(2): mf(s_,d0+4*((t0+hh*2+s_)%K))
        for hh in range(2):
            for s_ in range(2):
                sl=d0+4*((t0+hh*2+s_)%K)
                a(f'buffer_load_dwordx4 v[{sl}:{sl+3}], v{va[hh*2+s_]}, s[32:35], 0 offen sc1')
    if pdrain:
        f0=(CAP//2)%(K//4)
        for v in [f0]+[v for v in range(K//4) if v!=f0]: a(f'h_drain{v}:\ns_mov_b32 s79, {v}\ns_branch h_drain')
    a('h_drain:')
    if stag>=4 and not late7:
        a(f's_cmp_lg_u32 s3, 7\ns_cbranch_scc1 h_rb\nv_mov_b32 v4, {L_END}\nv_mov_b32 v5, 1\ns_mov_b64 exec, 1\nds_add_u32 v4, v5\ns_mov_b64 exec, -1')
    a(f"""h_rb:
    s_cmp_ge_u32 s78, {RB}
    s_cbranch_scc1 h_rbd
    s_barrier
    s_add_u32 s78, s78, 1
    s_branch h_rb
    h_rbd:""")
    hstamp('hi')
    if pdrain:
        for par in range(1,K//4): a(f's_cmp_eq_u32 s79, {par}\ns_cbranch_scc1 h_dr{par}')
        for par in range(K//4):
            if par: a(f'h_dr{par}:')
            for n in range(K//2):
                a(f's_waitcnt vmcnt({K-2-2*n})')
                for t in (2*n,2*n+1): mf(t%2,d0+4*((t+4*par)%K))
            if par<K//4-1: a('s_branch h_drx')
        a('h_drx:')
        hstamp('hd')
    else:
        a('s_waitcnt vmcnt(0)')
        hstamp('hd')
        for t in range(K): mf(t%2,d0+4*t)
    if late7: a(f's_cmp_lg_u32 s3, 7\ns_cbranch_scc1 h_l7\nv_mov_b32 v4, {L_END}\nv_mov_b32 v5, 1\ns_mov_b64 exec, 1\nds_add_u32 v4, v5\ns_mov_b64 exec, -1\nh_l7:')
    if eprio: a('s_setprio 2')
    a(f's_cmp_gt_u32 s53, {CAP}\ns_cbranch_scc1 h_slow\nh_slow_r:\ns_nop 3')
    a('s_cmp_eq_u32 s3, 7')
    for s_ in range(2):
        if s_: a('h_ns0:')
        for i in range(4): a(f'v_pk_mul_f32 v[{acc[s_]+2*i}:{acc[s_]+2*i+1}], v[{acc[s_]+2*i}:{acc[s_]+2*i+1}], v[12:13] op_sel:[0,{s_}] op_sel_hi:[1,{s_}]')
        for i in range(4): a(f'v_cvt_pk_bf16_f32 v{acc[s_]+i}, v{acc[s_]+2*i}, v{acc[s_]+2*i+1}')
        a(f's_cbranch_scc1 h_ns{"" if s_ else "0"}')
        a(f'buffer_store_dwordx4 v[{acc[s_]}:{acc[s_]+3}], v{8+s_}, s[36:39], 0 offen sc1')
        a(f'buffer_store_dwordx4 v[{acc[s_]}:{acc[s_]+3}], v{10+s_}, s[36:39], 0 offen sc1')
    if eprio: a('s_setprio 0')
    if post:
        a(f"""s_cmp_eq_u32 s3, 1
        s_cbranch_scc1 f_set
        f_setr1:
        s_add_u32 s62, s62, 1
        v_mov_b32 v56, s56
        v_mov_b32 v57, 1
        s_lshl_b32 s64, s62, 5
        s_sub_u32 s64, s64, 1
        s_cmp_lg_u32 s4, 0
        s_waitcnt vmcnt(0)
        HSTAMP_HA
        s_barrier
        s_cbranch_scc1 gb1_f
        s_mov_b64 exec, 1
        global_atomic_add v58, v56, v57, s[30:31] sc0 sc1
        s_waitcnt vmcnt(0)
        v_cmp_ne_u32 vcc, s64, v58
        s_cbranch_vccnz gb1_g
        s_mov_b64 exec, 0xff
        global_atomic_add v124, v57, s[30:31] sc1
        s_branch gb1_g
        gb1_f:
        s_mov_b64 exec, 0xffff
        buffer_load_dword v127, v126, s[36:39], 0 offen sc1
        gb1_g:
        s_mov_b64 exec, -1""")
    a(f"""h_ns:
    s_lshl_b32 s64, s3, 2
    s_sub_u32 s66, s3, 1
    s_mul_i32 s66, s66, {PL2}
    s_and_b32 s65, s3, 3
    s_lshl_b32 s65, s65, 6
    s_add_u32 s66, s66, s65
    s_lshr_b32 s65, s3, 2
    s_lshl_b32 s65, s65, 5
    s_add_u32 s66, s66, s65
    v_add_u32 v52, s64, v117
    v_add3_u32 v53, v1, v116, s66""")
    for s_ in range(2):
        l=a.lab('ep'); l2=a.lab('ep')
        rho_calc(a,acc[s_],54,55,14+s_,'s76')
        a(f"""s_mov_b64 exec, s[{48+2*s_}:{49+2*s_}]
        s_cbranch_execz {l}
        ds_write_b32 v52, v54 offset:{256*s_}
        s_cmp_gt_u32 s3, 4
        s_cbranch_scc1 {l}
        ds_write_b128 v53, v[{acc[s_]}:{acc[s_]+3}] offset:{1024*s_}
        {l}:
        s_mov_b64 exec, -1""")
    if post:
        a('s_cmp_eq_u32 s3, 7\ns_cbranch_scc1 f_top\ns_cmp_eq_u32 s3, 2\ns_cbranch_scc1 f_set2\ns_cmp_eq_u32 s3, 3\ns_cbranch_scc1 f_set3\nf_setr:')
    else:
        a('s_cmp_eq_u32 s3, 7\ns_cbranch_scc1 f_top\ns_cmp_le_u32 s3, 3\ns_cbranch_scc1 f_set\nf_setr:')
    a(f"""s_mov_b32 s32, s36
    s_mov_b32 s33, s37
    s_add_u32 s36, s36, {TSTR}
    s_addc_u32 s37, s37, 0
    s_add_u32 s3, s3, 1""")
    for hh in range(2):
        for s_ in range(2):
            a(f'v_add_u32_dpp v{va[hh*2+s_]}, v{off[s_]+hh}, v1 quad_perm:[0,0,0,0] {DPP}')
    if post:
        a(f"""s_cmp_lg_u32 s4, 0
        s_cbranch_scc1 gb1_w
        v_mov_b32 v59, s57
        s_lshl_b32 s66, s62, 3
        s_mov_b32 s65, 0
        s_mov_b64 exec, 1
        gb1_p:
        global_load_dword v58, v59, s[30:31] sc1
        s_add_u32 s65, s65, 1
        s_cmp_ge_u32 s65, 0x800000
        s_cbranch_scc1 gb1_pd
        s_waitcnt vmcnt(0)
        v_cmp_gt_u32 vcc, s66, v58
        s_cbranch_vccnz gb1_p
        gb1_pd:
        s_mov_b64 exec, -1
        gb1_w:
        s_barrier
        s_branch h_top""")
    else: gbarrier(a,'gb1',pf=pf,poll2=poll2)
    a('f_top:')
    a('''s_lshl_b32 s64, s2, 4
    s_add_u32 s64, s64, s4
    s_cmp_lg_u32 s64, 0xffc
    s_cbranch_scc1 h_nc
    v_mov_b32 v4, 0
    s_mov_b64 exec, 1
    global_store_dword v4, v4, s[28:29] sc1
    s_mov_b64 exec, -1
    h_nc:''')
    stamp('h')
    if stop=='hops': a('s_endpgm')
    a(f"""s_mov_b32 exec_lo, 0x01010101
    s_mov_b32 exec_hi, 0x01010101
    buffer_load_dword v117, v118, s[44:47], 0 offen
    buffer_load_dword v117, v8, s[96:99], 0 offen sc1
    buffer_load_dword v117, v8, s[32:35], 0 offen sc1
    buffer_load_dword v117, v119, s[44:47], 0 offen
    buffer_load_dword v117, v9, s[96:99], 0 offen sc1
    buffer_load_dword v117, v9, s[32:35], 0 offen sc1
    s_mov_b64 exec, -1
    s_mov_b32 s36, s26
    s_mov_b32 s37, s27
    s_mov_b32 s38, {N*128}
    s_mov_b32 s70, 0x000f000f
    s_mov_b32 s71, 0x000f000f
    v_mov_b32 v116, v{vAq}
    f_loop:""")
    vAq=116
    stamp('fl')
    order=[(0,T,s_) for T in range(4) for s_ in range(2)]+[(1,T,s_) for T in (0,2,3,1) for s_ in range(2)]
    def pk(op,d,x,y,z=None,bc=False,neg=False):
        m=' op_sel_hi:[1,0]' if bc and z is None else (' op_sel_hi:[1,0,0]' if bc else '')
        if neg: m+=' neg_lo:[0,0,1] neg_hi:[0,0,1]'
        a(f'v_pk_{op}_f32 v[{d}:{d+1}], v[{x}:{x+1}], v[{y}:{y+1}]'+(f', v[{z}:{z+1}]' if z is not None else '')+m)
    for pair in range(npairs):
        q_=[]
        ro=128*pair; no=64*pair
        def wait_for(names):
            idx=max(q_.index(n) for n in names if n in q_) if any(n in q_ for n in names) else -1
            if idx>=0:
                left=len(q_)-idx-1
                a(f's_waitcnt lgkmcnt({left})'); del q_[:idx+1]
        def issue(txt,name): a(txt); q_.append(name)
        u7=36+8*(pair>>1)
        if fprio: a(f's_setprio {fprio[0]}')
        a(f"""s_mov_b32 exec_lo, {0 if pair&1 else -1}
        s_mov_b32 exec_hi, {-1 if pair&1 else 0}
        ds_write_b128 v{vS}, v[{u7}:{u7+3}] offset:1760
        s_mov_b64 exec, -1""")
        issue(f'ds_read_b128 v[{WB[0]}:{WB[0]+3}], v{vW}','f0')
        issue(f'ds_read_b128 v[{WB[1]}:{WB[1]+3}], v{vW} offset:1024','f1')
        issue(f'ds_read_b128 v[{WB[2]}:{WB[2]+3}], v{vW} offset:2048','f2')
        if pair: a('s_waitcnt vmcnt(2)')
        issue(f'ds_read_b128 v[{TA}:{TA+3}], v{vA}','ta0')
        issue(f'ds_read_b128 v[{TQ}:{TQ+3}], v{vAq}','tq0')
        issue(f'ds_read_b128 v[{TA+4}:{TA+7}], v{vA} offset:64','ta1')
        issue(f'ds_read_b128 v[{TQ+4}:{TQ+7}], v{vAq} offset:64','tq1')
        issue(f'ds_read_b128 v[{TB[0]}:{TB[3]}], v{vA} offset:256','tb0')
        issue(f'ds_read_b128 v[{TB[4]}:{TB[7]}], v{vA} offset:320','tb1')
        Sm=TQ; RK=TQ+4
        def packV(T,tro):
            for X_,o in ((XA,0),(XB,256)):
                A=X_+4*T
                a(f'v_cvt_pk_bf16_f32 v{A+3}, v{A+2}, v{A+3}\nv_cvt_pk_bf16_f32 v{A+2}, v{A}, v{A+1}')
                issue(f'ds_read_b64_tr_b16 v[{A}:{A+1}], v{vTr} offset:{o+tro}',f'u{T}{o}')
        for n,(m,T,s_) in enumerate(order):
            b=WB[n%3]
            need=[f'f{n}']
            if n==0: need+=['ta0','tq0']
            if n==1: need+=['ta1','tq1']
            if n==8 and fprio: a(f's_setprio {fprio[3]}')
            wait_for(need)
            for X_,tk in ((XA,TA+4*s_),(XB,TQ+4*s_ if m==0 else TB[4*s_])):
                c=f'v[{X_+4*T}:{X_+4*T+3}]' if s_ else '0'
                if m==0: a(f'v_mfma_f32_16x16x32_bf16 v[{X_+4*T}:{X_+4*T+3}], v[{b}:{b+3}], v[{tk}:{tk+3}], {c}')
                else: a(f'v_mfma_f32_16x16x32_bf16 v[{X_+4*T}:{X_+4*T+3}], v[{tk}:{tk+3}], v[{b}:{b+3}], {c}')
            if n+3<16:
                m2,Tn,s2=order[n+3]
                issue(f'ds_read_b128 v[{b}:{b+3}], v{vW} offset:{8192*m2+2048*Tn+1024*s2}',f'f{n+3}')
            if n==5:
                for X_ in (XA,XB):
                    a(f'v_cvt_pk_bf16_f32 v{X_}, v{X_}, v{X_+1}\nv_cvt_pk_bf16_f32 v{X_+1}, v{X_+2}, v{X_+3}\nv_cvt_pk_bf16_f32 v{X_+2}, v{X_+4}, v{X_+5}\nv_cvt_pk_bf16_f32 v{X_+3}, v{X_+6}, v{X_+7}')
            if n==7:
                wait_for(['tb0','tb1'])
                a(f'v_mfma_f32_16x16x32_bf16 v[{XA+4}:{XA+7}], v[{TA}:{TA+3}], v[{XA}:{XA+3}], 0\nv_mfma_f32_16x16x32_bf16 v[{XB+4}:{XB+7}], v[{TB[0]}:{TB[3]}], v[{XB}:{XB+3}], 0')
                issue(f'ds_read_b128 v[{RK}:{RK+3}], v{vRk} offset:{ro}','rk')
                issue(f'ds_read_b32 v{cq}, v{vRq} offset:{ro}','rq')
                issue(f'ds_read_b32 v{dq}, v{vNd} offset:{no}','nd')
                a('s_nop 0')
                for X_ in (XA,XB):
                    A=X_+8
                    a(f'v_cvt_pk_bf16_f32 v{A}, v{A}, v{A+1}\nv_cvt_pk_bf16_f32 v{A+1}, v{A+2}, v{A+3}\nv_cvt_pk_bf16_f32 v{A+2}, v{A+4}, v{A+5}\nv_cvt_pk_bf16_f32 v{A+3}, v{A+6}, v{A+7}')
                a(f's_nop 0\nv_mfma_f32_16x16x32_bf16 v[{XA+4}:{XA+7}], v[{TA+4}:{TA+7}], v[{XA+8}:{XA+11}], v[{XA+4}:{XA+7}]\nv_mfma_f32_16x16x32_bf16 v[{XB+4}:{XB+7}], v[{TB[4]}:{TB[7]}], v[{XB+8}:{XB+11}], v[{XB+4}:{XB+7}]')
            if n==10:
                wait_for(['rk','rq','nd'])
                a(f's_mov_b64 exec, {mVA}')
                pk('mul',Sm,XA+4,RK); pk('mul',Sm+2,XA+6,RK+2)
                a(f's_mov_b64 exec, {mVB}')
                pk('mul',Sm,XB+4,RK); pk('mul',Sm+2,XB+6,RK+2)
                a(f's_mov_b64 exec, -1\nv_mul_f32 v{cq}, s74, v{cq}\nv_cndmask_b32 v{dq}, v{dq}, 1.0, {mH0}')
                a(f'v_max3_f32 v{t0_}, v{Sm}, v{Sm+1}, v{Sm+2}\nv_max_f32 v{t0_}, v{t0_}, v{Sm+3}\nv_mov_b32 v{t1_}, v{t0_}')
            if n==11:
                a(f'v_permlane16_swap_b32 v{t0_}, v{t1_}\nv_max_f32 v{t0_}, v{t0_}, v{t1_}\nv_mul_f32 v{t0_}, v{cq}, v{t0_}')
                pk('fma',Sm,Sm,cq,t0_,bc=True,neg=True); pk('fma',Sm+2,Sm+2,cq,t0_,bc=True,neg=True)
                for r in range(4): a(f'v_exp_f32 v{Sm+r}, v{Sm+r}')
            if n==12:
                a(f'v_add_f32 v{t0_}, v{Sm}, v{Sm+1}\nv_add_f32 v{t1_}, v{Sm+2}, v{Sm+3}\nv_add_f32 v{t0_}, v{t0_}, v{t1_}\nv_mov_b32 v{t1_}, v{t0_}')
                pk('mul',Sm,Sm,RK); pk('mul',Sm+2,Sm+2,RK+2)
            if n==13:
                a(f'v_permlane16_swap_b32 v{t0_}, v{t1_}\nv_add_f32 v{t0_}, v{t0_}, v{t1_}\nv_rcp_f32 v{t0_}, v{t0_}')
                packV(0,0)
                a(f'v_mul_f32 v{t0_}, v{dq}, v{t0_}')
                pk('mul',Sm,Sm,t0_,bc=True); pk('mul',Sm+2,Sm+2,t0_,bc=True)
            if n==14:
                a(f"""s_mov_b64 exec, {mVA}
                v_cvt_pk_bf16_f32 v{BA+2}, v{Sm}, v{Sm+1}
                v_cvt_pk_bf16_f32 v{BA+3}, v{Sm+2}, v{Sm+3}
                s_mov_b64 exec, {mVB}
                v_cvt_pk_bf16_f32 v{BB+2}, v{Sm}, v{Sm+1}
                v_cvt_pk_bf16_f32 v{BB+3}, v{Sm+2}, v{Sm+3}
                s_mov_b64 exec, -1""")
                packV(2,64)
        packV(3,72)
        issue(f'ds_read_b32 v{sv}, v{vNs} offset:{no+4}','ns')
        issue(f'ds_read_b32 v{vo}, v{vNo} offset:{no+8}','no')
        packV(1,8)
        if fprio: a(f's_setprio {fprio[1]}')
        for T in (0,2,3,1):
            wait_for([f'u{T}0'])
            a(f'v_mfma_f32_16x16x32_bf16 v[{Z+4*T}:{Z+4*T+3}], v[{XA+4*T}:{XA+4*T+3}], v[{BA}:{BA+3}], 0')
        for T in (0,2,3,1):
            wait_for([f'u{T}256'])
            a(f'v_mfma_f32_16x16x32_bf16 v[{XA+4*T}:{XA+4*T+3}], v[{XB+4*T}:{XB+4*T+3}], v[{BB}:{BB+3}], 0')
        a(f'v_cndmask_b32 v{sv}, v{sv}, 1.0, {mH0}\nv_add_u32 v{vo}, v{vo}, v{vOq}')
        for i in (0,1,4,5,6,7,2,3): a(f'v_cvt_pk_bf16_f32 v{TA+i}, v{Z+2*i}, v{Z+2*i+1}')
        issue(f'ds_write_b128 v{vA}, v[{TA}:{TA+3}]','w0'); issue(f'ds_write_b128 v{vA}, v[{TA+4}:{TA+7}] offset:64','w1')
        for i in (0,1,4,5,6,7,2,3): a(f'v_cvt_pk_bf16_f32 v{TB[i]}, v{XA+2*i}, v{XA+2*i+1}')
        issue(f'ds_write_b128 v{vAq}, v[{TB[0]}:{TB[3]}]','w2'); issue(f'ds_write_b128 v{vAq}, v[{TB[4]}:{TB[7]}] offset:64','w3')
        a(f"""v_mfma_f32_16x16x32_bf16 v[{XB}:{XB+3}], v[{ST[0]}:{ST[0]+3}], v[{TA}:{TA+3}], 0
        v_mfma_f32_16x16x32_bf16 v[{XB+4}:{XB+7}], v[{ST[0]}:{ST[0]+3}], v[{TB[0]}:{TB[3]}], 0
        v_mfma_f32_16x16x32_bf16 v[{XB}:{XB+3}], v[{ST[1]}:{ST[1]+3}], v[{TA+4}:{TA+7}], v[{XB}:{XB+3}]
        v_mfma_f32_16x16x32_bf16 v[{XB+4}:{XB+7}], v[{ST[1]}:{ST[1]+3}], v[{TB[4]}:{TB[7]}], v[{XB+4}:{XB+7}]""")
        for T in range(4):
            o=(0,8,64,72)[T]
            issue(f'ds_read_b64_tr_b16 v[{Z+4*T}:{Z+4*T+1}], v{vTr} offset:{o}',f'o{T}a')
            issue(f'ds_read_b64_tr_b16 v[{Z+4*T+2}:{Z+4*T+3}], v{vTr} offset:{256+o}',f'o{T}b')
        qa,qb,t2,t3=XB+12,XB+13,XB+14,XB+15
        if fprio: a(f's_setprio {fprio[2]}')
        for i in range(8):
            a(f'v_dot2_f32_bf16 v{qa}, v{TA+i}, v{TA+i}, {"0" if i==0 else f"v{qa}"}\nv_dot2_f32_bf16 v{qb}, v{TB[i]}, v{TB[i]}, {"0" if i==0 else f"v{qb}"}')
        a(f"""v_cndmask_b32 v{XB}, v{XB+4}, v{XB}, {mRH}
        v_cndmask_b32 v{XB+1}, v{XB+5}, v{XB+1}, {mRH}
        v_mul_f32 v{t2}, 0x3e000000, v{XB}
        v_permlane32_swap_b32 v{qa}, v{qb}
        v_add_f32 v{qa}, v{qa}, v{qb}
        v_mov_b32 v{qb}, v{qa}
        v_fma_f32 v{t3}, -v{XB}, s55, v{XB+1}
        v_mul_f32 v{XB}, 0x3e000000, v{sv}
        v_permlane16_swap_b32 v{qa}, v{qb}
        v_add_f32 v{qa}, v{qa}, v{qb}
        v_mul_f32 v{XB}, v{XB}, v{XB}
        v_fma_f32 v{qa}, -v{t2}, v{t2}, v{qa}
        v_max_f32 v{qa}, 0, v{qa}
        v_fmaak_f32 v{qa}, v{XB}, v{qa}, {EPS}
        v_rsq_f32 v{qa}, v{qa}
        v_mul_f32 v{t3}, v{sv}, v{t3}
        v_mul_f32 v{t3}, 0x3fb8aa3b, v{t3}
        v_mul_f32 v{qa}, v{qa}, v{t3}""")
        if pair<npairs-1: a(f's_mov_b64 exec, {mRA}\nv_add_u32 v{vA}, 0x200, v{vA}\nv_add_u32 v{vAq}, 0x200, v{vAq}\ns_mov_b64 exec, -1')
        else: a('s_nop 1')
        a(f"""v_max_f32_dpp v{qb}, v{qa}, v{qa} quad_perm:[1,0,3,2] {DPP}
        s_nop 1
        v_max_f32_dpp v{qb}, v{qb}, v{qb} quad_perm:[2,3,0,1] {DPP}
        s_nop 1
        v_max_f32_dpp v{qb}, v{qb}, v{qb} row_half_mirror {DPP}
        v_sub_f32 v{qa}, v{qa}, v{qb}
        v_exp_f32 v{qa}, v{qa}""")
        if pair<npairs-1: a(f's_mov_b64 exec, {mRT}\nv_add_u32 v{vTr}, 0x200, v{vTr}\ns_mov_b64 exec, -1')
        else: a('s_nop 1')
        a(f"""v_add_f32_dpp v{qb}, v{qa}, v{qa} quad_perm:[1,0,3,2] {DPP}
        s_nop 1
        v_add_f32_dpp v{qb}, v{qb}, v{qb} quad_perm:[2,3,0,1] {DPP}
        s_nop 1
        v_add_f32_dpp v{qb}, v{qb}, v{qb} row_half_mirror {DPP}
        v_rcp_f32 v{qb}, v{qb}
        v_mul_f32 v{qa}, v{sv}, v{qa}
        v_mul_f32 v{qa}, v{qa}, v{qb}
        ds_write_b32 v{vBw}, v{qa} offset:{ro}
        ds_read_b128 v[{XB}:{XB+3}], v{vBr} offset:{ro}
        s_waitcnt lgkmcnt(2)""")
        if pair==0: a('s_cmp_eq_u32 s4, 12\ns_cbranch_scc1 f_nd0')
        if pair<npairs-1: dma(pair+1)
        if pair==0: a('f_nd0:')
        if fprio: a(f's_setprio {fprio[4]}')
        a(f"""s_waitcnt lgkmcnt(0)
        s_mov_b64 exec, {mCA}
        v_cvt_pk_bf16_f32 v{BO}, v{XB}, v{XB+1}
        v_cvt_pk_bf16_f32 v{BO+1}, v{XB+2}, v{XB+3}
        s_mov_b64 exec, {mCB}
        v_cvt_pk_bf16_f32 v{BO+2}, v{XB}, v{XB+1}
        v_cvt_pk_bf16_f32 v{BO+3}, v{XB+2}, v{XB+3}
        s_mov_b64 exec, -1
        s_nop 0""")
        for T in range(4):
            a(f'v_mfma_f32_16x16x32_bf16 v[{XA+4*T}:{XA+4*T+3}], v[{Z+4*T}:{Z+4*T+3}], v[{BO}:{BO+3}], 0')
        a('s_nop 4')
        for i in range(8): a(f'v_cvt_pk_bf16_f32 v{XB+8+i}, v{XA+2*i}, v{XA+2*i+1}')
        a(f"""s_mov_b64 exec, s[70:71]
        buffer_store_dwordx4 v[{XB+8}:{XB+11}], v{vo}, s[36:39], 0 offen {OUTPOL}
        buffer_store_dwordx4 v[{XB+12}:{XB+15}], v{vo}, s[36:39], 0 offen offset:64 {OUTPOL}
        s_mov_b64 exec, -1""")
        if pair==0: a('s_cmp_eq_u32 s4, 12\ns_cbranch_scc1 f_done')
    a('f_done:')
    stamp('f')
    if side is not None:
        a('s_waitcnt vmcnt(0)')
        stamp('e')
        a('s_waitcnt lgkmcnt(0)')
        if side=='xcc':
            a('s_and_b32 s64, s2, 7\ns_cmp_lg_u32 s64, s7\ns_cselect_b32 s64, 5000, 0')
        elif side=='zero': a('s_mov_b32 s64, 0')
        elif side in ('min','minb'):
            a('v_mov_b32 v4, 0\nglobal_load_dword v5, v4, s[28:29] offset:8 sc1\ns_waitcnt vmcnt(0)\nv_readfirstlane_b32 s80, v5\ns_not_b32 s80, s80\ns_mov_b32 s64, 0')
            if side=='minb': a('s_sub_u32 s64, s82, s80\ns_lshl_b32 s64, s64, 2')
        else:
            a('s_sub_u32 s64, s82, s80\ns_lshl_b32 s64, s64, 2\ns_cmp_lg_u32 s2, 100\ns_cselect_b32 s64, 0, s64')
        a('s_min_u32 s64, s64, 40000\ns_add_u32 s64, s64, 15000\nsd_l:\ns_memrealtime s[66:67]\ns_waitcnt lgkmcnt(0)\ns_sub_u32 s66, s66, s80\ns_cmp_lt_u32 s66, s64\ns_cbranch_scc1 sd_l\ns_endpgm')
    if stamps:
        a('s_waitcnt vmcnt(0)')
        stamp('e')
        a(f's_waitcnt lgkmcnt(0)\ns_lshl_b32 s64, s2, 4\ns_add_u32 s64, s64, s4\ns_lshl_b32 s64, s64, 7\ns_add_u32 s64, s64, {DUMP}\nv_mov_b32 v4, s64\ns_mov_b64 exec, 1')
        if dbgst:
            a('v_mov_b32 v6, 0\ns_not_b32 s65, s80\nv_mov_b32 v5, s65\nglobal_atomic_umax v6, v5, s[28:29] offset:8 sc1')
            for i in range(len(stamps)): a(f'v_mov_b32 v5, s{80+2*i}\nglobal_atomic_umax v6, v5, s[28:29] offset:{12+4*i} sc1')
            a('s_or_b32 s65, s2, s4\ns_cbranch_scc1 k_nv\nv_mov_b32 v5, s94\nglobal_store_dword v6, v5, s[28:29] offset:4 sc1\nk_nv:')
        a('v_mov_b32 v5, s94\nglobal_store_dword v4, v5, s[30:31] offset:64')
        for i in range(len(stamps)): a(f'v_mov_b32 v5, s{80+2*i}\nglobal_store_dword v4, v5, s[30:31] offset:{4*i}')
    a('k_end:\ns_endpgm')
    for h in handlers:
        a(f'{h}:\ns_cmp_ge_u32 s78, {RB}\ns_cbranch_scc1 {h}_r\ns_add_u32 s78, s78, 1\ns_barrier\ns_add_u32 s77, s77, s52\ns_cbranch_scc0 {h}\ns_branch {h}_r')
    a('; nodes with more than 40 sources: remaining sources from the overflow lists')
    a(f"""h_slow:
    s_mov_b32 s64, {CAP}
    v_and_b32 v4, 3, v0
    v_lshlrev_b32 v4, 2, v4
    h_sl:""")
    for s_ in range(2):
        a(f"""v_add_u32 v5, s64, v4
        v_add_u32 v6, v5, v{122+s_}
        v_subrev_u32 v6, {CAP}, v6
        v_lshlrev_b32 v6, 2, v6
        v_sub_u32 v5, v{120+s_}, v5
        v_mov_b32 v7, {OOBV}
        buffer_load_dwordx4 v[68:71], v6, s[40:43], s59 offen
        s_waitcnt vmcnt(0)""")
        for r in range(4): a(f'v_cmp_lt_i32 vcc, {r}, v5\ns_nop 1\nv_cndmask_b32 v{68+r}, v7, v{68+r}, vcc')
        for hb in range(4):
            a('s_nop 1')
            for t in range(4):
                a(f'v_add_u32_dpp v7, v{68+t}, v1 quad_perm:[{hb},{hb},{hb},{hb}] {DPP}\nbuffer_load_dwordx4 v[{d0+4*t}:{d0+4*t+3}], v7, s[32:35], 0 offen sc1')
            a('s_waitcnt vmcnt(0)')
            for t in range(4): mf(s_,d0+4*t); a('s_nop 0')
    a('s_add_u32 s64, s64, 16\ns_cmp_lt_u32 s64, s53\ns_cbranch_scc1 h_sl\ns_branch h_slow_r')
    a(f"""k_hx:
    s_cmp_lg_u32 s4, 13
    s_cbranch_scc1 k_end
    v_lshlrev_b32 v2, 21, v7
    v_add_u32 v3, 0x1fff80, v2
    v_cmpx_gt_u32 vcc, {SMALL//(2*MB)}, v7
    global_load_dword v4, v3, s[30:31] sc1
    v_cmpx_gt_u32 vcc, 4, v7
    global_load_dword v4, v2, s[26:27] sc1
    s_endpgm""")
    vAq=125
    a('f_set:\ns_cmp_eq_u32 s3, 2\ns_cbranch_scc1 f_set2\ns_cmp_eq_u32 s3, 3\ns_cbranch_scc1 f_set3'); late(); late2(); a('s_branch f_setr1' if post else 's_branch f_setr')
    a('f_set2:'); fsetup(); a('s_branch f_setr')
    a('f_set3:'); fsetup2(); a('s_branch f_setr')
    a('h_def:'); deferred(); a('s_branch h_defr')
    for t in tails: t()
    t=a.text()
    import re
    def _d(m):
        b=Asm(); dup128(b,int(m.group(1)),int(m.group(2))); return b.text()
    t=re.sub(r'    DUPU0 (\d+) (\d+)\n',(lambda m: f'    v_mov_b32 v{m.group(1)}, 128\n') if OWN else _d,t)
    t=re.sub(r'    DUP128 (\d+) (\d+)\n',_d,t)
    t=t.replace('    OWNFIX\n','' if not OWN else '    v_lshrrev_b32 v63, 21, v66\n    v_bfe_u32 v63, s73, v63, 1\n    v_cmp_gt_u32 s[64:65], s38, v67\n    s_nop 1\n    v_cndmask_b32 v56, 0, 1, s[64:65]\n    v_bitop3_b32 v63, v63, v56, 1 bitop3:0x20\n    v_lshl_add_u32 v66, v63, 13, v66\n')
    hs=''
    if stamps and 'ha' in stamps:
        i=stamps.index('ha'); hs=f'    s_mov_b32 s79, s3\n    s_cmp_lg_u32 s3, {4 if post else 5}\n    s_cbranch_scc1 hs_ha\n    s_memrealtime s[{80+2*i}:{81+2*i}]\nhs_ha:\n    s_cmp_lg_u32 s4, 0\n'
    t=t.replace('    HSTAMP_HA\n',hs)
    return t

DOC='''; One persistent launch, one workgroup (196 destination nodes) per CU.
;  hops 1..7  u_k = dis^2 * sum u_(k-1)[src]: 128-byte row gathers, summed in fp32 by 4x4x4 MFMAs with an
;      identity operand; grid barrier (two-level counters in the workspace) between hops
; Half of the table rows are stored twice, once per 8-KB address half; a short latency probe tells which
; half is nearer to a die. Both copies hold the same bytes, the choice only affects speed.
'''
HDR=open('gather_scatter__hybrid_graph_tf_nagphormer__graph.s.ref').read().split('; Override launch')[0]
def wrap(body):
    return HDR+f'''; @launch grid=(256,1,1) block=(1024,1,1) lds={LDS_BYTES}
'''+DOC+f'''.amdgcn_target "amdgcn-amd-amdhsa--gfx950"
.text
.globl {KNAME}
.p2align 8
.type {KNAME},@function
{KNAME}:
'''+body+f'''.section .rodata,"a"
.p2align 6
.amdhsa_kernel {KNAME}
  .amdhsa_next_free_vgpr 128
  .amdhsa_next_free_sgpr 102
  .amdhsa_accum_offset 128
  .amdhsa_group_segment_fixed_size 0
  .amdhsa_kernarg_size 96
  .amdhsa_user_sgpr_count 2
  .amdhsa_user_sgpr_kernarg_segment_ptr 1
  .amdhsa_system_sgpr_workgroup_id_x 1
  .amdhsa_float_denorm_mode_32 3
.end_amdhsa_kernel
'''
if __name__=='__main__':
    import ast
    kw=dict(x.split('=') for x in sys.argv[2:])
    for k in kw:
        try: kw[k]=ast.literal_eval(kw[k])
        except Exception: pass
    if 'DUP' in kw: DUP=str(kw.pop('DUP'))
    if 'OWN' in kw: OWN=kw.pop('OWN')
    if 'stamps' in kw: kw['stamps']=kw['stamps'].split(',')
    open(sys.argv[1],'w').write(wrap(gen(**kw)))
```

```python
import sys
from lay import *
KNAME='gather_scatter__hybrid_graph_tf_nagphormer__graph_kernel'
class Asm:
    def __init__(s): s.l=[]; s.u=0
    def __call__(s,t):
        for x in t.strip('\n').split('\n'):
            x=x.strip()
            if x: s.l.append(x if x.endswith(':') else '    '+x)
    def lab(s,p='L'): s.u+=1; return f'{p}{s.u}'
    def text(s): return '\n'.join(s.l)+'\n'
DPP='row_mask:0xf bank_mask:0xf'
EPS='0x3727c5ac'

DUP='23'; OWN=False
def dup128(a,dst,n):
    if DUP=='23': a(f'v_and_b32 v{dst}, 128, v{n}')
    if DUP=='3': a(f'v_lshlrev_b32 v{dst}, 1, v{n}\nv_and_b32 v{dst}, v{dst}, v{n}\nv_and_b32 v{dst}, 128, v{dst}')
    if DUP=='none': a(f'v_mov_b32 v{dst}, 0')
    if DUP=='all': a(f'v_mov_b32 v{dst}, 128')
    if DUP=='123': a(f'v_lshlrev_b32 v{dst}, 1, v{n}\nv_or_b32 v{dst}, v{dst}, v{n}\nv_and_b32 v{dst}, 128, v{dst}')
def line_calc(a,dst,n,t,u):
    if DUP in ('all','123') or OWN:
        a(f"""v_lshrrev_b32 v{t}, 8, v{n}
        v_mul_u32_u24 v{u}, 547, v{t}
        v_and_b32 v{dst}, 0xffc0, v{n}
        v_lshrrev_b32 v{u}, 14, v{u}
        v_add_u32 v{dst}, v{dst}, v{n}
        v_lshl_add_u32 v{dst}, v{u}, 10, v{dst}""")
        if DUP=='123' and not OWN:
            a(f"""v_and_b32 v{u}, 0x1c0, v{n}
            v_cmp_eq_u32 vcc, 0x100, v{u}
            v_add_u32 v{t}, 64, v{dst}
            s_nop 0
            v_cndmask_b32 v{dst}, v{dst}, v{t}, vcc""")
        return
    a(f'''v_lshrrev_b32 v{t}, 8, v{n}
    v_mul_u32_u24 v{u}, 205, v{t}
    v_lshl_add_u32 v{dst}, v{t}, 7, v{n}
    v_lshrrev_b32 v{u}, 13, v{u}
    v_lshrrev_b32 v{t}, 1, v{n}
    v_lshl_add_u32 v{dst}, v{u}, 10, v{dst}
    v_bitop3_b32 v{t}, v{t}, v{n}, 64 bitop3:0x80
    v_add_u32 v{dst}, v{dst}, v{t}''')

def rho_calc(a,X,sm,sq,vs,sones):
    a(f'v_dot2_f32_bf16 v{sm}, v{X}, {sones}, 0\nv_dot2_f32_bf16 v{sq}, v{X}, v{X}, 0')
    for i in range(1,4):
        a(f'v_dot2_f32_bf16 v{sm}, v{X+i}, {sones}, v{sm}\nv_dot2_f32_bf16 v{sq}, v{X+i}, v{X+i}, v{sq}')
    a('s_nop 2')
    for m in ('quad_perm:[1,0,3,2]','quad_perm:[2,3,0,1]','row_half_mirror'):
        a(f'v_add_f32_dpp v{sm}, v{sm}, v{sm} {m} {DPP}\nv_add_f32_dpp v{sq}, v{sq}, v{sq} {m} {DPP}\ns_nop 0')
    a(f'''v_mul_f32 v{sm}, 0x3c800000, v{sm}
    v_mul_f32 v{sq}, 0x3c800000, v{sq}
    v_fma_f32 v{sq}, -v{sm}, v{sm}, v{sq}
    v_max_f32 v{sq}, 0, v{sq}''')
    if vs is not None: a(f'v_mul_f32 v{sq}, v{vs}, v{sq}\nv_mul_f32 v{sq}, v{vs}, v{sq}')
    a(f'v_add_f32 v{sq}, {EPS}, v{sq}\nv_rsq_f32 v{sm}, v{sq}\ns_nop 0')
    if vs is not None: a(f'v_mul_f32 v{sm}, v{vs}, v{sm}')

def baraddr(a,base):
    a(f'''s_and_b32 s64, s2, 7
    s_lshr_b32 s65, s64, 2
    s_xor_b32 s65, s65, s63
    s_lshl_b32 s65, s65, 13
    s_lshl_b32 s64, s64, 8
    s_add_u32 s64, s64, s65
    s_add_u32 s56, s64, {base}
    s_xor_b32 s65, s6, s63
    s_lshl_b32 s65, s65, 13
    s_and_b32 s64, s7, 7
    s_lshl_b32 s64, s64, 8
    s_add_u32 s64, s64, s65
    s_mov_b32 s75, {base+4096}
    s_add_u32 s57, s64, s75''')

def bar_l2(a,nm):
    a(f"""s_mov_b64 exec, 0xff
    v_mbcnt_lo_u32_b32 v58, -1, 0
    v_lshrrev_b32 v59, 2, v58
    v_xor_b32 v59, s63, v59
    v_lshlrev_b32 v59, 13, v59
    v_lshl_add_u32 v58, v58, 8, v59
    v_add_u32 v58, s75, v58
    v_mov_b32 v57, s65
    global_atomic_add v58, v57, s[30:31] sc1
    s_mov_b64 exec, 1
    {nm}_np:""")
def bar_poll(a,nm,votes=False):
    a(f"""s_mov_b32 s65, 0
    {nm}_p:
    global_load_dword v58, v56, s[30:31] sc1
    s_waitcnt vmcnt(0)""")
    if votes: a('v_and_b32 v59, 0xff, v58\nv_cmp_gt_u32 vcc, s64, v59')
    else: a('v_cmp_gt_u32 vcc, s64, v58')
    a(f"""s_cbranch_vccz {nm}_pd
    s_add_u32 s65, s65, 1
    s_cmp_lt_u32 s65, 0x800000
    s_cbranch_scc1 {nm}_p
    {nm}_pd:""")
def bar_arrive(a,nm):
    a(f"""v_mov_b32 v56, s56
    v_mov_b32 v57, 1
    global_atomic_add v58, v56, v57, s[30:31] sc0 sc1
    s_lshl_b32 s64, s62, 5
    s_sub_u32 s64, s64, 1
    v_mov_b32 v56, s57
    s_waitcnt vmcnt(0)
    v_readfirstlane_b32 s65, v58
    s_cmp_lg_u32 s65, s64
    s_cbranch_scc1 {nm}_np
    s_mov_b32 s65, 1""")
    bar_l2(a,nm)

def gbarrier(a,nm,pf=None,poll2=0):
    a(f"""s_add_u32 s62, s62, 1
    v_mov_b32 v56, s56
    v_mov_b32 v57, 1
    v_mov_b32 v59, s57
    s_lshl_b32 s64, s62, 5
    s_sub_u32 s64, s64, 1
    s_lshl_b32 s66, s62, 3
    s_mov_b32 s65, 0
    s_cmp_lg_u32 s4, 0
    s_waitcnt vmcnt(0)
    HSTAMP_HA
    s_barrier
    s_cbranch_scc1 {nm}_f
    s_mov_b64 exec, 1
    global_atomic_add v58, v56, v57, s[30:31] sc0 sc1
    s_waitcnt vmcnt(0)
    v_cmp_ne_u32 vcc, s64, v58
    s_cbranch_vccnz {nm}_p
    s_mov_b64 exec, 0xff
    global_atomic_add v124, v57, s[30:31] sc1
    s_mov_b64 exec, 1""")
    if poll2:
        a(f"""{nm}_p:
        global_load_dword v58, v59, s[30:31] sc1
        s_sleep {poll2}
        {nm}_q:
        global_load_dword v60, v59, s[30:31] sc1
        s_waitcnt vmcnt(1)
        v_cmp_gt_u32 vcc, s66, v58
        s_cbranch_vccz {nm}_pd
        global_load_dword v58, v59, s[30:31] sc1
        s_waitcnt vmcnt(1)
        v_cmp_gt_u32 vcc, s66, v60
        s_cbranch_vccz {nm}_pd
        s_add_u32 s65, s65, 1
        s_cmp_lt_u32 s65, 0x800000
        s_cbranch_scc1 {nm}_q""")
    else:
        a(f"""{nm}_p:
        global_load_dword v58, v59, s[30:31] sc1
        s_add_u32 s65, s65, 1
        s_cmp_ge_u32 s65, 0x800000
        s_cbranch_scc1 {nm}_pd
        s_waitcnt vmcnt(0)
        v_cmp_gt_u32 vcc, s66, v58
        s_cbranch_vccnz {nm}_p""")
    a(f'{nm}_pd:\ns_mov_b64 exec, -1\ns_barrier')
    if poll2: a('s_waitcnt vmcnt(0)')
    a(f's_branch h_top\n{nm}_f:')
    if pf:
        n0,n1,sl=pf
        def ex(lo,hi):
            m=((1<<(16*hi))-1)^((1<<(16*lo))-1)
            a(f's_mov_b32 exec_lo, {m&0xffffffff:#x}\ns_mov_b32 exec_hi, {m>>32:#x}')
        if n0: ex(0,n0); a('buffer_load_dword v127, v126, s[32:35], 0 offen sc1')
        if n1>n0:
            if sl: a(f's_sleep {sl}')
            ex(n0,n1); a('buffer_load_dword v127, v126, s[32:35], 0 offen sc1')
        a('s_mov_b64 exec, -1')
    a('s_barrier\ns_branch h_top')

def probe(a,nm,voff,res):
    a(f'v_add_u32 v{voff+1}, 0x2000, v{voff}\nv_mov_b32 v{voff+2}, 0\ns_mov_b32 s66, -1\ns_mov_b32 s67, -1\ns_mov_b32 s72, 0\n{nm}:')
    for s in range(2):
        a(f'''s_memtime s[68:69]
        s_waitcnt lgkmcnt(0)
        global_atomic_add v{voff+3}, v{voff+s}, v{voff+2}, s[30:31] sc0 sc1
        s_waitcnt vmcnt(0)
        s_memtime s[70:71]
        s_waitcnt lgkmcnt(0)
        s_sub_u32 s70, s70, s68
        s_min_u32 s{66+s}, s{66+s}, s70''')
    a(f's_add_u32 s72, s72, 1\ns_cmp_lt_u32 s72, 3\ns_cbranch_scc1 {nm}')
    a(f's_cmp_gt_u32 s66, s67\ns_cselect_b32 s{res}, 1, 0\ns_xor_b32 s{res}, s{res}, s6')

def gen(hprio=None,tlb0=False,post=True,eprio=False,ilv=False,late7=False,OUTPOL='sc1',u0pf=False,poll2=0,side=None,xh=0,ent='nt',xnt='',fprio=(0,1,0,2,0),dbgst=False,K=8,R=12,RB=8,pf=(1,1,0),pdrain=True,stop=None,dump=False,stamps=False,npairs=4,stag=8,nprobe=2,xpos=2,xpf=0,pa=0):
    a=Asm()
    if RB is None: RB=R-1
    def stamp(nm):
        if stamps and nm in stamps:
            i=stamps.index(nm); a(f's_memrealtime s[{80+2*i}:{81+2*i}]')
        if stamps and nm+'c' in stamps:
            i=stamps.index(nm+'c'); a(f's_memtime s[{80+2*i}:{81+2*i}]')
    def hstamp(nm):
        if stamps and nm in stamps:
            l=a.lab('hs'); i=stamps.index(nm)
            a(f's_cmp_lg_u32 s3, 4\ns_cbranch_scc1 {l}\ns_memrealtime s[{80+2*i}:{81+2*i}]\n{l}:')
    a(f"""s_cmp_ge_u32 s2, 256
    s_cbranch_scc1 k_end
    s_load_dwordx16 s[8:23], s[0:1], 0
    s_load_dwordx8 s[24:31], s[0:1], 64
    v_lshrrev_b32 v1, 6, v0
    s_and_b32 s5, s2, 7
    v_readfirstlane_b32 s4, v1
    s_lshl_b32 s5, s5, 5
    s_lshr_b32 s3, s2, 3
    s_add_u32 s5, s5, s3
    s_mov_b32 s62, 0
    s_mul_i32 s54, s5, {BS}
    v_lshlrev_b32 v10, 4, v0""")
    stamp('s')
    def wsinit():
        a(f"""s_add_u32 s30, s30, 0x1fffff
        s_addc_u32 s31, s31, 0
        s_and_b32 s30, s30, 0xffe00000
        s_mov_b32 s36, s30
        s_mov_b32 s37, s31
        s_mov_b32 s38, {TBYTES}
        s_mov_b32 s39, 0x20000
        s_add_u32 s40, s30, {SMALL}
        s_addc_u32 s41, s31, 0
        s_mov_b32 s42, {SMALL_BYTES}
        s_mov_b32 s43, 0x20000
        s_getreg_b32 s7, hwreg(HW_REG_XCC_ID, 0, 4)
        s_lshr_b32 s6, s7, 2
        s_mov_b64 s[56:57], 0
        s_mov_b32 s44, s8
        s_mov_b32 s45, s9
        s_mov_b32 s46, {N*128}
        s_mov_b32 s47, 0x20000
        s_add_u32 s96, s30, {5*TSTR}
        s_addc_u32 s97, s31, 0
        s_mov_b32 s98, {TBYTES}
        s_mov_b32 s99, 0x20000
        s_mov_b32 s60, 0
        s_mov_b32 s93, 0
        s_and_b32 s6, s6, 1""")
    def ldsinit(z):
        for k in range(4): a(f'v_mov_b32 v{z+k}, 0\nv_mov_b32 v{z+4+k}, {OOBV}')
        o=f'v[{z+4}:{z+7}]'; zz=f'v[{z}:{z+3}]'
        a(f"""ds_write_b128 v10, {o} offset:{L_LIST}
        v_add_u32 v1, 13312, v10
        ds_write_b128 v1, {o} offset:{L_LIST}
        v_add_u32 v1, 26624, v10
        s_movk_i32 s64, 416
        v_cmpx_gt_u32 vcc, s64, v0
        ds_write_b128 v1, {o} offset:{L_LIST}
        ds_write_b128 v10, {zz} offset:{L_CNT}
        s_movk_i32 s64, 208
        v_cmpx_gt_u32 vcc, s64, v0
        ds_write_b128 v10, v[{z+2}:{z+5}] offset:{L_INFO}
        s_movk_i32 s64, 84
        v_cmpx_gt_u32 vcc, s64, v0
        ds_write_b128 v10, {zz} offset:{L_HIST}
        s_mov_b64 exec, -1""")
    a(f"""s_cmp_ge_u32 s4, 13
    s_cbranch_scc1 p1_help
    v_lshrrev_b32 v2, 3, v0
    v_add_u32 v3, s54, v2
    v_add_u32 v4, 104, v3
    v_and_b32 v5, 7, v0
    v_lshlrev_b32 v5, 4, v5
    v_lshl_add_u32 v6, v3, 7, v5
    v_lshl_add_u32 v7, v4, 7, v5
    v_lshlrev_b32 v8, 1, v3
    v_lshlrev_b32 v9, 1, v4
    s_mul_i32 s55, s2, {CHE*4}
    v_add_u32 v11, s55, v10
    s_add_u32 s55, s55, {CHUNK}
    s_mov_b32 s64, {N}
    v_cmp_gt_u32 s[48:49], s64, v3
    v_cmp_gt_u32 s[50:51], s64, v4
    s_movk_i32 s64, 736
    v_cmp_gt_u32 vcc, s64, v0
    s_and_b64 s[50:51], s[50:51], vcc
    s_movk_i32 s64, 800
    v_cmp_gt_u32 s[52:53], s64, v0
    s_cmp_ge_u32 s2, {NCH}
    s_cselect_b64 s[52:53], 0, s[52:53]
    s_waitcnt lgkmcnt(0)""")
    a(f"""s_mov_b64 exec, s[52:53]
    s_cbranch_execz p1_ne
    global_load_dwordx4 v[12:15], v11, s[12:13] {ent}
    global_load_dwordx4 v[16:19], v11, s[10:11] {ent}
    p1_ne:
""")
    XL=f"""    s_mov_b64 exec, s[48:49]
    s_cbranch_execz p1_nxa
    global_load_dwordx4 v[20:23], v6, s[8:9] {xnt}
    global_load_ushort v28, v8, s[14:15]
    p1_nxa:
    s_mov_b64 exec, s[50:51]
    s_cbranch_execz p1_nxb
    global_load_dwordx4 v[24:27], v7, s[8:9] {xnt}
    global_load_ushort v29, v9, s[14:15]
    p1_nxb:
    s_mov_b64 exec, -1"""
    if xpos==0: a(XL)
    else: a('s_mov_b64 exec, -1')
    wsinit()
    a('; workgroup 255 clears the barrier counters and announces that through d_debug[0]')
    a(f"""s_lshl_b32 s64, s2, 4
    s_add_u32 s64, s64, s4
    s_cmp_lg_u32 s64, {255*16}
    s_cbranch_scc1 p1_nz
    v_and_b32 v40, 15, v0
    v_lshrrev_b32 v41, 4, v0
    v_lshlrev_b32 v40, 8, v40
    v_and_b32 v42, 1, v41
    v_lshrrev_b32 v41, 1, v41
    v_lshl_add_u32 v40, v42, 12, v40
    v_lshl_add_u32 v40, v41, 13, v40
    v_add_u32 v40, {BARP}, v40
    v_mov_b32 v41, 0
    global_store_dword v40, v41, s[30:31] sc1
    v_add_u32 v40, 0x4000, v40
    global_store_dword v40, v41, s[30:31] sc1
    v_add_u32 v40, 0x4000, v40
    global_store_dword v40, v41, s[30:31] sc1
    s_waitcnt vmcnt(0)
    s_mov_b64 exec, 1
    v_mov_b32 v40, 0
    v_mov_b32 v41, 1
    global_store_dword v40, v41, s[28:29] sc1
    s_mov_b64 exec, -1
    p1_nz:""")
    ldsinit(32)
    for n,d in ((3,76),(4,78)):
        line_calc(a,d,n,64,65)
        a(f"""v_lshl_add_u32 v{d}, v{d}, 7, v5
        v_cndmask_b32 v{d}, v36, v{d}, s[{48 if n==3 else 50}:{49 if n==3 else 51}]
        DUPU0 64 {n}
        v_cmp_ne_u32 vcc, 0, v64
        v_add_u32 v{d+1}, 0x2000, v{d}
        v_cndmask_b32 v{d+1}, v36, v{d+1}, vcc""".replace('v_add_u32 v{0}'.format(d+1),'s_nop 0\nv_add_u32 v{0}'.format(d+1)))
    a('s_waitcnt lgkmcnt(0)\ns_barrier')
    stamp('B1')
    if xpos==1: a(XL)
    a(f"""s_mov_b64 exec, s[52:53]
    s_cbranch_execz p1_e1
    s_movk_i32 s64, -{BS}
    v_mov_b32 v33, 1
""")
    if xpos<2: a('s_cmp_lt_u32 s4, 12\ns_cbranch_scc1 p1_w4\ns_waitcnt vmcnt(2)\np1_w4:\ns_waitcnt vmcnt(4)')
    else: a('s_waitcnt vmcnt(0)')
    stamp('ed')
    for i in range(4):
        d=12+i; b=40+i
        a(f"""v_mul_u32_u24 v30, 85599, v{d}
        v_lshrrev_b32 v{52+i}, 24, v30
        v_lshlrev_b32 v{b}, 2, v{52+i}
        ds_add_rtn_u32 v{48+i}, v{b}, v33 offset:{L_HIST}""")
    a('p1_e1:')
    if xpos==2: a(XL)
    a('s_mov_b64 exec, -1\ns_waitcnt lgkmcnt(0)\ns_barrier')
    stamp('B2')
    a(f"""s_cmp_lg_u32 s4, 0
    s_cbranch_scc1 p1_ns
    ds_read_b128 v[72:75], v10 offset:{L_HIST}
    s_waitcnt lgkmcnt(0)
    v_add_u32 v57, v72, v73
    v_add_u32 v58, v57, v74
    v_add_u32 v59, v58, v75
    v_mov_b32 v60, v59
    s_nop 1""")
    for m in ('row_shr:1','row_shr:2','row_shr:4','row_shr:8'):
        a(f'v_add_u32_dpp v60, v60, v60 {m} {DPP} bound_ctrl:0\ns_nop 1')
    a(f"""v_add_u32_dpp v60, v60, v60 row_bcast:15 row_mask:0xa bank_mask:0xf
    s_nop 1
    v_add_u32_dpp v60, v60, v60 row_bcast:31 row_mask:0xc bank_mask:0xf
    v_sub_u32 v60, v60, v59
    v_add_u32 v61, v60, v72
    v_add_u32 v62, v60, v57
    v_add_u32 v63, v60, v58
    ds_write_b128 v10, v[60:63] offset:{L_HIST}
    v_lshl_or_b32 v56, v72, 16, v60
    v_lshl_or_b32 v57, v73, 16, v61
    v_lshl_or_b32 v58, v74, 16, v62
    v_lshl_or_b32 v59, v75, 16, v63
    s_cmp_ge_u32 s2, {NCH}
    s_cbranch_scc1 p1_ns
    s_lshl_b32 s65, s2, 10
    s_add_u32 s65, s65, {OFFS}
    buffer_store_dwordx4 v[56:59], v10, s[40:43], s65 offen sc1
    p1_ns:""")
    for i in range(4):
        d=12+i; s_=16+i; b=52+i; e=44+i
        a(f"""v_mul_u32_u24 v31, 10700, v{s_}
        v_lshrrev_b32 v30, 5, v{b}
        v_lshrrev_b32 v31, 26, v31
        v_mad_i32_i24 v{d}, v{b}, s64, v{d}
""")
        if ilv: a(f'v_xor_b32 v31, v31, v30\nv_lshrrev_b32 v30, 2, v31\nv_lshl_or_b32 v31, v31, 1, v30\nv_and_b32 v31, 7, v31')
        else: a(f'v_sub_u32 v31, v31, v30\nv_and_b32 v31, 7, v31')
        a(f'v_lshl_add_u32 v{d}, v{d}, 3, v31')
        line_calc(a,e,s_,30,31)
        a(f"""v_bfe_u32 v30, v{s_}, 7, 1
        v_lshl_or_b32 v30, v{d}, 2, v30
        v_lshl_or_b32 v{e}, v{e}, 15, v30""")
    a('s_waitcnt lgkmcnt(0)\ns_barrier')
    stamp('B3')
    a('s_mov_b64 exec, s[52:53]')
    for i in range(4): a(f'ds_read_b32 v{40+i}, v{40+i} offset:{L_HIST}')
    for i in range(4):
        a(f's_waitcnt lgkmcnt(3)\nv_add_lshl_u32 v{40+i}, v{40+i}, v{48+i}, 2')
        a(f'ds_write_b32 v{40+i}, v{44+i} offset:{L_ESTG}')
    a('s_mov_b64 exec, -1\ns_waitcnt lgkmcnt(0)\ns_barrier')
    stamp('B4')
    a(f"""s_mov_b64 exec, s[52:53]
    s_cbranch_execz p1_e3
    ds_read_b128 v[40:43], v10 offset:{L_ESTG}
    s_waitcnt lgkmcnt(0)
    buffer_store_dwordx4 v[40:43], v10, s[40:43], s55 offen sc1
    p1_e3:
    s_mov_b64 exec, -1""")
    if xpos==3:
        a(XL)
        a('s_cmp_lt_u32 s4, 12\ns_cbranch_scc1 p1_w4\ns_waitcnt vmcnt(2)\np1_w4:\ns_waitcnt vmcnt(4)')
    else: a('s_waitcnt vmcnt(0)')
    stamp('pa')
    a('s_barrier')
    stamp('aa')
    a('s_mov_b32 s66, 0x3f803f80\ns_waitcnt vmcnt(0)')
    for (X,D,n,m,off) in ((20,28,3,48,0),(24,29,4,50,832)):
        l=a.lab('xc')
        a(f's_mov_b64 exec, s[{m}:{m+1}]\ns_cbranch_execz {l}')
        a(f'v_lshlrev_b32 v{D}, 16, v{D}')
        for i in range(4):
            a(f"""v_lshlrev_b32 v64, 16, v{X+i}
            v_and_b32 v65, 0xffff0000, v{X+i}
            v_mul_f32 v64, v{D}, v64
            v_mul_f32 v65, v{D}, v65
            v_cvt_pk_bf16_f32 v{(68 if off==0 else 72)+i}, v64, v65""")
        ad=76 if off==0 else 78
        o=68 if off==0 else 72
        a(f"""buffer_store_dwordx4 v[{o}:{o+3}], v{ad}, s[36:39], 0 offen sc1
        buffer_store_dwordx4 v[{o}:{o+3}], v{ad+1}, s[36:39], 0 offen sc1
        {l}:""")
    for (X,D,n,m,off) in ((20,28,3,48,0),(24,29,4,50,832)):
        l=a.lab('xr')
        a(f's_mov_b64 exec, s[{m}:{m+1}]\ns_cbranch_execz {l}')
        rho_calc(a,X,64,65,None,'s66')
        a(f"""v_mov_b32 v65, v{D}
        v_lshlrev_b32 v66, 3, v2
        ds_write_b64 v66, v[64:65] offset:{L_R0+off}
        {l}:""")
    a('s_mov_b64 exec, -1\ns_branch p1_done')
    def P1D():
        a(f"""v_lshrrev_b32 v2, 2, v0
        v_and_b32 v3, 3, v0
        v_lshlrev_b32 v70, 10, v2
        s_lshl_b32 s92, s5, 2
        s_add_u32 s92, s92, {OFFS}
        s_movk_i32 s65, {NCH}
        v_cmp_gt_u32 s[48:49], s65, v2
        v_mov_b32 v72, {OOBV}
        v_and_b32 v73, 63, v0
        v_lshlrev_b32 v8, 2, v73
        v_cndmask_b32 v70, v72, v70, s[48:49]
        v_mul_u32_u24 v71, {CHE*4}, v2
        v_lshl_add_u32 v71, v3, 4, v71
        v_add_u32 v71, {CHUNK}, v71
        v_lshlrev_b32 v3, 2, v3
        v_mov_b32 v69, 4
        v_mov_b32 v21, 1""")
    a(f"""p1_help:
    v_and_b32 v2, 63, v0
    v_and_b32 v3, 15, v0
    v_bfe_u32 v4, v0, 4, 2
    v_lshrrev_b32 v5, 2, v3
    v_and_b32 v6, 3, v0
    v_lshl_add_u32 v5, v5, 3, v6
    v_lshlrev_b32 v5, 7, v5
    v_lshl_add_u32 v5, v4, 4, v5
    v_add_u32 v7, 0x1000, v5
    s_waitcnt lgkmcnt(0)
    s_cmp_eq_u32 s4, 15
    s_cbranch_scc1 p1_probe
    s_barrier
    s_cmp_eq_u32 s4, 14
    s_cselect_b32 s64, s16, s20
    s_cselect_b32 s65, s17, s21""")
    WA=12; WBx=44; WD=[76,92,108,44]
    for t in range(4):
        for s_ in range(2):
            r=WA+8*t+4*s_
            a(f'global_load_dwordx4 v[{r}:{r+3}], v{5 if t<2 else 7}, s[64:65] offset:{512*(t&1)+64*s_}')
    a('s_cbranch_scc0 p1_wo')
    for t in range(4):
        for s_ in range(2):
            r=WBx+8*t+4*s_
            a(f'global_load_dwordx4 v[{r}:{r+3}], v{5 if t<2 else 7}, s[18:19] offset:{512*(t&1)+64*s_}')
    wsinit()
    XP=f"""v_add_u32 v8, s54, v2
    v_lshlrev_b32 v9, 7, v8
    s_mov_b32 s44, s8
    s_mov_b32 s45, s9
    s_mov_b32 s46, {N*128}
    s_mov_b32 s47, 0x20000
    s_movk_i32 s64, 0x2000
    s_movk_i32 s65, 0x4000
    buffer_load_dword v126, v9, s[44:47], 0 offen {xnt}
    buffer_load_dword v126, v9, s[44:47], s64 offen {xnt}
    buffer_load_dword v126, v9, s[44:47], s65 offen {xnt}
    s_movk_i32 s64, 0x6000
    s_mov_b64 exec, 15
    buffer_load_dword v126, v9, s[44:47], s64 offen {xnt}
    v_lshlrev_b32 v9, 7, v2
    s_lshl_b32 s64, s54, 1
    s_mov_b32 s44, s14
    s_mov_b32 s45, s15
    s_mov_b32 s46, {N*2}
    buffer_load_dword v126, v9, s[44:47], s64 offen {xnt}
    s_mov_b64 exec, -1"""
    if xpf==1: a(XP)
    a('s_barrier')
    if xpf==2: a(XP)
    a(f's_barrier\ns_barrier\ns_barrier\ns_waitcnt vmcnt({5 if xpf else 0})')
    a('s_branch p1_wm\np1_wo:\nv_lshlrev_b32 v8, 4, v2\nv_add_u32 v9, 0x1000, v8')
    for k in range(8):
        a(f'global_load_dwordx4 v[{76+4*k}:{79+4*k}], v{8 if k<4 else 9}, s[22:23] offset:{1024*(k&3)}')
    wsinit()
    a(f"""v_add_u32 v8, {L_WP}, v8
    v_bfe_u32 v9, v0, 2, 2
    v_lshl_add_u32 v9, v4, 3, v9
    v_lshlrev_b32 v9, 7, v9
    v_lshl_add_u32 v9, v6, 4, v9
    v_add_u32 v9, {L_WP}, v9
    s_barrier""")
    a('s_barrier\ns_barrier\ns_barrier\ns_waitcnt vmcnt(0)')
    for k in range(8): a(f'ds_write_b128 v8, v[{76+4*k}:{79+4*k}] offset:{1024*k}')
    a('s_waitcnt lgkmcnt(0)')
    for T in range(4):
        for s_ in range(2):
            for hf in range(2):
                r=WBx+8*T+4*s_+2*hf
                a(f'ds_read_b64_tr_b16 v[{r}:{r+1}], v9 offset:{4096*s_+512*hf+64*(T>>1)+8*(T&1)}')
        if T==2: a('s_waitcnt lgkmcnt(8)')
    a('s_waitcnt lgkmcnt(0)\np1_wm:')
    for T in range(4):
        for s_ in range(2):
            for t in range(4):
                d=WD[T]+4*t
                a(f'v_mfma_f32_16x16x32_bf16 v[{d}:{d+3}], v[{WA+8*t+4*s_}:{WA+8*t+4*s_+3}], v[{WBx+8*T+4*s_}:{WBx+8*T+4*s_+3}], '+(f'v[{d}:{d+3}]' if s_ else '0'))
    a('s_nop 7')
    for T in range(4):
        d=WD[T]
        a(f'v_pk_add_f32 v[{20+2*T}:{21+2*T}], v[{d}:{d+1}], v[{d+2}:{d+3}]')
    for k in range(2,8):
        for T in range(4):
            d=WD[T]; a(f'v_pk_add_f32 v[{20+2*T}:{21+2*T}], v[{20+2*T}:{21+2*T}], v[{d+2*k}:{d+2*k+1}]')
    for T in range(4): a(f'v_add_f32 v{12+T}, v{20+2*T}, v{21+2*T}')
    for sw in ('v_permlane16_swap_b32','v_permlane32_swap_b32'):
        for T in range(4): a(f'v_mov_b32 v{16+T}, v{12+T}')
        a('s_nop 1')
        for T in range(4): a(f'{sw} v{12+T}, v{16+T}')
        for T in range(4): a(f'v_add_f32 v{12+T}, v{12+T}, v{16+T}')
    for T in range(4): a(f'v_mul_f32 v{20+2*T}, 0xbc800000, v{12+T}')
    a('s_cmp_eq_u32 s4, 14\ns_cbranch_scc0 p1_wc')
    for k in range(8):
        a(f'v_pk_add_f32 v[{28+2*k}:{29+2*k}], v[{WD[0]+2*k}:{WD[0]+2*k+1}], v[{WD[1]+2*k}:{WD[1]+2*k+1}]')
    for T in (2,3):
        for k in range(8): a(f'v_pk_add_f32 v[{28+2*k}:{29+2*k}], v[{28+2*k}:{29+2*k}], v[{WD[T]+2*k}:{WD[T]+2*k+1}]')
    a('v_add_f32 v12, v20, v22\nv_add_f32 v13, v24, v26\nv_add_f32 v12, v12, v13\ns_nop 1')
    for m in ('quad_perm:[1,0,3,2]','quad_perm:[2,3,0,1]','row_half_mirror','row_mirror'):
        a(f'v_add_f32_dpp v12, v12, v12 {m} {DPP}')
        for k in range(16): a(f'v_add_f32_dpp v{28+k}, v{28+k}, v{28+k} {m} {DPP}')
    a('v_mul_f32 v12, 0xbc800000, v12\nv_mov_b32 v14, 0xbc800000')
    for T in range(4): a(f'v_add_f32 v{20+2*T}, v{20+2*T}, v12')
    for T in range(4):
        for k in range(8):
            d=WD[T]+2*k
            a(f'v_pk_fma_f32 v[{d}:{d+1}], v[{28+2*k}:{29+2*k}], v[14:15], v[{d}:{d+1}] op_sel_hi:[1,0,1]')
    a(f"""p1_wc:
    s_sub_u32 s64, 14, s4
    s_lshl_b32 s64, s64, 13
    s_add_u32 s64, s64, {L_W}
    v_lshlrev_b32 v8, 4, v2
    v_add_u32 v8, s64, v8""")
    for T in range(4):
        for k in range(8):
            d=WD[T]+2*k
            a(f'v_pk_add_f32 v[{d}:{d+1}], v[{d}:{d+1}], v[{20+2*T}:{21+2*T}] op_sel_hi:[1,0]')
        for s_ in range(2):
            d=WD[T]+8*s_
            for k in range(4): a(f'v_cvt_pk_bf16_f32 v{d+k}, v{d+2*k}, v{d+2*k+1}')
            a(f'ds_write_b128 v8, v[{d}:{d+3}] offset:{2048*T+1024*s_}')
    a('s_branch p1_done')
    a('p1_probe:')
    wsinit()
    a(f"""s_and_b32 s64, s2, 3
    s_and_b32 s74, s2, 1
    s_lshl_b32 s64, s64, 21
    s_lshr_b32 s65, s2, 2
    s_lshl_b32 s65, s65, 7
    s_add_u32 s64, s64, s65
    s_add_u32 s64, s64, {254*8192}
    v_mov_b32 v40, s64
    v_add_u32 v41, 0x2000, v40
    v_mov_b32 v42, 0
    v_mov_b32 v76, -1
    v_mov_b32 v77, -1
    v_mov_b32 v78, -1
    v_mov_b32 v79, -1
    v_cmp_gt_u32 vcc, 7, v2
    v_add_u32 v45, {SMALL//(2*MB)-7}, v2
    v_cmp_eq_u32 s[66:67], 7, v2
    v_cndmask_b32 v45, v45, v2, vcc
    v_cmp_eq_u32 vcc, 10, v2
    v_mov_b32 v46, 0x1fff80
    v_cndmask_b32 v46, v46, 0, s[66:67]
    v_cndmask_b32 v45, v45, {BARP//(2*MB)}, vcc
    v_lshl_add_u32 v45, v45, 21, v46
    TLB0
    s_mov_b64 exec, 1
    global_atomic_add v43, v40, v42, s[30:31] sc0 sc1
    global_atomic_add v44, v41, v42, s[30:31] sc0 sc1
    s_mov_b32 s63, 0
    s_mov_b32 s62, 1""")
    baraddr(a,BARP+16384)
    def rounds(nm,n):
        a(f"""s_mov_b32 s72, 0
        {nm}:
        global_atomic_add v43, v40, v42, s[30:31] sc0 sc1
        global_atomic_add v44, v41, v42, s[30:31] sc0 sc1
        s_waitcnt vmcnt(1)
        s_memtime s[68:69]
        s_waitcnt vmcnt(0)
        s_memtime s[70:71]
        v_swap_b32 v40, v41
        s_waitcnt lgkmcnt(0)
        s_sub_u32 s66, s70, s68
        s_sub_u32 s67, s66, s67
        s_add_u32 s72, s72, 1
        s_cmp_lt_u32 s72, {n}
        s_cbranch_scc1 {nm}""")
    a("""s_barrier
    s_barrier
    s_barrier
    global_load_dword v58, v42, s[28:29] sc1
    s_barrier
    s_mov_b32 s67, 0
    s_waitcnt vmcnt(0)""")
    if pa: rounds('p1_pl',pa)
    a(f"""s_mov_b32 s64, 0
    s_barrier
    gb0_i:
    v_readfirstlane_b32 s65, v58
    s_cmp_lg_u32 s65, 0
    s_cbranch_scc1 gb0_id
    s_sleep 2
    global_load_dword v58, v42, s[28:29] sc1
    s_add_u32 s64, s64, 1
    s_cmp_lt_u32 s64, 0x400000
    s_waitcnt vmcnt(0)
    s_cbranch_scc1 gb0_i
    gb0_id:""")
    bar_arrive(a,'gb0')
    rounds('p1_pm',nprobe-pa)
    a(f"""s_cmp_gt_i32 s67, 0
    s_cselect_b32 s65, 1, 0
    s_xor_b32 s65, s65, s6
    s_xor_b32 s65, s65, s74
    s_lshl_b32 s65, s65, 8
    s_or_b32 s93, s65, 1""")
    baraddr(a,BARP+32768)
    a('s_mov_b64 exec, -1')
    P1D()
    a('s_mov_b64 exec, 1\ns_mov_b32 s64, 8')
    bar_poll(a,'gb0')
    a('s_mov_b64 exec, -1\ns_branch p1_d9')
    a('p1_done:')
    P1D()
    a('p1_d9:\ns_waitcnt vmcnt(0) lgkmcnt(0)')
    stamp('p1')
    a('s_barrier')
    stamp('b0')
    if stop=='p1': a('s_endpgm')
    a('; P2: gather this bucket from all chunks, sort by node and source range')
    a(f"""buffer_load_dword v5, v70, s[40:43], s92 offen sc1
    s_cmp_lg_u32 s4, 15
    s_cbranch_scc1 p2_na
    s_mov_b64 exec, 1
    v_mov_b32 v57, s93
    v_mov_b32 v56, s56
    global_atomic_add v58, v56, v57, s[30:31] sc0 sc1
    s_mov_b64 exec, -1
    p2_na:
    s_waitcnt vmcnt(0)
    v_and_b32 v9, 0xffff, v5
    v_lshrrev_b32 v11, 16, v5
    v_lshl_add_u32 v4, v9, 2, v71
    v_cndmask_b32 v4, v72, v4, s[48:49]
    buffer_load_dwordx4 v[12:15], v4, s[40:43], 0 offen sc1
    buffer_load_dwordx4 v[16:19], v4, s[40:43], 0 offen offset:64 sc1
    v_sub_u32 v20, v11, v3
    v_mov_b32 v6, v72
    v_mov_b32 v7, v73
    s_cmp_lg_u32 s4, 15
    s_cbranch_scc1 p2_nw
    s_mov_b64 exec, 1
    v_add_u32 v57, v57, v58
    v_mov_b32 v56, s57
    v_readfirstlane_b32 s65, v57
    s_and_b32 s64, s65, 0xff
    s_cmp_lg_u32 s64, 32
    s_cbranch_scc1 gbb_np
    s_sub_u32 s65, s65, 31""")
    bar_l2(a,'gbb')
    a('s_mov_b64 exec, -1\np2_nw:')
    if u0pf:
        a('s_cmp_ge_u32 s4, 13\ns_cbranch_scc1 p2_np\ns_mov_b32 exec_lo, 0x01010101\ns_mov_b32 exec_hi, 0x01010101')
        for r in (76,77,78,79): a(f'buffer_load_dword v127, v{r}, s[36:39], 0 offen sc1')
        a('s_mov_b64 exec, -1\ns_waitcnt vmcnt(4)\ns_branch p2_np2\np2_np:\ns_waitcnt vmcnt(0)\np2_np2:')
    def each_entry(body,regs,base):
        for r,e in enumerate(regs):
            a(f'v_cmpx_lt_i32 vcc, {base[r]}, v20')
            body(e)
        a('s_mov_b64 exec, -1')
    regs=list(range(12,20)); base=[0,1,2,3,16,17,18,19]
    def pass1(regs):
        for k,e in enumerate(regs): a(f'v_and_b32 v{80+k}, 0x1ffc, v{e}')
        ad={e:80+k for k,e in enumerate(regs)}
        each_entry(lambda e: a(f'ds_add_u32 v{ad[e]}, v21 offset:{L_CNT}'),regs,base)
    if not u0pf: a('s_waitcnt vmcnt(0)')
    stamp('sg')
    pass1(regs)
    def longseg(nm,whole):
        a(f"""v_cmp_lt_i32 vcc, 32, v20
        s_cbranch_vccnz {nm}
        {nm}_d:""")
        def tail():
            a(f"""{nm}:
            v_mov_b32 v23, v20
            v_mov_b32 v24, v4
            {nm}_l:
            v_subrev_u32 v20, 32, v20
            v_add_u32 v24, 128, v24
            v_cmp_lt_i32 vcc, 0, v20
            s_cbranch_vccz {nm}_r
            buffer_load_dwordx4 v[28:31], v24, s[40:43], 0 offen sc1
            buffer_load_dwordx4 v[32:35], v24, s[40:43], 0 offen offset:64 sc1
            s_waitcnt vmcnt(0)""")
            whole(list(range(28,36)))
            a(f"""s_branch {nm}_l
            {nm}_r:
            v_mov_b32 v20, v23""")
            for k,e in enumerate(regs): a(f'v_and_b32 v{80+k}, 0x1ffc, v{e}')
            a(f's_branch {nm}_d')
        tails.append(tail)
    tails=[]
    longseg('ls1',pass1)
    a('s_waitcnt lgkmcnt(0)\ns_barrier')
    stamp('c1')
    a(f"""s_cmp_ge_u32 s4, 4
    s_cbranch_scc1 p2_n1
    v_add_u32 v36, s54, v0
    s_mov_b32 s64, {N}
    v_cmp_gt_u32 vcc, s64, v36
    s_movk_i32 s64, {BS}
    v_cmp_gt_u32 s[64:65], s64, v0
    s_and_b64 s[66:67], vcc, s[64:65]
    s_mov_b64 exec, s[66:67]
    v_lshlrev_b32 v37, 5, v0
    v_lshlrev_b32 v38, 3, v0
    ds_read_b128 v[40:43], v37 offset:{L_CNT}
    ds_read_b128 v[44:47], v37 offset:{L_CNT+16}
    ds_read_b64 v[58:59], v38 offset:{L_R0}""")
    line_calc(a,66,36,62,63)
    a(f"""v_lshlrev_b32 v66, 7, v66
    DUP128 62 36
    v_add_u32 v67, 0x2000, v66
    v_cmp_ne_u32 vcc, 0, v62
    v_mov_b32 v48, 0
    s_waitcnt lgkmcnt(1)
    v_cndmask_b32 v67, v6, v67, vcc
    v_mov_b32 v49, v40
    v_add_u32 v50, v49, v41
    v_add_u32 v51, v50, v42
    v_add_u32 v52, v51, v43
    v_add_u32 v53, v52, v44
    v_add_u32 v54, v53, v45
    v_add_u32 v55, v54, v46
    v_add_u32 v65, v55, v47
    v_min_u32 v57, 63, v65
    v_sub_u32 v57, 63, v57
    v_lshlrev_b32 v57, 2, v57
    ds_add_rtn_u32 v60, v57, v21 offset:{L_DH}
    s_mov_b64 exec, -1
    p2_n1:""")
    def offs(regs):
        for e in regs:
            a(f"""v_lshrrev_b32 v26, 29, v{e}
            v_lshrrev_b32 v27, 8, v{e}
            v_bfe_u32 v26, s58, v26, 1
            v_and_b32 v27, 0xffffff80, v27
            v_and_b32 v26, v26, v{e}
            v_lshl_add_u32 v{e}, v26, 13, v27""")
    a('s_cmp_lg_u32 s4, 15\ns_cbranch_scc1 p2_nq\ns_mov_b64 exec, 1\nv_mov_b32 v56, s57\ns_mov_b32 s64, 8')
    bar_poll(a,'gbb',votes=True)
    a(f"""v_mov_b32 v62, {L_RED}
    ds_write_b32 v62, v58 offset:8
    s_mov_b64 exec, -1
    p2_nq:
    v_mov_b32 v62, {L_RED}
    s_waitcnt lgkmcnt(0)
    s_barrier
    ds_read_b32 v63, v62 offset:8
    ds_read_b32 v61, v8 offset:{L_DH}
    s_waitcnt lgkmcnt(0)
    v_readfirstlane_b32 s60, v63
    s_cmp_ge_u32 s60, 0x8000
    s_cselect_b32 s61, 1, 0
    s_xor_b32 s58, s61, s6
    s_lshr_b32 s58, 0xaa, s58
    s_cmp_ge_u32 s4, 4
    s_cbranch_scc1 p2_n2
    v_mov_b32 v62, v61
    s_nop 1""")
    for m in ('row_shr:1','row_shr:2','row_shr:4','row_shr:8'):
        a(f'v_add_u32_dpp v62, v62, v62 {m} {DPP} bound_ctrl:0\ns_nop 1')
    a(f"""v_add_u32_dpp v62, v62, v62 row_bcast:15 row_mask:0xa bank_mask:0xf
    s_nop 1
    v_add_u32_dpp v62, v62, v62 row_bcast:31 row_mask:0xc bank_mask:0xf
    v_sub_u32 v62, v62, v61
    ds_bpermute_b32 v62, v57, v62
    s_mov_b64 exec, s[66:67]
    v_or_b32 v64, v59, v0
    s_waitcnt lgkmcnt(0)
    v_add_u32 v60, v60, v62
    v_mul_u32_u24 v61, {0x400000+160}, v60""")
    for j in range(8): a(f'v_lshl_add_u32 v{48+j}, v{48+j}, 2, v61')
    a(f"""ds_write_b128 v37, v[48:51] offset:{L_CNT}
    ds_write_b128 v37, v[52:55] offset:{L_CNT+16}
    v_lshlrev_b32 v62, 4, v60
    ds_write_b128 v62, v[64:67] offset:{L_INFO}
    v_lshlrev_b32 v62, 5, v60
    v_add_u32 v62, {L_RHO-65024}, v62
    ds_write_b32 v62, v58 offset:65024
    v_cmp_lt_u32 vcc, {CAP}, v65
    s_and_b64 exec, exec, vcc
    s_cbranch_execz p2_n3
    v_subrev_u32 v56, {CAP}, v65
    v_mov_b32 v62, {L_RED}
    ds_add_rtn_u32 v63, v62, v56
    v_lshlrev_b32 v62, 2, v60
    s_waitcnt lgkmcnt(0)
    ds_write_b32 v62, v63 offset:{L_INF2}
    s_branch p2_n3
    p2_n2:""")
    offs(regs)
    a('p2_n3:\ns_mov_b64 exec, -1')
    a('s_waitcnt lgkmcnt(0)\ns_barrier')
    stamp('nd')
    def pass2(regs,slow):
        cur={e:40+k for k,e in enumerate(regs)}; ad={e:80+k for k,e in enumerate(regs)}
        each_entry(lambda e: a(f'ds_add_rtn_u32 v{cur[e]}, v{ad[e]}, v69 offset:{L_CNT}'),regs,base)
        if not slow:
            a(f"""v_mov_b32 v62, {L_RED}
            ds_read_b32 v63, v62
            s_cmp_ge_u32 s4, 4
            s_cbranch_scc1 p2_o2""")
            offs(regs)
            a(f"""p2_o2:
            s_movk_i32 s64, 160
            s_mov_b32 s65, 0x3fffff
            s_waitcnt lgkmcnt(0)
            v_readfirstlane_b32 s59, v63
            s_cmp_lg_u32 s59, 0
            s_cbranch_scc1 p2_ovf""")
            for e in regs:
                a(f'v_and_b32 v{cur[e]}, s65, v{cur[e]}')
            each_entry(lambda e: a(f'ds_write_b32 v{cur[e]}, v{e} offset:{L_LIST}'),regs,base)
        else:
            a('s_waitcnt lgkmcnt(0)')
            slow2(regs)
    def slow2(regs):
        cur={e:40+k for k,e in enumerate(regs)}
        for r,e in enumerate(regs):
            l=a.lab('ov')
            a(f"""v_cmp_lt_i32 s[70:71], {base[r]}, v20
            v_lshrrev_b32 v26, 22, v{cur[e]}
            v_and_b32 v22, s65, v{cur[e]}
            v_mul_u32_u24 v25, s64, v26
            v_sub_u32 v25, v22, v25
            v_lshrrev_b32 v25, 2, v25
            v_cmp_gt_u32 vcc, {CAP}, v25
            s_and_b64 exec, s[70:71], vcc
            ds_write_b32 v22, v{e} offset:{L_LIST}
            s_andn2_b64 exec, s[70:71], vcc
            s_cbranch_execz {l}
            v_lshlrev_b32 v26, 2, v26
            ds_read_b32 v26, v26 offset:{L_INF2}
            v_subrev_u32 v25, {CAP}, v25
            s_waitcnt lgkmcnt(0)
            v_add_lshl_u32 v25, v25, v26, 2
            buffer_store_dword v{e}, v25, s[40:43], s59 offen
            {l}:
            s_mov_b64 exec, -1""")
    pass2(regs,False)
    a('p2_ovd:')
    def long2(regs):
        for k,e in enumerate(regs): a(f'v_and_b32 v{80+k}, 0x1ffc, v{e}')
        offs(regs); pass2(regs,True)
    longseg('ls2',long2)
    def ovf_tail():
        a(f"""p2_ovf:
        v_cmp_eq_u32 vcc, 0, v3
        s_mov_b64 exec, vcc
        ds_add_u32 v62, v9 offset:4
        s_mov_b64 exec, -1
        s_waitcnt lgkmcnt(0)
        s_barrier
        ds_read_b32 v63, v62 offset:4
        s_waitcnt lgkmcnt(0)
        v_readfirstlane_b32 s59, v63
        s_lshl_b32 s59, s59, 2
        s_add_u32 s59, s59, {OVF}""")
        slow2(regs)
        a('s_branch p2_ovd')
    tails.append(ovf_tail)
    a('s_waitcnt vmcnt(0) lgkmcnt(0)\ns_barrier')
    stamp('c2')
    a('s_cmp_ge_u32 s4, 13\ns_cbranch_scc1 k_end')
    a(f"""v_mov_b32 v0, v7
    v_lshrrev_b32 v115, 3, v0
    s_lshl_b32 s64, s4, 4
    v_add_u32 v115, s64, v115
    v_and_b32 v114, 3, v0
    v_mul_u32_u24 v6, 160, v115
    v_lshl_add_u32 v7, v114, 3, v6
    v_lshl_add_u32 v6, v114, 4, v6
    ds_read_b128 v[16:19], v6 offset:{L_LIST}
    ds_read_b128 v[26:29], v6 offset:{L_LIST+1280}
    v_lshlrev_b32 v116, 4, v115
    v_and_b32 v1, 7, v0
    v_lshlrev_b32 v1, 4, v1""")
    for s in range(2):
        o=16+10*s
        a(f"""ds_read_b128 v[{100+4*s}:{103+4*s}], v116 offset:{L_INFO+128*s}
        ds_read_b128 v[{o+4}:{o+7}], v6 offset:{L_LIST+1280*s+64}
        ds_read_b64 v[{o+8}:{o+9}], v7 offset:{L_LIST+1280*s+128}""")
    a(f"""s_mov_b32 s32, s36
    s_mov_b32 s33, s37
    s_mov_b32 s34, s38
    s_mov_b32 s35, 0x20000
    s_mov_b32 s3, 1
    v_mov_b32 v126, -1
    s_waitcnt lgkmcnt(6)""")
    stamp('p2')
    def deferred():
        a(f"""v_lshlrev_b32 v116, 2, v115
        ds_read_b32 v122, v116 offset:{L_INF2}
        ds_read_b32 v123, v116 offset:{L_INF2+32}
        v_mov_b32 v6, 0x3f80
        v_mov_b32 v7, 0x3f800000
        v_cmp_eq_u32 s[70:71], 0, v114
        v_cmp_eq_u32 s[64:65], 1, v114
        v_cmp_eq_u32 s[66:67], 2, v114
        v_cmp_eq_u32 s[68:69], 3, v114
        v_cndmask_b32 v2, 0, v6, s[70:71]
        v_cndmask_b32 v3, 0, v6, s[66:67]
        v_cndmask_b32 v2, v2, v7, s[64:65]
        v_cndmask_b32 v3, v3, v7, s[68:69]
        s_movk_i32 s64, {BS}
        v_cmp_gt_u32 s[48:49], s64, v115
        s_movk_i32 s64, {BS-8}
        v_cmp_gt_u32 s[50:51], s64, v115
        v_lshlrev_b32 v116, 7, v115
        v_lshlrev_b32 v117, 5, v115
        v_add_u32 v117, {L_RHO}, v117
        s_waitcnt lgkmcnt(0)
        v_max_u32 v4, v101, v105
        v_mov_b32 v120, v101
        v_mov_b32 v121, v105
        v_max_u32_dpp v4, v4, v4 row_shr:8 {DPP} bound_ctrl:0
        s_nop 1
        v_max_u32_dpp v4, v4, v4 row_bcast:15 row_mask:0xa bank_mask:0xf
        s_nop 1
        v_max_u32_dpp v4, v4, v4 row_bcast:31 row_mask:0xc bank_mask:0xf
        s_nop 1
        v_readlane_b32 s53, v4, 63""")
        for s in range(2):
            i=100+4*s
            a(f"""v_add_u32 v{8+s}, v{i+2}, v1
            v_add_u32 v{10+s}, v{i+3}, v1
            v_and_b32 v4, 0xffff0000, v{i}
            v_mul_f32 v{12+s}, v4, v4
            v_cmp_eq_f32 s[64:65], 0, v4
            v_and_b32 v5, 0xffff, v{i}
            v_add_u32 v5, s54, v5
            v_cndmask_b32 v{124+s}, v4, 1.0, s[64:65]
            v_lshl_add_u32 v{118+s}, v5, 7, v1
            v_cmp_gt_u32 s[64:65], s38, v{i+2}
            v_rcp_f32 v{14+s}, v{124+s}
            s_nop 0
            v_cndmask_b32 v{118+s}, v{i+2}, v{118+s}, s[64:65]""")
        a(f"""s_max_u32 s52, s53, {K//2}
        s_min_u32 s52, s52, {CAP}
        s_add_u32 s36, s36, {TSTR}
        s_addc_u32 s37, s37, 0
        s_mov_b32 s76, 0x3f803f80
        v_lshrrev_b32 v4, 4, v0
        v_lshlrev_b32 v4, 4, v4
        global_load_dwordx4 v[84:87], v4, s[24:25]
        global_load_dwordx4 v[88:91], v4, s[24:25] offset:64""")
    def late():
        a(f"""s_mul_i32 s95, s4, {STG}
        s_add_u32 s95, s95, {L_STAGE}
        s_xor_b32 s63, s61, 1
        s_mov_b32 s62, 0""")
        a('s_cmp_lg_u32 s4, 0\ns_cbranch_scc1 f_nb')
        baraddr(a,BARP)
        if stamps: a('s_mov_b32 s94, s60')
        a('f_nb:')
        if stag>=4: a(f'v_mov_b32 v4, {L_END}\nv_mov_b32 v5, 0\nds_write_b32 v4, v5')
        if pf:
            a(f"""v_lshrrev_b32 v4, 4, v0
            v_lshl_add_u32 v4, v4, 5, s5
            v_and_b32 v4, 0xff, v4
            v_mul_u32_u24 v4, {BS}, v4
            v_and_b32 v5, 15, v0
            s_lshl_b32 s64, s4, 4
            s_sub_u32 s64, s64, 16
            v_add3_u32 v4, v4, v5, s64""")
            line_calc(a,126,4,5,6)
            a(f"""v_lshrrev_b32 v5, 14, v126
            v_bfe_u32 v5, s58, v5, 1""")
            if not OWN: a('DUP128 6 4\nv_lshrrev_b32 v6, 7, v6\nv_and_b32 v5, v5, v6')
            a(f"""
            v_lshl_add_u32 v126, v5, 6, v126
            v_lshlrev_b32 v126, 7, v126""")
    def late2():
        for s_ in range(2):
            a(f"""s_mov_b64 exec, s[{48+2*s_}:{49+2*s_}]
            v_lshrrev_b32 v4, 3, v116
            v_add_u32 v4, {L_ND+128*s_}, v4
            v_mov_b32 v52, v{124+s_}
            v_mov_b32 v53, v{14+s_}
            v_sub_u32 v54, v{118+s_}, v1
            v_mov_b32 v55, 0
            ds_write_b128 v4, v[52:55]""")
        a(f"""s_mov_b64 exec, -1
        v_lshrrev_b32 v4, 2, v0
        v_xor_b32 v4, s63, v4
        v_and_b32 v4, 1, v4
        v_lshlrev_b32 v4, 13, v4
        v_lshl_add_u32 v4, v0, 8, v4
        v_add_u32 v124, {BARP+4096}, v4""")
    if dump:
        deferred()
        a(f's_lshl_b32 s64, s2, 4\ns_add_u32 s64, s64, s4\ns_mul_i32 s64, s64, {40*256}\ns_add_u32 s64, s64, {DUMP}\nv_lshlrev_b32 v4, 2, v0\nv_add_u32 v4, s64, v4')
        for i,r in enumerate(list(range(8,36))+list(range(118,126))):
            a(f'global_store_dword v4, v{r}, s[30:31]\nv_add_u32 v4, 256, v4')
        a('v_mov_b32 v5, s53\nglobal_store_dword v4, v5, s[30:31]\nv_add_u32 v4, 256, v4\nv_mov_b32 v5, s60\nglobal_store_dword v4, v5, s[30:31]\nv_add_u32 v4, 256, v4\nds_read_b32 v5, v117\ns_waitcnt lgkmcnt(0)\nglobal_store_dword v4, v5, s[30:31]')
    if stop=='p2': a('s_endpgm')
    if hprio:
        a(f's_setprio {hprio[2]}\ns_cmp_ge_u32 s4, 8\ns_cbranch_scc1 h_pr\ns_setprio {hprio[1]}\ns_cmp_ge_u32 s4, 4\ns_cbranch_scc1 h_pr\ns_setprio {hprio[0]}\nh_pr:')
    for k,(r,o) in enumerate(((4,16),(5,26),(6,17),(7,27))): a(f'v_add_u32_dpp v{r}, v{o}, v1 quad_perm:[0,0,0,0] {DPP}')
    if side in ('min','minb'):
        a('s_waitcnt lgkmcnt(0)\ns_cmp_lg_u32 s4, 0\ns_cbranch_scc1 sd_n\ns_not_b32 s64, s80\nv_mov_b32 v4, 0\nv_mov_b32 v5, s64\ns_mov_b64 exec, 1\nglobal_atomic_umax v4, v5, s[28:29] offset:8 sc1\ns_mov_b64 exec, -1\nsd_n:')
    a('h_top:')
    XA=52; XB=68; TA=120; TB=[40,41,42,43,48,49,50,51]; TQ=10; WB=[18,22,26]; Z=10; ST=[84,88]; BA=92; BB=96; BO=100
    vW,vOq,vA,vTr,vRk,vRq,vNd,vNs,vBw,vBr,vNo,vS=range(104,116); vAq=114+11
    mRA,mRT,mVA,mVB,mH0,mRH,mCA,mCB='s[10:11]','s[12:13]','s[14:15]','s[16:17]','s[18:19]','s[20:21]','s[22:23]','s[8:9]'
    t0_,t1_,cq,dq=2,3,4,5; sv=6; vo=7
    def tokaddr(dst,n,h,ch,t1,t2,mask):
        a(f"""v_lshlrev_b32 v{t1}, 4, v{ch}
        v_lshl_add_u32 v{t1}, v{n}, 7, v{t1}
        v_and_b32 v{t2}, 3, v{h}
        v_lshl_add_u32 v{t1}, v{t2}, 6, v{t1}
        v_lshrrev_b32 v{t2}, 2, v{h}
        v_lshl_add_u32 v{t1}, v{t2}, 5, v{t1}
        v_subrev_u32 v{t2}, 1, v{h}
        v_cmp_gt_u32 {mask}, 4, v{t2}
        v_mul_u32_u24 v{t2}, {PL2}, v{t2}
        v_add3_u32 v{t2}, v{t2}, v{t1}, s64
        v_subrev_u32 v{dst}, 4, v{h}
        v_max_i32 v{dst}, 0, v{dst}
        v_lshl_add_u32 v{dst}, v{dst}, 9, v{t1}
        v_add_u32 v{dst}, s95, v{dst}
        v_cndmask_b32 v{dst}, v{dst}, v{t2}, {mask}""")
    J,Q,C3,Q16,H,NN,QH,T1,T2,T3,T4,T5=4,5,6,7,56,57,58,59,60,61,62,63
    def fsetup():
        a(f"""v_and_b32 v{J}, 15, v0
        v_lshrrev_b32 v{Q}, 4, v0
        v_lshlrev_b32 v{Q16}, 4, v{Q}
        s_lshl_b32 s64, s4, 11
        v_and_b32 v{H}, 7, v0
        v_lshrrev_b32 v{NN}, 3, v{J}
        v_bfe_u32 v{T1}, v0, 3, 2
        v_lshl_add_u32 v{T1}, v{T1}, 7, v1
        v_add_u32 v{vS}, s95, v{T1}""")
        tokaddr(vA,NN,H,Q,T1,T2,mRA)
        a(f"""v_lshrrev_b32 v{QH}, 1, v{Q}
        v_and_b32 v{T3}, 1, v{Q}
        v_bfe_u32 v{T4}, v0, 2, 2
        v_lshl_add_u32 v{T3}, v{T3}, 2, v{T4}
        v_and_b32 v{C3}, 3, v0
        v_lshlrev_b32 v{T4}, 8, v{NN}
        v_sub_u32 v{vAq}, v{vA}, v{T4}
        v_add_u32 v{vAq}, 0x180, v{vAq}""")
        tokaddr(vTr,QH,T3,C3,T1,T2,mRT)
        a(f"""v_cmp_eq_u32 {mVA}, v{QH}, v{NN}
        v_cmp_ne_u32 {mVB}, v{QH}, v{NN}
        v_cmp_eq_u32 {mH0}, 0, v{H}
        v_cmp_gt_u32 {mRH}, 2, v{Q}
        v_cmp_gt_u32 s[66:67], 2, v{J}
        s_lshl_b32 s64, s4, 9
        s_add_u32 s64, s64, {L_RHO}
        s_lshl_b32 s65, s4, 8
        s_add_u32 s65, s65, {L_ND}
        v_lshlrev_b32 v{T1}, 2, v{J}
        v_xor_b32 v{T2}, 0x60, v{T1}
        v_add_u32 v{T4}, 64, v{Q16}
        v_cndmask_b32 v{vRk}, v{T4}, v{Q16}, {mVA}
        v_cndmask_b32 v{vRq}, v{T2}, v{T1}, {mVA}
        v_cndmask_b32 v{vBw}, v{T2}, v{T1}, {mRH}
        v_cndmask_b32 v{vBr}, v{T4}, v{Q16}, s[66:67]
        v_lshlrev_b32 v{T1}, 4, v{NN}
        v_xor_b32 v{T2}, 0x30, v{T1}
        v_cndmask_b32 v{vNd}, v{T2}, v{T1}, {mVA}
        v_cndmask_b32 v{vNs}, v{T2}, v{T1}, {mRH}
        v_lshlrev_b32 v{vNo}, 4, v{C3}""")
        for r in (vRk,vRq,vBw,vBr): a(f'v_add_u32 v{r}, s64, v{r}')
        for r in (vNd,vNs,vNo): a(f'v_add_u32 v{r}, s65, v{r}')
    def fsetup2():
        a(f"""v_and_b32 v{J}, 15, v0
        v_lshrrev_b32 v{Q}, 4, v0
        v_lshlrev_b32 v{Q16}, 4, v{Q}
        v_lshrrev_b32 v{QH}, 1, v{Q}
        v_and_b32 v{C3}, 3, v0
        v_lshlrev_b32 v{T1}, 2, v{Q}
        v_sub_u32 v{T2}, v{J}, v{T1}
        v_xor_b32 v{T3}, 8, v{J}
        v_sub_u32 v{T3}, v{T3}, v{T1}
        v_mov_b32 v{T4}, 0x3f80
        v_mov_b32 v{T5}, 0x3f800000""")
        for B_,d in ((BA,T2),(BB,T3)):
            for hf in range(2):
                a(f"""v_cmp_eq_u32 s[66:67], {2*hf}, v{d}
                v_cmp_eq_u32 s[68:69], {2*hf+1}, v{d}
                v_mov_b32 v{B_+2+hf}, 0
                v_cndmask_b32 v{B_+hf}, 0, v{T4}, s[66:67]
                v_cndmask_b32 v{B_+hf}, v{B_+hf}, v{T5}, s[68:69]""")
        for i in range(4): a(f'v_mov_b32 v{BO+i}, 0')
        a(f"""v_cmp_eq_u32 {mCA}, v{J}, v{QH}
        v_add_u32 v{QH}, 2, v{QH}
        v_cmp_eq_u32 {mCB}, v{J}, v{QH}
        v_mov_b32 v{vOq}, v{Q16}
        v_lshlrev_b32 v{vW}, 4, v0
        v_add_u32 v{vW}, {L_W}, v{vW}
        v_cmp_eq_u32 s[66:67], 0, v{C3}
        v_cmp_eq_u32 s[68:69], 1, v{C3}
        v_mov_b32 v{T1}, s76
        v_dot2_f32_bf16 v{T3}, v{ST[0]}, s76, 0""")
        for r in [ST[0]+1,ST[0]+2,ST[0]+3,ST[1],ST[1]+1,ST[1]+2,ST[1]+3]: a(f'v_dot2_f32_bf16 v{T3}, v{r}, s76, v{T3}')
        for b in ST:
            for i in range(4): a(f'v_cndmask_b32 v{b+i}, 0, v{b+i}, s[68:69]\nv_cndmask_b32 v{b+i}, v{b+i}, v{T1}, s[66:67]')
        a(f"""v_readlane_b32 s64, v{T3}, 0
        v_readlane_b32 s65, v{T3}, 16
        v_readlane_b32 s66, v{T3}, 32
        v_readlane_b32 s67, v{T3}, 48
        v_mov_b32 v{T1}, s64
        v_add_f32 v{T1}, s65, v{T1}
        v_add_f32 v{T1}, s66, v{T1}
        v_add_f32 v{T1}, s67, v{T1}
        v_mul_f32 v{T1}, 0x3c800000, v{T1}
        s_mov_b32 s74, 0x3e38aa3b
        v_readfirstlane_b32 s55, v{T1}""")
    acc=[36,44]; d0=52; off=[16,26]; va=[4,5,6,7]
    def mf(s_,sl):
        a(f'v_mfma_f32_4x4x4_16b_bf16 v[{acc[s_]}:{acc[s_]+3}], v[2:3], v[{sl}:{sl+1}], v[{acc[s_]}:{acc[s_]+3}]')
        a(f'v_mfma_f32_4x4x4_16b_bf16 v[{acc[s_]+4}:{acc[s_]+7}], v[2:3], v[{sl+2}:{sl+3}], v[{acc[s_]+4}:{acc[s_]+7}]')
    def dma(pair):
        sl=pair>>1; hf=pair&1
        a(f's_mov_b32 exec_lo, {0 if hf else -1}\ns_mov_b32 exec_hi, {-1 if hf else 0}')
        for (srd,v,o) in ((44,118+sl,0),(96,8+sl,608),(32,8+sl,1184)):
            a(f's_add_u32 m0, s95, {o-512*hf}' if o-512*hf>=0 else f's_sub_u32 m0, s95, {512*hf-o}')
            a(f's_nop 0\nbuffer_load_dwordx4 v{v}, s[{srd}:{srd+3}], 0 offen {"" if srd==44 else "sc1"} lds')
        a('s_mov_b64 exec, -1')
    def hop7():
        a(f"""s_cmp_lg_u32 s3, 7
        s_cbranch_scc1 h_nx
    """)
        dma(0)
        a('s_setprio 3')
        if stag==1:
            a('s_setprio 3\ns_cmp_ge_u32 s4, 8\ns_cbranch_scc1 h_nx\ns_setprio 2\ns_cmp_ge_u32 s4, 4\ns_cbranch_scc1 h_nx\ns_setprio 1')
        if stag==2: a('s_setprio 3')
        if stag>=4:
            G={4:(8,4,5,9),5:(6,6,7,7),6:(10,5,3,8),7:(9,5,4,8),8:(8,4,4,8),9:(8,4,3,7),10:(8,4,5,8)}[stag]
            a(f'''s_setprio 3
            s_cmp_ge_u32 s4, {G[0]}
            s_cbranch_scc1 h_nx
            s_cmp_ge_u32 s4, {G[1]}
            s_cselect_b32 s64, {G[2]}, {G[3]}
            v_mov_b32 v60, {L_END}
            s_mov_b32 s65, 0
            h_g7:
            ds_read_b32 v61, v60
            s_waitcnt lgkmcnt(0)
            v_readfirstlane_b32 s66, v61
            s_cmp_ge_u32 s66, s64
            s_cbranch_scc1 h_nx
            s_sleep 1
            s_add_u32 s65, s65, 1
            s_cmp_lt_u32 s65, 0x1000000
            s_cbranch_scc1 h_g7''')
        if stag==3:
            a('s_setprio 1\ns_cmp_ge_u32 s4, 8\ns_cbranch_scc1 h_nx\ns_setprio 2\ns_cmp_ge_u32 s4, 4\ns_cbranch_scc1 h_nx\ns_setprio 3')
        a('h_nx:')
    if stag>=4: hop7()
    hstamp('hs')
    if stamps and 'h5' in stamps:
        i=stamps.index('h5'); a(f's_cmp_lg_u32 s3, 5\ns_cbranch_scc1 hs_h5\ns_memrealtime s[{80+2*i}:{81+2*i}]\nhs_h5:')
    handlers=[]
    for u in range(CAP//2):
        j=2*u; t0=4*u
        if j<32: q=(j>>2)&3; rb=4*(j>>4)+(j&3)
        else: q=(j-32)>>1; rb=8
        if t0>=K: a(f's_cmp_ge_u32 {j}, s52\ns_cbranch_scc1 h_drain{"" if not pdrain else (u%(K//4))}')
        if u==1:
            a('s_cmp_eq_u32 s3, 1\ns_cbranch_scc1 h_def\nh_defr:')
            if stag<4: hop7()
            for i in range(16): a(f'v_mov_b32 v{36+i}, 0')
            a('s_mov_b32 s77, s52\ns_mov_b32 s78, 0')
            if stag: a(f's_cmp_eq_u32 s3, 7\ns_cselect_b32 s78, {RB}, 0')
        if u>0:
            h=f'h_ev{u}'; a(f's_sub_u32 s77, s77, {2*R}\ns_cbranch_scc1 {h}\n{h}_r:'); handlers.append(h)
        for hh in range(2 if u else 0):
            for s_ in range(2):
                a(f'v_add_u32_dpp v{va[hh*2+s_]}, v{off[s_]+rb+hh}, v1 quad_perm:[{q},{q},{q},{q}] {DPP}')
        if t0>=K:
            a(f's_waitcnt vmcnt({K-4})')
            for hh in range(2):
                for s_ in range(2): mf(s_,d0+4*((t0+hh*2+s_)%K))
        for hh in range(2):
            for s_ in range(2):
                sl=d0+4*((t0+hh*2+s_)%K)
                a(f'buffer_load_dwordx4 v[{sl}:{sl+3}], v{va[hh*2+s_]}, s[32:35], 0 offen sc1')
    if pdrain:
        f0=(CAP//2)%(K//4)
        for v in [f0]+[v for v in range(K//4) if v!=f0]: a(f'h_drain{v}:\ns_mov_b32 s79, {v}\ns_branch h_drain')
    a('h_drain:')
    if stag>=4 and not late7:
        a(f's_cmp_lg_u32 s3, 7\ns_cbranch_scc1 h_rb\nv_mov_b32 v4, {L_END}\nv_mov_b32 v5, 1\ns_mov_b64 exec, 1\nds_add_u32 v4, v5\ns_mov_b64 exec, -1')
    a(f"""h_rb:
    s_cmp_ge_u32 s78, {RB}
    s_cbranch_scc1 h_rbd
    s_barrier
    s_add_u32 s78, s78, 1
    s_branch h_rb
    h_rbd:""")
    hstamp('hi')
    if pdrain:
        for par in range(1,K//4): a(f's_cmp_eq_u32 s79, {par}\ns_cbranch_scc1 h_dr{par}')
        for par in range(K//4):
            if par: a(f'h_dr{par}:')
            for n in range(K//2):
                a(f's_waitcnt vmcnt({K-2-2*n})')
                for t in (2*n,2*n+1): mf(t%2,d0+4*((t+4*par)%K))
            if par<K//4-1: a('s_branch h_drx')
        a('h_drx:')
        hstamp('hd')
    else:
        a('s_waitcnt vmcnt(0)')
        hstamp('hd')
        for t in range(K): mf(t%2,d0+4*t)
    if late7: a(f's_cmp_lg_u32 s3, 7\ns_cbranch_scc1 h_l7\nv_mov_b32 v4, {L_END}\nv_mov_b32 v5, 1\ns_mov_b64 exec, 1\nds_add_u32 v4, v5\ns_mov_b64 exec, -1\nh_l7:')
    if eprio: a('s_setprio 2')
    a(f's_cmp_gt_u32 s53, {CAP}\ns_cbranch_scc1 h_slow\nh_slow_r:\ns_nop 3')
    a('s_cmp_eq_u32 s3, 7')
    for s_ in range(2):
        if s_: a('h_ns0:')
        for i in range(4): a(f'v_pk_mul_f32 v[{acc[s_]+2*i}:{acc[s_]+2*i+1}], v[{acc[s_]+2*i}:{acc[s_]+2*i+1}], v[12:13] op_sel:[0,{s_}] op_sel_hi:[1,{s_}]')
        for i in range(4): a(f'v_cvt_pk_bf16_f32 v{acc[s_]+i}, v{acc[s_]+2*i}, v{acc[s_]+2*i+1}')
        a(f's_cbranch_scc1 h_ns{"" if s_ else "0"}')
        a(f'buffer_store_dwordx4 v[{acc[s_]}:{acc[s_]+3}], v{8+s_}, s[36:39], 0 offen sc1')
        a(f'buffer_store_dwordx4 v[{acc[s_]}:{acc[s_]+3}], v{10+s_}, s[36:39], 0 offen sc1')
    if eprio: a('s_setprio 0')
    if post:
        a(f"""s_cmp_eq_u32 s3, 1
        s_cbranch_scc1 f_set
        f_setr1:
        s_add_u32 s62, s62, 1
        v_mov_b32 v56, s56
        v_mov_b32 v57, 1
        s_lshl_b32 s64, s62, 5
        s_sub_u32 s64, s64, 1
        s_cmp_lg_u32 s4, 0
        s_waitcnt vmcnt(0)
        HSTAMP_HA
        s_barrier
        s_cbranch_scc1 gb1_f
        s_mov_b64 exec, 1
        global_atomic_add v58, v56, v57, s[30:31] sc0 sc1
        s_waitcnt vmcnt(0)
        v_cmp_ne_u32 vcc, s64, v58
        s_cbranch_vccnz gb1_g
        s_mov_b64 exec, 0xff
        global_atomic_add v124, v57, s[30:31] sc1
        s_branch gb1_g
        gb1_f:
        s_mov_b64 exec, 0xffff
        buffer_load_dword v127, v126, s[36:39], 0 offen sc1
        gb1_g:
        s_mov_b64 exec, -1""")
    a(f"""h_ns:
    s_lshl_b32 s64, s3, 2
    s_sub_u32 s66, s3, 1
    s_mul_i32 s66, s66, {PL2}
    s_and_b32 s65, s3, 3
    s_lshl_b32 s65, s65, 6
    s_add_u32 s66, s66, s65
    s_lshr_b32 s65, s3, 2
    s_lshl_b32 s65, s65, 5
    s_add_u32 s66, s66, s65
    v_add_u32 v52, s64, v117
    v_add3_u32 v53, v1, v116, s66""")
    for s_ in range(2):
        l=a.lab('ep'); l2=a.lab('ep')
        rho_calc(a,acc[s_],54,55,14+s_,'s76')
        a(f"""s_mov_b64 exec, s[{48+2*s_}:{49+2*s_}]
        s_cbranch_execz {l}
        ds_write_b32 v52, v54 offset:{256*s_}
        s_cmp_gt_u32 s3, 4
        s_cbranch_scc1 {l}
        ds_write_b128 v53, v[{acc[s_]}:{acc[s_]+3}] offset:{1024*s_}
        {l}:
        s_mov_b64 exec, -1""")
    if post:
        a('s_cmp_eq_u32 s3, 7\ns_cbranch_scc1 f_top\ns_cmp_eq_u32 s3, 2\ns_cbranch_scc1 f_set2\ns_cmp_eq_u32 s3, 3\ns_cbranch_scc1 f_set3\nf_setr:')
    else:
        a('s_cmp_eq_u32 s3, 7\ns_cbranch_scc1 f_top\ns_cmp_le_u32 s3, 3\ns_cbranch_scc1 f_set\nf_setr:')
    a(f"""s_mov_b32 s32, s36
    s_mov_b32 s33, s37
    s_add_u32 s36, s36, {TSTR}
    s_addc_u32 s37, s37, 0
    s_add_u32 s3, s3, 1""")
    for hh in range(2):
        for s_ in range(2):
            a(f'v_add_u32_dpp v{va[hh*2+s_]}, v{off[s_]+hh}, v1 quad_perm:[0,0,0,0] {DPP}')
    if post:
        a(f"""s_cmp_lg_u32 s4, 0
        s_cbranch_scc1 gb1_w
        v_mov_b32 v59, s57
        s_lshl_b32 s66, s62, 3
        s_mov_b32 s65, 0
        s_mov_b64 exec, 1
        gb1_p:
        global_load_dword v58, v59, s[30:31] sc1
        s_add_u32 s65, s65, 1
        s_cmp_ge_u32 s65, 0x800000
        s_cbranch_scc1 gb1_pd
        s_waitcnt vmcnt(0)
        v_cmp_gt_u32 vcc, s66, v58
        s_cbranch_vccnz gb1_p
        gb1_pd:
        s_mov_b64 exec, -1
        gb1_w:
        s_barrier
        s_branch h_top""")
    else: gbarrier(a,'gb1',pf=pf,poll2=poll2)
    a('f_top:')
    a('''s_lshl_b32 s64, s2, 4
    s_add_u32 s64, s64, s4
    s_cmp_lg_u32 s64, 0xffc
    s_cbranch_scc1 h_nc
    v_mov_b32 v4, 0
    s_mov_b64 exec, 1
    global_store_dword v4, v4, s[28:29] sc1
    s_mov_b64 exec, -1
    h_nc:''')
    stamp('h')
    if stop=='hops': a('s_endpgm')
    a(f"""s_mov_b32 exec_lo, 0x01010101
    s_mov_b32 exec_hi, 0x01010101
    buffer_load_dword v117, v118, s[44:47], 0 offen
    buffer_load_dword v117, v8, s[96:99], 0 offen sc1
    buffer_load_dword v117, v8, s[32:35], 0 offen sc1
    buffer_load_dword v117, v119, s[44:47], 0 offen
    buffer_load_dword v117, v9, s[96:99], 0 offen sc1
    buffer_load_dword v117, v9, s[32:35], 0 offen sc1
    s_mov_b64 exec, -1
    s_mov_b32 s36, s26
    s_mov_b32 s37, s27
    s_mov_b32 s38, {N*128}
    s_mov_b32 s70, 0x000f000f
    s_mov_b32 s71, 0x000f000f
    s_mov_b32 s72, 0xffff
    s_mov_b32 s73, 0xffff
    v_mov_b32 v116, v{vAq}
    f_loop:""")
    vAq=116
    stamp('fl')
    order=[(0,T,s_) for T in range(4) for s_ in range(2)]+[(1,T,s_) for T in (0,2,3,1) for s_ in range(2)]
    def pk(op,d,x,y,z=None,bc=False,neg=False):
        m=' op_sel_hi:[1,0]' if bc and z is None else (' op_sel_hi:[1,0,0]' if bc else '')
        if neg: m+=' neg_lo:[0,0,1] neg_hi:[0,0,1]'
        a(f'v_pk_{op}_f32 v[{d}:{d+1}], v[{x}:{x+1}], v[{y}:{y+1}]'+(f', v[{z}:{z+1}]' if z is not None else '')+m)
    for pair in range(npairs):
        q_=[]
        ro=128*pair; no=64*pair
        def wait_for(names):
            idx=max(q_.index(n) for n in names if n in q_) if any(n in q_ for n in names) else -1
            if idx>=0:
                left=len(q_)-idx-1
                a(f's_waitcnt lgkmcnt({left})'); del q_[:idx+1]
        def issue(txt,name): a(txt); q_.append(name)
        u7=36+8*(pair>>1)
        if fprio: a(f's_setprio {fprio[0]}')
        a(f"""s_mov_b32 exec_lo, {0 if pair&1 else -1}
        s_mov_b32 exec_hi, {-1 if pair&1 else 0}
        ds_write_b128 v{vS}, v[{u7}:{u7+3}] offset:1760
        s_mov_b64 exec, -1""")
        issue(f'ds_read_b128 v[{WB[0]}:{WB[0]+3}], v{vW}','f0')
        issue(f'ds_read_b128 v[{WB[1]}:{WB[1]+3}], v{vW} offset:1024','f1')
        issue(f'ds_read_b128 v[{WB[2]}:{WB[2]+3}], v{vW} offset:2048','f2')
        if pair: a('s_waitcnt vmcnt(2)')
        issue(f'ds_read_b128 v[{TA}:{TA+3}], v{vA}','ta0')
        issue(f'ds_read_b128 v[{TQ}:{TQ+3}], v{vAq}','tq0')
        issue(f'ds_read_b128 v[{TA+4}:{TA+7}], v{vA} offset:64','ta1')
        issue(f'ds_read_b128 v[{TQ+4}:{TQ+7}], v{vAq} offset:64','tq1')
        issue(f'ds_read_b128 v[{TB[0]}:{TB[3]}], v{vA} offset:256','tb0')
        issue(f'ds_read_b128 v[{TB[4]}:{TB[7]}], v{vA} offset:320','tb1')
        Sm=TQ; RK=TQ+4
        def packV(T,tro):
            for X_,o in ((XA,0),(XB,256)):
                A=X_+4*T
                a(f'v_cvt_pk_bf16_f32 v{A+3}, v{A+2}, v{A+3}\nv_cvt_pk_bf16_f32 v{A+2}, v{A}, v{A+1}')
                issue(f'ds_read_b64_tr_b16 v[{A}:{A+1}], v{vTr} offset:{o+tro}',f'u{T}{o}')
        for n,(m,T,s_) in enumerate(order):
            b=WB[n%3]
            need=[f'f{n}']
            if n==0: need+=['ta0','tq0']
            if n==1: need+=['ta1','tq1']
            if n==8 and fprio: a(f's_setprio {fprio[3]}')
            wait_for(need)
            for X_,tk in ((XA,TA+4*s_),(XB,TQ+4*s_ if m==0 else TB[4*s_])):
                c=f'v[{X_+4*T}:{X_+4*T+3}]' if s_ else '0'
                if m==0: a(f'v_mfma_f32_16x16x32_bf16 v[{X_+4*T}:{X_+4*T+3}], v[{b}:{b+3}], v[{tk}:{tk+3}], {c}')
                else: a(f'v_mfma_f32_16x16x32_bf16 v[{X_+4*T}:{X_+4*T+3}], v[{tk}:{tk+3}], v[{b}:{b+3}], {c}')
            if n+3<16:
                m2,Tn,s2=order[n+3]
                issue(f'ds_read_b128 v[{b}:{b+3}], v{vW} offset:{8192*m2+2048*Tn+1024*s2}',f'f{n+3}')
            if n==5:
                for X_ in (XA,XB):
                    a(f'v_cvt_pk_bf16_f32 v{X_}, v{X_}, v{X_+1}\nv_cvt_pk_bf16_f32 v{X_+1}, v{X_+2}, v{X_+3}\nv_cvt_pk_bf16_f32 v{X_+2}, v{X_+4}, v{X_+5}\nv_cvt_pk_bf16_f32 v{X_+3}, v{X_+6}, v{X_+7}')
            if n==7:
                wait_for(['tb0','tb1'])
                a(f'v_mfma_f32_16x16x32_bf16 v[{XA+4}:{XA+7}], v[{TA}:{TA+3}], v[{XA}:{XA+3}], 0\nv_mfma_f32_16x16x32_bf16 v[{XB+4}:{XB+7}], v[{TB[0]}:{TB[3]}], v[{XB}:{XB+3}], 0')
                issue(f'ds_read_b128 v[{RK}:{RK+3}], v{vRk} offset:{ro}','rk')
                issue(f'ds_read_b32 v{cq}, v{vRq} offset:{ro}','rq')
                issue(f'ds_read_b32 v{dq}, v{vNd} offset:{no}','nd')
                a('s_nop 0')
                for X_ in (XA,XB):
                    A=X_+8
                    a(f'v_cvt_pk_bf16_f32 v{A}, v{A}, v{A+1}\nv_cvt_pk_bf16_f32 v{A+1}, v{A+2}, v{A+3}\nv_cvt_pk_bf16_f32 v{A+2}, v{A+4}, v{A+5}\nv_cvt_pk_bf16_f32 v{A+3}, v{A+6}, v{A+7}')
                a(f's_nop 0\nv_mfma_f32_16x16x32_bf16 v[{XA+4}:{XA+7}], v[{TA+4}:{TA+7}], v[{XA+8}:{XA+11}], v[{XA+4}:{XA+7}]\nv_mfma_f32_16x16x32_bf16 v[{XB+4}:{XB+7}], v[{TB[4]}:{TB[7]}], v[{XB+8}:{XB+11}], v[{XB+4}:{XB+7}]')
            if n==10:
                wait_for(['rk','rq','nd'])
                a(f's_mov_b64 exec, {mVA}')
                pk('mul',Sm,XA+4,RK); pk('mul',Sm+2,XA+6,RK+2)
                a(f's_mov_b64 exec, {mVB}')
                pk('mul',Sm,XB+4,RK); pk('mul',Sm+2,XB+6,RK+2)
                a(f's_mov_b64 exec, -1\nv_mul_f32 v{cq}, s74, v{cq}\nv_cndmask_b32 v{dq}, v{dq}, 1.0, {mH0}')
                a(f'v_max3_f32 v{t0_}, v{Sm}, v{Sm+1}, v{Sm+2}\nv_max_f32 v{t0_}, v{t0_}, v{Sm+3}\nv_mov_b32 v{t1_}, v{t0_}')
            if n==11:
                a(f'v_permlane16_swap_b32 v{t0_}, v{t1_}\nv_max_f32 v{t0_}, v{t0_}, v{t1_}\nv_mul_f32 v{t0_}, v{cq}, v{t0_}')
                pk('fma',Sm,Sm,cq,t0_,bc=True,neg=True); pk('fma',Sm+2,Sm+2,cq,t0_,bc=True,neg=True)
                for r in range(4): a(f'v_exp_f32 v{Sm+r}, v{Sm+r}')
            if n==12:
                a(f'v_add_f32 v{t0_}, v{Sm}, v{Sm+1}\nv_add_f32 v{t1_}, v{Sm+2}, v{Sm+3}\nv_add_f32 v{t0_}, v{t0_}, v{t1_}\nv_mov_b32 v{t1_}, v{t0_}')
                pk('mul',Sm,Sm,RK); pk('mul',Sm+2,Sm+2,RK+2)
            if n==13:
                a(f'v_permlane16_swap_b32 v{t0_}, v{t1_}\nv_add_f32 v{t0_}, v{t0_}, v{t1_}\nv_rcp_f32 v{t0_}, v{t0_}')
                packV(0,0)
                a(f'v_mul_f32 v{t0_}, v{dq}, v{t0_}')
                pk('mul',Sm,Sm,t0_,bc=True); pk('mul',Sm+2,Sm+2,t0_,bc=True)
            if n==14:
                a(f"""s_mov_b64 exec, {mVA}
                v_cvt_pk_bf16_f32 v{BA+2}, v{Sm}, v{Sm+1}
                v_cvt_pk_bf16_f32 v{BA+3}, v{Sm+2}, v{Sm+3}
                s_mov_b64 exec, {mVB}
                v_cvt_pk_bf16_f32 v{BB+2}, v{Sm}, v{Sm+1}
                v_cvt_pk_bf16_f32 v{BB+3}, v{Sm+2}, v{Sm+3}
                s_mov_b64 exec, -1""")
                packV(2,64)
        packV(3,72)
        issue(f'ds_read_b32 v{sv}, v{vNs} offset:{no+4}','ns')
        issue(f'ds_read_b32 v{vo}, v{vNo} offset:{no+8}','no')
        packV(1,8)
        if fprio: a(f's_setprio {fprio[1]}')
        for T in (0,2,3,1):
            wait_for([f'u{T}0'])
            a(f'v_mfma_f32_16x16x32_bf16 v[{Z+4*T}:{Z+4*T+3}], v[{XA+4*T}:{XA+4*T+3}], v[{BA}:{BA+3}], 0')
        for T in (0,2,3,1):
            wait_for([f'u{T}256'])
            a(f'v_mfma_f32_16x16x32_bf16 v[{XA+4*T}:{XA+4*T+3}], v[{XB+4*T}:{XB+4*T+3}], v[{BB}:{BB+3}], 0')
        a(f'v_cndmask_b32 v{sv}, v{sv}, 1.0, {mH0}\nv_add_u32 v{vo}, v{vo}, v{vOq}')
        for i in (0,1,4,5,6,7,2,3): a(f'v_cvt_pk_bf16_f32 v{TA+i}, v{Z+2*i}, v{Z+2*i+1}')
        issue(f'ds_write_b128 v{vA}, v[{TA}:{TA+3}]','w0'); issue(f'ds_write_b128 v{vA}, v[{TA+4}:{TA+7}] offset:64','w1')
        for i in (0,1,4,5,6,7,2,3): a(f'v_cvt_pk_bf16_f32 v{TB[i]}, v{XA+2*i}, v{XA+2*i+1}')
        issue(f'ds_write_b128 v{vAq}, v[{TB[0]}:{TB[3]}]','w2'); issue(f'ds_write_b128 v{vAq}, v[{TB[4]}:{TB[7]}] offset:64','w3')
        a(f"""v_mfma_f32_16x16x32_bf16 v[{XB}:{XB+3}], v[{ST[0]}:{ST[0]+3}], v[{TA}:{TA+3}], 0
        v_mfma_f32_16x16x32_bf16 v[{XB+4}:{XB+7}], v[{ST[0]}:{ST[0]+3}], v[{TB[0]}:{TB[3]}], 0
        v_mfma_f32_16x16x32_bf16 v[{XB}:{XB+3}], v[{ST[1]}:{ST[1]+3}], v[{TA+4}:{TA+7}], v[{XB}:{XB+3}]
        v_mfma_f32_16x16x32_bf16 v[{XB+4}:{XB+7}], v[{ST[1]}:{ST[1]+3}], v[{TB[4]}:{TB[7]}], v[{XB+4}:{XB+7}]""")
        for T in range(4):
            o=(0,8,64,72)[T]
            issue(f'ds_read_b64_tr_b16 v[{Z+4*T}:{Z+4*T+1}], v{vTr} offset:{o}',f'o{T}a')
            issue(f'ds_read_b64_tr_b16 v[{Z+4*T+2}:{Z+4*T+3}], v{vTr} offset:{256+o}',f'o{T}b')
        qa,qb,t2,t3=XB+12,XB+13,XB+14,XB+15
        if fprio: a(f's_setprio {fprio[2]}')
        for i in range(8):
            a(f'v_dot2_f32_bf16 v{qa}, v{TA+i}, v{TA+i}, {"0" if i==0 else f"v{qa}"}\nv_dot2_f32_bf16 v{qb}, v{TB[i]}, v{TB[i]}, {"0" if i==0 else f"v{qb}"}')
        a(f"""v_cndmask_b32 v{XB}, v{XB+4}, v{XB}, {mRH}
        v_cndmask_b32 v{XB+1}, v{XB+5}, v{XB+1}, {mRH}
        v_mul_f32 v{t2}, 0x3e000000, v{XB}
        v_permlane32_swap_b32 v{qa}, v{qb}
        v_add_f32 v{qa}, v{qa}, v{qb}
        v_mov_b32 v{qb}, v{qa}
        v_fma_f32 v{t3}, -v{XB}, s55, v{XB+1}
        v_mul_f32 v{XB}, 0x3e000000, v{sv}
        v_permlane16_swap_b32 v{qa}, v{qb}
        s_mov_b64 exec, s[72:73]
        v_add_f32 v{qa}, v{qa}, v{qb}
        v_mul_f32 v{XB}, v{XB}, v{XB}
        v_fma_f32 v{qa}, -v{t2}, v{t2}, v{qa}
        v_max_f32 v{qa}, 0, v{qa}
        v_fmaak_f32 v{qa}, v{XB}, v{qa}, {EPS}
        v_rsq_f32 v{qa}, v{qa}
        v_mul_f32 v{t3}, v{sv}, v{t3}
        v_mul_f32 v{t3}, 0x3fb8aa3b, v{t3}
        v_mul_f32 v{qa}, v{qa}, v{t3}""")
        if pair<npairs-1: a(f's_mov_b64 exec, {mRA}\nv_add_u32 v{vA}, 0x200, v{vA}\nv_add_u32 v{vAq}, 0x200, v{vAq}\ns_mov_b64 exec, s[72:73]')
        else: a('s_nop 1')
        a(f"""v_max_f32_dpp v{qb}, v{qa}, v{qa} quad_perm:[1,0,3,2] {DPP}
        s_nop 1
        v_max_f32_dpp v{qb}, v{qb}, v{qb} quad_perm:[2,3,0,1] {DPP}
        s_nop 1
        v_max_f32_dpp v{qb}, v{qb}, v{qb} row_half_mirror {DPP}
        v_sub_f32 v{qa}, v{qa}, v{qb}
        v_exp_f32 v{qa}, v{qa}""")
        if pair<npairs-1: a(f's_mov_b64 exec, {mRT}\nv_add_u32 v{vTr}, 0x200, v{vTr}\ns_mov_b64 exec, s[72:73]')
        else: a('s_nop 1')
        a(f"""v_add_f32_dpp v{qb}, v{qa}, v{qa} quad_perm:[1,0,3,2] {DPP}
        s_nop 1
        v_add_f32_dpp v{qb}, v{qb}, v{qb} quad_perm:[2,3,0,1] {DPP}
        s_nop 1
        v_add_f32_dpp v{qb}, v{qb}, v{qb} row_half_mirror {DPP}
        v_rcp_f32 v{qb}, v{qb}
        v_mul_f32 v{qa}, v{sv}, v{qa}
        v_mul_f32 v{qa}, v{qa}, v{qb}
        ds_write_b32 v{vBw}, v{qa} offset:{ro}
        s_mov_b64 exec, -1
        ds_read_b128 v[{XB}:{XB+3}], v{vBr} offset:{ro}
        s_waitcnt lgkmcnt(2)""")
        if pair==0: a('s_cmp_eq_u32 s4, 12\ns_cbranch_scc1 f_nd0')
        if pair<npairs-1: dma(pair+1)
        if pair==0: a('f_nd0:')
        if fprio: a(f's_setprio {fprio[4]}')
        a(f"""s_waitcnt lgkmcnt(0)
        s_mov_b64 exec, {mCA}
        v_cvt_pk_bf16_f32 v{BO}, v{XB}, v{XB+1}
        v_cvt_pk_bf16_f32 v{BO+1}, v{XB+2}, v{XB+3}
        s_mov_b64 exec, {mCB}
        v_cvt_pk_bf16_f32 v{BO+2}, v{XB}, v{XB+1}
        v_cvt_pk_bf16_f32 v{BO+3}, v{XB+2}, v{XB+3}
        s_mov_b64 exec, -1
        s_nop 0""")
        for T in range(4):
            a(f'v_mfma_f32_16x16x32_bf16 v[{XA+4*T}:{XA+4*T+3}], v[{Z+4*T}:{Z+4*T+3}], v[{BO}:{BO+3}], 0')
        a('s_mov_b64 exec, s[70:71]\ns_nop 3')
        for i in range(8): a(f'v_cvt_pk_bf16_f32 v{XB+8+i}, v{XA+2*i}, v{XA+2*i+1}')
        a(f"""        buffer_store_dwordx4 v[{XB+8}:{XB+11}], v{vo}, s[36:39], 0 offen {OUTPOL}
        buffer_store_dwordx4 v[{XB+12}:{XB+15}], v{vo}, s[36:39], 0 offen offset:64 {OUTPOL}
        s_mov_b64 exec, -1""")
        if pair==0: a('s_cmp_eq_u32 s4, 12\ns_cbranch_scc1 f_done')
    a('f_done:')
    stamp('f')
    if side is not None:
        a('s_waitcnt vmcnt(0)')
        stamp('e')
        a('s_waitcnt lgkmcnt(0)')
        if side=='xcc':
            a('s_and_b32 s64, s2, 7\ns_cmp_lg_u32 s64, s7\ns_cselect_b32 s64, 5000, 0')
        elif side=='zero': a('s_mov_b32 s64, 0')
        elif side in ('min','minb'):
            a('v_mov_b32 v4, 0\nglobal_load_dword v5, v4, s[28:29] offset:8 sc1\ns_waitcnt vmcnt(0)\nv_readfirstlane_b32 s80, v5\ns_not_b32 s80, s80\ns_mov_b32 s64, 0')
            if side=='minb': a('s_sub_u32 s64, s82, s80\ns_lshl_b32 s64, s64, 2')
        else:
            a('s_sub_u32 s64, s82, s80\ns_lshl_b32 s64, s64, 2\ns_cmp_lg_u32 s2, 100\ns_cselect_b32 s64, 0, s64')
        a('s_min_u32 s64, s64, 40000\ns_add_u32 s64, s64, 15000\nsd_l:\ns_memrealtime s[66:67]\ns_waitcnt lgkmcnt(0)\ns_sub_u32 s66, s66, s80\ns_cmp_lt_u32 s66, s64\ns_cbranch_scc1 sd_l\ns_endpgm')
    if stamps:
        a('s_waitcnt vmcnt(0)')
        stamp('e')
        a(f's_waitcnt lgkmcnt(0)\ns_lshl_b32 s64, s2, 4\ns_add_u32 s64, s64, s4\ns_lshl_b32 s64, s64, 7\ns_add_u32 s64, s64, {DUMP}\nv_mov_b32 v4, s64\ns_mov_b64 exec, 1')
        if dbgst:
            a('v_mov_b32 v6, 0\ns_not_b32 s65, s80\nv_mov_b32 v5, s65\nglobal_atomic_umax v6, v5, s[28:29] offset:8 sc1')
            for i in range(len(stamps)): a(f'v_mov_b32 v5, s{80+2*i}\nglobal_atomic_umax v6, v5, s[28:29] offset:{12+4*i} sc1')
            a('s_or_b32 s65, s2, s4\ns_cbranch_scc1 k_nv\nv_mov_b32 v5, s94\nglobal_store_dword v6, v5, s[28:29] offset:4 sc1\nk_nv:')
        a('v_mov_b32 v5, s94\nglobal_store_dword v4, v5, s[30:31] offset:64')
        for i in range(len(stamps)): a(f'v_mov_b32 v5, s{80+2*i}\nglobal_store_dword v4, v5, s[30:31] offset:{4*i}')
    a('k_end:\ns_endpgm')
    for h in handlers:
        a(f'{h}:\ns_cmp_ge_u32 s78, {RB}\ns_cbranch_scc1 {h}_r\ns_add_u32 s78, s78, 1\ns_barrier\ns_add_u32 s77, s77, s52\ns_cbranch_scc0 {h}\ns_branch {h}_r')
    a('; nodes with more than 40 sources: remaining sources from the overflow lists')
    a(f"""h_slow:
    s_mov_b32 s64, {CAP}
    v_and_b32 v4, 3, v0
    v_lshlrev_b32 v4, 2, v4
    h_sl:""")
    for s_ in range(2):
        a(f"""v_add_u32 v5, s64, v4
        v_add_u32 v6, v5, v{122+s_}
        v_subrev_u32 v6, {CAP}, v6
        v_lshlrev_b32 v6, 2, v6
        v_sub_u32 v5, v{120+s_}, v5
        v_mov_b32 v7, {OOBV}
        buffer_load_dwordx4 v[68:71], v6, s[40:43], s59 offen
        s_waitcnt vmcnt(0)""")
        for r in range(4): a(f'v_cmp_lt_i32 vcc, {r}, v5\ns_nop 1\nv_cndmask_b32 v{68+r}, v7, v{68+r}, vcc')
        for hb in range(4):
            a('s_nop 1')
            for t in range(4):
                a(f'v_add_u32_dpp v7, v{68+t}, v1 quad_perm:[{hb},{hb},{hb},{hb}] {DPP}\nbuffer_load_dwordx4 v[{d0+4*t}:{d0+4*t+3}], v7, s[32:35], 0 offen sc1')
            a('s_waitcnt vmcnt(0)')
            for t in range(4): mf(s_,d0+4*t); a('s_nop 0')
    a('s_add_u32 s64, s64, 16\ns_cmp_lt_u32 s64, s53\ns_cbranch_scc1 h_sl\ns_branch h_slow_r')
    vAq=125
    a('f_set:\ns_cmp_eq_u32 s3, 2\ns_cbranch_scc1 f_set2\ns_cmp_eq_u32 s3, 3\ns_cbranch_scc1 f_set3'); late(); late2(); a('s_branch f_setr1' if post else 's_branch f_setr')
    a('f_set2:'); fsetup(); a('s_branch f_setr')
    a('f_set3:'); fsetup2(); a('s_branch f_setr')
    a('h_def:'); deferred(); a('s_branch h_defr')
    for t in tails: t()
    t=a.text()
    import re
    def _d(m):
        b=Asm(); dup128(b,int(m.group(1)),int(m.group(2))); return b.text()
    t=re.sub(r'    DUPU0 (\d+) (\d+)\n',(lambda m: f'    v_mov_b32 v{m.group(1)}, 128\n') if OWN else _d,t)
    t=re.sub(r'    DUP128 (\d+) (\d+)\n',_d,t)
    t=t.replace('    OWNFIX\n','' if not OWN else '    v_lshrrev_b32 v63, 21, v66\n    v_bfe_u32 v63, s73, v63, 1\n    v_cmp_gt_u32 s[64:65], s38, v67\n    s_nop 1\n    v_cndmask_b32 v56, 0, 1, s[64:65]\n    v_bitop3_b32 v63, v63, v56, 1 bitop3:0x20\n    v_lshl_add_u32 v66, v63, 13, v66\n')
    t=t.replace('    TLB0\n','    s_mov_b64 exec, 0x7ff\n    global_load_dword v47, v45, s[30:31] sc1\n    s_mov_b64 exec, 1\n    global_load_dword v47, v42, s[28:29] sc1\n' if tlb0 else '')
    hs=''
    if stamps and 'ha' in stamps:
        i=stamps.index('ha'); hs=f'    s_mov_b32 s79, s3\n    s_cmp_lg_u32 s3, {4 if post else 5}\n    s_cbranch_scc1 hs_ha\n    s_memrealtime s[{80+2*i}:{81+2*i}]\nhs_ha:\n    s_cmp_lg_u32 s4, 0\n'
    t=t.replace('    HSTAMP_HA\n',hs)
    return t

DOC='''; One persistent launch, one workgroup (196 destination nodes) per CU.
;  hops 1..7  u_k = dis^2 * sum u_(k-1)[src]: 128-byte row gathers, summed in fp32 by 4x4x4 MFMAs with an
;      identity operand; grid barrier (two-level counters in the workspace) between hops
; Half of the table rows are stored twice, once per 8-KB address half; a short latency probe tells which
; half is nearer to a die. Both copies hold the same bytes, the choice only affects speed.
'''
HDR=open('gather_scatter__hybrid_graph_tf_nagphormer__graph.s.ref').read().split('; Override launch')[0]
def wrap(body):
    return HDR+f'''; @launch grid=(256,1,1) block=(1024,1,1) lds={LDS_BYTES}
'''+DOC+f'''.amdgcn_target "amdgcn-amd-amdhsa--gfx950"
.text
.globl {KNAME}
.p2align 8
.type {KNAME},@function
{KNAME}:
'''+body+f'''.section .rodata,"a"
.p2align 6
.amdhsa_kernel {KNAME}
  .amdhsa_next_free_vgpr 128
  .amdhsa_next_free_sgpr 102
  .amdhsa_accum_offset 128
  .amdhsa_group_segment_fixed_size 0
  .amdhsa_kernarg_size 96
  .amdhsa_user_sgpr_count 2
  .amdhsa_user_sgpr_kernarg_segment_ptr 1
  .amdhsa_system_sgpr_workgroup_id_x 1
  .amdhsa_float_denorm_mode_32 3
.end_amdhsa_kernel
'''
if __name__=='__main__':
    import ast
    kw=dict(x.split('=') for x in sys.argv[2:])
    for k in kw:
        try: kw[k]=ast.literal_eval(kw[k])
        except Exception: pass
    if 'DUP' in kw: DUP=str(kw.pop('DUP'))
    if 'OWN' in kw: OWN=kw.pop('OWN')
    if 'stamps' in kw: kw['stamps']=kw['stamps'].split(',')
    open(sys.argv[1],'w').write(wrap(gen(**kw)))
```

```python
import sys
from lay import *
KNAME='gather_scatter__hybrid_graph_tf_nagphormer__graph_kernel'
class Asm:
    def __init__(s): s.l=[]; s.u=0
    def __call__(s,t):
        for x in t.strip('\n').split('\n'):
            x=x.strip()
            if x: s.l.append(x if x.endswith(':') else '    '+x)
    def lab(s,p='L'): s.u+=1; return f'{p}{s.u}'
    def text(s): return '\n'.join(s.l)+'\n'
DPP='row_mask:0xf bank_mask:0xf'
EPS='0x3727c5ac'

DUP='23'; OWN=False
def dup128(a,dst,n):
    if DUP=='23': a(f'v_and_b32 v{dst}, 128, v{n}')
    if DUP=='3': a(f'v_lshlrev_b32 v{dst}, 1, v{n}\nv_and_b32 v{dst}, v{dst}, v{n}\nv_and_b32 v{dst}, 128, v{dst}')
    if DUP=='none': a(f'v_mov_b32 v{dst}, 0')
    if DUP=='all': a(f'v_mov_b32 v{dst}, 128')
    if DUP=='123': a(f'v_lshlrev_b32 v{dst}, 1, v{n}\nv_or_b32 v{dst}, v{dst}, v{n}\nv_and_b32 v{dst}, 128, v{dst}')
def line_calc(a,dst,n,t,u):
    if DUP in ('all','123') or OWN:
        a(f"""v_lshrrev_b32 v{t}, 8, v{n}
        v_mul_u32_u24 v{u}, 547, v{t}
        v_and_b32 v{dst}, 0xffc0, v{n}
        v_lshrrev_b32 v{u}, 14, v{u}
        v_add_u32 v{dst}, v{dst}, v{n}
        v_lshl_add_u32 v{dst}, v{u}, 10, v{dst}""")
        if DUP=='123' and not OWN:
            a(f"""v_and_b32 v{u}, 0x1c0, v{n}
            v_cmp_eq_u32 vcc, 0x100, v{u}
            v_add_u32 v{t}, 64, v{dst}
            s_nop 0
            v_cndmask_b32 v{dst}, v{dst}, v{t}, vcc""")
        return
    a(f'''v_lshrrev_b32 v{t}, 8, v{n}
    v_mul_u32_u24 v{u}, 205, v{t}
    v_lshl_add_u32 v{dst}, v{t}, 7, v{n}
    v_lshrrev_b32 v{u}, 13, v{u}
    v_lshrrev_b32 v{t}, 1, v{n}
    v_lshl_add_u32 v{dst}, v{u}, 10, v{dst}
    v_bitop3_b32 v{t}, v{t}, v{n}, 64 bitop3:0x80
    v_add_u32 v{dst}, v{dst}, v{t}''')

def rho_calc(a,X,sm,sq,vs,sones):
    a(f'v_dot2_f32_bf16 v{sm}, v{X}, {sones}, 0\nv_dot2_f32_bf16 v{sq}, v{X}, v{X}, 0')
    for i in range(1,4):
        a(f'v_dot2_f32_bf16 v{sm}, v{X+i}, {sones}, v{sm}\nv_dot2_f32_bf16 v{sq}, v{X+i}, v{X+i}, v{sq}')
    a('s_nop 2')
    for m in ('quad_perm:[1,0,3,2]','quad_perm:[2,3,0,1]','row_half_mirror'):
        a(f'v_add_f32_dpp v{sm}, v{sm}, v{sm} {m} {DPP}\nv_add_f32_dpp v{sq}, v{sq}, v{sq} {m} {DPP}\ns_nop 0')
    a(f'''v_mul_f32 v{sm}, 0x3c800000, v{sm}
    v_mul_f32 v{sq}, 0x3c800000, v{sq}
    v_fma_f32 v{sq}, -v{sm}, v{sm}, v{sq}
    v_max_f32 v{sq}, 0, v{sq}''')
    if vs is not None: a(f'v_mul_f32 v{sq}, v{vs}, v{sq}\nv_mul_f32 v{sq}, v{vs}, v{sq}')
    a(f'v_add_f32 v{sq}, {EPS}, v{sq}\nv_rsq_f32 v{sm}, v{sq}\ns_nop 0')
    if vs is not None: a(f'v_mul_f32 v{sm}, v{vs}, v{sm}')

def baraddr(a,base):
    a(f'''s_and_b32 s64, s2, 7
    s_lshr_b32 s65, s64, 2
    s_xor_b32 s65, s65, s63
    s_lshl_b32 s65, s65, 13
    s_lshl_b32 s64, s64, 8
    s_add_u32 s64, s64, s65
    s_add_u32 s56, s64, {base}
    s_xor_b32 s65, s6, s63
    s_lshl_b32 s65, s65, 13
    s_and_b32 s64, s7, 7
    s_lshl_b32 s64, s64, 8
    s_add_u32 s64, s64, s65
    s_mov_b32 s75, {base+4096}
    s_add_u32 s57, s64, s75''')

def bar_l2(a,nm):
    a(f"""s_mov_b64 exec, 0xff
    v_mbcnt_lo_u32_b32 v58, -1, 0
    v_lshrrev_b32 v59, 2, v58
    v_xor_b32 v59, s63, v59
    v_lshlrev_b32 v59, 13, v59
    v_lshl_add_u32 v58, v58, 8, v59
    v_add_u32 v58, s75, v58
    v_mov_b32 v57, s65
    global_atomic_add v58, v57, s[30:31] sc1
    s_mov_b64 exec, 1
    {nm}_np:""")
def bar_poll(a,nm,votes=False):
    a(f"""s_mov_b32 s65, 0
    {nm}_p:
    global_load_dword v58, v56, s[30:31] sc1
    s_waitcnt vmcnt(0)""")
    if votes: a('v_and_b32 v59, 0xff, v58\nv_cmp_gt_u32 vcc, s64, v59')
    else: a('v_cmp_gt_u32 vcc, s64, v58')
    a(f"""s_cbranch_vccz {nm}_pd
    s_add_u32 s65, s65, 1
    s_cmp_lt_u32 s65, 0x800000
    s_cbranch_scc1 {nm}_p
    {nm}_pd:""")
def bar_arrive(a,nm):
    a(f"""v_mov_b32 v56, s56
    v_mov_b32 v57, 1
    global_atomic_add v58, v56, v57, s[30:31] sc0 sc1
    s_lshl_b32 s64, s62, 5
    s_sub_u32 s64, s64, 1
    v_mov_b32 v56, s57
    s_waitcnt vmcnt(0)
    v_readfirstlane_b32 s65, v58
    s_cmp_lg_u32 s65, s64
    s_cbranch_scc1 {nm}_np
    s_mov_b32 s65, 1""")
    bar_l2(a,nm)

def gbarrier(a,nm,pf=None,poll2=0):
    a(f"""s_add_u32 s62, s62, 1
    v_mov_b32 v56, s56
    v_mov_b32 v57, 1
    v_mov_b32 v59, s57
    s_lshl_b32 s64, s62, 5
    s_sub_u32 s64, s64, 1
    s_lshl_b32 s66, s62, 3
    s_mov_b32 s65, 0
    s_cmp_lg_u32 s4, 0
    s_waitcnt vmcnt(0)
    HSTAMP_HA
    s_barrier
    s_cbranch_scc1 {nm}_f
    s_mov_b64 exec, 1
    global_atomic_add v58, v56, v57, s[30:31] sc0 sc1
    s_waitcnt vmcnt(0)
    v_cmp_ne_u32 vcc, s64, v58
    s_cbranch_vccnz {nm}_p
    s_mov_b64 exec, 0xff
    global_atomic_add v124, v57, s[30:31] sc1
    s_mov_b64 exec, 1""")
    if poll2:
        a(f"""{nm}_p:
        global_load_dword v58, v59, s[30:31] sc1
        s_sleep {poll2}
        {nm}_q:
        global_load_dword v60, v59, s[30:31] sc1
        s_waitcnt vmcnt(1)
        v_cmp_gt_u32 vcc, s66, v58
        s_cbranch_vccz {nm}_pd
        global_load_dword v58, v59, s[30:31] sc1
        s_waitcnt vmcnt(1)
        v_cmp_gt_u32 vcc, s66, v60
        s_cbranch_vccz {nm}_pd
        s_add_u32 s65, s65, 1
        s_cmp_lt_u32 s65, 0x800000
        s_cbranch_scc1 {nm}_q""")
    else:
        a(f"""{nm}_p:
        global_load_dword v58, v59, s[30:31] sc1
        s_add_u32 s65, s65, 1
        s_cmp_ge_u32 s65, 0x800000
        s_cbranch_scc1 {nm}_pd
        s_waitcnt vmcnt(0)
        v_cmp_gt_u32 vcc, s66, v58
        s_cbranch_vccnz {nm}_p""")
    a(f'{nm}_pd:\ns_mov_b64 exec, -1\ns_barrier')
    if poll2: a('s_waitcnt vmcnt(0)')
    a(f's_branch h_top\n{nm}_f:')
    if pf:
        n0,n1,sl=pf
        def ex(lo,hi):
            m=((1<<(16*hi))-1)^((1<<(16*lo))-1)
            a(f's_mov_b32 exec_lo, {m&0xffffffff:#x}\ns_mov_b32 exec_hi, {m>>32:#x}')
        if n0: ex(0,n0); a('buffer_load_dword v127, v126, s[32:35], 0 offen sc1')
        if n1>n0:
            if sl: a(f's_sleep {sl}')
            ex(n0,n1); a('buffer_load_dword v127, v126, s[32:35], 0 offen sc1')
        a('s_mov_b64 exec, -1')
    a('s_barrier\ns_branch h_top')

def probe(a,nm,voff,res):
    a(f'v_add_u32 v{voff+1}, 0x2000, v{voff}\nv_mov_b32 v{voff+2}, 0\ns_mov_b32 s66, -1\ns_mov_b32 s67, -1\ns_mov_b32 s72, 0\n{nm}:')
    for s in range(2):
        a(f'''s_memtime s[68:69]
        s_waitcnt lgkmcnt(0)
        global_atomic_add v{voff+3}, v{voff+s}, v{voff+2}, s[30:31] sc0 sc1
        s_waitcnt vmcnt(0)
        s_memtime s[70:71]
        s_waitcnt lgkmcnt(0)
        s_sub_u32 s70, s70, s68
        s_min_u32 s{66+s}, s{66+s}, s70''')
    a(f's_add_u32 s72, s72, 1\ns_cmp_lt_u32 s72, 3\ns_cbranch_scc1 {nm}')
    a(f's_cmp_gt_u32 s66, s67\ns_cselect_b32 s{res}, 1, 0\ns_xor_b32 s{res}, s{res}, s6')

def gen(upos=0,uarr='nd',hprio=None,tlb0=False,post=True,eprio=False,ilv=False,late7=False,OUTPOL='sc1',u0pf=False,poll2=0,side=None,xh=0,ent='nt',xnt='',fprio=(0,1,0,2,0),dbgst=False,K=8,R=12,RB=8,pf=(1,1,0),pdrain=True,stop=None,dump=False,stamps=False,npairs=4,stag=8,nprobe=2,xpos=2,xpf=0,pa=0):
    a=Asm()
    if RB is None: RB=R-1
    def stamp(nm):
        if stamps and nm in stamps:
            i=stamps.index(nm); a(f's_memrealtime s[{80+2*i}:{81+2*i}]')
        if stamps and nm+'c' in stamps:
            i=stamps.index(nm+'c'); a(f's_memtime s[{80+2*i}:{81+2*i}]')
    def hstamp(nm):
        if stamps and nm in stamps:
            l=a.lab('hs'); i=stamps.index(nm)
            a(f's_cmp_lg_u32 s3, 4\ns_cbranch_scc1 {l}\ns_memrealtime s[{80+2*i}:{81+2*i}]\n{l}:')
    a(f"""s_cmp_ge_u32 s2, 256
    s_cbranch_scc1 k_end
    s_load_dwordx16 s[8:23], s[0:1], 0
    s_load_dwordx8 s[24:31], s[0:1], 64
    v_lshrrev_b32 v1, 6, v0
    s_and_b32 s5, s2, 7
    v_readfirstlane_b32 s4, v1
    s_lshl_b32 s5, s5, 5
    s_lshr_b32 s3, s2, 3
    s_add_u32 s5, s5, s3
    s_mov_b32 s62, 0
    s_mul_i32 s54, s5, {BS}
    v_lshlrev_b32 v10, 4, v0""")
    stamp('s')
    def wsinit():
        a(f"""s_add_u32 s30, s30, 0x1fffff
        s_addc_u32 s31, s31, 0
        s_and_b32 s30, s30, 0xffe00000
        s_mov_b32 s36, s30
        s_mov_b32 s37, s31
        s_mov_b32 s38, {TBYTES}
        s_mov_b32 s39, 0x20000
        s_add_u32 s40, s30, {SMALL}
        s_addc_u32 s41, s31, 0
        s_mov_b32 s42, {SMALL_BYTES}
        s_mov_b32 s43, 0x20000
        s_getreg_b32 s7, hwreg(HW_REG_XCC_ID, 0, 4)
        s_lshr_b32 s6, s7, 2
        s_mov_b64 s[56:57], 0
        s_mov_b32 s44, s8
        s_mov_b32 s45, s9
        s_mov_b32 s46, {N*128}
        s_mov_b32 s47, 0x20000
        s_add_u32 s96, s30, {5*TSTR}
        s_addc_u32 s97, s31, 0
        s_mov_b32 s98, {TBYTES}
        s_mov_b32 s99, 0x20000
        s_mov_b32 s60, 0
        s_mov_b32 s93, 0
        s_and_b32 s6, s6, 1""")
    def ldsinit(z):
        for k in range(4): a(f'v_mov_b32 v{z+k}, 0\nv_mov_b32 v{z+4+k}, {OOBV}')
        o=f'v[{z+4}:{z+7}]'; zz=f'v[{z}:{z+3}]'
        a(f"""ds_write_b128 v10, {o} offset:{L_LIST}
        v_add_u32 v1, 13312, v10
        ds_write_b128 v1, {o} offset:{L_LIST}
        v_add_u32 v1, 26624, v10
        s_movk_i32 s64, 416
        v_cmpx_gt_u32 vcc, s64, v0
        ds_write_b128 v1, {o} offset:{L_LIST}
        ds_write_b128 v10, {zz} offset:{L_CNT}
        s_movk_i32 s64, 208
        v_cmpx_gt_u32 vcc, s64, v0
        ds_write_b128 v10, v[{z+2}:{z+5}] offset:{L_INFO}
        s_movk_i32 s64, 84
        v_cmpx_gt_u32 vcc, s64, v0
        ds_write_b128 v10, {zz} offset:{L_HIST}
        s_mov_b64 exec, -1""")
    a(f"""s_cmp_ge_u32 s4, 13
    s_cbranch_scc1 p1_help
    v_lshrrev_b32 v2, 3, v0
    v_add_u32 v3, s54, v2
    v_add_u32 v4, 104, v3
    v_and_b32 v5, 7, v0
    v_lshlrev_b32 v5, 4, v5
    v_lshl_add_u32 v6, v3, 7, v5
    v_lshl_add_u32 v7, v4, 7, v5
    v_lshlrev_b32 v8, 1, v3
    v_lshlrev_b32 v9, 1, v4
    s_mul_i32 s55, s2, {CHE*4}
    v_add_u32 v11, s55, v10
    s_add_u32 s55, s55, {CHUNK}
    s_mov_b32 s64, {N}
    v_cmp_gt_u32 s[48:49], s64, v3
    v_cmp_gt_u32 s[50:51], s64, v4
    s_movk_i32 s64, 736
    v_cmp_gt_u32 vcc, s64, v0
    s_and_b64 s[50:51], s[50:51], vcc
    s_movk_i32 s64, 800
    v_cmp_gt_u32 s[52:53], s64, v0
    s_cmp_ge_u32 s2, {NCH}
    s_cselect_b64 s[52:53], 0, s[52:53]
    s_waitcnt lgkmcnt(0)""")
    a(f"""s_mov_b64 exec, s[52:53]
    s_cbranch_execz p1_ne
    global_load_dwordx4 v[12:15], v11, s[12:13] {ent}
    global_load_dwordx4 v[16:19], v11, s[10:11] {ent}
    p1_ne:
""")
    XL=f"""    s_mov_b64 exec, s[48:49]
    s_cbranch_execz p1_nxa
    global_load_dwordx4 v[20:23], v6, s[8:9] {xnt}
    global_load_ushort v28, v8, s[14:15]
    p1_nxa:
    s_mov_b64 exec, s[50:51]
    s_cbranch_execz p1_nxb
    global_load_dwordx4 v[24:27], v7, s[8:9] {xnt}
    global_load_ushort v29, v9, s[14:15]
    p1_nxb:
    s_mov_b64 exec, -1"""
    if xpos==0: a(XL)
    else: a('s_mov_b64 exec, -1')
    wsinit()
    a('; workgroup 255 clears the barrier counters and announces that through d_debug[0]')
    a(f"""s_lshl_b32 s64, s2, 4
    s_add_u32 s64, s64, s4
    s_cmp_lg_u32 s64, {255*16}
    s_cbranch_scc1 p1_nz
    v_and_b32 v40, 15, v0
    v_lshrrev_b32 v41, 4, v0
    v_lshlrev_b32 v40, 8, v40
    v_and_b32 v42, 1, v41
    v_lshrrev_b32 v41, 1, v41
    v_lshl_add_u32 v40, v42, 12, v40
    v_lshl_add_u32 v40, v41, 13, v40
    v_add_u32 v40, {BARP}, v40
    v_mov_b32 v41, 0
    global_store_dword v40, v41, s[30:31] sc1
    v_add_u32 v40, 0x4000, v40
    global_store_dword v40, v41, s[30:31] sc1
    v_add_u32 v40, 0x4000, v40
    global_store_dword v40, v41, s[30:31] sc1
    v_add_u32 v40, 0x4000, v40
    global_store_dword v40, v41, s[30:31] sc1
    s_waitcnt vmcnt(0)
    s_mov_b64 exec, 1
    v_mov_b32 v40, 0
    v_mov_b32 v41, 1
    global_store_dword v40, v41, s[28:29] sc1
    s_mov_b64 exec, -1
    p1_nz:""")
    ldsinit(32)
    for n,d in ((3,76),(4,78)):
        line_calc(a,d,n,64,65)
        a(f"""v_lshl_add_u32 v{d}, v{d}, 7, v5
        v_cndmask_b32 v{d}, v36, v{d}, s[{48 if n==3 else 50}:{49 if n==3 else 51}]
        DUPU0 64 {n}
        v_cmp_ne_u32 vcc, 0, v64
        v_add_u32 v{d+1}, 0x2000, v{d}
        v_cndmask_b32 v{d+1}, v36, v{d+1}, vcc""".replace('v_add_u32 v{0}'.format(d+1),'s_nop 0\nv_add_u32 v{0}'.format(d+1)))
    a('s_waitcnt lgkmcnt(0)\ns_barrier')
    stamp('B1')
    if xpos==1: a(XL)
    a(f"""s_mov_b64 exec, s[52:53]
    s_cbranch_execz p1_e1
    s_movk_i32 s64, -{BS}
    v_mov_b32 v33, 1
""")
    if xpos<2: a('s_cmp_lt_u32 s4, 12\ns_cbranch_scc1 p1_w4\ns_waitcnt vmcnt(2)\np1_w4:\ns_waitcnt vmcnt(4)')
    else: a('s_waitcnt vmcnt(0)')
    stamp('ed')
    for i in range(4):
        d=12+i; b=40+i
        a(f"""v_mul_u32_u24 v30, 85599, v{d}
        v_lshrrev_b32 v{52+i}, 24, v30
        v_lshlrev_b32 v{b}, 2, v{52+i}
        ds_add_rtn_u32 v{48+i}, v{b}, v33 offset:{L_HIST}""")
    a('p1_e1:')
    if xpos==2: a(XL)
    a('s_mov_b64 exec, -1\ns_waitcnt lgkmcnt(0)\ns_barrier')
    stamp('B2')
    a(f"""s_cmp_lg_u32 s4, 0
    s_cbranch_scc1 p1_ns
    ds_read_b128 v[72:75], v10 offset:{L_HIST}
    s_waitcnt lgkmcnt(0)
    v_add_u32 v57, v72, v73
    v_add_u32 v58, v57, v74
    v_add_u32 v59, v58, v75
    v_mov_b32 v60, v59
    s_nop 1""")
    for m in ('row_shr:1','row_shr:2','row_shr:4','row_shr:8'):
        a(f'v_add_u32_dpp v60, v60, v60 {m} {DPP} bound_ctrl:0\ns_nop 1')
    a(f"""v_add_u32_dpp v60, v60, v60 row_bcast:15 row_mask:0xa bank_mask:0xf
    s_nop 1
    v_add_u32_dpp v60, v60, v60 row_bcast:31 row_mask:0xc bank_mask:0xf
    v_sub_u32 v60, v60, v59
    v_add_u32 v61, v60, v72
    v_add_u32 v62, v60, v57
    v_add_u32 v63, v60, v58
    ds_write_b128 v10, v[60:63] offset:{L_HIST}
    v_lshl_or_b32 v56, v72, 16, v60
    v_lshl_or_b32 v57, v73, 16, v61
    v_lshl_or_b32 v58, v74, 16, v62
    v_lshl_or_b32 v59, v75, 16, v63
    s_cmp_ge_u32 s2, {NCH}
    s_cbranch_scc1 p1_ns
    s_lshl_b32 s65, s2, 10
    s_add_u32 s65, s65, {OFFS}
    buffer_store_dwordx4 v[56:59], v10, s[40:43], s65 offen sc1
    p1_ns:""")
    for i in range(4):
        d=12+i; s_=16+i; b=52+i; e=44+i
        a(f"""v_mul_u32_u24 v31, 10700, v{s_}
        v_lshrrev_b32 v30, 5, v{b}
        v_lshrrev_b32 v31, 26, v31
        v_mad_i32_i24 v{d}, v{b}, s64, v{d}
""")
        if ilv: a(f'v_xor_b32 v31, v31, v30\nv_lshrrev_b32 v30, 2, v31\nv_lshl_or_b32 v31, v31, 1, v30\nv_and_b32 v31, 7, v31')
        else: a(f'v_sub_u32 v31, v31, v30\nv_and_b32 v31, 7, v31')
        a(f'v_lshl_add_u32 v{d}, v{d}, 3, v31')
        line_calc(a,e,s_,30,31)
        a(f"""v_bfe_u32 v30, v{s_}, 7, 1
        v_lshl_or_b32 v30, v{d}, 2, v30
        v_lshl_or_b32 v{e}, v{e}, 15, v30""")
    a('s_waitcnt lgkmcnt(0)\ns_barrier')
    stamp('B3')
    a('s_mov_b64 exec, s[52:53]')
    for i in range(4): a(f'ds_read_b32 v{40+i}, v{40+i} offset:{L_HIST}')
    for i in range(4):
        a(f's_waitcnt lgkmcnt(3)\nv_add_lshl_u32 v{40+i}, v{40+i}, v{48+i}, 2')
        a(f'ds_write_b32 v{40+i}, v{44+i} offset:{L_ESTG}')
    a('s_mov_b64 exec, -1\ns_waitcnt lgkmcnt(0)\ns_barrier')
    stamp('B4')
    a(f"""s_mov_b64 exec, s[52:53]
    s_cbranch_execz p1_e3
    ds_read_b128 v[40:43], v10 offset:{L_ESTG}
    s_waitcnt lgkmcnt(0)
    buffer_store_dwordx4 v[40:43], v10, s[40:43], s55 offen sc1
    p1_e3:
    s_mov_b64 exec, -1""")
    if xpos==3:
        a(XL)
        a('s_cmp_lt_u32 s4, 12\ns_cbranch_scc1 p1_w4\ns_waitcnt vmcnt(2)\np1_w4:\ns_waitcnt vmcnt(4)')
    else: a('s_waitcnt vmcnt(0)')
    stamp('pa')
    a('s_barrier')
    stamp('aa')
    a('s_mov_b32 s66, 0x3f803f80\ns_waitcnt vmcnt(0)')
    for (X,D,n,m,off) in ((20,28,3,48,0),(24,29,4,50,832)):
        l=a.lab('xc')
        a(f's_mov_b64 exec, s[{m}:{m+1}]\ns_cbranch_execz {l}')
        a(f'v_lshlrev_b32 v{D}, 16, v{D}')
        for i in range(4):
            a(f"""v_lshlrev_b32 v64, 16, v{X+i}
            v_and_b32 v65, 0xffff0000, v{X+i}
            v_mul_f32 v64, v{D}, v64
            v_mul_f32 v65, v{D}, v65
            v_cvt_pk_bf16_f32 v{((100 if off==0 else 104) if upos else (68 if off==0 else 72))+i}, v64, v65""")
        ad=76 if off==0 else 78
        o=68 if off==0 else 72
        if not upos: a(f"""buffer_store_dwordx4 v[{o}:{o+3}], v{ad}, s[36:39], 0 offen sc1
        buffer_store_dwordx4 v[{o}:{o+3}], v{ad+1}, s[36:39], 0 offen sc1""")
        a(f'{l}:')
    for (X,D,n,m,off) in ((20,28,3,48,0),(24,29,4,50,832)):
        l=a.lab('xr')
        a(f's_mov_b64 exec, s[{m}:{m+1}]\ns_cbranch_execz {l}')
        rho_calc(a,X,64,65,None,'s66')
        a(f"""v_mov_b32 v65, v{D}
        v_lshlrev_b32 v66, 3, v2
        ds_write_b64 v66, v[64:65] offset:{L_R0+off}
        {l}:""")
    a('s_mov_b64 exec, -1\ns_branch p1_done')
    def P1D():
        a(f"""v_lshrrev_b32 v2, 2, v0
        v_and_b32 v3, 3, v0
        v_lshlrev_b32 v70, 10, v2
        s_lshl_b32 s92, s5, 2
        s_add_u32 s92, s92, {OFFS}
        s_movk_i32 s65, {NCH}
        v_cmp_gt_u32 s[48:49], s65, v2
        v_mov_b32 v72, {OOBV}
        v_and_b32 v73, 63, v0
        v_lshlrev_b32 v8, 2, v73
        v_cndmask_b32 v70, v72, v70, s[48:49]
        v_mul_u32_u24 v71, {CHE*4}, v2
        v_lshl_add_u32 v71, v3, 4, v71
        v_add_u32 v71, {CHUNK}, v71
        v_lshlrev_b32 v3, 2, v3
        v_mov_b32 v69, 4
        v_mov_b32 v21, 1""")
    a('; helper waves: 14 builds M = C Wq Wk^T C, 13 builds W = C Wv Wo, 15 probes placement and runs the first barriers')
    a(f"""p1_help:
    v_and_b32 v2, 63, v0
    v_and_b32 v3, 15, v0
    v_bfe_u32 v4, v0, 4, 2
    v_lshrrev_b32 v5, 2, v3
    v_and_b32 v6, 3, v0
    v_lshl_add_u32 v5, v5, 3, v6
    v_lshlrev_b32 v5, 7, v5
    v_lshl_add_u32 v5, v4, 4, v5
    v_add_u32 v7, 0x1000, v5
    s_waitcnt lgkmcnt(0)
    s_cmp_eq_u32 s4, 15
    s_cbranch_scc1 p1_probe
    s_barrier
    s_cmp_eq_u32 s4, 14
    s_cselect_b32 s64, s16, s20
    s_cselect_b32 s65, s17, s21""")
    WA=12; WBx=44; WD=[76,92,108,44]
    for t in range(4):
        for s_ in range(2):
            r=WA+8*t+4*s_
            a(f'global_load_dwordx4 v[{r}:{r+3}], v{5 if t<2 else 7}, s[64:65] offset:{512*(t&1)+64*s_}')
    a('s_cbranch_scc0 p1_wo')
    for t in range(4):
        for s_ in range(2):
            r=WBx+8*t+4*s_
            a(f'global_load_dwordx4 v[{r}:{r+3}], v{5 if t<2 else 7}, s[18:19] offset:{512*(t&1)+64*s_}')
    wsinit()
    XP=f"""v_add_u32 v8, s54, v2
    v_lshlrev_b32 v9, 7, v8
    s_mov_b32 s44, s8
    s_mov_b32 s45, s9
    s_mov_b32 s46, {N*128}
    s_mov_b32 s47, 0x20000
    s_movk_i32 s64, 0x2000
    s_movk_i32 s65, 0x4000
    buffer_load_dword v126, v9, s[44:47], 0 offen {xnt}
    buffer_load_dword v126, v9, s[44:47], s64 offen {xnt}
    buffer_load_dword v126, v9, s[44:47], s65 offen {xnt}
    s_movk_i32 s64, 0x6000
    s_mov_b64 exec, 15
    buffer_load_dword v126, v9, s[44:47], s64 offen {xnt}
    v_lshlrev_b32 v9, 7, v2
    s_lshl_b32 s64, s54, 1
    s_mov_b32 s44, s14
    s_mov_b32 s45, s15
    s_mov_b32 s46, {N*2}
    buffer_load_dword v126, v9, s[44:47], s64 offen {xnt}
    s_mov_b64 exec, -1"""
    if xpf==1: a(XP)
    a('s_barrier')
    if xpf==2: a(XP)
    a(f's_barrier\ns_barrier\ns_barrier\ns_waitcnt vmcnt({5 if xpf else 0})')
    a('s_branch p1_wm\np1_wo:\nv_lshlrev_b32 v8, 4, v2\nv_add_u32 v9, 0x1000, v8')
    for k in range(8):
        a(f'global_load_dwordx4 v[{76+4*k}:{79+4*k}], v{8 if k<4 else 9}, s[22:23] offset:{1024*(k&3)}')
    wsinit()
    a(f"""v_add_u32 v8, {L_WP}, v8
    v_bfe_u32 v9, v0, 2, 2
    v_lshl_add_u32 v9, v4, 3, v9
    v_lshlrev_b32 v9, 7, v9
    v_lshl_add_u32 v9, v6, 4, v9
    v_add_u32 v9, {L_WP}, v9
    s_barrier""")
    a('s_barrier\ns_barrier\ns_barrier\ns_waitcnt vmcnt(0)')
    for k in range(8): a(f'ds_write_b128 v8, v[{76+4*k}:{79+4*k}] offset:{1024*k}')
    a('s_waitcnt lgkmcnt(0)')
    for T in range(4):
        for s_ in range(2):
            for hf in range(2):
                r=WBx+8*T+4*s_+2*hf
                a(f'ds_read_b64_tr_b16 v[{r}:{r+1}], v9 offset:{4096*s_+512*hf+64*(T>>1)+8*(T&1)}')
        if T==2: a('s_waitcnt lgkmcnt(8)')
    a('s_waitcnt lgkmcnt(0)\np1_wm:')
    for T in range(4):
        for s_ in range(2):
            for t in range(4):
                d=WD[T]+4*t
                a(f'v_mfma_f32_16x16x32_bf16 v[{d}:{d+3}], v[{WA+8*t+4*s_}:{WA+8*t+4*s_+3}], v[{WBx+8*T+4*s_}:{WBx+8*T+4*s_+3}], '+(f'v[{d}:{d+3}]' if s_ else '0'))
    a('s_nop 7')
    for T in range(4):
        d=WD[T]
        a(f'v_pk_add_f32 v[{20+2*T}:{21+2*T}], v[{d}:{d+1}], v[{d+2}:{d+3}]')
    for k in range(2,8):
        for T in range(4):
            d=WD[T]; a(f'v_pk_add_f32 v[{20+2*T}:{21+2*T}], v[{20+2*T}:{21+2*T}], v[{d+2*k}:{d+2*k+1}]')
    for T in range(4): a(f'v_add_f32 v{12+T}, v{20+2*T}, v{21+2*T}')
    for sw in ('v_permlane16_swap_b32','v_permlane32_swap_b32'):
        for T in range(4): a(f'v_mov_b32 v{16+T}, v{12+T}')
        a('s_nop 1')
        for T in range(4): a(f'{sw} v{12+T}, v{16+T}')
        for T in range(4): a(f'v_add_f32 v{12+T}, v{12+T}, v{16+T}')
    for T in range(4): a(f'v_mul_f32 v{20+2*T}, 0xbc800000, v{12+T}')
    a('s_cmp_eq_u32 s4, 14\ns_cbranch_scc0 p1_wc')
    for k in range(8):
        a(f'v_pk_add_f32 v[{28+2*k}:{29+2*k}], v[{WD[0]+2*k}:{WD[0]+2*k+1}], v[{WD[1]+2*k}:{WD[1]+2*k+1}]')
    for T in (2,3):
        for k in range(8): a(f'v_pk_add_f32 v[{28+2*k}:{29+2*k}], v[{28+2*k}:{29+2*k}], v[{WD[T]+2*k}:{WD[T]+2*k+1}]')
    a('v_add_f32 v12, v20, v22\nv_add_f32 v13, v24, v26\nv_add_f32 v12, v12, v13\ns_nop 1')
    for m in ('quad_perm:[1,0,3,2]','quad_perm:[2,3,0,1]','row_half_mirror','row_mirror'):
        a(f'v_add_f32_dpp v12, v12, v12 {m} {DPP}')
        for k in range(16): a(f'v_add_f32_dpp v{28+k}, v{28+k}, v{28+k} {m} {DPP}')
    a('v_mul_f32 v12, 0xbc800000, v12\nv_mov_b32 v14, 0xbc800000')
    for T in range(4): a(f'v_add_f32 v{20+2*T}, v{20+2*T}, v12')
    for T in range(4):
        for k in range(8):
            d=WD[T]+2*k
            a(f'v_pk_fma_f32 v[{d}:{d+1}], v[{28+2*k}:{29+2*k}], v[14:15], v[{d}:{d+1}] op_sel_hi:[1,0,1]')
    a(f"""p1_wc:
    s_sub_u32 s64, 14, s4
    s_lshl_b32 s64, s64, 13
    s_add_u32 s64, s64, {L_W}
    v_lshlrev_b32 v8, 4, v2
    v_add_u32 v8, s64, v8""")
    for T in range(4):
        for k in range(8):
            d=WD[T]+2*k
            a(f'v_pk_add_f32 v[{d}:{d+1}], v[{d}:{d+1}], v[{20+2*T}:{21+2*T}] op_sel_hi:[1,0]')
        for s_ in range(2):
            d=WD[T]+8*s_
            for k in range(4): a(f'v_cvt_pk_bf16_f32 v{d+k}, v{d+2*k}, v{d+2*k+1}')
            a(f'ds_write_b128 v8, v[{d}:{d+3}] offset:{2048*T+1024*s_}')
    a('s_branch p1_done')
    a('p1_probe:')
    wsinit()
    a(f"""s_and_b32 s64, s2, 3
    s_and_b32 s74, s2, 1
    s_lshl_b32 s64, s64, 21
    s_lshr_b32 s65, s2, 2
    s_lshl_b32 s65, s65, 7
    s_add_u32 s64, s64, s65
    s_add_u32 s64, s64, {254*8192}
    v_mov_b32 v40, s64
    v_add_u32 v41, 0x2000, v40
    v_mov_b32 v42, 0
    v_mov_b32 v76, -1
    v_mov_b32 v77, -1
    v_mov_b32 v78, -1
    v_mov_b32 v79, -1
    v_cmp_gt_u32 vcc, 7, v2
    v_add_u32 v45, {SMALL//(2*MB)-7}, v2
    v_cmp_eq_u32 s[66:67], 7, v2
    v_cndmask_b32 v45, v45, v2, vcc
    v_cmp_eq_u32 vcc, 10, v2
    v_mov_b32 v46, 0x1fff80
    v_cndmask_b32 v46, v46, 0, s[66:67]
    v_cndmask_b32 v45, v45, {BARP//(2*MB)}, vcc
    v_lshl_add_u32 v45, v45, 21, v46
    TLB0
    s_mov_b64 exec, 1
    global_atomic_add v43, v40, v42, s[30:31] sc0 sc1
    global_atomic_add v44, v41, v42, s[30:31] sc0 sc1
    s_mov_b32 s63, 0
    s_mov_b32 s62, 1""")
    baraddr(a,BARP+16384)
    def rounds(nm,n):
        a(f"""s_mov_b32 s72, 0
        {nm}:
        global_atomic_add v43, v40, v42, s[30:31] sc0 sc1
        global_atomic_add v44, v41, v42, s[30:31] sc0 sc1
        s_waitcnt vmcnt(1)
        s_memtime s[68:69]
        s_waitcnt vmcnt(0)
        s_memtime s[70:71]
        v_swap_b32 v40, v41
        s_waitcnt lgkmcnt(0)
        s_sub_u32 s66, s70, s68
        s_sub_u32 s67, s66, s67
        s_add_u32 s72, s72, 1
        s_cmp_lt_u32 s72, {n}
        s_cbranch_scc1 {nm}""")
    a("""s_barrier
    s_barrier
    s_barrier
    global_load_dword v58, v42, s[28:29] sc1
    s_barrier
    s_mov_b32 s67, 0
    s_waitcnt vmcnt(0)""")
    if pa: rounds('p1_pl',pa)
    a(f"""s_mov_b32 s64, 0
    s_barrier
    gb0_i:
    v_readfirstlane_b32 s65, v58
    s_cmp_lg_u32 s65, 0
    s_cbranch_scc1 gb0_id
    s_sleep 2
    global_load_dword v58, v42, s[28:29] sc1
    s_add_u32 s64, s64, 1
    s_cmp_lt_u32 s64, 0x400000
    s_waitcnt vmcnt(0)
    s_cbranch_scc1 gb0_i
    gb0_id:""")
    bar_arrive(a,'gb0')
    rounds('p1_pm',nprobe-pa)
    a(f"""s_cmp_gt_i32 s67, 0
    s_cselect_b32 s65, 1, 0
    s_xor_b32 s65, s65, s6
    s_xor_b32 s65, s65, s74
    s_lshl_b32 s65, s65, 8
    s_or_b32 s93, s65, 1""")
    baraddr(a,BARP+32768)
    a('s_mov_b64 exec, -1')
    P1D()
    a('s_mov_b64 exec, 1\ns_mov_b32 s64, 8')
    bar_poll(a,'gb0')
    a('s_mov_b64 exec, -1\ns_branch p1_d9')
    a('p1_done:')
    P1D()
    a('p1_d9:\ns_waitcnt vmcnt(0) lgkmcnt(0)')
    stamp('p1')
    a('s_barrier')
    stamp('b0')
    if stop=='p1': a('s_endpgm')
    a('; P2: gather this bucket from all chunks, sort by node and source range')
    a(f"""buffer_load_dword v5, v70, s[40:43], s92 offen sc1
    s_cmp_lg_u32 s4, 15
    s_cbranch_scc1 p2_na
    s_mov_b64 exec, 1
    v_mov_b32 v57, s93
    v_mov_b32 v56, s56
    global_atomic_add v58, v56, v57, s[30:31] sc0 sc1
    s_mov_b64 exec, -1
    p2_na:
    s_waitcnt vmcnt(0)
    v_and_b32 v9, 0xffff, v5
    v_lshrrev_b32 v11, 16, v5
    v_lshl_add_u32 v4, v9, 2, v71
    v_cndmask_b32 v4, v72, v4, s[48:49]
    buffer_load_dwordx4 v[12:15], v4, s[40:43], 0 offen sc1
    buffer_load_dwordx4 v[16:19], v4, s[40:43], 0 offen offset:64 sc1
    v_sub_u32 v20, v11, v3
    v_mov_b32 v6, v72
    v_mov_b32 v7, v73
    s_cmp_lg_u32 s4, 15
    s_cbranch_scc1 p2_nw
    s_mov_b64 exec, 1
    v_add_u32 v57, v57, v58
    v_mov_b32 v56, s57
    v_readfirstlane_b32 s65, v57
    s_and_b32 s64, s65, 0xff
    s_cmp_lg_u32 s64, 32
    s_cbranch_scc1 gbb_np
    s_sub_u32 s65, s65, 31""")
    bar_l2(a,'gbb')
    a('s_mov_b64 exec, -1\np2_nw:')
    if u0pf:
        a('s_cmp_ge_u32 s4, 13\ns_cbranch_scc1 p2_np\ns_mov_b32 exec_lo, 0x01010101\ns_mov_b32 exec_hi, 0x01010101')
        for r in (76,77,78,79): a(f'buffer_load_dword v127, v{r}, s[36:39], 0 offen sc1')
        a('s_mov_b64 exec, -1\ns_waitcnt vmcnt(4)\ns_branch p2_np2\np2_np:\ns_waitcnt vmcnt(0)\np2_np2:')
    def each_entry(body,regs,base):
        for r,e in enumerate(regs):
            a(f'v_cmpx_lt_i32 vcc, {base[r]}, v20')
            body(e)
        a('s_mov_b64 exec, -1')
    regs=list(range(12,20)); base=[0,1,2,3,16,17,18,19]
    def pass1(regs):
        for k,e in enumerate(regs): a(f'v_and_b32 v{80+k}, 0x1ffc, v{e}')
        ad={e:80+k for k,e in enumerate(regs)}
        each_entry(lambda e: a(f'ds_add_u32 v{ad[e]}, v21 offset:{L_CNT}'),regs,base)
    US=''.join(f'buffer_store_dwordx4 v[{d}:{d+3}], v{r}, s[36:39], 0 offen sc1\n' for d,r in ((100,76),(100,77),(104,78),(104,79)))
    if upos==1: a('s_cmp_ge_u32 s4, 13\ns_cbranch_scc1 p2_x0\n'+US+'s_waitcnt vmcnt(4)\ns_branch p2_x1\np2_x0:\ns_waitcnt vmcnt(0)\np2_x1:')
    else: a('s_waitcnt vmcnt(0)')
    stamp('sg')
    pass1(regs)
    def longseg(nm,whole):
        a(f"""v_cmp_lt_i32 vcc, 32, v20
        s_cbranch_vccnz {nm}
        {nm}_d:""")
        def tail():
            a(f"""{nm}:
            v_mov_b32 v23, v20
            v_mov_b32 v24, v4
            {nm}_l:
            v_subrev_u32 v20, 32, v20
            v_add_u32 v24, 128, v24
            v_cmp_lt_i32 vcc, 0, v20
            s_cbranch_vccz {nm}_r
            buffer_load_dwordx4 v[28:31], v24, s[40:43], 0 offen sc1
            buffer_load_dwordx4 v[32:35], v24, s[40:43], 0 offen offset:64 sc1
            s_waitcnt vmcnt(0)""")
            whole(list(range(28,36)))
            a(f"""s_branch {nm}_l
            {nm}_r:
            v_mov_b32 v20, v23""")
            for k,e in enumerate(regs): a(f'v_and_b32 v{80+k}, 0x1ffc, v{e}')
            a(f's_branch {nm}_d')
        tails.append(tail)
    tails=[]
    if upos==2: a('s_cmp_ge_u32 s4, 13\ns_cbranch_scc1 p2_x2\n'+US+'p2_x2:')
    longseg('ls1',pass1)
    a('s_waitcnt lgkmcnt(0)\ns_barrier')
    stamp('c1')
    a(f"""s_cmp_ge_u32 s4, 4
    s_cbranch_scc1 p2_n1
    v_add_u32 v36, s54, v0
    s_mov_b32 s64, {N}
    v_cmp_gt_u32 vcc, s64, v36
    s_movk_i32 s64, {BS}
    v_cmp_gt_u32 s[64:65], s64, v0
    s_and_b64 s[66:67], vcc, s[64:65]
    s_mov_b64 exec, s[66:67]
    v_lshlrev_b32 v37, 5, v0
    v_lshlrev_b32 v38, 3, v0
    ds_read_b128 v[40:43], v37 offset:{L_CNT}
    ds_read_b128 v[44:47], v37 offset:{L_CNT+16}
    ds_read_b64 v[58:59], v38 offset:{L_R0}""")
    line_calc(a,66,36,62,63)
    a(f"""v_lshlrev_b32 v66, 7, v66
    DUP128 62 36
    v_add_u32 v67, 0x2000, v66
    v_cmp_ne_u32 vcc, 0, v62
    v_mov_b32 v48, 0
    s_waitcnt lgkmcnt(1)
    v_cndmask_b32 v67, v6, v67, vcc
    v_mov_b32 v49, v40
    v_add_u32 v50, v49, v41
    v_add_u32 v51, v50, v42
    v_add_u32 v52, v51, v43
    v_add_u32 v53, v52, v44
    v_add_u32 v54, v53, v45
    v_add_u32 v55, v54, v46
    v_add_u32 v65, v55, v47
    v_min_u32 v57, 63, v65
    v_sub_u32 v57, 63, v57
    v_lshlrev_b32 v57, 2, v57
    ds_add_rtn_u32 v60, v57, v21 offset:{L_DH}
    s_mov_b64 exec, -1
    p2_n1:""")
    def offs(regs):
        for e in regs:
            a(f"""v_lshrrev_b32 v26, 29, v{e}
            v_lshrrev_b32 v27, 8, v{e}
            v_bfe_u32 v26, s58, v26, 1
            v_and_b32 v27, 0xffffff80, v27
            v_and_b32 v26, v26, v{e}
            v_lshl_add_u32 v{e}, v26, 13, v27""")
    a('s_cmp_lg_u32 s4, 15\ns_cbranch_scc1 p2_nq\ns_mov_b64 exec, 1\nv_mov_b32 v56, s57\ns_mov_b32 s64, 8')
    bar_poll(a,'gbb',votes=True)
    a(f"""v_mov_b32 v62, {L_RED}
    ds_write_b32 v62, v58 offset:8
    s_mov_b64 exec, -1
    p2_nq:
    v_mov_b32 v62, {L_RED}
    s_waitcnt lgkmcnt(0)
    s_barrier
    ds_read_b32 v63, v62 offset:8
    ds_read_b32 v61, v8 offset:{L_DH}
    s_waitcnt lgkmcnt(0)
    v_readfirstlane_b32 s60, v63
    s_cmp_ge_u32 s60, 0x8000
    s_cselect_b32 s61, 1, 0
    s_xor_b32 s58, s61, s6
    s_lshr_b32 s58, 0xaa, s58
    s_cmp_ge_u32 s4, 4
    s_cbranch_scc1 p2_n2
    v_mov_b32 v62, v61
    s_nop 1""")
    for m in ('row_shr:1','row_shr:2','row_shr:4','row_shr:8'):
        a(f'v_add_u32_dpp v62, v62, v62 {m} {DPP} bound_ctrl:0\ns_nop 1')
    a(f"""v_add_u32_dpp v62, v62, v62 row_bcast:15 row_mask:0xa bank_mask:0xf
    s_nop 1
    v_add_u32_dpp v62, v62, v62 row_bcast:31 row_mask:0xc bank_mask:0xf
    v_sub_u32 v62, v62, v61
    ds_bpermute_b32 v62, v57, v62
    s_mov_b64 exec, s[66:67]
    v_or_b32 v64, v59, v0
    s_waitcnt lgkmcnt(0)
    v_add_u32 v60, v60, v62
    v_mul_u32_u24 v61, {0x400000+160}, v60""")
    for j in range(8): a(f'v_lshl_add_u32 v{48+j}, v{48+j}, 2, v61')
    a(f"""ds_write_b128 v37, v[48:51] offset:{L_CNT}
    ds_write_b128 v37, v[52:55] offset:{L_CNT+16}
    v_lshlrev_b32 v62, 4, v60
    ds_write_b128 v62, v[64:67] offset:{L_INFO}
    v_lshlrev_b32 v62, 5, v60
    v_add_u32 v62, {L_RHO-65024}, v62
    ds_write_b32 v62, v58 offset:65024
    v_cmp_lt_u32 vcc, {CAP}, v65
    s_and_b64 exec, exec, vcc
    s_cbranch_execz p2_n3
    v_subrev_u32 v56, {CAP}, v65
    v_mov_b32 v62, {L_RED}
    ds_add_rtn_u32 v63, v62, v56
    v_lshlrev_b32 v62, 2, v60
    s_waitcnt lgkmcnt(0)
    ds_write_b32 v62, v63 offset:{L_INF2}
    s_branch p2_n3
    p2_n2:""")
    offs(regs)
    a('p2_n3:\ns_mov_b64 exec, -1')
    a('s_waitcnt lgkmcnt(0)'+(' vmcnt(0)' if upos and uarr=='nd' else '')+'\ns_barrier')
    stamp('nd')
    UA='s_cmp_lg_u32 s4, 15\ns_cbranch_scc1 p2_u1\ns_mov_b64 exec, 1\nv_mov_b32 v56, s56\nv_add_u32 v56, 0x4000, v56\nglobal_atomic_add v60, v56, v21, s[30:31] sc0 sc1\ns_mov_b64 exec, -1\np2_u1:'
    def UB():
        a('s_mov_b64 exec, 1\ns_waitcnt vmcnt(0)\nv_cmp_ne_u32 vcc, 31, v60\ns_cbranch_vccnz gbu_np\ns_add_u32 s75, s75, 0x4000\ns_mov_b32 s65, 1')
        bar_l2(a,'gbu')
        a('s_mov_b64 exec, -1')
    if upos and uarr=='nd': a(UA)
    def pass2(regs,slow):
        cur={e:40+k for k,e in enumerate(regs)}; ad={e:80+k for k,e in enumerate(regs)}
        each_entry(lambda e: a(f'ds_add_rtn_u32 v{cur[e]}, v{ad[e]}, v69 offset:{L_CNT}'),regs,base)
        if not slow:
            a(f"""v_mov_b32 v62, {L_RED}
            ds_read_b32 v63, v62
            s_cmp_ge_u32 s4, 4
            s_cbranch_scc1 p2_o2""")
            offs(regs)
            a(f"""p2_o2:
            s_movk_i32 s64, 160
            s_mov_b32 s65, 0x3fffff
            s_waitcnt lgkmcnt(0)
            v_readfirstlane_b32 s59, v63
            s_cmp_lg_u32 s59, 0
            s_cbranch_scc1 p2_ovf""")
            for e in regs:
                a(f'v_and_b32 v{cur[e]}, s65, v{cur[e]}')
            each_entry(lambda e: a(f'ds_write_b32 v{cur[e]}, v{e} offset:{L_LIST}'),regs,base)
        else:
            a('s_waitcnt lgkmcnt(0)')
            slow2(regs)
    def slow2(regs):
        cur={e:40+k for k,e in enumerate(regs)}
        for r,e in enumerate(regs):
            l=a.lab('ov')
            a(f"""v_cmp_lt_i32 s[70:71], {base[r]}, v20
            v_lshrrev_b32 v26, 22, v{cur[e]}
            v_and_b32 v22, s65, v{cur[e]}
            v_mul_u32_u24 v25, s64, v26
            v_sub_u32 v25, v22, v25
            v_lshrrev_b32 v25, 2, v25
            v_cmp_gt_u32 vcc, {CAP}, v25
            s_and_b64 exec, s[70:71], vcc
            ds_write_b32 v22, v{e} offset:{L_LIST}
            s_andn2_b64 exec, s[70:71], vcc
            s_cbranch_execz {l}
            v_lshlrev_b32 v26, 2, v26
            ds_read_b32 v26, v26 offset:{L_INF2}
            v_subrev_u32 v25, {CAP}, v25
            s_waitcnt lgkmcnt(0)
            v_add_lshl_u32 v25, v25, v26, 2
            buffer_store_dword v{e}, v25, s[40:43], s59 offen
            {l}:
            s_mov_b64 exec, -1""")
    pass2(regs,False)
    a('p2_ovd:')
    def long2(regs):
        for k,e in enumerate(regs): a(f'v_and_b32 v{80+k}, 0x1ffc, v{e}')
        offs(regs); pass2(regs,True)
    longseg('ls2',long2)
    def ovf_tail():
        a(f"""p2_ovf:
        v_cmp_eq_u32 vcc, 0, v3
        s_mov_b64 exec, vcc
        ds_add_u32 v62, v9 offset:4
        s_mov_b64 exec, -1
        s_waitcnt lgkmcnt(0)
        s_barrier
        ds_read_b32 v63, v62 offset:4
        s_waitcnt lgkmcnt(0)
        v_readfirstlane_b32 s59, v63
        s_lshl_b32 s59, s59, 2
        s_add_u32 s59, s59, {OVF}""")
        slow2(regs)
        a('s_branch p2_ovd')
    tails.append(ovf_tail)
    if upos and uarr=='nd':
        a('s_cmp_lg_u32 s4, 15\ns_cbranch_scc1 p2_u2'); UB(); a('p2_u2:')
    a('s_waitcnt vmcnt(0) lgkmcnt(0)\ns_barrier')
    stamp('c2')
    if upos:
        a('s_cmp_eq_u32 s4, 15\ns_cbranch_scc1 k_hb')
    a('s_cmp_ge_u32 s4, 13\ns_cbranch_scc1 k_end')
    a(f"""v_mov_b32 v0, v7
    v_lshrrev_b32 v115, 3, v0
    s_lshl_b32 s64, s4, 4
    v_add_u32 v115, s64, v115
    v_and_b32 v114, 3, v0
    v_mul_u32_u24 v6, 160, v115
    v_lshl_add_u32 v7, v114, 3, v6
    v_lshl_add_u32 v6, v114, 4, v6
    ds_read_b128 v[16:19], v6 offset:{L_LIST}
    ds_read_b128 v[26:29], v6 offset:{L_LIST+1280}
    v_lshlrev_b32 v116, 4, v115
    v_and_b32 v1, 7, v0
    v_lshlrev_b32 v1, 4, v1""")
    for s in range(2):
        o=16+10*s
        a(f"""ds_read_b128 v[{100+4*s}:{103+4*s}], v116 offset:{L_INFO+128*s}
        ds_read_b128 v[{o+4}:{o+7}], v6 offset:{L_LIST+1280*s+64}
        ds_read_b64 v[{o+8}:{o+9}], v7 offset:{L_LIST+1280*s+128}""")
    a(f"""s_mov_b32 s32, s36
    s_mov_b32 s33, s37
    s_mov_b32 s34, s38
    s_mov_b32 s35, 0x20000
    s_mov_b32 s3, 1
    v_mov_b32 v126, -1
    s_waitcnt lgkmcnt(6)""")
    stamp('p2')
    def deferred():
        a(f"""v_lshlrev_b32 v116, 2, v115
        ds_read_b32 v122, v116 offset:{L_INF2}
        ds_read_b32 v123, v116 offset:{L_INF2+32}
        v_mov_b32 v6, 0x3f80
        v_mov_b32 v7, 0x3f800000
        v_cmp_eq_u32 s[70:71], 0, v114
        v_cmp_eq_u32 s[64:65], 1, v114
        v_cmp_eq_u32 s[66:67], 2, v114
        v_cmp_eq_u32 s[68:69], 3, v114
        v_cndmask_b32 v2, 0, v6, s[70:71]
        v_cndmask_b32 v3, 0, v6, s[66:67]
        v_cndmask_b32 v2, v2, v7, s[64:65]
        v_cndmask_b32 v3, v3, v7, s[68:69]
        s_movk_i32 s64, {BS}
        v_cmp_gt_u32 s[48:49], s64, v115
        s_movk_i32 s64, {BS-8}
        v_cmp_gt_u32 s[50:51], s64, v115
        v_lshlrev_b32 v116, 7, v115
        v_lshlrev_b32 v117, 5, v115
        v_add_u32 v117, {L_RHO}, v117
        s_waitcnt lgkmcnt(0)
        v_max_u32 v4, v101, v105
        v_mov_b32 v120, v101
        v_mov_b32 v121, v105
        v_max_u32_dpp v4, v4, v4 row_shr:8 {DPP} bound_ctrl:0
        s_nop 1
        v_max_u32_dpp v4, v4, v4 row_bcast:15 row_mask:0xa bank_mask:0xf
        s_nop 1
        v_max_u32_dpp v4, v4, v4 row_bcast:31 row_mask:0xc bank_mask:0xf
        s_nop 1
        v_readlane_b32 s53, v4, 63""")
        for s in range(2):
            i=100+4*s
            a(f"""v_add_u32 v{8+s}, v{i+2}, v1
            v_add_u32 v{10+s}, v{i+3}, v1
            v_and_b32 v4, 0xffff0000, v{i}
            v_mul_f32 v{12+s}, v4, v4
            v_cmp_eq_f32 s[64:65], 0, v4
            v_and_b32 v5, 0xffff, v{i}
            v_add_u32 v5, s54, v5
            v_cndmask_b32 v{124+s}, v4, 1.0, s[64:65]
            v_lshl_add_u32 v{118+s}, v5, 7, v1
            v_cmp_gt_u32 s[64:65], s38, v{i+2}
            v_rcp_f32 v{14+s}, v{124+s}
            s_nop 0
            v_cndmask_b32 v{118+s}, v{i+2}, v{118+s}, s[64:65]""")
        a(f"""s_max_u32 s52, s53, {K//2}
        s_min_u32 s52, s52, {CAP}
        s_add_u32 s36, s36, {TSTR}
        s_addc_u32 s37, s37, 0
        s_mov_b32 s76, 0x3f803f80
        v_lshrrev_b32 v4, 4, v0
        v_lshlrev_b32 v4, 4, v4
        global_load_dwordx4 v[84:87], v4, s[24:25]
        global_load_dwordx4 v[88:91], v4, s[24:25] offset:64""")
    def late():
        a(f"""s_mul_i32 s95, s4, {STG}
        s_add_u32 s95, s95, {L_STAGE}
        s_xor_b32 s63, s61, 1
        s_mov_b32 s62, 0""")
        a('s_cmp_lg_u32 s4, 0\ns_cbranch_scc1 f_nb')
        baraddr(a,BARP)
        if stamps: a('s_mov_b32 s94, s60')
        a('f_nb:')
        if stag>=4: a(f'v_mov_b32 v4, {L_END}\nv_mov_b32 v5, 0\nds_write_b32 v4, v5')
        if pf:
            a(f"""v_lshrrev_b32 v4, 4, v0
            v_lshl_add_u32 v4, v4, 5, s5
            v_and_b32 v4, 0xff, v4
            v_mul_u32_u24 v4, {BS}, v4
            v_and_b32 v5, 15, v0
            s_lshl_b32 s64, s4, 4
            s_sub_u32 s64, s64, 16
            v_add3_u32 v4, v4, v5, s64""")
            line_calc(a,126,4,5,6)
            a(f"""v_lshrrev_b32 v5, 14, v126
            v_bfe_u32 v5, s58, v5, 1""")
            if not OWN: a('DUP128 6 4\nv_lshrrev_b32 v6, 7, v6\nv_and_b32 v5, v5, v6')
            a(f"""
            v_lshl_add_u32 v126, v5, 6, v126
            v_lshlrev_b32 v126, 7, v126""")
    def late2():
        for s_ in range(2):
            a(f"""s_mov_b64 exec, s[{48+2*s_}:{49+2*s_}]
            v_lshrrev_b32 v4, 3, v116
            v_add_u32 v4, {L_ND+128*s_}, v4
            v_mov_b32 v52, v{124+s_}
            v_mov_b32 v53, v{14+s_}
            v_sub_u32 v54, v{118+s_}, v1
            v_mov_b32 v55, 0
            ds_write_b128 v4, v[52:55]""")
        a(f"""s_mov_b64 exec, -1
        v_lshrrev_b32 v4, 2, v0
        v_xor_b32 v4, s63, v4
        v_and_b32 v4, 1, v4
        v_lshlrev_b32 v4, 13, v4
        v_lshl_add_u32 v4, v0, 8, v4
        v_add_u32 v124, {BARP+4096}, v4""")
    if dump:
        deferred()
        a(f's_lshl_b32 s64, s2, 4\ns_add_u32 s64, s64, s4\ns_mul_i32 s64, s64, {40*256}\ns_add_u32 s64, s64, {DUMP}\nv_lshlrev_b32 v4, 2, v0\nv_add_u32 v4, s64, v4')
        for i,r in enumerate(list(range(8,36))+list(range(118,126))):
            a(f'global_store_dword v4, v{r}, s[30:31]\nv_add_u32 v4, 256, v4')
        a('v_mov_b32 v5, s53\nglobal_store_dword v4, v5, s[30:31]\nv_add_u32 v4, 256, v4\nv_mov_b32 v5, s60\nglobal_store_dword v4, v5, s[30:31]\nv_add_u32 v4, 256, v4\nds_read_b32 v5, v117\ns_waitcnt lgkmcnt(0)\nglobal_store_dword v4, v5, s[30:31]')
    if stop=='p2': a('s_endpgm')
    if hprio:
        a(f's_setprio {hprio[2]}\ns_cmp_ge_u32 s4, 8\ns_cbranch_scc1 h_pr\ns_setprio {hprio[1]}\ns_cmp_ge_u32 s4, 4\ns_cbranch_scc1 h_pr\ns_setprio {hprio[0]}\nh_pr:')
    if upos: deferred()
    for k,(r,o) in enumerate(((4,16),(5,26),(6,17),(7,27))): a(f'v_add_u32_dpp v{r}, v{o}, v1 quad_perm:[0,0,0,0] {DPP}')
    if upos: a('s_barrier')
    stamp('h0')
    if side in ('min','minb'):
        a('s_waitcnt lgkmcnt(0)\ns_cmp_lg_u32 s4, 0\ns_cbranch_scc1 sd_n\ns_not_b32 s64, s80\nv_mov_b32 v4, 0\nv_mov_b32 v5, s64\ns_mov_b64 exec, 1\nglobal_atomic_umax v4, v5, s[28:29] offset:8 sc1\ns_mov_b64 exec, -1\nsd_n:')
    a('h_top:')
    XA=52; XB=68; TA=120; TB=[40,41,42,43,48,49,50,51]; TQ=10; WB=[18,22,26]; Z=10; ST=[84,88]; BA=92; BB=96; BO=100
    vW,vOq,vA,vTr,vRk,vRq,vNd,vNs,vBw,vBr,vNo,vS=range(104,116); vAq=114+11
    mRA,mRT,mVA,mVB,mH0,mRH,mCA,mCB='s[10:11]','s[12:13]','s[14:15]','s[16:17]','s[18:19]','s[20:21]','s[22:23]','s[8:9]'
    t0_,t1_,cq,dq=2,3,4,5; sv=6; vo=7
    def tokaddr(dst,n,h,ch,t1,t2,mask):
        a(f"""v_lshlrev_b32 v{t1}, 4, v{ch}
        v_lshl_add_u32 v{t1}, v{n}, 7, v{t1}
        v_and_b32 v{t2}, 3, v{h}
        v_lshl_add_u32 v{t1}, v{t2}, 6, v{t1}
        v_lshrrev_b32 v{t2}, 2, v{h}
        v_lshl_add_u32 v{t1}, v{t2}, 5, v{t1}
        v_subrev_u32 v{t2}, 1, v{h}
        v_cmp_gt_u32 {mask}, 4, v{t2}
        v_mul_u32_u24 v{t2}, {PL2}, v{t2}
        v_add3_u32 v{t2}, v{t2}, v{t1}, s64
        v_subrev_u32 v{dst}, 4, v{h}
        v_max_i32 v{dst}, 0, v{dst}
        v_lshl_add_u32 v{dst}, v{dst}, 9, v{t1}
        v_add_u32 v{dst}, s95, v{dst}
        v_cndmask_b32 v{dst}, v{dst}, v{t2}, {mask}""")
    J,Q,C3,Q16,H,NN,QH,T1,T2,T3,T4,T5=4,5,6,7,56,57,58,59,60,61,62,63
    def fsetup():
        a(f"""v_and_b32 v{J}, 15, v0
        v_lshrrev_b32 v{Q}, 4, v0
        v_lshlrev_b32 v{Q16}, 4, v{Q}
        s_lshl_b32 s64, s4, 11
        v_and_b32 v{H}, 7, v0
        v_lshrrev_b32 v{NN}, 3, v{J}
        v_bfe_u32 v{T1}, v0, 3, 2
        v_lshl_add_u32 v{T1}, v{T1}, 7, v1
        v_add_u32 v{vS}, s95, v{T1}""")
        tokaddr(vA,NN,H,Q,T1,T2,mRA)
        a(f"""v_lshrrev_b32 v{QH}, 1, v{Q}
        v_and_b32 v{T3}, 1, v{Q}
        v_bfe_u32 v{T4}, v0, 2, 2
        v_lshl_add_u32 v{T3}, v{T3}, 2, v{T4}
        v_and_b32 v{C3}, 3, v0
        v_lshlrev_b32 v{T4}, 8, v{NN}
        v_sub_u32 v{vAq}, v{vA}, v{T4}
        v_add_u32 v{vAq}, 0x180, v{vAq}""")
        tokaddr(vTr,QH,T3,C3,T1,T2,mRT)
        a(f"""v_cmp_eq_u32 {mVA}, v{QH}, v{NN}
        v_cmp_ne_u32 {mVB}, v{QH}, v{NN}
        v_cmp_eq_u32 {mH0}, 0, v{H}
        v_cmp_gt_u32 {mRH}, 2, v{Q}
        v_cmp_gt_u32 s[66:67], 2, v{J}
        s_lshl_b32 s64, s4, 9
        s_add_u32 s64, s64, {L_RHO}
        s_lshl_b32 s65, s4, 8
        s_add_u32 s65, s65, {L_ND}
        v_lshlrev_b32 v{T1}, 2, v{J}
        v_xor_b32 v{T2}, 0x60, v{T1}
        v_add_u32 v{T4}, 64, v{Q16}
        v_cndmask_b32 v{vRk}, v{T4}, v{Q16}, {mVA}
        v_cndmask_b32 v{vRq}, v{T2}, v{T1}, {mVA}
        v_cndmask_b32 v{vBw}, v{T2}, v{T1}, {mRH}
        v_cndmask_b32 v{vBr}, v{T4}, v{Q16}, s[66:67]
        v_lshlrev_b32 v{T1}, 4, v{NN}
        v_xor_b32 v{T2}, 0x30, v{T1}
        v_cndmask_b32 v{vNd}, v{T2}, v{T1}, {mVA}
        v_cndmask_b32 v{vNs}, v{T2}, v{T1}, {mRH}
        v_lshlrev_b32 v{vNo}, 4, v{C3}""")
        for r in (vRk,vRq,vBw,vBr): a(f'v_add_u32 v{r}, s64, v{r}')
        for r in (vNd,vNs,vNo): a(f'v_add_u32 v{r}, s65, v{r}')
    def fsetup2():
        a(f"""v_and_b32 v{J}, 15, v0
        v_lshrrev_b32 v{Q}, 4, v0
        v_lshlrev_b32 v{Q16}, 4, v{Q}
        v_lshrrev_b32 v{QH}, 1, v{Q}
        v_and_b32 v{C3}, 3, v0
        v_lshlrev_b32 v{T1}, 2, v{Q}
        v_sub_u32 v{T2}, v{J}, v{T1}
        v_xor_b32 v{T3}, 8, v{J}
        v_sub_u32 v{T3}, v{T3}, v{T1}
        v_mov_b32 v{T4}, 0x3f80
        v_mov_b32 v{T5}, 0x3f800000""")
        for B_,d in ((BA,T2),(BB,T3)):
            for hf in range(2):
                a(f"""v_cmp_eq_u32 s[66:67], {2*hf}, v{d}
                v_cmp_eq_u32 s[68:69], {2*hf+1}, v{d}
                v_mov_b32 v{B_+2+hf}, 0
                v_cndmask_b32 v{B_+hf}, 0, v{T4}, s[66:67]
                v_cndmask_b32 v{B_+hf}, v{B_+hf}, v{T5}, s[68:69]""")
        for i in range(4): a(f'v_mov_b32 v{BO+i}, 0')
        a(f"""v_cmp_eq_u32 {mCA}, v{J}, v{QH}
        v_add_u32 v{QH}, 2, v{QH}
        v_cmp_eq_u32 {mCB}, v{J}, v{QH}
        v_mov_b32 v{vOq}, v{Q16}
        v_lshlrev_b32 v{vW}, 4, v0
        v_add_u32 v{vW}, {L_W}, v{vW}
        v_cmp_eq_u32 s[66:67], 0, v{C3}
        v_cmp_eq_u32 s[68:69], 1, v{C3}
        v_mov_b32 v{T1}, s76
        v_dot2_f32_bf16 v{T3}, v{ST[0]}, s76, 0""")
        for r in [ST[0]+1,ST[0]+2,ST[0]+3,ST[1],ST[1]+1,ST[1]+2,ST[1]+3]: a(f'v_dot2_f32_bf16 v{T3}, v{r}, s76, v{T3}')
        for b in ST:
            for i in range(4): a(f'v_cndmask_b32 v{b+i}, 0, v{b+i}, s[68:69]\nv_cndmask_b32 v{b+i}, v{b+i}, v{T1}, s[66:67]')
        a(f"""v_readlane_b32 s64, v{T3}, 0
        v_readlane_b32 s65, v{T3}, 16
        v_readlane_b32 s66, v{T3}, 32
        v_readlane_b32 s67, v{T3}, 48
        v_mov_b32 v{T1}, s64
        v_add_f32 v{T1}, s65, v{T1}
        v_add_f32 v{T1}, s66, v{T1}
        v_add_f32 v{T1}, s67, v{T1}
        v_mul_f32 v{T1}, 0x3c800000, v{T1}
        s_mov_b32 s74, 0x3e38aa3b
        v_readfirstlane_b32 s55, v{T1}""")
    acc=[36,44]; d0=52; off=[16,26]; va=[4,5,6,7]
    def mf(s_,sl):
        a(f'v_mfma_f32_4x4x4_16b_bf16 v[{acc[s_]}:{acc[s_]+3}], v[2:3], v[{sl}:{sl+1}], v[{acc[s_]}:{acc[s_]+3}]')
        a(f'v_mfma_f32_4x4x4_16b_bf16 v[{acc[s_]+4}:{acc[s_]+7}], v[2:3], v[{sl+2}:{sl+3}], v[{acc[s_]+4}:{acc[s_]+7}]')
    def dma(pair):
        sl=pair>>1; hf=pair&1
        a(f's_mov_b32 exec_lo, {0 if hf else -1}\ns_mov_b32 exec_hi, {-1 if hf else 0}')
        for (srd,v,o) in ((44,118+sl,0),(96,8+sl,608),(32,8+sl,1184)):
            a(f's_add_u32 m0, s95, {o-512*hf}' if o-512*hf>=0 else f's_sub_u32 m0, s95, {512*hf-o}')
            a(f's_nop 0\nbuffer_load_dwordx4 v{v}, s[{srd}:{srd+3}], 0 offen {"" if srd==44 else "sc1"} lds')
        a('s_mov_b64 exec, -1')
    def hop7():
        a(f"""s_cmp_lg_u32 s3, 7
        s_cbranch_scc1 h_nx
    """)
        dma(0)
        a('s_setprio 3')
        if stag==1:
            a('s_setprio 3\ns_cmp_ge_u32 s4, 8\ns_cbranch_scc1 h_nx\ns_setprio 2\ns_cmp_ge_u32 s4, 4\ns_cbranch_scc1 h_nx\ns_setprio 1')
        if stag==2: a('s_setprio 3')
        if stag>=4:
            G={4:(8,4,5,9),5:(6,6,7,7),6:(10,5,3,8),7:(9,5,4,8),8:(8,4,4,8),9:(8,4,3,7),10:(8,4,5,8)}[stag]
            a(f'''s_setprio 3
            s_cmp_ge_u32 s4, {G[0]}
            s_cbranch_scc1 h_nx
            s_cmp_ge_u32 s4, {G[1]}
            s_cselect_b32 s64, {G[2]}, {G[3]}
            v_mov_b32 v60, {L_END}
            s_mov_b32 s65, 0
            h_g7:
            ds_read_b32 v61, v60
            s_waitcnt lgkmcnt(0)
            v_readfirstlane_b32 s66, v61
            s_cmp_ge_u32 s66, s64
            s_cbranch_scc1 h_nx
            s_sleep 1
            s_add_u32 s65, s65, 1
            s_cmp_lt_u32 s65, 0x1000000
            s_cbranch_scc1 h_g7''')
        if stag==3:
            a('s_setprio 1\ns_cmp_ge_u32 s4, 8\ns_cbranch_scc1 h_nx\ns_setprio 2\ns_cmp_ge_u32 s4, 4\ns_cbranch_scc1 h_nx\ns_setprio 3')
        a('h_nx:')
    if stag>=4: hop7()
    hstamp('hs')
    if stamps and 'h5' in stamps:
        i=stamps.index('h5'); a(f's_cmp_lg_u32 s3, 5\ns_cbranch_scc1 hs_h5\ns_memrealtime s[{80+2*i}:{81+2*i}]\nhs_h5:')
    handlers=[]
    for u in range(CAP//2):
        j=2*u; t0=4*u
        if j<32: q=(j>>2)&3; rb=4*(j>>4)+(j&3)
        else: q=(j-32)>>1; rb=8
        if t0>=K: a(f's_cmp_ge_u32 {j}, s52\ns_cbranch_scc1 h_drain{"" if not pdrain else (u%(K//4))}')
        if u==1:
            if not upos: a('s_cmp_eq_u32 s3, 1\ns_cbranch_scc1 h_def\nh_defr:')
            if stag<4: hop7()
            for i in range(16): a(f'v_mov_b32 v{36+i}, 0')
            a('s_mov_b32 s77, s52\ns_mov_b32 s78, 0')
            if stag: a(f's_cmp_eq_u32 s3, 7\ns_cselect_b32 s78, {RB}, 0')
        if u>0:
            h=f'h_ev{u}'; a(f's_sub_u32 s77, s77, {2*R}\ns_cbranch_scc1 {h}\n{h}_r:'); handlers.append(h)
        for hh in range(2 if u else 0):
            for s_ in range(2):
                a(f'v_add_u32_dpp v{va[hh*2+s_]}, v{off[s_]+rb+hh}, v1 quad_perm:[{q},{q},{q},{q}] {DPP}')
        if t0>=K:
            a(f's_waitcnt vmcnt({K-4})')
            for hh in range(2):
                for s_ in range(2): mf(s_,d0+4*((t0+hh*2+s_)%K))
        for hh in range(2):
            for s_ in range(2):
                sl=d0+4*((t0+hh*2+s_)%K)
                a(f'buffer_load_dwordx4 v[{sl}:{sl+3}], v{va[hh*2+s_]}, s[32:35], 0 offen sc1')
    if pdrain:
        f0=(CAP//2)%(K//4)
        for v in [f0]+[v for v in range(K//4) if v!=f0]: a(f'h_drain{v}:\ns_mov_b32 s79, {v}\ns_branch h_drain')
    a('h_drain:')
    if stag>=4 and not late7:
        a(f's_cmp_lg_u32 s3, 7\ns_cbranch_scc1 h_rb\nv_mov_b32 v4, {L_END}\nv_mov_b32 v5, 1\ns_mov_b64 exec, 1\nds_add_u32 v4, v5\ns_mov_b64 exec, -1')
    a(f"""h_rb:
    s_cmp_ge_u32 s78, {RB}
    s_cbranch_scc1 h_rbd
    s_barrier
    s_add_u32 s78, s78, 1
    s_branch h_rb
    h_rbd:""")
    hstamp('hi')
    if pdrain:
        for par in range(1,K//4): a(f's_cmp_eq_u32 s79, {par}\ns_cbranch_scc1 h_dr{par}')
        for par in range(K//4):
            if par: a(f'h_dr{par}:')
            for n in range(K//2):
                a(f's_waitcnt vmcnt({K-2-2*n})')
                for t in (2*n,2*n+1): mf(t%2,d0+4*((t+4*par)%K))
            if par<K//4-1: a('s_branch h_drx')
        a('h_drx:')
        hstamp('hd')
    else:
        a('s_waitcnt vmcnt(0)')
        hstamp('hd')
        for t in range(K): mf(t%2,d0+4*t)
    if late7: a(f's_cmp_lg_u32 s3, 7\ns_cbranch_scc1 h_l7\nv_mov_b32 v4, {L_END}\nv_mov_b32 v5, 1\ns_mov_b64 exec, 1\nds_add_u32 v4, v5\ns_mov_b64 exec, -1\nh_l7:')
    if eprio: a('s_setprio 2')
    a(f's_cmp_gt_u32 s53, {CAP}\ns_cbranch_scc1 h_slow\nh_slow_r:\ns_nop 3')
    a('s_cmp_eq_u32 s3, 7')
    for s_ in range(2):
        if s_: a('h_ns0:')
        for i in range(4): a(f'v_pk_mul_f32 v[{acc[s_]+2*i}:{acc[s_]+2*i+1}], v[{acc[s_]+2*i}:{acc[s_]+2*i+1}], v[12:13] op_sel:[0,{s_}] op_sel_hi:[1,{s_}]')
        for i in range(4): a(f'v_cvt_pk_bf16_f32 v{acc[s_]+i}, v{acc[s_]+2*i}, v{acc[s_]+2*i+1}')
        a(f's_cbranch_scc1 h_ns{"" if s_ else "0"}')
        a(f'buffer_store_dwordx4 v[{acc[s_]}:{acc[s_]+3}], v{8+s_}, s[36:39], 0 offen sc1')
        a(f'buffer_store_dwordx4 v[{acc[s_]}:{acc[s_]+3}], v{10+s_}, s[36:39], 0 offen sc1')
    if eprio: a('s_setprio 0')
    if post:
        a(f"""s_cmp_eq_u32 s3, 1
        s_cbranch_scc1 f_set
        f_setr1:
        s_add_u32 s62, s62, 1
        v_mov_b32 v56, s56
        v_mov_b32 v57, 1
        s_lshl_b32 s64, s62, 5
        s_sub_u32 s64, s64, 1
        s_cmp_lg_u32 s4, 0
        s_waitcnt vmcnt(0)
        HSTAMP_HA
        s_barrier
        s_cbranch_scc1 gb1_f
        s_mov_b64 exec, 1
        global_atomic_add v58, v56, v57, s[30:31] sc0 sc1
        s_waitcnt vmcnt(0)
        v_cmp_ne_u32 vcc, s64, v58
        s_cbranch_vccnz gb1_g
        s_mov_b64 exec, 0xff
        global_atomic_add v124, v57, s[30:31] sc1
        s_branch gb1_g
        gb1_f:
        s_mov_b64 exec, 0xffff
        buffer_load_dword v127, v126, s[36:39], 0 offen sc1
        gb1_g:
        s_mov_b64 exec, -1""")
    a(f"""h_ns:
    s_lshl_b32 s64, s3, 2
    s_sub_u32 s66, s3, 1
    s_mul_i32 s66, s66, {PL2}
    s_and_b32 s65, s3, 3
    s_lshl_b32 s65, s65, 6
    s_add_u32 s66, s66, s65
    s_lshr_b32 s65, s3, 2
    s_lshl_b32 s65, s65, 5
    s_add_u32 s66, s66, s65
    v_add_u32 v52, s64, v117
    v_add3_u32 v53, v1, v116, s66""")
    for s_ in range(2):
        l=a.lab('ep'); l2=a.lab('ep')
        rho_calc(a,acc[s_],54,55,14+s_,'s76')
        a(f"""s_mov_b64 exec, s[{48+2*s_}:{49+2*s_}]
        s_cbranch_execz {l}
        ds_write_b32 v52, v54 offset:{256*s_}
        s_cmp_gt_u32 s3, 4
        s_cbranch_scc1 {l}
        ds_write_b128 v53, v[{acc[s_]}:{acc[s_]+3}] offset:{1024*s_}
        {l}:
        s_mov_b64 exec, -1""")
    if post:
        a('s_cmp_eq_u32 s3, 7\ns_cbranch_scc1 f_top\ns_cmp_eq_u32 s3, 2\ns_cbranch_scc1 f_set2\ns_cmp_eq_u32 s3, 3\ns_cbranch_scc1 f_set3\nf_setr:')
    else:
        a('s_cmp_eq_u32 s3, 7\ns_cbranch_scc1 f_top\ns_cmp_le_u32 s3, 3\ns_cbranch_scc1 f_set\nf_setr:')
    a(f"""s_mov_b32 s32, s36
    s_mov_b32 s33, s37
    s_add_u32 s36, s36, {TSTR}
    s_addc_u32 s37, s37, 0
    s_add_u32 s3, s3, 1""")
    for hh in range(2):
        for s_ in range(2):
            a(f'v_add_u32_dpp v{va[hh*2+s_]}, v{off[s_]+hh}, v1 quad_perm:[0,0,0,0] {DPP}')
    if post:
        a(f"""s_cmp_lg_u32 s4, 0
        s_cbranch_scc1 gb1_w
        v_mov_b32 v59, s57
        s_lshl_b32 s66, s62, 3
        s_mov_b32 s65, 0
        s_mov_b64 exec, 1
        gb1_p:
        global_load_dword v58, v59, s[30:31] sc1
        s_add_u32 s65, s65, 1
        s_cmp_ge_u32 s65, 0x800000
        s_cbranch_scc1 gb1_pd
        s_waitcnt vmcnt(0)
        v_cmp_gt_u32 vcc, s66, v58
        s_cbranch_vccnz gb1_p
        gb1_pd:
        s_mov_b64 exec, -1
        gb1_w:
        s_barrier
        s_branch h_top""")
    else: gbarrier(a,'gb1',pf=pf,poll2=poll2)
    a('f_top:')
    a('''s_lshl_b32 s64, s2, 4
    s_add_u32 s64, s64, s4
    s_cmp_lg_u32 s64, 0xffc
    s_cbranch_scc1 h_nc
    v_mov_b32 v4, 0
    s_mov_b64 exec, 1
    global_store_dword v4, v4, s[28:29] sc1
    s_mov_b64 exec, -1
    h_nc:''')
    stamp('h')
    if stop=='hops': a('s_endpgm')
    a(f"""s_mov_b32 exec_lo, 0x01010101
    s_mov_b32 exec_hi, 0x01010101
    buffer_load_dword v117, v118, s[44:47], 0 offen
    buffer_load_dword v117, v8, s[96:99], 0 offen sc1
    buffer_load_dword v117, v8, s[32:35], 0 offen sc1
    buffer_load_dword v117, v119, s[44:47], 0 offen
    buffer_load_dword v117, v9, s[96:99], 0 offen sc1
    buffer_load_dword v117, v9, s[32:35], 0 offen sc1
    s_mov_b64 exec, -1
    s_mov_b32 s36, s26
    s_mov_b32 s37, s27
    s_mov_b32 s38, {N*128}
    s_mov_b32 s70, 0x000f000f
    s_mov_b32 s71, 0x000f000f
    s_mov_b32 s72, 0xffff
    s_mov_b32 s73, 0xffff
    v_mov_b32 v116, v{vAq}
    f_loop:""")
    vAq=116
    stamp('fl')
    order=[(0,T,s_) for T in range(4) for s_ in range(2)]+[(1,T,s_) for T in (0,2,3,1) for s_ in range(2)]
    def pk(op,d,x,y,z=None,bc=False,neg=False):
        m=' op_sel_hi:[1,0]' if bc and z is None else (' op_sel_hi:[1,0,0]' if bc else '')
        if neg: m+=' neg_lo:[0,0,1] neg_hi:[0,0,1]'
        a(f'v_pk_{op}_f32 v[{d}:{d+1}], v[{x}:{x+1}], v[{y}:{y+1}]'+(f', v[{z}:{z+1}]' if z is not None else '')+m)
    for pair in range(npairs):
        q_=[]
        ro=128*pair; no=64*pair
        def wait_for(names):
            idx=max(q_.index(n) for n in names if n in q_) if any(n in q_ for n in names) else -1
            if idx>=0:
                left=len(q_)-idx-1
                a(f's_waitcnt lgkmcnt({left})'); del q_[:idx+1]
        def issue(txt,name): a(txt); q_.append(name)
        u7=36+8*(pair>>1)
        if fprio: a(f's_setprio {fprio[0]}')
        a(f"""s_mov_b32 exec_lo, {0 if pair&1 else -1}
        s_mov_b32 exec_hi, {-1 if pair&1 else 0}
        ds_write_b128 v{vS}, v[{u7}:{u7+3}] offset:1760
        s_mov_b64 exec, -1""")
        issue(f'ds_read_b128 v[{WB[0]}:{WB[0]+3}], v{vW}','f0')
        issue(f'ds_read_b128 v[{WB[1]}:{WB[1]+3}], v{vW} offset:1024','f1')
        issue(f'ds_read_b128 v[{WB[2]}:{WB[2]+3}], v{vW} offset:2048','f2')
        if pair: a('s_waitcnt vmcnt(2)')
        issue(f'ds_read_b128 v[{TA}:{TA+3}], v{vA}','ta0')
        issue(f'ds_read_b128 v[{TQ}:{TQ+3}], v{vAq}','tq0')
        issue(f'ds_read_b128 v[{TA+4}:{TA+7}], v{vA} offset:64','ta1')
        issue(f'ds_read_b128 v[{TQ+4}:{TQ+7}], v{vAq} offset:64','tq1')
        issue(f'ds_read_b128 v[{TB[0]}:{TB[3]}], v{vA} offset:256','tb0')
        issue(f'ds_read_b128 v[{TB[4]}:{TB[7]}], v{vA} offset:320','tb1')
        Sm=TQ; RK=TQ+4
        def packV(T,tro):
            for X_,o in ((XA,0),(XB,256)):
                A=X_+4*T
                a(f'v_cvt_pk_bf16_f32 v{A+3}, v{A+2}, v{A+3}\nv_cvt_pk_bf16_f32 v{A+2}, v{A}, v{A+1}')
                issue(f'ds_read_b64_tr_b16 v[{A}:{A+1}], v{vTr} offset:{o+tro}',f'u{T}{o}')
        for n,(m,T,s_) in enumerate(order):
            b=WB[n%3]
            need=[f'f{n}']
            if n==0: need+=['ta0','tq0']
            if n==1: need+=['ta1','tq1']
            if n==8 and fprio: a(f's_setprio {fprio[3]}')
            wait_for(need)
            for X_,tk in ((XA,TA+4*s_),(XB,TQ+4*s_ if m==0 else TB[4*s_])):
                c=f'v[{X_+4*T}:{X_+4*T+3}]' if s_ else '0'
                if m==0: a(f'v_mfma_f32_16x16x32_bf16 v[{X_+4*T}:{X_+4*T+3}], v[{b}:{b+3}], v[{tk}:{tk+3}], {c}')
                else: a(f'v_mfma_f32_16x16x32_bf16 v[{X_+4*T}:{X_+4*T+3}], v[{tk}:{tk+3}], v[{b}:{b+3}], {c}')
            if n+3<16:
                m2,Tn,s2=order[n+3]
                issue(f'ds_read_b128 v[{b}:{b+3}], v{vW} offset:{8192*m2+2048*Tn+1024*s2}',f'f{n+3}')
            if n==5:
                for X_ in (XA,XB):
                    a(f'v_cvt_pk_bf16_f32 v{X_}, v{X_}, v{X_+1}\nv_cvt_pk_bf16_f32 v{X_+1}, v{X_+2}, v{X_+3}\nv_cvt_pk_bf16_f32 v{X_+2}, v{X_+4}, v{X_+5}\nv_cvt_pk_bf16_f32 v{X_+3}, v{X_+6}, v{X_+7}')
            if n==7:
                wait_for(['tb0','tb1'])
                a(f'v_mfma_f32_16x16x32_bf16 v[{XA+4}:{XA+7}], v[{TA}:{TA+3}], v[{XA}:{XA+3}], 0\nv_mfma_f32_16x16x32_bf16 v[{XB+4}:{XB+7}], v[{TB[0]}:{TB[3]}], v[{XB}:{XB+3}], 0')
                issue(f'ds_read_b128 v[{RK}:{RK+3}], v{vRk} offset:{ro}','rk')
                issue(f'ds_read_b32 v{cq}, v{vRq} offset:{ro}','rq')
                issue(f'ds_read_b32 v{dq}, v{vNd} offset:{no}','nd')
                a('s_nop 0')
                for X_ in (XA,XB):
                    A=X_+8
                    a(f'v_cvt_pk_bf16_f32 v{A}, v{A}, v{A+1}\nv_cvt_pk_bf16_f32 v{A+1}, v{A+2}, v{A+3}\nv_cvt_pk_bf16_f32 v{A+2}, v{A+4}, v{A+5}\nv_cvt_pk_bf16_f32 v{A+3}, v{A+6}, v{A+7}')
                a(f's_nop 0\nv_mfma_f32_16x16x32_bf16 v[{XA+4}:{XA+7}], v[{TA+4}:{TA+7}], v[{XA+8}:{XA+11}], v[{XA+4}:{XA+7}]\nv_mfma_f32_16x16x32_bf16 v[{XB+4}:{XB+7}], v[{TB[4]}:{TB[7]}], v[{XB+8}:{XB+11}], v[{XB+4}:{XB+7}]')
            if n==10:
                wait_for(['rk','rq','nd'])
                a(f's_mov_b64 exec, {mVA}')
                pk('mul',Sm,XA+4,RK); pk('mul',Sm+2,XA+6,RK+2)
                a(f's_mov_b64 exec, {mVB}')
                pk('mul',Sm,XB+4,RK); pk('mul',Sm+2,XB+6,RK+2)
                a(f's_mov_b64 exec, -1\nv_mul_f32 v{cq}, s74, v{cq}\nv_cndmask_b32 v{dq}, v{dq}, 1.0, {mH0}')
                a(f'v_max3_f32 v{t0_}, v{Sm}, v{Sm+1}, v{Sm+2}\nv_max_f32 v{t0_}, v{t0_}, v{Sm+3}\nv_mov_b32 v{t1_}, v{t0_}')
            if n==11:
                a(f'v_permlane16_swap_b32 v{t0_}, v{t1_}\nv_max_f32 v{t0_}, v{t0_}, v{t1_}\nv_mul_f32 v{t0_}, v{cq}, v{t0_}')
                pk('fma',Sm,Sm,cq,t0_,bc=True,neg=True); pk('fma',Sm+2,Sm+2,cq,t0_,bc=True,neg=True)
                for r in range(4): a(f'v_exp_f32 v{Sm+r}, v{Sm+r}')
            if n==12:
                a(f'v_add_f32 v{t0_}, v{Sm}, v{Sm+1}\nv_add_f32 v{t1_}, v{Sm+2}, v{Sm+3}\nv_add_f32 v{t0_}, v{t0_}, v{t1_}\nv_mov_b32 v{t1_}, v{t0_}')
                pk('mul',Sm,Sm,RK); pk('mul',Sm+2,Sm+2,RK+2)
            if n==13:
                a(f'v_permlane16_swap_b32 v{t0_}, v{t1_}\nv_add_f32 v{t0_}, v{t0_}, v{t1_}\nv_rcp_f32 v{t0_}, v{t0_}')
                packV(0,0)
                a(f'v_mul_f32 v{t0_}, v{dq}, v{t0_}')
                pk('mul',Sm,Sm,t0_,bc=True); pk('mul',Sm+2,Sm+2,t0_,bc=True)
            if n==14:
                a(f"""s_mov_b64 exec, {mVA}
                v_cvt_pk_bf16_f32 v{BA+2}, v{Sm}, v{Sm+1}
                v_cvt_pk_bf16_f32 v{BA+3}, v{Sm+2}, v{Sm+3}
                s_mov_b64 exec, {mVB}
                v_cvt_pk_bf16_f32 v{BB+2}, v{Sm}, v{Sm+1}
                v_cvt_pk_bf16_f32 v{BB+3}, v{Sm+2}, v{Sm+3}
                s_mov_b64 exec, -1""")
                packV(2,64)
        packV(3,72)
        issue(f'ds_read_b32 v{sv}, v{vNs} offset:{no+4}','ns')
        issue(f'ds_read_b32 v{vo}, v{vNo} offset:{no+8}','no')
        packV(1,8)
        if fprio: a(f's_setprio {fprio[1]}')
        for T in (0,2,3,1):
            wait_for([f'u{T}0'])
            a(f'v_mfma_f32_16x16x32_bf16 v[{Z+4*T}:{Z+4*T+3}], v[{XA+4*T}:{XA+4*T+3}], v[{BA}:{BA+3}], 0')
        for T in (0,2,3,1):
            wait_for([f'u{T}256'])
            a(f'v_mfma_f32_16x16x32_bf16 v[{XA+4*T}:{XA+4*T+3}], v[{XB+4*T}:{XB+4*T+3}], v[{BB}:{BB+3}], 0')
        a(f'v_cndmask_b32 v{sv}, v{sv}, 1.0, {mH0}\nv_add_u32 v{vo}, v{vo}, v{vOq}')
        for i in (0,1,4,5,6,7,2,3): a(f'v_cvt_pk_bf16_f32 v{TA+i}, v{Z+2*i}, v{Z+2*i+1}')
        issue(f'ds_write_b128 v{vA}, v[{TA}:{TA+3}]','w0'); issue(f'ds_write_b128 v{vA}, v[{TA+4}:{TA+7}] offset:64','w1')
        for i in (0,1,4,5,6,7,2,3): a(f'v_cvt_pk_bf16_f32 v{TB[i]}, v{XA+2*i}, v{XA+2*i+1}')
        issue(f'ds_write_b128 v{vAq}, v[{TB[0]}:{TB[3]}]','w2'); issue(f'ds_write_b128 v{vAq}, v[{TB[4]}:{TB[7]}] offset:64','w3')
        a(f"""v_mfma_f32_16x16x32_bf16 v[{XB}:{XB+3}], v[{ST[0]}:{ST[0]+3}], v[{TA}:{TA+3}], 0
        v_mfma_f32_16x16x32_bf16 v[{XB+4}:{XB+7}], v[{ST[0]}:{ST[0]+3}], v[{TB[0]}:{TB[3]}], 0
        v_mfma_f32_16x16x32_bf16 v[{XB}:{XB+3}], v[{ST[1]}:{ST[1]+3}], v[{TA+4}:{TA+7}], v[{XB}:{XB+3}]
        v_mfma_f32_16x16x32_bf16 v[{XB+4}:{XB+7}], v[{ST[1]}:{ST[1]+3}], v[{TB[4]}:{TB[7]}], v[{XB+4}:{XB+7}]""")
        for T in range(4):
            o=(0,8,64,72)[T]
            issue(f'ds_read_b64_tr_b16 v[{Z+4*T}:{Z+4*T+1}], v{vTr} offset:{o}',f'o{T}a')
            issue(f'ds_read_b64_tr_b16 v[{Z+4*T+2}:{Z+4*T+3}], v{vTr} offset:{256+o}',f'o{T}b')
        qa,qb,t2,t3=XB+12,XB+13,XB+14,XB+15
        if fprio: a(f's_setprio {fprio[2]}')
        for i in range(8):
            a(f'v_dot2_f32_bf16 v{qa}, v{TA+i}, v{TA+i}, {"0" if i==0 else f"v{qa}"}\nv_dot2_f32_bf16 v{qb}, v{TB[i]}, v{TB[i]}, {"0" if i==0 else f"v{qb}"}')
        a(f"""v_cndmask_b32 v{XB}, v{XB+4}, v{XB}, {mRH}
        v_cndmask_b32 v{XB+1}, v{XB+5}, v{XB+1}, {mRH}
        v_mul_f32 v{t2}, 0x3e000000, v{XB}
        v_permlane32_swap_b32 v{qa}, v{qb}
        v_add_f32 v{qa}, v{qa}, v{qb}
        v_mov_b32 v{qb}, v{qa}
        v_fma_f32 v{t3}, -v{XB}, s55, v{XB+1}
        v_mul_f32 v{XB}, 0x3e000000, v{sv}
        v_permlane16_swap_b32 v{qa}, v{qb}
        s_mov_b64 exec, s[72:73]
        v_add_f32 v{qa}, v{qa}, v{qb}
        v_mul_f32 v{XB}, v{XB}, v{XB}
        v_fma_f32 v{qa}, -v{t2}, v{t2}, v{qa}
        v_max_f32 v{qa}, 0, v{qa}
        v_fmaak_f32 v{qa}, v{XB}, v{qa}, {EPS}
        v_rsq_f32 v{qa}, v{qa}
        v_mul_f32 v{t3}, v{sv}, v{t3}
        v_mul_f32 v{t3}, 0x3fb8aa3b, v{t3}
        v_mul_f32 v{qa}, v{qa}, v{t3}""")
        if pair<npairs-1: a(f's_mov_b64 exec, {mRA}\nv_add_u32 v{vA}, 0x200, v{vA}\nv_add_u32 v{vAq}, 0x200, v{vAq}\ns_mov_b64 exec, s[72:73]')
        else: a('s_nop 1')
        a(f"""v_max_f32_dpp v{qb}, v{qa}, v{qa} quad_perm:[1,0,3,2] {DPP}
        s_nop 1
        v_max_f32_dpp v{qb}, v{qb}, v{qb} quad_perm:[2,3,0,1] {DPP}
        s_nop 1
        v_max_f32_dpp v{qb}, v{qb}, v{qb} row_half_mirror {DPP}
        v_sub_f32 v{qa}, v{qa}, v{qb}
        v_exp_f32 v{qa}, v{qa}""")
        if pair<npairs-1: a(f's_mov_b64 exec, {mRT}\nv_add_u32 v{vTr}, 0x200, v{vTr}\ns_mov_b64 exec, s[72:73]')
        else: a('s_nop 1')
        a(f"""v_add_f32_dpp v{qb}, v{qa}, v{qa} quad_perm:[1,0,3,2] {DPP}
        s_nop 1
        v_add_f32_dpp v{qb}, v{qb}, v{qb} quad_perm:[2,3,0,1] {DPP}
        s_nop 1
        v_add_f32_dpp v{qb}, v{qb}, v{qb} row_half_mirror {DPP}
        v_rcp_f32 v{qb}, v{qb}
        v_mul_f32 v{qa}, v{sv}, v{qa}
        v_mul_f32 v{qa}, v{qa}, v{qb}
        ds_write_b32 v{vBw}, v{qa} offset:{ro}
        s_mov_b64 exec, -1
        ds_read_b128 v[{XB}:{XB+3}], v{vBr} offset:{ro}
        s_waitcnt lgkmcnt(2)""")
        if pair==0: a('s_cmp_eq_u32 s4, 12\ns_cbranch_scc1 f_nd0')
        if pair<npairs-1: dma(pair+1)
        if pair==0: a('f_nd0:')
        if fprio: a(f's_setprio {fprio[4]}')
        a(f"""s_waitcnt lgkmcnt(0)
        s_mov_b64 exec, {mCA}
        v_cvt_pk_bf16_f32 v{BO}, v{XB}, v{XB+1}
        v_cvt_pk_bf16_f32 v{BO+1}, v{XB+2}, v{XB+3}
        s_mov_b64 exec, {mCB}
        v_cvt_pk_bf16_f32 v{BO+2}, v{XB}, v{XB+1}
        v_cvt_pk_bf16_f32 v{BO+3}, v{XB+2}, v{XB+3}
        s_mov_b64 exec, -1
        s_nop 0""")
        for T in range(4):
            a(f'v_mfma_f32_16x16x32_bf16 v[{XA+4*T}:{XA+4*T+3}], v[{Z+4*T}:{Z+4*T+3}], v[{BO}:{BO+3}], 0')
        a('s_mov_b64 exec, s[70:71]\ns_nop 3')
        for i in range(8): a(f'v_cvt_pk_bf16_f32 v{XB+8+i}, v{XA+2*i}, v{XA+2*i+1}')
        a(f"""        buffer_store_dwordx4 v[{XB+8}:{XB+11}], v{vo}, s[36:39], 0 offen {OUTPOL}
        buffer_store_dwordx4 v[{XB+12}:{XB+15}], v{vo}, s[36:39], 0 offen offset:64 {OUTPOL}
        s_mov_b64 exec, -1""")
        if pair==0: a('s_cmp_eq_u32 s4, 12\ns_cbranch_scc1 f_done')
    a('f_done:')
    stamp('f')
    if side is not None:
        a('s_waitcnt vmcnt(0)')
        stamp('e')
        a('s_waitcnt lgkmcnt(0)')
        if side=='xcc':
            a('s_and_b32 s64, s2, 7\ns_cmp_lg_u32 s64, s7\ns_cselect_b32 s64, 5000, 0')
        elif side=='zero': a('s_mov_b32 s64, 0')
        elif side in ('min','minb'):
            a('v_mov_b32 v4, 0\nglobal_load_dword v5, v4, s[28:29] offset:8 sc1\ns_waitcnt vmcnt(0)\nv_readfirstlane_b32 s80, v5\ns_not_b32 s80, s80\ns_mov_b32 s64, 0')
            if side=='minb': a('s_sub_u32 s64, s82, s80\ns_lshl_b32 s64, s64, 2')
        else:
            a('s_sub_u32 s64, s82, s80\ns_lshl_b32 s64, s64, 2\ns_cmp_lg_u32 s2, 100\ns_cselect_b32 s64, 0, s64')
        a('s_min_u32 s64, s64, 40000\ns_add_u32 s64, s64, 15000\nsd_l:\ns_memrealtime s[66:67]\ns_waitcnt lgkmcnt(0)\ns_sub_u32 s66, s66, s80\ns_cmp_lt_u32 s66, s64\ns_cbranch_scc1 sd_l\ns_endpgm')
    if stamps:
        a('s_waitcnt vmcnt(0)')
        stamp('e')
        a(f's_waitcnt lgkmcnt(0)\ns_lshl_b32 s64, s2, 4\ns_add_u32 s64, s64, s4\ns_lshl_b32 s64, s64, 7\ns_add_u32 s64, s64, {DUMP}\nv_mov_b32 v4, s64\ns_mov_b64 exec, 1')
        if dbgst:
            a('v_mov_b32 v6, 0\ns_not_b32 s65, s80\nv_mov_b32 v5, s65\nglobal_atomic_umax v6, v5, s[28:29] offset:8 sc1')
            for i in range(len(stamps)): a(f'v_mov_b32 v5, s{80+2*i}\nglobal_atomic_umax v6, v5, s[28:29] offset:{12+4*i} sc1')
            a('s_or_b32 s65, s2, s4\ns_cbranch_scc1 k_nv\nv_mov_b32 v5, s94\nglobal_store_dword v6, v5, s[28:29] offset:4 sc1\nk_nv:')
        a('v_mov_b32 v5, s94\nglobal_store_dword v4, v5, s[30:31] offset:64')
        for i in range(len(stamps)): a(f'v_mov_b32 v5, s{80+2*i}\nglobal_store_dword v4, v5, s[30:31] offset:{4*i}')
    a('k_end:\ns_endpgm')
    for h in handlers:
        a(f'{h}:\ns_cmp_ge_u32 s78, {RB}\ns_cbranch_scc1 {h}_r\ns_add_u32 s78, s78, 1\ns_barrier\ns_add_u32 s77, s77, s52\ns_cbranch_scc0 {h}\ns_branch {h}_r')
    a('; nodes with more than 40 sources: remaining sources from the overflow lists')
    a(f"""h_slow:
    s_mov_b32 s64, {CAP}
    v_and_b32 v4, 3, v0
    v_lshlrev_b32 v4, 2, v4
    h_sl:""")
    for s_ in range(2):
        a(f"""v_add_u32 v5, s64, v4
        v_add_u32 v6, v5, v{122+s_}
        v_subrev_u32 v6, {CAP}, v6
        v_lshlrev_b32 v6, 2, v6
        v_sub_u32 v5, v{120+s_}, v5
        v_mov_b32 v7, {OOBV}
        buffer_load_dwordx4 v[68:71], v6, s[40:43], s59 offen
        s_waitcnt vmcnt(0)""")
        for r in range(4): a(f'v_cmp_lt_i32 vcc, {r}, v5\ns_nop 1\nv_cndmask_b32 v{68+r}, v7, v{68+r}, vcc')
        for hb in range(4):
            a('s_nop 1')
            for t in range(4):
                a(f'v_add_u32_dpp v7, v{68+t}, v1 quad_perm:[{hb},{hb},{hb},{hb}] {DPP}\nbuffer_load_dwordx4 v[{d0+4*t}:{d0+4*t+3}], v7, s[32:35], 0 offen sc1')
            a('s_waitcnt vmcnt(0)')
            for t in range(4): mf(s_,d0+4*t); a('s_nop 0')
    a('s_add_u32 s64, s64, 16\ns_cmp_lt_u32 s64, s53\ns_cbranch_scc1 h_sl\ns_branch h_slow_r')
    if upos:
        a('k_hb:')
        if uarr!='nd': a(UA.replace('p2_u1','p2_u3')); UB()
        a('s_mov_b64 exec, 1\nv_mov_b32 v56, s57\nv_add_u32 v56, 0x4000, v56\ns_mov_b32 s64, 8')
        bar_poll(a,'gbu')
        a('s_barrier\ns_endpgm')
    vAq=125
    a('f_set:\ns_cmp_eq_u32 s3, 2\ns_cbranch_scc1 f_set2\ns_cmp_eq_u32 s3, 3\ns_cbranch_scc1 f_set3'); late(); late2(); a('s_branch f_setr1' if post else 's_branch f_setr')
    a('f_set2:'); fsetup(); a('s_branch f_setr')
    a('f_set3:'); fsetup2(); a('s_branch f_setr')
    if not upos: a('h_def:'); deferred(); a('s_branch h_defr')
    for t in tails: t()
    t=a.text()
    import re
    def _d(m):
        b=Asm(); dup128(b,int(m.group(1)),int(m.group(2))); return b.text()
    t=re.sub(r'    DUPU0 (\d+) (\d+)\n',(lambda m: f'    v_mov_b32 v{m.group(1)}, 128\n') if OWN else _d,t)
    t=re.sub(r'    DUP128 (\d+) (\d+)\n',_d,t)
    t=t.replace('    OWNFIX\n','' if not OWN else '    v_lshrrev_b32 v63, 21, v66\n    v_bfe_u32 v63, s73, v63, 1\n    v_cmp_gt_u32 s[64:65], s38, v67\n    s_nop 1\n    v_cndmask_b32 v56, 0, 1, s[64:65]\n    v_bitop3_b32 v63, v63, v56, 1 bitop3:0x20\n    v_lshl_add_u32 v66, v63, 13, v66\n')
    t=t.replace('    TLB0\n','    s_mov_b64 exec, 0x7ff\n    global_load_dword v47, v45, s[30:31] sc1\n    s_mov_b64 exec, 1\n    global_load_dword v47, v42, s[28:29] sc1\n' if tlb0 else '')
    hs=''
    if stamps and 'ha' in stamps:
        i=stamps.index('ha'); hs=f'    s_mov_b32 s79, s3\n    s_cmp_lg_u32 s3, {4 if post else 5}\n    s_cbranch_scc1 hs_ha\n    s_memrealtime s[{80+2*i}:{81+2*i}]\nhs_ha:\n    s_cmp_lg_u32 s4, 0\n'
    t=t.replace('    HSTAMP_HA\n',hs)
    return t

DOC='''; One persistent launch, one workgroup (196 destination nodes) per CU.
;      scaled table u0 = x*dis, build the folded weights (centred Wq*Wk^T and Wv*Wo) in LDS
;  hops 1..7  u_k = dis^2 * sum u_(k-1)[src]: 128-byte row gathers, summed in fp32 by 4x4x4 MFMAs with an
;      identity operand; grid barrier (two-level counters in the workspace) between hops
; Half of the table rows are stored twice, once per 8-KB address half; a short latency probe tells which
; half is nearer to a die. Both copies hold the same bytes, the choice only affects speed.
'''
HDR=open('gather_scatter__hybrid_graph_tf_nagphormer__graph.s.ref').read().split('; Override launch')[0]
def wrap(body):
    return HDR+f'''; @launch grid=(256,1,1) block=(1024,1,1) lds={LDS_BYTES}
'''+DOC+f'''.amdgcn_target "amdgcn-amd-amdhsa--gfx950"
.text
.globl {KNAME}
.p2align 8
.type {KNAME},@function
{KNAME}:
'''+body+f'''.section .rodata,"a"
.p2align 6
.amdhsa_kernel {KNAME}
  .amdhsa_next_free_vgpr 128
  .amdhsa_next_free_sgpr 102
  .amdhsa_accum_offset 128
  .amdhsa_group_segment_fixed_size 0
  .amdhsa_kernarg_size 96
  .amdhsa_user_sgpr_count 2
  .amdhsa_user_sgpr_kernarg_segment_ptr 1
  .amdhsa_system_sgpr_workgroup_id_x 1
  .amdhsa_float_denorm_mode_32 3
.end_amdhsa_kernel
'''
if __name__=='__main__':
    import ast
    kw=dict(x.split('=') for x in sys.argv[2:])
    for k in kw:
        try: kw[k]=ast.literal_eval(kw[k])
        except Exception: pass
    if 'DUP' in kw: DUP=str(kw.pop('DUP'))
    if 'OWN' in kw: OWN=kw.pop('OWN')
    if 'stamps' in kw: kw['stamps']=kw['stamps'].split(',')
    open(sys.argv[1],'w').write(wrap(gen(**kw)))
```
